```python
import torch

def _softmax(x, axis=-1):
    return torch.softmax(x, dim=axis)
def _gelu(x):
    return torch.nn.functional.gelu(x, approximate="tanh")
def _silu(x):
    return torch.nn.functional.silu(x)
def _sigmoid(x):
    return torch.sigmoid(x)
def _layernorm(x, axis=-1, eps=1e-5):
    m = x.mean(dim=axis, keepdim=True)
    v = x.var(dim=axis, keepdim=True, unbiased=False)
    return (x - m) / torch.sqrt(v + eps)
def _scatter_add(tgt, idx, src, axis=0):
    return tgt.clone().index_add_(axis, idx, src)
def _segment_sum(src, seg, n):
    out = torch.zeros((n,) + src.shape[1:], dtype=src.dtype)
    return out.index_add_(0, seg, src)
def _pad(x, pw):
    flat = tuple(v for pair in reversed(pw) for v in pair)
    return torch.nn.functional.pad(x, flat)

kernel_name = 'sequential_preLN__sliding_block__mixer_s_mlp__prompt'

def setup_inputs():

    _w = (lambda a: (lambda t: t.to(torch.bfloat16) if t.is_floating_point() else t)(torch.as_tensor(a)))
    def _A_setup():
        B, S, D = 1, 2048, 640
        return {
            "x": _w((lambda *s: torch.randn(*s, dtype=torch.bfloat16) * 0.05)(B, S, D)),
            "wqkv": _w((lambda *s: torch.randn(*s, dtype=torch.bfloat16) * 0.05)(D, 3 * D)),
            "wo": _w((lambda *s: torch.randn(*s, dtype=torch.bfloat16) * 0.05)(D, D)),
        }
    _A_in = _A_setup()

    def _B_setup():
        B, S, D, F = 1, 2048, 640, 1728
        return {
            "x":  _w((lambda *s: torch.randn(*s, dtype=torch.bfloat16) * 0.05)(B, S, D)),
            "w1": _w((lambda *s: torch.randn(*s, dtype=torch.bfloat16) * 3.2)(D, D) * (D ** -0.5)),
            "w2": _w((lambda *s: torch.randn(*s, dtype=torch.bfloat16) * 3.2)(D, D) * (D ** -0.5)),
            "w3": _w((lambda *s: torch.randn(*s, dtype=torch.bfloat16) * 3.2)(D, F) * (D ** -0.5)),
            "w4": _w((lambda *s: torch.randn(*s, dtype=torch.bfloat16) * 3.2)(F, D) * (F ** -0.5)),
        }
    _B_in = _B_setup()

    return {
        "A_x": _A_in["x"],
        "A_wqkv": _A_in["wqkv"],
        "A_wo": _A_in["wo"],
        "B_x": _B_in["x"],
        "B_w1": _B_in["w1"],
        "B_w2": _B_in["w2"],
        "B_w3": _B_in["w3"],
        "B_w4": _B_in["w4"],
    }

def reference(A_x, A_wqkv, A_wo, B_x, B_w1, B_w2, B_w3, B_w4):
    def _A_ref(x, wqkv, wo):
        B, S, D = x.shape
        H = 32; Dh = D // H; W = 256
        qkv = (lambda x, *d: x.permute(*d))((x @ wqkv).reshape(B, S, 3, H, Dh), 2, 0, 3, 1, 4)
        q, k, v = qkv[0], qkv[1], qkv[2]
        scores = torch.einsum("bhqd,bhkd->bhqk", q, k) * (Dh ** -0.5)
        idx = torch.arange(S)
        mask = (idx[:, None] - idx[None, :] >= 0) & (idx[:, None] - idx[None, :] < W)
        scores = torch.where(mask[None, None], scores, -1e9)
        p = _softmax(scores, axis=-1)
        o = torch.einsum("bhqk,bhkd->bhqd", p, v)
        return (lambda x, *d: x.permute(*d))(o, 0, 2, 1, 3).reshape(B, S, D) @ wo

    def _B_ref(x, w1, w2, w3, w4):
        B, S, D = x.shape
        h = _gelu(_layernorm(x, axis=-1) @ w1)
        c = D // 4
        g0 = _pad(h[:, :, 0*c:1*c], ((0, 0), (1, 0), (0, 0)))[:, :S, :]
        g1 = _pad(h[:, :, 1*c:2*c], ((0, 0), (0, 1), (0, 0)))[:, 1:, :]
        g2 = _pad(h[:, :, 2*c:3*c], ((0, 0), (2, 0), (0, 0)))[:, :S, :]
        g3 = _pad(h[:, :, 3*c:   ], ((0, 0), (0, 2), (0, 0)))[:, 2:, :]
        hs = torch.concatenate([g0, g1, g2, g3], axis=-1) @ w2
        x1 = x + hs
        h2 = _gelu(_layernorm(x1, axis=-1) @ w3) @ w4
        return x1 + h2

    x = A_x
    h = x + _A_ref(_layernorm(x, axis=-1), A_wqkv, A_wo)
    h2 = h + _B_ref(_layernorm(h, axis=-1), B_w1, B_w2, B_w3, B_w4)
    return h2
```

```python
import re

def v(a, n=1):
    return f"v{a}" if n == 1 else f"v[{a}:{a+n-1}]"
def a_(a, n=1):
    return f"a{a}" if n == 1 else f"a[{a}:{a+n-1}]"
def s(a, n=1):
    return f"s{a}" if n == 1 else f"s[{a}:{a+n-1}]"

_REG = re.compile(r"^(-|abs\(|neg\(|\|)*([vas])(?:(\d+)|\[(\d+):(\d+)\])\)?\|?$")
def regs_of(op):
    op = op.strip()
    m = _REG.match(op)
    if m:
        k = m.group(2)
        if m.group(3) is not None:
            return {(k, int(m.group(3)))}
        return {(k, i) for i in range(int(m.group(4)), int(m.group(5)) + 1)}
    if op in ("vcc", "vcc_lo", "vcc_hi"): return {("vcc", 0)}
    if op in ("exec", "exec_lo", "exec_hi"): return {("exec", 0)}
    if op == "m0": return {("m0", 0)}
    return set()

TRANS = ("v_exp_f32", "v_log_f32", "v_rcp_f32", "v_rsq_f32", "v_sqrt_f32", "v_sin_f32", "v_cos_f32", "v_rcp_iflag_f32")

class Ins:
    __slots__ = ("text", "op", "ops", "wr", "rd", "kind", "passes", "srcc", "srcab", "mods", "sdata")
    def __init__(self, text):
        self.text = text
        t = text.split(";")[0].strip()
        self.op = t.split()[0] if t else ""
        rest = t[len(self.op):].strip()
        parts = []; cur = ""; depth = 0
        for ch in rest:
            if ch in "[(": depth += 1
            if ch in "])": depth -= 1
            if ch == "," and depth == 0:
                parts.append(cur.strip()); cur = ""
            else:
                cur += ch
        if cur.strip(): parts.append(cur.strip())
        self.mods = ""
        if parts:
            sp = parts[-1].split(None, 1)
            if len(sp) == 2 and not sp[0].endswith("("):
                parts[-1] = sp[0]; self.mods = sp[1]
        self.ops = parts
        self.wr = set(); self.rd = set(); self.kind = "other"; self.passes = 0
        self.srcc = set(); self.srcab = set(); self.sdata = set()
        op = self.op
        R = [regs_of(p) for p in parts]
        if op.startswith("v_mfma"):
            self.kind = "mfma"
            self.passes = 8 if "32x32x16" in op else 4
            assert ("32x32x16" in op) or ("16x16x32" in op), op
            self.wr = R[0]; self.srcab = R[1] | R[2]; self.srcc = R[3]; self.rd = self.srcab | self.srcc
        elif op.startswith("v_"):
            self.kind = "valu"
            base = op.replace("_e32", "").replace("_e64", "").replace("_dpp", "")
            if base in TRANS: self.kind = "trans"
            if base.startswith("v_dot"): self.kind = "dot"
            if base.startswith("v_cmp"):
                self.wr = R[0]; self.rd = set().union(*R[1:])
                if base.startswith("v_cmpx"): self.wr = self.wr | {("exec", 0)}
            elif base.startswith("v_permlane") and "swap" in base:
                self.kind = "permlane"; self.wr = R[0] | R[1]; self.rd = R[0] | R[1]
            elif base in ("v_readfirstlane_b32", "v_readlane_b32"):
                self.kind = "readlane"; self.wr = R[0]; self.rd = set().union(*R[1:])
            elif base in ("v_add_co_u32", "v_sub_co_u32", "v_addc_co_u32", "v_subb_co_u32"):
                self.wr = R[0] | R[1]; self.rd = set().union(*R[2:])
            elif base == "v_nop":
                pass
            else:
                self.wr = R[0]; self.rd = set().union(*R[1:]) if len(R) > 1 else set()
                if base in ("v_fmac_f32", "v_dot2c_f32_bf16", "v_pk_fmac_f16") : self.rd |= R[0]
                if base == "v_cndmask_b32" and len(parts) == 3: self.rd |= {("vcc", 0)}
            if "_dpp" in op or "row_" in self.mods or "quad_perm" in self.mods:
                self.kind = "dpp"; self.rd |= R[0]
        elif op.startswith("ds_"):
            self.kind = "ds"
            if op.startswith("ds_read") or op.startswith("ds_bpermute") or op.startswith("ds_permute") or op.startswith("ds_swizzle") or "_rtn" in op:
                self.wr = R[0]; self.rd = set().union(*R[1:])
            else:
                self.rd = set().union(*R)
        elif op.startswith("buffer_") or op.startswith("global_"):
            self.kind = "vmem"
            lds = (" lds" in (" " + self.mods)) or "_lds_" in op
            if op in ("buffer_wbl2", "buffer_inv"):
                pass
            elif "load" in op and not lds:
                self.wr = R[0]; self.rd = set().union(*R[1:])
            elif lds:
                self.rd = set().union(*R) | {("m0", 0)}; self.kind = "vmem_lds"
            elif "atomic" in op:
                self.rd = set().union(*R)
                if "sc0" in self.mods: self.wr = R[0]
            else:
                self.rd = set().union(*R)
                if op.endswith("x3") or op.endswith("x4"):
                    self.sdata = R[0] if op.startswith("buffer_") else R[1]
        elif op.startswith("s_"):
            self.kind = "salu"
            if op.startswith("s_cmp") or op.startswith("s_cbranch") or op in ("s_branch", "s_waitcnt", "s_barrier", "s_nop", "s_endpgm", "s_sleep", "s_setprio", "s_bitcmp1_b32", "s_bitcmp0_b32"):
                self.rd = set().union(*R) if R else set()
            else:
                self.wr = R[0] if R else set(); self.rd = set().union(*R[1:]) if len(R) > 1 else set()
                if "saveexec" in op: self.wr = self.wr | {("exec", 0)}
    def states(self):
        if self.op == "s_nop": return int(self.ops[0], 0) + 1
        return 1

VALU_KINDS = ("valu", "trans", "dot", "permlane", "readlane", "dpp")
def isv(rs): return {r for r in rs if r[0] in "va" and r[0] != "vcc"}
def iss(rs): return {r for r in rs if r[0] in ("s", "vcc")}

def need(p, c):
    n = 0
    pv = p.kind in VALU_KINDS; cv = c.kind in VALU_KINDS
    if p.kind == "mfma":
        big = p.passes == 8
        D = p.wr
        if c.kind == "mfma":
            if c.srcab & D: n = max(n, 12 if big else 8)
            if c.srcc & D:
                if not (c.srcc == D and c.passes == p.passes): n = max(n, 10 if big else 6)
            if (c.wr & D) and not (c.srcc == D and c.passes == p.passes): n = max(n, 10 if big else 6)
        elif cv:
            if (c.rd | c.wr) & D: n = max(n, 12 if big else 8)
            if c.wr & p.srcc: n = max(n, 7 if big else 3)
        elif c.kind in ("ds", "vmem", "vmem_lds"):
            if (c.rd | c.wr) & D: n = max(n, 12 if big else 8)
    if pv:
        wv = isv(p.wr); ws = iss(p.wr)
        if c.kind == "mfma" and (wv & c.rd): n = max(n, 2)
        if c.kind == "mfma" and ("exec", 0) in p.wr: n = max(n, 4)
        if p.kind == "trans" and cv and c.kind != "trans" and (wv & c.rd): n = max(n, 1)
        if p.kind == "trans" and c.kind == "trans" and (wv & c.rd): n = max(n, 1)
        if p.kind == "dot":
            if c.kind == "dot" and c.op == p.op:
                srcab = set().union(*[regs_of(x) for x in c.ops[1:3]])
                if wv & srcab: n = max(n, 3)
            elif (wv & (c.rd | c.wr)): n = max(n, 3)
        if c.kind == "readlane" and (wv & c.rd): n = max(n, 1)
        if c.kind in ("permlane", "dpp") and (wv & c.rd): n = max(n, 2)
        if ws:
            if cv and (ws & c.rd): n = max(n, 4 if c.kind == "readlane" else 2)
            if c.kind in ("vmem", "vmem_lds") and (ws & c.rd): n = max(n, 5)
            if c.kind == "salu" and (ws & c.rd): n = max(n, 1)
        if ("exec", 0) in p.wr:
            if c.kind == "dpp": n = max(n, 5)
            if c.kind in ("readlane", "permlane"): n = max(n, 4)
    if p.kind == "salu" and ("m0", 0) in p.wr and c.kind == "vmem_lds": n = max(n, 1)
    if p.sdata:
        if cv and (c.wr & p.sdata): n = max(n, 2)
        elif (c.wr & p.sdata): n = max(n, 1)
    return n

class Prog:
    def __init__(self):
        self.items = []
    def __call__(self, text):
        for line in text.split("\n"):
            t = line.strip()
            if not t: continue
            if t.endswith(":") or t.startswith(".") or t.startswith(";"):
                self.items.append(t)
            else:
                self.items.append(Ins(t))
    def raw(self, t): self.items.append(t)
    def render(self):
        out = []
        hists = [[]]
        pending = {}
        for it in self.items:
            if isinstance(it, str):
                out.append(it)
                if it.endswith(":") and it[:-1] in pending:
                    hists = hists + pending.pop(it[:-1])
                continue
            req = 0
            for hist in hists:
                dist = 0
                for p in reversed(hist):
                    nd = need(p, it)
                    if nd > dist: req = max(req, nd - dist)
                    dist += p.states()
                    if dist >= 20: break
            while req > 0:
                k = min(req, 16)
                nop = Ins(f"s_nop {k-1}")
                out.append("    " + nop.text)
                for h in hists: h.append(nop)
                req -= k
            out.append("    " + it.text)
            for h in hists: h.append(it)
            if it.op.startswith("s_cbranch") or it.op == "s_branch":
                pending.setdefault(it.ops[0], []).extend([list(h[-24:]) for h in hists])
            if it.op in ("s_endpgm", "s_branch"): hists = [[]]
            nh = []
            seen = set()
            for h in hists:
                h = h[-24:]
                key = tuple(id(x) for x in h)
                if key not in seen:
                    seen.add(key); nh.append(h)
            hists = nh
        return "\n".join(out) + "\n"

def kdesc(name, vgpr, sgpr=102, accum=None):
    accum = accum if accum is not None else min(256, (vgpr + 3) // 4 * 4)
    return f""".p2align 6
.amdhsa_kernel {name}
  .amdhsa_next_free_vgpr {vgpr}
  .amdhsa_next_free_sgpr {sgpr}
  .amdhsa_accum_offset {accum}
  .amdhsa_group_segment_fixed_size 0
  .amdhsa_kernarg_size 88
  .amdhsa_user_sgpr_count 2
  .amdhsa_user_sgpr_kernarg_segment_ptr 1
  .amdhsa_system_sgpr_workgroup_id_x 1
.end_amdhsa_kernel
"""
```

```python
import sys, math
sys.path.insert(0, "gen")
from asmlib import *

NAME = "sequential_preLN__sliding_block__mixer_s_mlp__prompt"
SZ = 2621440
Q_OFF, K_OFF, V_OFF, O_OFF, H_OFF, T_OFF, X1_OFF, G_OFF = [i * SZ for i in range(8)]
WO_OFF = G_OFF + 7077888
W1_OFF = WO_OFF + 819200
W2_OFF = W1_OFF + 819200
W3_OFF = W2_OFF + 819200
W4_OFF = W3_OFF + 2211840
CS1_OFF = W4_OFF + 2211840 + 131072
CS3_OFF = CS1_OFF + 4096
STH_OFF = CS3_OFF + 8192
STX_OFF = STH_OFF + 131072
WS_USED = STX_OFF + 131072
ARG = dict(x=0, wqkv=8, wo=16, bx=24, w1=32, w2=40, w3=48, w4=56, out=64, dbg=72, ws=80)
EPS = 1e-5
import struct
def f2u(f): return "0x%08x" % struct.unpack("<I", struct.pack("<f", f))[0]
LOG2E = 1.4426950408889634
ONES = "0x3f803f80"

def srd(P, d, ptr, nbytes):
    P(f"s_mov_b32 s{d}, s{ptr}\ns_and_b32 s{d+1}, s{ptr+1}, 0xffff\ns_mov_b32 s{d+2}, {nbytes}\ns_mov_b32 s{d+3}, 0x20000")

def header(P, name):
    P.raw(f".globl {name}"); P.raw(".p2align 8"); P.raw(f".type {name},@function"); P.raw(f"{name}:")

def xg_reduce(P, regs, tmp, op="v_add_f32"):
    for sw in ("v_permlane16_swap_b32", "v_permlane32_swap_b32"):
        for r, t in zip(regs, tmp): P(f"v_mov_b32 v{t}, v{r}")
        for r, t in zip(regs, tmp): P(f"{sw} v{r}, v{t}")
        for r, t in zip(regs, tmp): P(f"{op} v{r}, v{r}, v{t}")

def gen_prep(P):
    name = "prep_kernel"
    header(P, name)
    P("s_cmp_ge_u32 s2, 87\ns_cbranch_scc1 L_prep_end")
    P(f"s_load_dwordx2 s[4:5], s[0:1], {ARG['wo']}\ns_load_dwordx4 s[8:11], s[0:1], {ARG['w1']}\ns_load_dwordx4 s[12:15], s[0:1], {ARG['w3']}\ns_load_dwordx2 s[6:7], s[0:1], {ARG['ws']}")
    P("v_and_b32 v1, 63, v0\nv_lshrrev_b32 v2, 6, v0\nv_readfirstlane_b32 s30, v2")
    P("s_waitcnt lgkmcnt(0)")
    P(f"""s_mov_b32 s16, s4
s_mov_b32 s17, s5
s_mov_b32 s31, s2
s_mov_b32 s32, 1280
s_mov_b32 s33, {WO_OFF}
s_mov_b32 s34, 40
s_mov_b32 s35, 0
s_mov_b32 s36, 10
s_mov_b32 s37, 0
s_mov_b32 s38, 819200
s_mov_b32 s39, 1
s_cmp_lt_u32 s2, 10
s_cbranch_scc1 L_prep_go
s_mov_b32 s16, s8
s_mov_b32 s17, s9
s_sub_u32 s31, s2, 10
s_mov_b32 s33, {W1_OFF}
s_mov_b32 s37, {CS1_OFF}
s_cmp_lt_u32 s2, 20
s_cbranch_scc1 L_prep_go
s_mov_b32 s16, s10
s_mov_b32 s17, s11
s_sub_u32 s31, s2, 20
s_mov_b32 s33, {W2_OFF}
s_mov_b32 s37, 0
s_cmp_lt_u32 s2, 30
s_cbranch_scc1 L_prep_go
s_mov_b32 s16, s12
s_mov_b32 s17, s13
s_sub_u32 s31, s2, 30
s_mov_b32 s32, 3456
s_mov_b32 s33, {W3_OFF}
s_mov_b32 s34, 108
s_mov_b32 s37, {CS3_OFF}
s_mov_b32 s38, 2211840
s_mov_b32 s39, 0
s_cmp_lt_u32 s2, 57
s_cbranch_scc1 L_prep_go
s_mov_b32 s16, s14
s_mov_b32 s17, s15
s_sub_u32 s31, s2, 57
s_mov_b32 s32, 1280
s_mov_b32 s33, {W4_OFF}
s_mov_b32 s34, 40
s_mov_b32 s36, 9
s_mov_b32 s37, 0
s_mov_b32 s39, 1
s_cmp_lt_u32 s31, 10
s_cbranch_scc1 L_prep_go
s_sub_u32 s31, s31, 10
s_mov_b32 s35, 576
s_cmp_lt_u32 s31, 10
s_cbranch_scc1 L_prep_go
s_sub_u32 s31, s31, 10
s_mov_b32 s35, 1152
L_prep_go:""")
    P("s_mov_b32 s20, s16\ns_and_b32 s21, s17, 0xffff\ns_mov_b32 s22, s38\ns_mov_b32 s23, 0x20000")
    srd(P, 24, 6, WS_USED)
    P("v_and_b32 v3, 7, v1\nv_lshrrev_b32 v4, 3, v1")
    P("s_lshl_b32 s40, s32, 3\nv_mul_lo_u32 v5, v4, s40\nv_lshl_add_u32 v5, v3, 4, v5")
    P("v_lshrrev_b32 v6, 2, v3\nv_lshlrev_b32 v6, 1, v6\ns_lshl_b32 s41, s31, 2\nv_add_u32 v6, s41, v6\nv_add_u32 v7, 1, v6")
    for r in (6, 7):
        P(f"""v_mul_u32_u24 v8, 52429, v{r}
v_lshrrev_b32 v8, 18, v8
v_mul_u32_u24 v9, 5, v8
v_sub_u32 v9, v{r}, v9
v_and_b32 v8, s39, v8
v_cmp_eq_u32 vcc, 0, v9
v_mov_b32 v10, -1
v_cndmask_b32 v10, v10, 4, vcc
v_mul_i32_i24 v10, v10, v8
v_add_u32 v{r}, v{r}, v10""")
    P("v_lshrrev_b32 v8, 2, v4\nv_mul_lo_u32 v8, v8, s34\nv_and_b32 v9, 3, v4\nv_lshlrev_b32 v9, 8, v9\nv_and_b32 v10, 3, v3\nv_lshl_add_u32 v9, v10, 6, v9")
    P("v_add_u32 v11, v8, v6\nv_lshl_add_u32 v11, v11, 10, v9\nv_add_u32 v12, v8, v7\nv_lshl_add_u32 v12, v12, 10, v9")
    for x in range(8): P(f"v_mov_b32 v{16+x}, 0")
    P(f"v_mov_b32 v14, {ONES}\ns_mov_b32 s42, 0x05040100\ns_mov_b32 s43, 0x07060302")
    P("s_mov_b32 s44, s30")
    P("L_prep_loop:")
    P("s_cmp_ge_u32 s44, s36\ns_cbranch_scc1 L_prep_done")
    P("s_lshl_b32 s45, s44, 6\ns_add_u32 s45, s45, s35\ns_mul_i32 s46, s45, s32\ns_lshl_b32 s47, s31, 7\ns_add_u32 s46, s46, s47")
    for e in range(8):
        P(f"buffer_load_dwordx4 v[{32+4*e}:{35+4*e}], v5, s[20:23], s46 offen")
        if e < 7: P("s_add_u32 s46, s46, s32")
    P("s_lshr_b32 s45, s45, 5\ns_mul_i32 s45, s45, s34\ns_lshl_b32 s45, s45, 10\ns_add_u32 s45, s45, s33")
    P("s_waitcnt vmcnt(0)")
    for x in range(8):
        for m in range(4):
            sel = "s42" if x % 2 == 0 else "s43"
            P(f"v_perm_b32 v{64+4*x+m}, v{32+4*(2*m+1)+x//2}, v{32+4*(2*m)+x//2}, {sel}")
    for x in range(8):
        P(f"buffer_store_dwordx4 v[{64+4*x}:{67+4*x}], v{11 + x//4}, s[24:27], s45 offen offset:{(x&3)*16}")
    for m in range(4):
        for x in range(8):
            P(f"v_dot2c_f32_bf16 v{16+x}, v{64+4*x+m}, v14")
    P("s_add_u32 s44, s44, 4\ns_nop 4\ns_branch L_prep_loop")
    P("L_prep_done:")
    P("s_cmp_eq_u32 s37, 0\ns_cbranch_scc1 L_prep_end")
    P("s_nop 4\nv_lshrrev_b32 v8, 3, v0\nv_lshlrev_b32 v8, 8, v8\nv_lshl_add_u32 v8, v3, 5, v8")
    P("ds_write_b128 v8, v[16:19]\nds_write_b128 v8, v[20:23] offset:16\ns_waitcnt lgkmcnt(0)\ns_barrier")
    P("s_cmp_lg_u32 s30, 0\ns_cbranch_scc1 L_prep_end")
    P("v_lshlrev_b32 v8, 2, v1")
    for r in range(32): P(f"ds_read_b32 v{32+r}, v8 offset:{r*256}")
    P("s_waitcnt lgkmcnt(0)")
    for r in range(1, 32): P(f"v_add_f32 v32, v32, v{32+r}")
    P("""v_lshrrev_b32 v6, 5, v1
v_lshlrev_b32 v6, 1, v6
v_bfe_u32 v7, v1, 2, 1
v_add3_u32 v6, v6, v7, s41
v_mul_u32_u24 v8, 52429, v6
v_lshrrev_b32 v8, 18, v8
v_mul_u32_u24 v9, 5, v8
v_sub_u32 v9, v6, v9
v_and_b32 v8, s39, v8
v_cmp_eq_u32 vcc, 0, v9
v_mov_b32 v10, -1
v_cndmask_b32 v10, v10, 4, vcc
v_mul_i32_i24 v10, v10, v8
v_add_u32 v6, v6, v10
v_bfe_u32 v7, v1, 3, 2
v_and_b32 v9, 3, v1
v_lshl_add_u32 v7, v7, 2, v9
v_lshl_add_u32 v6, v6, 4, v7
v_lshlrev_b32 v6, 2, v6
buffer_store_dword v32, v6, s[24:27], s37 offen""")
    P("L_prep_end:\ns_endpgm")
    return (name, 87, 256, 8192, 96)

def gen_qkv(P):
    name = "qkv_kernel"
    header(P, name)
    NSLOT = 4
    STAT = NSLOT * 32768
    P("s_cmp_ge_u32 s2, 240\ns_cbranch_scc1 L_qkv_end")
    P(f"s_load_dwordx4 s[4:7], s[0:1], 0\ns_load_dwordx2 s[8:9], s[0:1], {ARG['ws']}")
    P("v_and_b32 v1, 63, v0\nv_lshrrev_b32 v2, 6, v0\nv_readfirstlane_b32 s30, v2")
    P("""s_and_b32 s31, s2, 7
s_lshr_b32 s32, s2, 3
s_lshl_b32 s31, s31, 1
s_cmp_ge_u32 s32, 15
s_cselect_b32 s33, 15, 0
s_addc_u32 s31, s31, 0
s_sub_u32 s32, s32, s33""")
    P("s_lshr_b32 s34, s30, 1\ns_and_b32 s35, s30, 1")
    P("v_lshrrev_b32 v8, 3, v1\nv_and_b32 v9, 7, v1\nv_lshrrev_b32 v10, 4, v1")
    for i in range(4):
        P(f"v_add_u32 v11, {8*i}, v8\nv_mul_u32_u24 v11, 1280, v11\nv_add_u32 v12, {4*i}, v10\nv_and_b32 v12, 7, v12\nv_xor_b32 v12, v12, v9\nv_lshl_add_u32 v{4+i}, v12, 4, v11")
    P("v_mul_u32_u24 v11, 3840, v10\nv_bfe_u32 v12, v1, 2, 2\nv_xor_b32 v12, v12, v10\nv_lshl_add_u32 v11, v12, 6, v11\nv_and_b32 v12, 3, v1\nv_lshl_add_u32 v3, v12, 4, v11")
    P("s_lshl_b32 s36, s31, 2\ns_add_u32 s36, s36, s30\ns_mul_i32 s36, s36, 40960")
    P("s_mul_i32 s37, s30, 61440\ns_lshl_b32 s38, s32, 8\ns_add_u32 s37, s37, s38")
    P("s_lshl_b32 s39, s30, 12")
    P("s_waitcnt lgkmcnt(0)")
    srd(P, 12, 4, SZ); srd(P, 16, 6, 640 * 3840); srd(P, 20, 8, WS_USED)
    def dma(st):
        slot = (st % NSLOT) * 32768
        for i in range(4):
            P(f"s_add_u32 m0, s39, {slot + i*1024}\ns_add_u32 s40, s36, {st*128}\nbuffer_load_dwordx4 v{4+i}, s[12:15], s40 offen lds")
        for i in range(4):
            P(f"s_add_u32 m0, s39, {slot + 16384 + i*1024}\ns_add_u32 s40, s37, {(st*64 + 4*i)*3840}\nbuffer_load_dwordx4 v3, s[16:19], s40 offen lds")
    for st in range(NSLOT): dma(st)
    P("""v_and_b32 v8, 31, v1
v_lshrrev_b32 v9, 5, v1
s_lshl_b32 s41, s34, 6
v_add_u32 v10, s41, v8
v_bfe_u32 v11, v10, 1, 3
v_xor_b32 v11, v11, v9
v_lshlrev_b32 v11, 4, v11
v_lshl_add_u32 v20, v10, 7, v11
s_lshl_b32 s41, s35, 12
v_add_u32 v20, s41, v20""")
    for kk in range(1, 4): P(f"v_xor_b32 v{20+kk}, {kk*32}, v20")
    for kk in range(4): P(f"v_add_u32 v{24+kk}, 0x10000, v{20+kk}")
    for kk in range(8): P(f"v_xor_b32 v{40+kk}, 0x1000, v{20+kk}")
    P("""v_bfe_u32 v10, v1, 2, 2
v_lshl_add_u32 v11, v9, 3, v10
v_lshlrev_b32 v11, 8, v11
v_bfe_u32 v12, v1, 4, 1
v_lshl_add_u32 v11, v12, 5, v11
v_and_b32 v12, 3, v1
v_lshl_add_u32 v11, v12, 3, v11
s_lshl_b32 s41, s35, 1
s_add_u32 s41, s41, s34
v_xor_b32 v12, s41, v10
v_lshl_add_u32 v28, v12, 6, v11
v_xor_b32 v29, 64, v28
v_add_u32 v30, 0x10000, v28
v_add_u32 v31, 0x10000, v29""")
    ACC = 64
    FX = 128
    FW = 144
    SS, SQ, SC = 32, 33, 34
    P(f"v_mov_b32 v{SS}, 0\nv_mov_b32 v{SQ}, 0\nv_mov_b32 v{SC}, 0\nv_mov_b32 v35, {ONES}")
    for r in range(64): P(f"v_mov_b32 v{ACC+r}, 0")
    P("s_cmp_ge_u32 s32, 10\ns_cbranch_scc1 L_qkv_v")
    for variant in ("qk", "v"):
        if variant == "v": P("L_qkv_v:")
        def reads(n):
            st, kk = divmod(n, 4)
            b = n & 1
            slot = (st % NSLOT) * 32768
            hi = slot >= 65536
            off = slot - (65536 if hi else 0)
            for rt in range(2):
                P(f"ds_read_b128 v[{FX+b*8+rt*4}:{FX+b*8+rt*4+3}], v{(40 if rt else 20)+(4 if hi else 0)+kk} offset:{off}")
            for ct in range(2):
                ar = 28 + ct + (2 if hi else 0)
                P(f"ds_read_b64_tr_b16 v[{FW+b*8+ct*4}:{FW+b*8+ct*4+1}], v{ar} offset:{off+16384+kk*4096}")
                P(f"ds_read_b64_tr_b16 v[{FW+b*8+ct*4+2}:{FW+b*8+ct*4+3}], v{ar} offset:{off+16384+kk*4096+1024}")
        def enter(st):
            issued = min(10, NSLOT + max(0, st - 1))
            P(f"s_waitcnt vmcnt({8*(issued-st-1)}) lgkmcnt(0)\ns_barrier")
            nxt = st - 1 + NSLOT
            if st >= 1 and nxt < 10: dma(nxt)
        if variant == "qk":
            pass
        enter(0); reads(0)
        for n in range(40):
            b = n & 1
            if n + 1 < 40:
                if (n + 1) % 4 == 0: enter((n + 1) // 4)
                reads(n + 1)
                P("s_waitcnt lgkmcnt(6)")
            else:
                P("s_waitcnt lgkmcnt(0)")
            dots = []
            for m in range(4):
                dots.append(f"v_dot2c_f32_bf16 v{SS}, v{FX+b*8+m}, v35")
                dots.append(f"v_dot2c_f32_bf16 v{SQ}, v{FX+b*8+m}, v{FX+b*8+m}")
                dots.append(f"v_dot2c_f32_bf16 v{SC}, v{FW+b*8+m}, v35")
            for t in range(4):
                rt, ct = t >> 1, t & 1
                x = v(FX + b*8 + rt*4, 4); w = v(FW + b*8 + ct*4, 4); d = v(ACC + t*16, 16)
                if variant == "qk": P(f"v_mfma_f32_32x32x16_bf16 {d}, {w}, {x}, {d}")
                else: P(f"v_mfma_f32_32x32x16_bf16 {d}, {x}, {w}, {d}")
                for dd in dots[3*t:3*t+3]: P(dd)
        P(f"v_mov_b32 v36, v{SS}\nv_mov_b32 v37, v{SQ}\nv_mov_b32 v38, v{SC}")
        P(f"v_permlane32_swap_b32 v{SS}, v36\nv_permlane32_swap_b32 v{SQ}, v37\nv_permlane32_swap_b32 v{SC}, v38")
        P(f"v_add_f32 v{SS}, v{SS}, v36\nv_add_f32 v{SQ}, v{SQ}, v37\nv_add_f32 v{SC}, v{SC}, v38")
        P(f"v_mul_f32 v{SS}, {f2u(1/640)}, v{SS}\nv_mul_f32 v{SQ}, {f2u(1/640)}, v{SQ}\nv_fma_f32 v{SQ}, -v{SS}, v{SS}, v{SQ}\nv_max_f32 v{SQ}, 0, v{SQ}\nv_add_f32 v{SQ}, {f2u(EPS)}, v{SQ}\nv_rsq_f32 v{SQ}, v{SQ}")
        if variant == "qk":
            P(f"s_cmp_lt_u32 s32, 5\ns_cselect_b32 s41, {f2u(20**-0.5*LOG2E)}, 1.0\nv_mul_f32 v{SQ}, s41, v{SQ}")
        P(f"v_mul_f32 v{SS}, v{SS}, v{SQ}")
        P(f"""s_lshl_b32 s41, s34, 1
s_add_u32 s41, s41, s35
s_lshl_b32 s41, s41, 7
s_add_u32 s41, s41, {STAT}
v_and_b32 v36, 31, v1
v_lshl_add_u32 v37, v36, 2, s41
ds_write_b32 v37, v{SQ}
ds_write_b32 v37, v{SS} offset:512
s_lshl_b32 s41, s35, 1
s_add_u32 s41, s41, s34
s_lshl_b32 s41, s41, 7
s_add_u32 s41, s41, {STAT}
v_lshl_add_u32 v37, v36, 2, s41
ds_write_b32 v37, v{SC} offset:1024
s_waitcnt lgkmcnt(0)
s_barrier""")
        if variant == "qk":
            P(f"""s_lshl_b32 s41, s34, 1
s_add_u32 s41, s41, s35
s_lshl_b32 s41, s41, 7
s_add_u32 s41, s41, {STAT}
v_lshl_add_u32 v37, v36, 2, s41
v_xor_b32 v38, 128, v37
ds_read_b32 v40, v37
ds_read_b32 v42, v37 offset:512
ds_read_b32 v44, v38
ds_read_b32 v46, v38 offset:512
s_lshl_b32 s41, s35, 1
s_add_u32 s41, s41, s34
s_lshl_b32 s41, s41, 7
s_add_u32 s41, s41, {STAT+1024}
v_lshrrev_b32 v39, 5, v1
v_lshl_add_u32 v37, v39, 4, s41
v_xor_b32 v38, 128, v37""")
            for ct in range(2):
                for b in range(4):
                    P(f"ds_read_b128 v[{128+ct*16+b*4}:{128+ct*16+b*4+3}], v{37+ct} offset:{b*32}")
            P(f"""s_cmp_ge_u32 s32, 5
s_cselect_b32 s42, {K_OFF - 5*32*256}, {Q_OFF}
s_lshl_b32 s43, s32, 13
s_add_u32 s42, s42, s43
s_lshl_b32 s43, s35, 12
s_add_u32 s42, s42, s43
s_lshl_b32 s43, s31, 2
s_lshl_b32 s44, s34, 1
s_add_u32 s43, s43, s44
s_add_u32 s44, s43, s35
s_xor_b32 s45, s44, 1
s_mul_i32 s44, s44, 40960
s_mul_i32 s45, s45, 40960
s_add_u32 s44, s44, s42
s_add_u32 s45, s45, s42
v_lshlrev_b32 v37, 3, v36
v_lshl_add_u32 v37, v39, 8, v37
s_lshl_b32 s43, s34, 11
v_add_u32 v37, s43, v37
v_xor_b32 v38, 0x800, v37
s_waitcnt lgkmcnt(0)
v_mov_b32 v41, v40
v_mov_b32 v43, v42
v_mov_b32 v45, v44
v_mov_b32 v47, v46""")
            for t in range(4):
                rt, ct = t >> 1, t & 1
                A = v(40 + rt*4, 2); B = v(42 + rt*4, 2)
                for p in range(8):
                    r = ACC + t*16 + 2*p
                    P(f"v_pk_mul_f32 v[48:49], v[{128+ct*16+2*p}:{128+ct*16+2*p+1}], {B}" if False else f"v_pk_mul_f32 v[{48+2*(p&3)}:{49+2*(p&3)}], v[{128+ct*16+2*p}:{128+ct*16+2*p+1}], {B}")
                    P(f"v_pk_fma_f32 v[{r}:{r+1}], v[{r}:{r+1}], {A}, v[{48+2*(p&3)}:{49+2*(p&3)}] neg_lo:[0,0,1] neg_hi:[0,0,1]")
                for p in range(8):
                    r = ACC + t*16 + 2*p
                    P(f"v_cvt_pk_bf16_f32 v{160+t*8+p}, v{r}, v{r+1}")
                for b in range(4):
                    P(f"buffer_store_dwordx2 v[{160+t*8+2*b}:{160+t*8+2*b+1}], v{37+ct}, s[20:23], s{44+rt} offen offset:{b*512}")
            P("s_endpgm")
        else:
            P(f"""s_lshl_b32 s41, s35, 1
s_add_u32 s41, s41, s34
s_lshl_b32 s41, s41, 7
s_add_u32 s41, s41, {STAT+1024}
v_lshl_add_u32 v37, v36, 2, s41
v_xor_b32 v38, 128, v37
ds_read_b32 v40, v37
ds_read_b32 v42, v38
s_lshl_b32 s41, s34, 1
s_add_u32 s41, s41, s35
s_lshl_b32 s41, s41, 7
s_add_u32 s41, s41, {STAT}
v_lshrrev_b32 v39, 5, v1
v_lshl_add_u32 v37, v39, 4, s41
v_xor_b32 v38, 128, v37""")
            for rt in range(2):
                for b in range(4):
                    P(f"ds_read_b128 v[{128+rt*32+b*4}:{128+rt*32+b*4+3}], v{37+rt} offset:{b*32}")
                    P(f"ds_read_b128 v[{144+rt*32+b*4}:{144+rt*32+b*4+3}], v{37+rt} offset:{512+b*32}")
            P(f"""s_sub_u32 s42, s32, 10
s_lshl_b32 s42, s42, 11
s_lshl_b32 s43, s35, 10
s_add_u32 s42, s42, s43
s_add_u32 s42, s42, {V_OFF}
s_lshl_b32 s43, s31, 2
s_lshl_b32 s44, s34, 1
s_add_u32 s43, s43, s44
s_add_u32 s44, s43, s35
s_xor_b32 s45, s44, 1
s_mul_i32 s44, s44, 40960
s_mul_i32 s45, s45, 40960
s_add_u32 s44, s44, s42
s_add_u32 s45, s45, s42
s_add_u32 s46, s44, 20480
s_add_u32 s47, s45, 20480
v_lshlrev_b32 v37, 4, v36
s_lshl_b32 s43, s34, 9
v_add_u32 v37, s43, v37
v_xor_b32 v38, 0x200, v37
v_mul_u32_u24 v39, 10240, v39
v_add_u32 v37, v37, v39
v_add_u32 v38, v38, v39
s_waitcnt lgkmcnt(0)
v_mov_b32 v41, v40
v_mov_b32 v43, v42""")
            for t in range(4):
                rt, ct = t >> 1, t & 1
                C = v(40 + ct*2, 2)
                for p in range(8):
                    r = ACC + t*16 + 2*p
                    P(f"v_pk_mul_f32 v[{48+2*(p&3)}:{49+2*(p&3)}], v[{144+rt*32+2*p}:{144+rt*32+2*p+1}], {C}")
                    P(f"v_pk_fma_f32 v[{r}:{r+1}], v[{r}:{r+1}], v[{128+rt*32+2*p}:{128+rt*32+2*p+1}], v[{48+2*(p&3)}:{49+2*(p&3)}] neg_lo:[0,0,1] neg_hi:[0,0,1]")
                for p in range(8):
                    r = ACC + t*16 + 2*p
                    P(f"v_cvt_pk_bf16_f32 v{192+t*8+p}, v{r}, v{r+1}")
                for u in range(2):
                    P(f"buffer_store_dwordx4 v[{192+t*8+4*u}:{192+t*8+4*u+3}], v{37+ct}, s[20:23], s{44+rt+2*u} offen")
    P("L_qkv_end:\ns_endpgm")
    return (name, 240, 256, STAT + 2048, 256)

def gen_attn(P):
    name = "attn_kernel"
    header(P, name)
    P("s_cmp_ge_u32 s2, 256\ns_cbranch_scc1 L_at_end")
    P(f"s_load_dwordx2 s[8:9], s[0:1], {ARG['ws']}")
    P("v_and_b32 v1, 63, v0\nv_lshrrev_b32 v2, 6, v0\nv_readfirstlane_b32 s30, v2")
    P("s_and_b32 s31, s2, 7\ns_lshr_b32 s32, s2, 3")
    P("s_cmp_ge_u32 s30, 4\ns_cselect_b32 s33, 9920, 0")
    for i in range(5):
        P(f"""v_add_u32 v3, {64*i}, v1
v_mul_u32_u24 v4, 52429, v3
v_lshrrev_b32 v4, 22, v4
v_mul_u32_u24 v5, 80, v4
v_sub_u32 v5, v3, v5
v_mul_u32_u24 v6, 52429, v5
v_lshrrev_b32 v6, 20, v6
v_mul_lo_u32 v6, v6, s33
v_mul_u32_u24 v4, 40960, v4
v_lshl_add_u32 v4, v5, 4, v4
v_add_u32 v{8+i}, v4, v6""")
    P(f"""s_cmp_ge_u32 s30, 4
s_mov_b32 s34, {K_OFF}
s_cmov_b32 s34, {V_OFF}
s_mov_b32 s35, 1280
s_cmov_b32 s35, 320
s_mul_i32 s35, s35, s32
s_add_u32 s34, s34, s35
s_and_b32 s36, s30, 3
s_lshl_b32 s37, s31, 1
s_add_u32 s36, s36, s37
s_mul_i32 s36, s36, {4*40960}
s_add_u32 s34, s34, s36
s_sub_u32 s34, s34, {8*40960}
s_mul_i32 s38, s30, 5120
s_waitcnt lgkmcnt(0)""")
    srd(P, 20, 8, WS_USED)
    for i in range(5):
        P(f"s_add_u32 m0, s38, {i*1024}\nbuffer_load_dwordx4 v{8+i}, s[20:23], s34 offen lds")
    QF = 16
    P(f"""s_lshl_b32 s39, s31, 3
s_add_u32 s39, s39, s30
s_mul_i32 s40, s39, 40960
s_mul_i32 s41, s32, 1280
s_add_u32 s40, s40, s41
v_and_b32 v3, 31, v1
v_lshrrev_b32 v4, 5, v1
v_lshlrev_b32 v5, 3, v3
v_lshl_add_u32 v6, v4, 9, v5
buffer_load_dwordx2 v[16:17], v6, s[20:23], s40 offen
buffer_load_dwordx2 v[18:19], v6, s[20:23], s40 offen offset:256
buffer_load_dwordx2 v[20:21], v5, s[20:23], s40 offen offset:1024
v_mov_b32 v22, 0
v_mov_b32 v23, 0""")
    P(f"""s_mul_i32 s41, s30, 1280
v_add_u32 v24, s41, v6
v_add_u32 v25, s41, v5
v_mul_u32_u24 v26, 320, v4
v_lshl_add_u32 v26, v3, 4, v26
v_add_u32 v26, s41, v26""")
    S = 32
    KF = 176
    VF = 192
    OA = 224
    for b in range(2): P(f"v_mov_b32 v{KF+b*8+6}, 0\nv_mov_b32 v{KF+b*8+7}, 0")
    for r in range(32): P(f"v_mov_b32 v{VF+r}, {ONES}")
    for r in range(16):
        m = 0
        for l in range(64):
            if 8*(r >> 2) + 4*(l >> 5) + (r & 3) <= (l & 31): m |= 1 << l
        P(f"s_mov_b32 s{48+2*r}, {m & 0xffffffff:#x}\ns_mov_b32 s{49+2*r}, {m >> 32:#x}")
    P("s_mov_b32 s44, 0x000fffff\ns_mov_b32 s45, 0x000fffff")
    P("s_waitcnt vmcnt(0)")
    P("v_cmp_gt_u32 vcc, 32, v1\nv_cndmask_b32 v20, 0, v20, vcc\nv_cndmask_b32 v21, 0, v21, vcc")
    P("s_barrier")
    def kread(t):
        b = t & 1
        P(f"ds_read_b64 v[{KF+b*8}:{KF+b*8+1}], v24 offset:{t*1280}\nds_read_b64 v[{KF+b*8+2}:{KF+b*8+3}], v24 offset:{t*1280+256}\nds_read_b64 v[{KF+b*8+4}:{KF+b*8+5}], v25 offset:{t*1280+1024}")
    kread(0)
    for t in range(9):
        b = t & 1
        if t + 1 < 9:
            kread(t + 1); P("s_waitcnt lgkmcnt(3)")
        else: P("s_waitcnt lgkmcnt(0)")
        d = v(S + 16*t, 16)
        P(f"v_mfma_f32_32x32x16_bf16 {d}, {v(KF+b*8,4)}, v[16:19], 0")
        P(f"v_mfma_f32_32x32x16_bf16 {d}, {v(KF+b*8+4,4)}, v[20:23], {d}")
    def vread(t):
        b = t & 3
        P("s_mov_b64 exec, s[44:45]")
        P(f"ds_read_b128 {v(VF+b*8,4)}, v26 offset:{20480+t*1280}\nds_read_b128 {v(VF+b*8+4,4)}, v26 offset:{20480+t*1280+640}")
        P("s_mov_b64 exec, -1")
    P("s_cmp_ge_u32 s39, 8\ns_cbranch_scc1 L_at_full\ns_nop 15")
    for t in range(8):
        P(f"s_cmp_ge_u32 s39, {8-t}\ns_cbranch_scc1 L_at_full")
        for r in range(16): P(f"v_mov_b32 v{S+16*t+r}, 0xff800000")
    P("L_at_full:")
    order = [1, 2, 3, 4, 5, 6, 7, 0]
    M = 28
    P(f"v_max3_f32 v{M}, v{S+16}, v{S+17}, v{S+18}\nv_max3_f32 v{M+1}, v{S+19}, v{S+20}, v{S+21}")
    lst = list(range(S + 22, S + 128))
    k = 0
    while lst:
        if len(lst) >= 2:
            a, b2 = lst.pop(0), lst.pop(0); P(f"v_max3_f32 v{M+k}, v{M+k}, v{a}, v{b2}")
        else:
            a = lst.pop(0); P(f"v_max_f32 v{M+k}, v{M+k}, v{a}")
        k ^= 1
    for r in range(16): P(f"v_cndmask_b32 v{S+r}, v{S+r}, v{S+128+r}, s[{48+2*r}:{49+2*r}]")
    for r in range(0, 16, 2):
        P(f"v_max3_f32 v{M+k}, v{M+k}, v{S+r}, v{S+r+1}"); k ^= 1
    P(f"v_max_f32 v{M}, v{M}, v{M+1}\nv_mov_b32 v{M+1}, v{M}\nv_permlane32_swap_b32 v{M}, v{M+1}\nv_max_f32 v{M}, v{M}, v{M+1}\nv_mov_b32 v{M+1}, v{M}")
    vread(1); vread(2); vread(3)
    first = True
    for idx, t in enumerate(order):
        base = S + 16*t
        for p in range(8):
            P(f"v_pk_add_f32 v[{base+2*p}:{base+2*p+1}], v[{base+2*p}:{base+2*p+1}], v[{M}:{M+1}] neg_lo:[0,1] neg_hi:[0,1]")
        for r in range(16): P(f"v_exp_f32 v{base+r}, v{base+r}")
        if t != 0:
            for p in range(8): P(f"v_cvt_pk_bf16_f32 v{base+p}, v{base+2*p}, v{base+2*p+1}")
            b = t & 3
            P("s_waitcnt lgkmcnt(4)")
            c = "0" if first else v(OA, 16)
            P(f"v_mfma_f32_32x32x16_bf16 {v(OA,16)}, {v(VF+b*8,4)}, {v(base,4)}, {c}")
            P(f"v_mfma_f32_32x32x16_bf16 {v(OA,16)}, {v(VF+b*8+4,4)}, {v(base+4,4)}, {v(OA,16)}")
            first = False
            nxt = t + 3
            if nxt <= 8: vread(nxt)
            elif nxt == 9:
                P("s_mov_b64 exec, s[44:45]")
                P(f"ds_read_b128 {v(VF+8,4)}, v26 offset:{20480}\nds_read_b128 {v(VF+12,4)}, v26 offset:{20480+640}")
                P("s_mov_b64 exec, -1")
            else:
                pass
        else:
            D = S + 128
            for r in range(16): P(f"v_cndmask_b32 v{D+r}, 0, v{base+r}, s[{48+2*r}:{49+2*r}]")
            for r in range(16): P(f"v_cndmask_b32 v{base+r}, v{base+r}, 0, s[{48+2*r}:{49+2*r}]")
            for p in range(8): P(f"v_cvt_pk_bf16_f32 v{base+p}, v{base+2*p}, v{base+2*p+1}")
            for p in range(8): P(f"v_cvt_pk_bf16_f32 v{D+p}, v{D+2*p}, v{D+2*p+1}")
            P("s_waitcnt lgkmcnt(0)")
            P(f"v_mfma_f32_32x32x16_bf16 {v(OA,16)}, {v(VF+0,4)}, {v(D,4)}, {v(OA,16)}")
            P(f"v_mfma_f32_32x32x16_bf16 {v(OA,16)}, {v(VF+4,4)}, {v(D+4,4)}, {v(OA,16)}")
            P(f"v_mfma_f32_32x32x16_bf16 {v(OA,16)}, {v(VF+8,4)}, {v(base,4)}, {v(OA,16)}")
            P(f"v_mfma_f32_32x32x16_bf16 {v(OA,16)}, {v(VF+12,4)}, {v(base+4,4)}, {v(OA,16)}")
    P(f"""s_mul_i32 s41, s32, 5
v_add_u32 v8, s41, v4
v_lshrrev_b32 v9, 4, v3
v_mul_u32_u24 v9, 20480, v9
v_and_b32 v10, 15, v3
v_lshl_add_u32 v9, v10, 4, v9""")
    for b in range(3):
        P(f"""v_add_u32 v10, {2*b}, v8
v_lshrrev_b32 v11, 1, v10
v_lshl_add_u32 v11, v11, 8, v9
v_and_b32 v10, 1, v10
v_lshl_add_u32 v{12+b}, v10, 3, v11""")
    P(f"v_cmp_gt_u32 vcc, 32, v1\nv_mov_b32 v10, 0x7ffffff0\nv_cndmask_b32 v14, v10, v14, vcc")
    P(f"s_mul_i32 s41, s39, 40960\ns_add_u32 s41, s41, {O_OFF}")
    P(f"v_rcp_f32 v28, v{OA+12}\nv_mov_b32 v29, v28")
    for p in range(6): P(f"v_pk_mul_f32 v[{OA+2*p}:{OA+2*p+1}], v[{OA+2*p}:{OA+2*p+1}], v[28:29]")
    for p in range(6): P(f"v_cvt_pk_bf16_f32 v{32+p}, v{OA+2*p}, v{OA+2*p+1}")
    for b in range(3): P(f"buffer_store_dwordx2 v[{32+2*b}:{33+2*b}], v{12+b}, s[20:23], s41 offen")
    P("L_at_end:\ns_endpgm")
    return (name, 256, 512, 40960, 240)

def gen_gemm(P, name, kind):
    cfg = dict(
        wo=dict(KS=20, NT=5, NTT=40, SK=4, R=5, A=O_OFF, W=WO_OFF),
        w1=dict(KS=20, NT=5, NTT=40, SK=4, R=5, A=H_OFF, W=W1_OFF),
        w2=dict(KS=20, NT=5, NTT=40, SK=4, R=5, A=T_OFF, W=W2_OFF),
        w3=dict(KS=20, NT=14, NTT=108, SK=2, R=5, A=X1_OFF, W=W3_OFF),
        w4=dict(KS=54, NT=5, NTT=40, SK=4, R=7, A=G_OFF, W=W4_OFF))[kind]
    KS, NT, NTT, SK, R = cfg["KS"], cfg["NT"], cfg["NTT"], cfg["SK"], cfg["R"]
    NST = (KS + SK - 1) // SK
    CPW = SK * NT // 4
    SLOT = SK * NT * 1024
    XR = R * SLOT
    L = f"L_{kind}"
    header(P, name)
    P(f"s_cmp_ge_u32 s2, 256\ns_cbranch_scc1 {L}_end")
    P(f"s_load_dwordx2 s[8:9], s[0:1], {ARG['ws']}\ns_load_dwordx2 s[4:5], s[0:1], {ARG['x'] if kind=='wo' else ARG['out']}")
    P("v_and_b32 v1, 63, v0\nv_lshrrev_b32 v2, 6, v0\nv_readfirstlane_b32 s30, v2\nv_lshlrev_b32 v3, 4, v1")
    P("s_and_b32 s31, s2, 7\ns_lshl_b32 s31, s31, 2\ns_bfe_u32 s33, s2, 0x20003\ns_add_u32 s31, s31, s33\ns_lshr_b32 s32, s2, 5\ns_lshl_b32 s33, s31, 2\ns_add_u32 s33, s33, s30")
    if NT == 5:
        P("s_mul_i32 s34, s32, 5")
        P("s_and_b32 s37, s32, 1\ns_lshr_b32 s35, s34, 1\ns_add_u32 s36, s35, 2\ns_lshl_b32 s38, s37, 1\ns_sub_u32 s36, s36, s38\ns_add_u32 s35, s35, s37")
        P(f"s_mul_i32 s38, s30, {NTT}\ns_add_u32 s38, s38, s34")
    else:
        P("s_mul_i32 s35, s32, 7\ns_min_u32 s35, s35, 47\ns_lshl_b32 s34, s35, 1")
        P(f"s_lshr_b32 s38, s30, 1\ns_mul_i32 s38, s38, {NTT}\ns_and_b32 s39, s30, 1\ns_mul_i32 s39, s39, 7\ns_add_u32 s38, s38, s39\ns_add_u32 s38, s38, s34")
    P(f"s_lshl_b32 s38, s38, 10\ns_add_u32 s38, s38, {cfg['W']}")
    P(f"s_mul_i32 s39, s30, {CPW*1024}")
    P(f"s_mul_i32 s40, s33, {KS*1024}\ns_add_u32 s40, s40, {cfg['A']}")
    P("s_waitcnt lgkmcnt(0)")
    srd(P, 20, 8, WS_USED); srd(P, 12, 4, SZ)
    ACC = 16; NACC = NT * 4
    D = 6
    BF = ACC + NACC
    EX = BF + (D + 1) * 4
    ST = EX; HR = ST + 4; XRg = HR + 12; CS = XRg + 12
    AF = CS + (NACC if kind in ("w1", "w3") else 0)
    AF = (AF + 3) // 4 * 4
    NV = AF + R * SK * 4
    assert NV <= 256, NV
    if NT == 5:
        P("s_mul_i32 s41, s33, 20\ns_add_u32 s42, s41, s36\ns_add_u32 s41, s41, s35\ns_lshl_b32 s41, s41, 10\ns_lshl_b32 s42, s42, 10\ns_lshl_b32 s43, s37, 3\ns_add_u32 s42, s42, s43")
    def tile_load(reg, off):
        P(f"s_add_u32 s43, s41, {off}\ns_add_u32 s44, s42, {off}")
        P(f"buffer_load_dwordx4 {v(reg,4)}, v3, s[20:23], s43 offen\nbuffer_load_dwordx4 {v(reg+4,4)}, v3, s[20:23], s43 offen offset:1024\nbuffer_load_dwordx2 {v(reg+8,2)}, v3, s[20:23], s44 offen")
    if kind in ("wo", "w4"):
        P("v_lshrrev_b32 v4, 2, v1\nv_mul_u32_u24 v4, 1280, v4\nv_and_b32 v5, 3, v1\nv_lshl_add_u32 v4, v5, 4, v4")
        P("s_mul_i32 s45, s33, 20480\ns_lshl_b32 s46, s35, 6\ns_add_u32 s46, s46, s45\ns_lshl_b32 s47, s36, 6\ns_add_u32 s47, s47, s45")
        P(f"s_mul_i32 s48, s30, 3072\ns_add_u32 s48, s48, {XR}")
        P("v_and_b32 v5, 15, v1\nv_lshlrev_b32 v5, 6, v5\nv_lshrrev_b32 v6, 4, v1\nv_lshl_add_u32 v5, v6, 4, v5\nv_add_u32 v5, s48, v5\ns_lshl_b32 s43, s37, 3\nv_add_u32 v6, s43, v5")
    if kind == "wo":
        P("s_mov_b32 m0, s48\nbuffer_load_dwordx4 v4, s[12:15], s46 offen lds")
        P("s_add_u32 m0, s48, 1024\ns_add_u32 s43, s46, 64\nbuffer_load_dwordx4 v4, s[12:15], s43 offen lds")
        P("s_add_u32 m0, s48, 2048\nbuffer_load_dwordx4 v4, s[12:15], s47 offen lds")
    if kind in ("w1", "w2", "w3"):
        P(f"s_lshl_b32 s43, s33, 10\ns_add_u32 s43, s43, {STX_OFF if kind=='w3' else STH_OFF}\nbuffer_load_dwordx4 {v(ST,4)}, v3, s[20:23], s43 offen")
    if kind in ("w1", "w3"):
        P(f"v_and_b32 v7, 0x30, v1\ns_lshl_b32 s43, s34, 6\ns_add_u32 s43, s43, {CS3_OFF if kind=='w3' else CS1_OFF}")
        for t in range(NT): P(f"buffer_load_dwordx4 {v(CS+4*t,4)}, v7, s[20:23], s43 offen offset:{t*64}")
    if kind in ("w2", "w4"): tile_load(HR, H_OFF)
    if kind == "w4": tile_load(XRg, X1_OFF)
    def group(st):
        slot = (st % R) * SLOT
        for i in range(CPW):
            if i % 4 == 0:
                P(f"s_add_u32 m0, s39, {slot + i*1024}\ns_add_u32 s43, s38, {st*SK*NTT*1024 + i*1024}")
            P(f"buffer_load_dwordx4 v3, s[20:23], s43 offen offset:{(i%4)*1024} lds")
        P(f"s_add_u32 s43, s40, {st*SK*1024}")
        for k in range(SK):
            P(f"buffer_load_dwordx4 {v(AF+((st%R)*SK+k)*4,4)}, v3, s[20:23], s43 offen offset:{k*1024}")
    G = CPW + SK
    INIT = min(R, NST)
    assert G * INIT <= 63 or True
    for st in range(INIT):
        if G * (st + 1) > 54: P(f"s_waitcnt vmcnt({63 - G})")
        group(st)
    P("v_add_u32 v8, 0x10000, v3\nv_add_u32 v9, 0x20000, v3")
    for r in range(NACC): P(f"v_mov_b32 v{ACC+r}, 0")
    items = [(ks, t) for ks in range(KS) for t in range(NT)]
    def rd(n):
        ks, t = items[n]
        st = ks // SK
        if ks % SK == 0 and t == 0:
            issued = min(NST, INIT + max(0, st - 2))
            P(f"s_waitcnt vmcnt({min(63, G*(issued-st-1))})\ns_barrier")
            nxt = st - 2 + R
            if st >= 2 and nxt < NST: group(nxt)
        off = (st % R) * SLOT + ((ks % SK) * NT + t) * 1024
        ar = 3 if off < 65536 else (8 if off < 131072 else 9)
        P(f"ds_read_b128 {v(BF+(n%(D+1))*4,4)}, v{ar} offset:{off % 65536}")
    for n in range(D): rd(n)
    for n in range(len(items)):
        ks, t = items[n]
        if n + D < len(items):
            rd(n + D); P(f"s_waitcnt lgkmcnt({D})")
        else:
            P(f"s_waitcnt lgkmcnt({len(items)-1-n})")
        st = ks // SK
        P(f"v_mfma_f32_16x16x32_bf16 {v(ACC+4*t,4)}, {v(BF+(n%(D+1))*4,4)}, {v(AF+((st%R)*SK+ks%SK)*4,4)}, {v(ACC+4*t,4)}")
    TMP = AF
    def unpack(dst, src, n):
        for i in range(n):
            P(f"v_lshlrev_b32 v{dst+2*i}, 16, v{src+i}\nv_and_b32 v{dst+2*i+1}, 0xffff0000, v{src+i}")
    def stats_in(double):
        P(f"v_add_f32 v{ST}, v{ST}, v{ST+2}\nv_add_f32 v{ST+1}, v{ST+1}, v{ST+3}")
        xg_reduce(P, [ST, ST+1], [ST+2, ST+3])
        P(f"v_mul_f32 v{ST}, {f2u(1/640)}, v{ST}\nv_mul_f32 v{ST+1}, {f2u(1/640)}, v{ST+1}\nv_fma_f32 v{ST+1}, -v{ST}, v{ST}, v{ST+1}\nv_max_f32 v{ST+1}, 0, v{ST+1}")
        P(f"v_add_f32 v{ST+2}, {f2u(EPS)}, v{ST+1}\nv_rsq_f32 v{ST+2}, v{ST+2}")
        if double:
            P(f"v_mul_f32 v{ST+1}, v{ST+1}, v{ST+2}\nv_mov_b32 v{ST+3}, {f2u(EPS)}\nv_fma_f32 v{ST+1}, v{ST+1}, v{ST+2}, v{ST+3}\nv_rsq_f32 v{ST+1}, v{ST+1}\nv_mul_f32 v{ST+2}, v{ST+2}, v{ST+1}")
        P(f"v_mul_f32 v{ST}, v{ST}, v{ST+2}\nv_mov_b32 v{ST+3}, v{ST+2}\nv_mov_b32 v{ST+1}, v{ST}")
    def pack(dst, n):
        for i in range(n): P(f"v_cvt_pk_bf16_f32 v{dst+i}, v{ACC+2*i}, v{ACC+2*i+1}")
    def stats_out(pk, off):
        P(f"v_mov_b32 v10, 0\nv_mov_b32 v11, 0\nv_mov_b32 v12, {ONES}")
        for i in range(10): P(f"v_dot2c_f32_bf16 v10, v{pk+i}, v12\nv_dot2c_f32_bf16 v11, v{pk+i}, v{pk+i}")
        xg_reduce(P, [10, 11], [12, 13])
        P(f"s_lshl_b32 s43, s33, 10\ns_lshr_b32 s44, s32, 1\ns_lshl_b32 s44, s44, 8\ns_add_u32 s43, s43, s44\ns_lshl_b32 s44, s37, 3\ns_add_u32 s43, s43, s44\ns_add_u32 s43, s43, {off}")
        P("s_mov_b64 exec, 0xffff\nbuffer_store_dwordx2 v[10:11], v3, s[20:23], s43 offen\ns_mov_b64 exec, -1")
    def tile_store(pk, off, vaddr=3):
        P(f"s_add_u32 s43, s41, {off}\ns_add_u32 s44, s42, {off}")
        P(f"buffer_store_dwordx4 {v(pk,4)}, v{vaddr}, s[20:23], s43 offen\nbuffer_store_dwordx4 {v(pk+4,4)}, v{vaddr}, s[20:23], s43 offen offset:1024\nbuffer_store_dwordx2 {v(pk+8,2)}, v{vaddr}, s[20:23], s44 offen")
    def gelu_ln():
        k = 2 * 0.7978845608028654 * LOG2E
        P(f"s_mov_b32 s50, {f2u(-k)}\ns_mov_b32 s51, {f2u(-k)}\nv_mov_b32 v10, {f2u(-k*0.044715)}\nv_mov_b32 v11, v10\nv_mov_b32 v12, {f2u(-k)}\nv_mov_b32 v13, v12")
        for i in range(0, NACC, 2):
            a = v(ACC+i, 2); c = v(CS+i, 2)
            P(f"v_pk_mul_f32 {c}, {c}, {v(ST,2)}\nv_pk_fma_f32 {a}, {a}, {v(ST+2,2)}, {c} neg_lo:[0,0,1] neg_hi:[0,0,1]")
        for i in range(0, NACC, 2):
            a = v(ACC+i, 2); c = v(CS+i, 2)
            P(f"v_pk_mul_f32 {c}, {a}, {a}\nv_pk_fma_f32 {c}, {c}, v[10:11], v[12:13]\nv_pk_mul_f32 {c}, {c}, {a}")
        for i in range(NACC): P(f"v_exp_f32 v{CS+i}, v{CS+i}")
        for i in range(0, NACC, 2):
            c = v(CS+i, 2); P(f"v_pk_add_f32 {c}, {c}, 1.0 op_sel_hi:[1,0]")
        for i in range(NACC): P(f"v_rcp_f32 v{CS+i}, v{CS+i}")
        for i in range(0, NACC, 2):
            a = v(ACC+i, 2); c = v(CS+i, 2); P(f"v_pk_mul_f32 {a}, {a}, {c}")
    PK = BF
    if kind == "wo":
        P(f"ds_read_b128 {v(HR,4)}, v5\nds_read_b128 {v(HR+4,4)}, v5 offset:1024\nds_read_b64 {v(HR+8,2)}, v6 offset:2048\ns_waitcnt lgkmcnt(0)")
        unpack(TMP, HR, 10)
        for i in range(0, 20, 2): P(f"v_pk_add_f32 {v(ACC+i,2)}, {v(ACC+i,2)}, {v(TMP+i,2)}")
        pack(PK, 10); tile_store(PK, H_OFF); stats_out(PK, STH_OFF)
    elif kind == "w1":
        stats_in(True); gelu_ln(); pack(PK, 10)
        P("s_lshr_b32 s43, s32, 2\ns_add_u32 s43, s43, 1\ns_sub_u32 s44, 0, s43\ns_bitcmp1_b32 s32, 1\ns_cselect_b32 s43, s44, s43")
        P("s_lshl_b32 s44, s33, 4\ns_add_u32 s44, s44, s43\nv_and_b32 v10, 15, v1\nv_add_u32 v10, s44, v10")
        P("v_cmp_gt_u32 vcc, 2048, v10\nv_and_b32 v10, 2047, v10\nv_lshrrev_b32 v11, 4, v10\nv_mul_u32_u24 v11, 20480, v11\nv_and_b32 v10, 15, v10\nv_lshl_add_u32 v11, v10, 4, v11\nv_and_b32 v10, 0x30, v1\nv_lshl_add_u32 v11, v10, 4, v11")
        for i in range(10): P(f"v_cndmask_b32 v{PK+i}, 0, v{PK+i}, vcc")
        P("s_mul_i32 s45, s33, 20480\ns_sub_u32 s41, s41, s45\ns_sub_u32 s42, s42, s45")
        tile_store(PK, T_OFF, 11)
    elif kind == "w2":
        stats_in(False)
        unpack(TMP, HR, 10)
        for i in range(0, 20, 2):
            P(f"v_pk_fma_f32 {v(TMP+i,2)}, {v(TMP+i,2)}, {v(ST+2,2)}, {v(ST,2)} neg_lo:[0,0,1] neg_hi:[0,0,1]\nv_pk_add_f32 {v(ACC+i,2)}, {v(ACC+i,2)}, {v(TMP+i,2)}")
        pack(PK, 10); tile_store(PK, X1_OFF); stats_out(PK, STX_OFF)
    elif kind == "w3":
        stats_in(False); gelu_ln(); pack(PK, 28)
        P(f"s_mul_i32 s43, s33, 54\ns_add_u32 s43, s43, s35\ns_lshl_b32 s43, s43, 10\ns_add_u32 s43, s43, {G_OFF}\ns_add_u32 s44, s43, 4096")
        for c in range(7): P(f"buffer_store_dwordx4 {v(PK+4*c,4)}, v3, s[20:23], s{43+c//4} offen offset:{(c%4)*1024}")
    elif kind == "w4":
        unpack(TMP, HR, 10); unpack(TMP+20, XRg, 10)
        for i in range(0, 20, 2):
            P(f"v_pk_add_f32 {v(ACC+i,2)}, {v(ACC+i,2)}, {v(TMP+20+i,2)}\nv_pk_add_f32 {v(ACC+i,2)}, {v(ACC+i,2)}, {v(TMP+i,2)}")
        pack(PK, 10)
        P(f"ds_write_b128 v5, {v(PK,4)}\nds_write_b128 v5, {v(PK+4,4)} offset:1024\nds_write_b64 v5, {v(PK+8,2)} offset:2048")
        P(f"v_add_u32 v10, s48, v3\ns_waitcnt lgkmcnt(0)")
        P(f"ds_read_b128 {v(TMP,4)}, v10\nds_read_b128 {v(TMP+4,4)}, v10 offset:1024\nds_read_b64 {v(TMP+8,2)}, v10 offset:2048")
        P("s_lshl_b32 s43, s37, 3\ns_add_u32 s47, s47, s43\ns_waitcnt lgkmcnt(0)")
        P(f"buffer_store_dwordx4 {v(TMP,4)}, v4, s[12:15], s46 offen\nbuffer_store_dwordx4 {v(TMP+4,4)}, v4, s[12:15], s46 offen offset:64\nbuffer_store_dwordx2 {v(TMP+8,2)}, v4, s[12:15], s47 offen")
    P(f"{L}_end:\ns_endpgm")
    return (name, 256, 256, XR + 12288, NV)

def main(path):
    P = Prog()
    ks = []
    ks.append(gen_prep(P))
    ks.append(gen_qkv(P))
    ks.append(gen_attn(P))
    for kind in ("wo", "w1", "w2", "w3", "w4"):
        ks.append(gen_gemm(P, f"{kind}_kernel", kind))
    hdr = "; generated by gen1.py\n"
    for (n, g, b, lds, nv) in ks:
        hdr += f"; @launch kernel={n} grid=({g},1,1) block=({b},1,1) lds={lds}\n"
    txt = hdr + '.amdgcn_target "amdgcn-amd-amdhsa--gfx950"\n.text\n' + P.render() + '.section .rodata,"a"\n'
    for (n, g, b, lds, nv) in ks: txt += kdesc(n, nv)
    open(path, "w").write(txt)
    print(ks)

if __name__ == "__main__":
    main(sys.argv[1] if len(sys.argv) > 1 else f"cdna_kernels/{NAME}.s")
```

```python
import sys, math
sys.path.insert(0, "gen")
from asmlib import *

NAME = "sequential_preLN__sliding_block__mixer_s_mlp__prompt"
SZ = 2621440
Q_OFF, K_OFF, V_OFF, O_OFF, H_OFF, T_OFF, X1_OFF, G_OFF = [i * SZ for i in range(8)]
WO_OFF = G_OFF + 7077888
W1_OFF = WO_OFF + 819200
W2_OFF = W1_OFF + 819200
W3_OFF = W2_OFF + 819200
W4_OFF = W3_OFF + 2211840
CS1_OFF = W4_OFF + 2211840 + 131072
CS3_OFF = CS1_OFF + 4096
STH_OFF = CS3_OFF + 8192
STX_OFF = STH_OFF + 131072
WS_USED = STX_OFF + 131072
ARG = dict(x=0, wqkv=8, wo=16, bx=24, w1=32, w2=40, w3=48, w4=56, out=64, dbg=72, ws=80)
EPS = 1e-5
import struct
def f2u(f): return "0x%08x" % struct.unpack("<I", struct.pack("<f", f))[0]
LOG2E = 1.4426950408889634
ONES = "0x3f803f80"

STAMP = False
STAMP_OFF = 0x4000000
_sn = [0]
def stamp(P):
    if not STAMP: return
    i = _sn[0]; _sn[0] += 1
    assert i < 10
    P(f"s_memtime s[{80+2*i}:{81+2*i}]")
def stamp_begin(P):
    _sn[0] = 0
    if not STAMP: return
    P("s_memrealtime s[100:101]")
    stamp(P)
def stamp_end(P, kid, wsptr=8):
    if not STAMP: return
    P("s_waitcnt vmcnt(0)")
    stamp(P)
    n = _sn[0]
    P("s_waitcnt lgkmcnt(0)\nv_mov_b32 v40, s100\ns_memrealtime s[100:101]\ns_waitcnt lgkmcnt(0)\nv_mov_b32 v41, s100")
    for i in range(10): P(f"v_mov_b32 v{42+i}, s{80+2*min(i,n-1)}")
    P(f"s_mov_b32 s60, s{wsptr}\ns_and_b32 s61, s{wsptr+1}, 0xffff\ns_mov_b32 s62, 0x8000000\ns_mov_b32 s63, 0x20000")
    P(f"s_lshl_b32 s64, s2, 3\ns_add_u32 s64, s64, s30\ns_lshl_b32 s64, s64, 6\ns_add_u32 s64, s64, {STAMP_OFF + kid*0x100000}\nv_mov_b32 v39, 0")
    P("s_mov_b64 exec, 1\nbuffer_store_dwordx4 v[40:43], v39, s[60:63], s64 offen\nbuffer_store_dwordx4 v[44:47], v39, s[60:63], s64 offen offset:16\nbuffer_store_dwordx4 v[48:51], v39, s[60:63], s64 offen offset:32\ns_mov_b64 exec, -1")

def srd(P, d, ptr, nbytes):
    P(f"s_mov_b32 s{d}, s{ptr}\ns_and_b32 s{d+1}, s{ptr+1}, 0xffff\ns_mov_b32 s{d+2}, {nbytes}\ns_mov_b32 s{d+3}, 0x20000")

def header(P, name):
    P.raw(f".globl {name}"); P.raw(".p2align 8"); P.raw(f".type {name},@function"); P.raw(f"{name}:")

def xg_reduce(P, regs, tmp, op="v_add_f32"):
    for sw in ("v_permlane16_swap_b32", "v_permlane32_swap_b32"):
        for r, t in zip(regs, tmp): P(f"v_mov_b32 v{t}, v{r}")
        for r, t in zip(regs, tmp): P(f"{sw} v{r}, v{t}")
        for r, t in zip(regs, tmp): P(f"{op} v{r}, v{r}, v{t}")

def gen_prep(P):
    name = "prep_kernel"
    header(P, name)
    P("s_cmp_ge_u32 s2, 87\ns_cbranch_scc1 L_prep_end")
    P(f"s_load_dwordx2 s[4:5], s[0:1], {ARG['wo']}\ns_load_dwordx4 s[8:11], s[0:1], {ARG['w1']}\ns_load_dwordx4 s[12:15], s[0:1], {ARG['w3']}\ns_load_dwordx2 s[6:7], s[0:1], {ARG['ws']}")
    P("v_and_b32 v1, 63, v0\nv_lshrrev_b32 v2, 6, v0\nv_readfirstlane_b32 s30, v2")
    P("s_waitcnt lgkmcnt(0)")
    P(f"""s_mov_b32 s16, s4
s_mov_b32 s17, s5
s_mov_b32 s31, s2
s_mov_b32 s32, 1280
s_mov_b32 s33, {WO_OFF}
s_mov_b32 s34, 40
s_mov_b32 s35, 0
s_mov_b32 s36, 10
s_mov_b32 s37, 0
s_mov_b32 s38, 819200
s_mov_b32 s39, 1
s_cmp_lt_u32 s2, 10
s_cbranch_scc1 L_prep_go
s_mov_b32 s16, s8
s_mov_b32 s17, s9
s_sub_u32 s31, s2, 10
s_mov_b32 s33, {W1_OFF}
s_mov_b32 s37, {CS1_OFF}
s_cmp_lt_u32 s2, 20
s_cbranch_scc1 L_prep_go
s_mov_b32 s16, s10
s_mov_b32 s17, s11
s_sub_u32 s31, s2, 20
s_mov_b32 s33, {W2_OFF}
s_mov_b32 s37, 0
s_cmp_lt_u32 s2, 30
s_cbranch_scc1 L_prep_go
s_mov_b32 s16, s12
s_mov_b32 s17, s13
s_sub_u32 s31, s2, 30
s_mov_b32 s32, 3456
s_mov_b32 s33, {W3_OFF}
s_mov_b32 s34, 108
s_mov_b32 s37, {CS3_OFF}
s_mov_b32 s38, 2211840
s_mov_b32 s39, 0
s_cmp_lt_u32 s2, 57
s_cbranch_scc1 L_prep_go
s_mov_b32 s16, s14
s_mov_b32 s17, s15
s_sub_u32 s31, s2, 57
s_mov_b32 s32, 1280
s_mov_b32 s33, {W4_OFF}
s_mov_b32 s34, 40
s_mov_b32 s36, 9
s_mov_b32 s37, 0
s_mov_b32 s39, 1
s_cmp_lt_u32 s31, 10
s_cbranch_scc1 L_prep_go
s_sub_u32 s31, s31, 10
s_mov_b32 s35, 576
s_cmp_lt_u32 s31, 10
s_cbranch_scc1 L_prep_go
s_sub_u32 s31, s31, 10
s_mov_b32 s35, 1152
L_prep_go:""")
    P("s_mov_b32 s20, s16\ns_and_b32 s21, s17, 0xffff\ns_mov_b32 s22, s38\ns_mov_b32 s23, 0x20000")
    srd(P, 24, 6, WS_USED)
    P("v_and_b32 v3, 7, v1\nv_lshrrev_b32 v4, 3, v1")
    P("s_lshl_b32 s40, s32, 3\nv_mul_lo_u32 v5, v4, s40\nv_lshl_add_u32 v5, v3, 4, v5")
    P("v_lshrrev_b32 v6, 2, v3\nv_lshlrev_b32 v6, 1, v6\ns_lshl_b32 s41, s31, 2\nv_add_u32 v6, s41, v6\nv_add_u32 v7, 1, v6")
    for r in (6, 7):
        P(f"""v_mul_u32_u24 v8, 52429, v{r}
v_lshrrev_b32 v8, 18, v8
v_mul_u32_u24 v9, 5, v8
v_sub_u32 v9, v{r}, v9
v_and_b32 v8, s39, v8
v_cmp_eq_u32 vcc, 0, v9
v_mov_b32 v10, -1
v_cndmask_b32 v10, v10, 4, vcc
v_mul_i32_i24 v10, v10, v8
v_add_u32 v{r}, v{r}, v10""")
    P("v_lshrrev_b32 v8, 2, v4\nv_mul_lo_u32 v8, v8, s34\nv_and_b32 v9, 3, v4\nv_lshlrev_b32 v9, 8, v9\nv_and_b32 v10, 3, v3\nv_lshl_add_u32 v9, v10, 6, v9")
    P("v_add_u32 v11, v8, v6\nv_lshl_add_u32 v11, v11, 10, v9\nv_add_u32 v12, v8, v7\nv_lshl_add_u32 v12, v12, 10, v9")
    for x in range(8): P(f"v_mov_b32 v{16+x}, 0")
    P(f"v_mov_b32 v14, {ONES}\ns_mov_b32 s42, 0x05040100\ns_mov_b32 s43, 0x07060302")
    P("s_mov_b32 s44, s30")
    P("L_prep_loop:")
    P("s_cmp_ge_u32 s44, s36\ns_cbranch_scc1 L_prep_done")
    P("s_lshl_b32 s45, s44, 6\ns_add_u32 s45, s45, s35\ns_mul_i32 s46, s45, s32\ns_lshl_b32 s47, s31, 7\ns_add_u32 s46, s46, s47")
    for e in range(8):
        P(f"buffer_load_dwordx4 v[{32+4*e}:{35+4*e}], v5, s[20:23], s46 offen")
        if e < 7: P("s_add_u32 s46, s46, s32")
    P("s_lshr_b32 s45, s45, 5\ns_mul_i32 s45, s45, s34\ns_lshl_b32 s45, s45, 10\ns_add_u32 s45, s45, s33")
    P("s_waitcnt vmcnt(0)")
    for x in range(8):
        for m in range(4):
            sel = "s42" if x % 2 == 0 else "s43"
            P(f"v_perm_b32 v{64+4*x+m}, v{32+4*(2*m+1)+x//2}, v{32+4*(2*m)+x//2}, {sel}")
    for x in range(8):
        P(f"buffer_store_dwordx4 v[{64+4*x}:{67+4*x}], v{11 + x//4}, s[24:27], s45 offen offset:{(x&3)*16}")
    for m in range(4):
        for x in range(8):
            P(f"v_dot2c_f32_bf16 v{16+x}, v{64+4*x+m}, v14")
    P("s_add_u32 s44, s44, 4\ns_nop 4\ns_branch L_prep_loop")
    P("L_prep_done:")
    P("s_cmp_eq_u32 s37, 0\ns_cbranch_scc1 L_prep_end")
    P("s_nop 4\nv_lshrrev_b32 v8, 3, v0\nv_lshlrev_b32 v8, 8, v8\nv_lshl_add_u32 v8, v3, 5, v8")
    P("ds_write_b128 v8, v[16:19]\nds_write_b128 v8, v[20:23] offset:16\ns_waitcnt lgkmcnt(0)\ns_barrier")
    P("s_cmp_lg_u32 s30, 0\ns_cbranch_scc1 L_prep_end")
    P("v_lshlrev_b32 v8, 2, v1")
    for r in range(32): P(f"ds_read_b32 v{32+r}, v8 offset:{r*256}")
    P("s_waitcnt lgkmcnt(0)")
    for r in range(1, 32): P(f"v_add_f32 v32, v32, v{32+r}")
    P("""v_lshrrev_b32 v6, 5, v1
v_lshlrev_b32 v6, 1, v6
v_bfe_u32 v7, v1, 2, 1
v_add3_u32 v6, v6, v7, s41
v_mul_u32_u24 v8, 52429, v6
v_lshrrev_b32 v8, 18, v8
v_mul_u32_u24 v9, 5, v8
v_sub_u32 v9, v6, v9
v_and_b32 v8, s39, v8
v_cmp_eq_u32 vcc, 0, v9
v_mov_b32 v10, -1
v_cndmask_b32 v10, v10, 4, vcc
v_mul_i32_i24 v10, v10, v8
v_add_u32 v6, v6, v10
v_bfe_u32 v7, v1, 3, 2
v_and_b32 v9, 3, v1
v_lshl_add_u32 v7, v7, 2, v9
v_lshl_add_u32 v6, v6, 4, v7
v_lshlrev_b32 v6, 2, v6
buffer_store_dword v32, v6, s[24:27], s37 offen""")
    P("L_prep_end:\ns_endpgm")
    return (name, 87, 256, 8192, 96)

def gen_qkv(P):
    name = "qkv_kernel"
    header(P, name)
    NSLOT = 4
    STAT = NSLOT * 32768
    P("s_cmp_ge_u32 s2, 240\ns_cbranch_scc1 L_qkv_end")
    stamp_begin(P)
    P(f"s_load_dwordx4 s[4:7], s[0:1], 0\ns_load_dwordx2 s[8:9], s[0:1], {ARG['ws']}")
    P("v_and_b32 v1, 63, v0\nv_lshrrev_b32 v2, 6, v0\nv_readfirstlane_b32 s30, v2")
    P("""s_and_b32 s31, s2, 7
s_lshr_b32 s32, s2, 3
s_lshl_b32 s31, s31, 1
s_cmp_ge_u32 s32, 15
s_cselect_b32 s33, 15, 0
s_addc_u32 s31, s31, 0
s_sub_u32 s32, s32, s33""")
    P("s_lshr_b32 s34, s30, 1\ns_and_b32 s35, s30, 1")
    P("v_lshrrev_b32 v8, 3, v1\nv_and_b32 v9, 7, v1\nv_lshrrev_b32 v10, 4, v1")
    for i in range(4):
        P(f"v_add_u32 v11, {8*i}, v8\nv_mul_u32_u24 v11, 1280, v11\nv_add_u32 v12, {4*i}, v10\nv_and_b32 v12, 7, v12\nv_xor_b32 v12, v12, v9\nv_lshl_add_u32 v{4+i}, v12, 4, v11")
    P("v_mul_u32_u24 v11, 3840, v10\nv_bfe_u32 v12, v1, 2, 2\nv_xor_b32 v12, v12, v10\nv_lshl_add_u32 v11, v12, 6, v11\nv_and_b32 v12, 3, v1\nv_lshl_add_u32 v3, v12, 4, v11")
    P("s_lshl_b32 s36, s31, 2\ns_add_u32 s36, s36, s30\ns_mul_i32 s36, s36, 40960")
    P("s_mul_i32 s37, s30, 61440\ns_lshl_b32 s38, s32, 8\ns_add_u32 s37, s37, s38")
    P("s_lshl_b32 s39, s30, 12")
    P("s_waitcnt lgkmcnt(0)")
    srd(P, 12, 4, SZ); srd(P, 16, 6, 640 * 3840); srd(P, 20, 8, WS_USED)
    def dma(st):
        slot = (st % NSLOT) * 32768
        for i in range(4):
            P(f"s_add_u32 m0, s39, {slot + i*1024}\ns_add_u32 s40, s36, {st*128}\nbuffer_load_dwordx4 v{4+i}, s[12:15], s40 offen lds")
        for i in range(4):
            P(f"s_add_u32 m0, s39, {slot + 16384 + i*1024}\ns_add_u32 s40, s37, {(st*64 + 4*i)*3840}\nbuffer_load_dwordx4 v3, s[16:19], s40 offen lds")
    stamp(P)
    for st in range(NSLOT): dma(st)
    stamp(P)
    P("""v_and_b32 v8, 31, v1
v_lshrrev_b32 v9, 5, v1
s_lshl_b32 s41, s34, 6
v_add_u32 v10, s41, v8
v_bfe_u32 v11, v10, 1, 3
v_xor_b32 v11, v11, v9
v_lshlrev_b32 v11, 4, v11
v_lshl_add_u32 v20, v10, 7, v11
s_lshl_b32 s41, s35, 12
v_add_u32 v20, s41, v20""")
    for kk in range(1, 4): P(f"v_xor_b32 v{20+kk}, {kk*32}, v20")
    for kk in range(4): P(f"v_add_u32 v{24+kk}, 0x10000, v{20+kk}")
    for kk in range(8): P(f"v_xor_b32 v{40+kk}, 0x1000, v{20+kk}")
    P("""v_bfe_u32 v10, v1, 2, 2
v_lshl_add_u32 v11, v9, 3, v10
v_lshlrev_b32 v11, 8, v11
v_bfe_u32 v12, v1, 4, 1
v_lshl_add_u32 v11, v12, 5, v11
v_and_b32 v12, 3, v1
v_lshl_add_u32 v11, v12, 3, v11
s_lshl_b32 s41, s35, 1
s_add_u32 s41, s41, s34
v_xor_b32 v12, s41, v10
v_lshl_add_u32 v28, v12, 6, v11
v_xor_b32 v29, 64, v28
v_add_u32 v30, 0x10000, v28
v_add_u32 v31, 0x10000, v29""")
    ACC = 64
    FX = 128
    FW = 144
    SS, SQ, SC = 32, 33, 34
    P(f"v_mov_b32 v{SS}, 0\nv_mov_b32 v{SQ}, 0\nv_mov_b32 v{SC}, 0\nv_mov_b32 v35, {ONES}")
    for r in range(64): P(f"v_mov_b32 v{ACC+r}, 0")
    P("s_cmp_ge_u32 s32, 10\ns_cbranch_scc1 L_qkv_v")
    for variant in ("qk", "v"):
        if variant == "v": P("L_qkv_v:")
        def reads(n):
            st, kk = divmod(n, 4)
            b = n & 1
            slot = (st % NSLOT) * 32768
            hi = slot >= 65536
            off = slot - (65536 if hi else 0)
            for rt in range(2):
                P(f"ds_read_b128 v[{FX+b*8+rt*4}:{FX+b*8+rt*4+3}], v{(40 if rt else 20)+(4 if hi else 0)+kk} offset:{off}")
            for ct in range(2):
                ar = 28 + ct + (2 if hi else 0)
                P(f"ds_read_b64_tr_b16 v[{FW+b*8+ct*4}:{FW+b*8+ct*4+1}], v{ar} offset:{off+16384+kk*4096}")
                P(f"ds_read_b64_tr_b16 v[{FW+b*8+ct*4+2}:{FW+b*8+ct*4+3}], v{ar} offset:{off+16384+kk*4096+1024}")
        def enter(st):
            issued = min(10, NSLOT + max(0, st - 1))
            P(f"s_waitcnt vmcnt({8*(issued-st-1)}) lgkmcnt(0)\ns_barrier")
            nxt = st - 1 + NSLOT
            if st >= 1 and nxt < 10: dma(nxt)
        if variant == "qk":
            pass
        _sn[0] = 3
        stamp(P)
        enter(0); stamp(P); reads(0)
        for n in range(40):
            b = n & 1
            if n + 1 < 40:
                if (n + 1) % 4 == 0: enter((n + 1) // 4)
                if n + 1 == 20: stamp(P)
                reads(n + 1)
                P("s_waitcnt lgkmcnt(6)")
            else:
                P("s_waitcnt lgkmcnt(0)")
            dots = []
            for m in range(4):
                dots.append(f"v_dot2c_f32_bf16 v{SS}, v{FX+b*8+m}, v35")
                dots.append(f"v_dot2c_f32_bf16 v{SQ}, v{FX+b*8+m}, v{FX+b*8+m}")
                dots.append(f"v_dot2c_f32_bf16 v{SC}, v{FW+b*8+m}, v35")
            for t in range(4):
                rt, ct = t >> 1, t & 1
                x = v(FX + b*8 + rt*4, 4); w = v(FW + b*8 + ct*4, 4); d = v(ACC + t*16, 16)
                if variant == "qk": P(f"v_mfma_f32_32x32x16_bf16 {d}, {w}, {x}, {d}")
                else: P(f"v_mfma_f32_32x32x16_bf16 {d}, {x}, {w}, {d}")
                for dd in dots[3*t:3*t+3]: P(dd)
        stamp(P)
        P(f"v_mov_b32 v36, v{SS}\nv_mov_b32 v37, v{SQ}\nv_mov_b32 v38, v{SC}")
        P(f"v_permlane32_swap_b32 v{SS}, v36\nv_permlane32_swap_b32 v{SQ}, v37\nv_permlane32_swap_b32 v{SC}, v38")
        P(f"v_add_f32 v{SS}, v{SS}, v36\nv_add_f32 v{SQ}, v{SQ}, v37\nv_add_f32 v{SC}, v{SC}, v38")
        P(f"v_mul_f32 v{SS}, {f2u(1/640)}, v{SS}\nv_mul_f32 v{SQ}, {f2u(1/640)}, v{SQ}\nv_fma_f32 v{SQ}, -v{SS}, v{SS}, v{SQ}\nv_max_f32 v{SQ}, 0, v{SQ}\nv_add_f32 v{SQ}, {f2u(EPS)}, v{SQ}\nv_rsq_f32 v{SQ}, v{SQ}")
        if variant == "qk":
            P(f"s_cmp_lt_u32 s32, 5\ns_cselect_b32 s41, {f2u(20**-0.5*LOG2E)}, 1.0\nv_mul_f32 v{SQ}, s41, v{SQ}")
        P(f"v_mul_f32 v{SS}, v{SS}, v{SQ}")
        P(f"""s_lshl_b32 s41, s34, 1
s_add_u32 s41, s41, s35
s_lshl_b32 s41, s41, 7
s_add_u32 s41, s41, {STAT}
v_and_b32 v36, 31, v1
v_lshl_add_u32 v37, v36, 2, s41
ds_write_b32 v37, v{SQ}
ds_write_b32 v37, v{SS} offset:512
s_lshl_b32 s41, s35, 1
s_add_u32 s41, s41, s34
s_lshl_b32 s41, s41, 7
s_add_u32 s41, s41, {STAT}
v_lshl_add_u32 v37, v36, 2, s41
ds_write_b32 v37, v{SC} offset:1024
s_waitcnt lgkmcnt(0)
s_barrier""")
        if variant == "qk":
            P(f"""s_lshl_b32 s41, s34, 1
s_add_u32 s41, s41, s35
s_lshl_b32 s41, s41, 7
s_add_u32 s41, s41, {STAT}
v_lshl_add_u32 v37, v36, 2, s41
v_xor_b32 v38, 128, v37
ds_read_b32 v40, v37
ds_read_b32 v42, v37 offset:512
ds_read_b32 v44, v38
ds_read_b32 v46, v38 offset:512
s_lshl_b32 s41, s35, 1
s_add_u32 s41, s41, s34
s_lshl_b32 s41, s41, 7
s_add_u32 s41, s41, {STAT+1024}
v_lshrrev_b32 v39, 5, v1
v_lshl_add_u32 v37, v39, 4, s41
v_xor_b32 v38, 128, v37""")
            for ct in range(2):
                for b in range(4):
                    P(f"ds_read_b128 v[{128+ct*16+b*4}:{128+ct*16+b*4+3}], v{37+ct} offset:{b*32}")
            P(f"""s_cmp_ge_u32 s32, 5
s_cselect_b32 s42, {K_OFF - 5*32*256}, {Q_OFF}
s_lshl_b32 s43, s32, 13
s_add_u32 s42, s42, s43
s_lshl_b32 s43, s35, 12
s_add_u32 s42, s42, s43
s_lshl_b32 s43, s31, 2
s_lshl_b32 s44, s34, 1
s_add_u32 s43, s43, s44
s_add_u32 s44, s43, s35
s_xor_b32 s45, s44, 1
s_mul_i32 s44, s44, 40960
s_mul_i32 s45, s45, 40960
s_add_u32 s44, s44, s42
s_add_u32 s45, s45, s42
v_lshlrev_b32 v37, 3, v36
v_lshl_add_u32 v37, v39, 8, v37
s_lshl_b32 s43, s34, 11
v_add_u32 v37, s43, v37
v_xor_b32 v38, 0x800, v37
s_waitcnt lgkmcnt(0)
v_mov_b32 v41, v40
v_mov_b32 v43, v42
v_mov_b32 v45, v44
v_mov_b32 v47, v46""")
            for t in range(4):
                rt, ct = t >> 1, t & 1
                A = v(40 + rt*4, 2); B = v(42 + rt*4, 2)
                for p in range(8):
                    r = ACC + t*16 + 2*p
                    P(f"v_pk_mul_f32 v[48:49], v[{128+ct*16+2*p}:{128+ct*16+2*p+1}], {B}" if False else f"v_pk_mul_f32 v[{48+2*(p&3)}:{49+2*(p&3)}], v[{128+ct*16+2*p}:{128+ct*16+2*p+1}], {B}")
                    P(f"v_pk_fma_f32 v[{r}:{r+1}], v[{r}:{r+1}], {A}, v[{48+2*(p&3)}:{49+2*(p&3)}] neg_lo:[0,0,1] neg_hi:[0,0,1]")
                for p in range(8):
                    r = ACC + t*16 + 2*p
                    P(f"v_cvt_pk_bf16_f32 v{160+t*8+p}, v{r}, v{r+1}")
                for b in range(4):
                    P(f"buffer_store_dwordx2 v[{160+t*8+2*b}:{160+t*8+2*b+1}], v{37+ct}, s[20:23], s{44+rt} offen offset:{b*512}")
            stamp(P); stamp_end(P, 1)
            P("s_endpgm")
        else:
            P(f"""s_lshl_b32 s41, s35, 1
s_add_u32 s41, s41, s34
s_lshl_b32 s41, s41, 7
s_add_u32 s41, s41, {STAT+1024}
v_lshl_add_u32 v37, v36, 2, s41
v_xor_b32 v38, 128, v37
ds_read_b32 v40, v37
ds_read_b32 v42, v38
s_lshl_b32 s41, s34, 1
s_add_u32 s41, s41, s35
s_lshl_b32 s41, s41, 7
s_add_u32 s41, s41, {STAT}
v_lshrrev_b32 v39, 5, v1
v_lshl_add_u32 v37, v39, 4, s41
v_xor_b32 v38, 128, v37""")
            for rt in range(2):
                for b in range(4):
                    P(f"ds_read_b128 v[{128+rt*32+b*4}:{128+rt*32+b*4+3}], v{37+rt} offset:{b*32}")
                    P(f"ds_read_b128 v[{144+rt*32+b*4}:{144+rt*32+b*4+3}], v{37+rt} offset:{512+b*32}")
            P(f"""s_sub_u32 s42, s32, 10
s_lshl_b32 s42, s42, 11
s_lshl_b32 s43, s35, 10
s_add_u32 s42, s42, s43
s_add_u32 s42, s42, {V_OFF}
s_lshl_b32 s43, s31, 2
s_lshl_b32 s44, s34, 1
s_add_u32 s43, s43, s44
s_add_u32 s44, s43, s35
s_xor_b32 s45, s44, 1
s_mul_i32 s44, s44, 40960
s_mul_i32 s45, s45, 40960
s_add_u32 s44, s44, s42
s_add_u32 s45, s45, s42
s_add_u32 s46, s44, 20480
s_add_u32 s47, s45, 20480
v_lshlrev_b32 v37, 4, v36
s_lshl_b32 s43, s34, 9
v_add_u32 v37, s43, v37
v_xor_b32 v38, 0x200, v37
v_mul_u32_u24 v39, 10240, v39
v_add_u32 v37, v37, v39
v_add_u32 v38, v38, v39
s_waitcnt lgkmcnt(0)
v_mov_b32 v41, v40
v_mov_b32 v43, v42""")
            for t in range(4):
                rt, ct = t >> 1, t & 1
                C = v(40 + ct*2, 2)
                for p in range(8):
                    r = ACC + t*16 + 2*p
                    P(f"v_pk_mul_f32 v[{48+2*(p&3)}:{49+2*(p&3)}], v[{144+rt*32+2*p}:{144+rt*32+2*p+1}], {C}")
                    P(f"v_pk_fma_f32 v[{r}:{r+1}], v[{r}:{r+1}], v[{128+rt*32+2*p}:{128+rt*32+2*p+1}], v[{48+2*(p&3)}:{49+2*(p&3)}] neg_lo:[0,0,1] neg_hi:[0,0,1]")
                for p in range(8):
                    r = ACC + t*16 + 2*p
                    P(f"v_cvt_pk_bf16_f32 v{192+t*8+p}, v{r}, v{r+1}")
                for u in range(2):
                    P(f"buffer_store_dwordx4 v[{192+t*8+4*u}:{192+t*8+4*u+3}], v{37+ct}, s[20:23], s{44+rt+2*u} offen")
    stamp(P); stamp_end(P, 1)
    P("L_qkv_end:\ns_endpgm")
    return (name, 240, 256, STAT + 2048, 256)

def gen_attn(P):
    name = "attn_kernel"
    header(P, name)
    P("s_cmp_ge_u32 s2, 256\ns_cbranch_scc1 L_at_end")
    stamp_begin(P)
    P(f"s_load_dwordx2 s[8:9], s[0:1], {ARG['ws']}")
    P("v_and_b32 v1, 63, v0\nv_lshrrev_b32 v2, 6, v0\nv_readfirstlane_b32 s30, v2")
    P("s_and_b32 s31, s2, 7\ns_lshr_b32 s32, s2, 3")
    P("s_cmp_ge_u32 s30, 4\ns_cselect_b32 s33, 9920, 0")
    for i in range(5):
        P(f"""v_add_u32 v3, {64*i}, v1
v_mul_u32_u24 v4, 52429, v3
v_lshrrev_b32 v4, 22, v4
v_mul_u32_u24 v5, 80, v4
v_sub_u32 v5, v3, v5
v_mul_u32_u24 v6, 52429, v5
v_lshrrev_b32 v6, 20, v6
v_mul_lo_u32 v6, v6, s33
v_mul_u32_u24 v4, 40960, v4
v_lshl_add_u32 v4, v5, 4, v4
v_add_u32 v{8+i}, v4, v6""")
    P(f"""s_cmp_ge_u32 s30, 4
s_mov_b32 s34, {K_OFF}
s_cmov_b32 s34, {V_OFF}
s_mov_b32 s35, 1280
s_cmov_b32 s35, 320
s_mul_i32 s35, s35, s32
s_add_u32 s34, s34, s35
s_and_b32 s36, s30, 3
s_lshl_b32 s37, s31, 1
s_add_u32 s36, s36, s37
s_mul_i32 s36, s36, {4*40960}
s_add_u32 s34, s34, s36
s_sub_u32 s34, s34, {8*40960}
s_mul_i32 s38, s30, 5120
s_waitcnt lgkmcnt(0)""")
    srd(P, 20, 8, WS_USED)
    stamp(P)
    for i in range(5):
        P(f"s_add_u32 m0, s38, {i*1024}\nbuffer_load_dwordx4 v{8+i}, s[20:23], s34 offen lds")
    QF = 16
    P(f"""s_lshl_b32 s39, s31, 3
s_add_u32 s39, s39, s30
s_mul_i32 s40, s39, 40960
s_mul_i32 s41, s32, 1280
s_add_u32 s40, s40, s41
v_and_b32 v3, 31, v1
v_lshrrev_b32 v4, 5, v1
v_lshlrev_b32 v5, 3, v3
v_lshl_add_u32 v6, v4, 9, v5
buffer_load_dwordx2 v[16:17], v6, s[20:23], s40 offen
buffer_load_dwordx2 v[18:19], v6, s[20:23], s40 offen offset:256
buffer_load_dwordx2 v[20:21], v5, s[20:23], s40 offen offset:1024
v_mov_b32 v22, 0
v_mov_b32 v23, 0""")
    P(f"""s_mul_i32 s41, s30, 1280
v_add_u32 v24, s41, v6
v_add_u32 v25, s41, v5
v_mul_u32_u24 v26, 320, v4
v_lshl_add_u32 v26, v3, 4, v26
v_add_u32 v26, s41, v26""")
    S = 32
    KF = 176
    VF = 192
    OA = 224
    for b in range(2): P(f"v_mov_b32 v{KF+b*8+6}, 0\nv_mov_b32 v{KF+b*8+7}, 0")
    for r in range(32): P(f"v_mov_b32 v{VF+r}, {ONES}")
    for r in range(16):
        m = 0
        for l in range(64):
            if 8*(r >> 2) + 4*(l >> 5) + (r & 3) <= (l & 31): m |= 1 << l
        P(f"s_mov_b32 s{48+2*r}, {m & 0xffffffff:#x}\ns_mov_b32 s{49+2*r}, {m >> 32:#x}")
    P("s_mov_b32 s44, 0x000fffff\ns_mov_b32 s45, 0x000fffff")
    stamp(P)
    P("s_waitcnt vmcnt(0)")
    P("v_cmp_gt_u32 vcc, 32, v1\nv_cndmask_b32 v20, 0, v20, vcc\nv_cndmask_b32 v21, 0, v21, vcc")
    P("s_barrier")
    def kread(t):
        b = t & 1
        P(f"ds_read_b64 v[{KF+b*8}:{KF+b*8+1}], v24 offset:{t*1280}\nds_read_b64 v[{KF+b*8+2}:{KF+b*8+3}], v24 offset:{t*1280+256}\nds_read_b64 v[{KF+b*8+4}:{KF+b*8+5}], v25 offset:{t*1280+1024}")
    stamp(P)
    P("s_waitcnt lgkmcnt(0)")
    kread(0)
    for t in range(9):
        b = t & 1
        if t + 1 < 9:
            kread(t + 1); P("s_waitcnt lgkmcnt(3)")
        else: P("s_waitcnt lgkmcnt(0)")
        d = v(S + 16*t, 16)
        P(f"v_mfma_f32_32x32x16_bf16 {d}, {v(KF+b*8,4)}, v[16:19], 0")
        P(f"v_mfma_f32_32x32x16_bf16 {d}, {v(KF+b*8+4,4)}, v[20:23], {d}")
    def vread(t):
        b = t & 3
        P("s_mov_b64 exec, s[44:45]")
        P(f"ds_read_b128 {v(VF+b*8,4)}, v26 offset:{20480+t*1280}\nds_read_b128 {v(VF+b*8+4,4)}, v26 offset:{20480+t*1280+640}")
        P("s_mov_b64 exec, -1")
    P("s_cmp_ge_u32 s39, 8\ns_cbranch_scc1 L_at_full\ns_nop 15")
    for t in range(8):
        P(f"s_cmp_ge_u32 s39, {8-t}\ns_cbranch_scc1 L_at_full")
        for r in range(16): P(f"v_mov_b32 v{S+16*t+r}, 0xff800000")
    P("L_at_full:")
    stamp(P)
    order = [1, 2, 3, 4, 5, 6, 7, 0]
    M = 28
    P(f"v_max3_f32 v{M}, v{S+16}, v{S+17}, v{S+18}\nv_max3_f32 v{M+1}, v{S+19}, v{S+20}, v{S+21}")
    lst = list(range(S + 22, S + 128))
    k = 0
    while lst:
        if len(lst) >= 2:
            a, b2 = lst.pop(0), lst.pop(0); P(f"v_max3_f32 v{M+k}, v{M+k}, v{a}, v{b2}")
        else:
            a = lst.pop(0); P(f"v_max_f32 v{M+k}, v{M+k}, v{a}")
        k ^= 1
    for r in range(16): P(f"v_cndmask_b32 v{S+r}, v{S+r}, v{S+128+r}, s[{48+2*r}:{49+2*r}]")
    for r in range(0, 16, 2):
        P(f"v_max3_f32 v{M+k}, v{M+k}, v{S+r}, v{S+r+1}"); k ^= 1
    P(f"v_max_f32 v{M}, v{M}, v{M+1}\nv_mov_b32 v{M+1}, v{M}\nv_permlane32_swap_b32 v{M}, v{M+1}\nv_max_f32 v{M}, v{M}, v{M+1}\nv_mov_b32 v{M+1}, v{M}")
    stamp(P)
    P("s_waitcnt lgkmcnt(0)")
    vread(1); vread(2); vread(3)
    first = True
    for idx, t in enumerate(order):
        base = S + 16*t
        for p in range(8):
            P(f"v_pk_add_f32 v[{base+2*p}:{base+2*p+1}], v[{base+2*p}:{base+2*p+1}], v[{M}:{M+1}] neg_lo:[0,1] neg_hi:[0,1]")
        for r in range(16): P(f"v_exp_f32 v{base+r}, v{base+r}")
        if t != 0:
            for p in range(8): P(f"v_cvt_pk_bf16_f32 v{base+p}, v{base+2*p}, v{base+2*p+1}")
            b = t & 3
            P("s_waitcnt lgkmcnt(4)")
            c = "0" if first else v(OA, 16)
            P(f"v_mfma_f32_32x32x16_bf16 {v(OA,16)}, {v(VF+b*8,4)}, {v(base,4)}, {c}")
            P(f"v_mfma_f32_32x32x16_bf16 {v(OA,16)}, {v(VF+b*8+4,4)}, {v(base+4,4)}, {v(OA,16)}")
            first = False
            nxt = t + 3
            if nxt <= 8: vread(nxt)
            elif nxt == 9:
                P("s_mov_b64 exec, s[44:45]")
                P(f"ds_read_b128 {v(VF+8,4)}, v26 offset:{20480}\nds_read_b128 {v(VF+12,4)}, v26 offset:{20480+640}")
                P("s_mov_b64 exec, -1")
            else:
                pass
        else:
            D = S + 128
            for r in range(16): P(f"v_cndmask_b32 v{D+r}, 0, v{base+r}, s[{48+2*r}:{49+2*r}]")
            for r in range(16): P(f"v_cndmask_b32 v{base+r}, v{base+r}, 0, s[{48+2*r}:{49+2*r}]")
            for p in range(8): P(f"v_cvt_pk_bf16_f32 v{base+p}, v{base+2*p}, v{base+2*p+1}")
            for p in range(8): P(f"v_cvt_pk_bf16_f32 v{D+p}, v{D+2*p}, v{D+2*p+1}")
            P("s_waitcnt lgkmcnt(0)")
            P(f"v_mfma_f32_32x32x16_bf16 {v(OA,16)}, {v(VF+0,4)}, {v(D,4)}, {v(OA,16)}")
            P(f"v_mfma_f32_32x32x16_bf16 {v(OA,16)}, {v(VF+4,4)}, {v(D+4,4)}, {v(OA,16)}")
            P(f"v_mfma_f32_32x32x16_bf16 {v(OA,16)}, {v(VF+8,4)}, {v(base,4)}, {v(OA,16)}")
            P(f"v_mfma_f32_32x32x16_bf16 {v(OA,16)}, {v(VF+12,4)}, {v(base+4,4)}, {v(OA,16)}")
    stamp(P)
    P(f"""s_mul_i32 s41, s32, 5
v_add_u32 v8, s41, v4
v_lshrrev_b32 v9, 4, v3
v_mul_u32_u24 v9, 20480, v9
v_and_b32 v10, 15, v3
v_lshl_add_u32 v9, v10, 4, v9""")
    for b in range(3):
        P(f"""v_add_u32 v10, {2*b}, v8
v_lshrrev_b32 v11, 1, v10
v_lshl_add_u32 v11, v11, 8, v9
v_and_b32 v10, 1, v10
v_lshl_add_u32 v{12+b}, v10, 3, v11""")
    P(f"v_cmp_gt_u32 vcc, 32, v1\nv_mov_b32 v10, 0x7ffffff0\nv_cndmask_b32 v14, v10, v14, vcc")
    P(f"s_mul_i32 s41, s39, 40960\ns_add_u32 s41, s41, {O_OFF}")
    P(f"v_rcp_f32 v28, v{OA+12}\nv_mov_b32 v29, v28")
    for p in range(6): P(f"v_pk_mul_f32 v[{OA+2*p}:{OA+2*p+1}], v[{OA+2*p}:{OA+2*p+1}], v[28:29]")
    for p in range(6): P(f"v_cvt_pk_bf16_f32 v{32+p}, v{OA+2*p}, v{OA+2*p+1}")
    for b in range(3): P(f"buffer_store_dwordx2 v[{32+2*b}:{33+2*b}], v{12+b}, s[20:23], s41 offen")
    stamp(P); stamp_end(P, 2)
    P("L_at_end:\ns_endpgm")
    return (name, 256, 512, 40960, 240)

def gen_gemm(P, name, kind):
    cfg = dict(
        wo=dict(KS=20, NT=5, NTT=40, SK=4, R=5, A=O_OFF, W=WO_OFF),
        w1=dict(KS=20, NT=5, NTT=40, SK=4, R=5, A=H_OFF, W=W1_OFF),
        w2=dict(KS=20, NT=5, NTT=40, SK=4, R=5, A=T_OFF, W=W2_OFF),
        w3=dict(KS=20, NT=14, NTT=108, SK=2, R=5, A=X1_OFF, W=W3_OFF),
        w4=dict(KS=54, NT=5, NTT=40, SK=4, R=7, A=G_OFF, W=W4_OFF))[kind]
    KS, NT, NTT, SK, R = cfg["KS"], cfg["NT"], cfg["NTT"], cfg["SK"], cfg["R"]
    NST = (KS + SK - 1) // SK
    CPW = SK * NT // 4
    SLOT = SK * NT * 1024
    XR = R * SLOT
    L = f"L_{kind}"
    header(P, name)
    P(f"s_cmp_ge_u32 s2, 256\ns_cbranch_scc1 {L}_end")
    stamp_begin(P)
    P(f"s_load_dwordx2 s[8:9], s[0:1], {ARG['ws']}\ns_load_dwordx2 s[4:5], s[0:1], {ARG['x'] if kind=='wo' else ARG['out']}")
    P("v_and_b32 v1, 63, v0\nv_lshrrev_b32 v2, 6, v0\nv_readfirstlane_b32 s30, v2\nv_lshlrev_b32 v3, 4, v1")
    P("s_and_b32 s31, s2, 7\ns_lshl_b32 s31, s31, 2\ns_bfe_u32 s33, s2, 0x20003\ns_add_u32 s31, s31, s33\ns_lshr_b32 s32, s2, 5\ns_lshl_b32 s33, s31, 2\ns_add_u32 s33, s33, s30")
    if NT == 5:
        P("s_mul_i32 s34, s32, 5")
        P("s_and_b32 s37, s32, 1\ns_lshr_b32 s35, s34, 1\ns_add_u32 s36, s35, 2\ns_lshl_b32 s38, s37, 1\ns_sub_u32 s36, s36, s38\ns_add_u32 s35, s35, s37")
        P(f"s_mul_i32 s38, s30, {NTT}\ns_add_u32 s38, s38, s34")
    else:
        P("s_mul_i32 s35, s32, 7\ns_min_u32 s35, s35, 47\ns_lshl_b32 s34, s35, 1")
        P(f"s_lshr_b32 s38, s30, 1\ns_mul_i32 s38, s38, {NTT}\ns_and_b32 s39, s30, 1\ns_mul_i32 s39, s39, 7\ns_add_u32 s38, s38, s39\ns_add_u32 s38, s38, s34")
    P(f"s_lshl_b32 s38, s38, 10\ns_add_u32 s38, s38, {cfg['W']}")
    P(f"s_mul_i32 s39, s30, {CPW*1024}")
    P(f"s_mul_i32 s40, s33, {KS*1024}\ns_add_u32 s40, s40, {cfg['A']}")
    P("s_waitcnt lgkmcnt(0)")
    srd(P, 20, 8, WS_USED); srd(P, 12, 4, SZ)
    stamp(P)
    ACC = 16; NACC = NT * 4
    D = 6
    BF = ACC + NACC
    EX = BF + (D + 1) * 4
    ST = EX; HR = ST + 4; XRg = HR + 12; CS = XRg + 12
    AF = CS + (NACC if kind in ("w1", "w3") else 0)
    AF = (AF + 3) // 4 * 4
    NV = AF + R * SK * 4
    assert NV <= 256, NV
    if NT == 5:
        P("s_mul_i32 s41, s33, 20\ns_add_u32 s42, s41, s36\ns_add_u32 s41, s41, s35\ns_lshl_b32 s41, s41, 10\ns_lshl_b32 s42, s42, 10\ns_lshl_b32 s43, s37, 3\ns_add_u32 s42, s42, s43")
    def tile_load(reg, off):
        P(f"s_add_u32 s43, s41, {off}\ns_add_u32 s44, s42, {off}")
        P(f"buffer_load_dwordx4 {v(reg,4)}, v3, s[20:23], s43 offen\nbuffer_load_dwordx4 {v(reg+4,4)}, v3, s[20:23], s43 offen offset:1024\nbuffer_load_dwordx2 {v(reg+8,2)}, v3, s[20:23], s44 offen")
    if kind in ("wo", "w4"):
        P("v_lshrrev_b32 v4, 2, v1\nv_mul_u32_u24 v4, 1280, v4\nv_and_b32 v5, 3, v1\nv_lshl_add_u32 v4, v5, 4, v4")
        P("s_mul_i32 s45, s33, 20480\ns_lshl_b32 s46, s35, 6\ns_add_u32 s46, s46, s45\ns_lshl_b32 s47, s36, 6\ns_add_u32 s47, s47, s45")
        P(f"s_mul_i32 s48, s30, 3072\ns_add_u32 s48, s48, {XR}")
        P("v_and_b32 v5, 15, v1\nv_lshlrev_b32 v5, 6, v5\nv_lshrrev_b32 v6, 4, v1\nv_lshl_add_u32 v5, v6, 4, v5\nv_add_u32 v5, s48, v5\ns_lshl_b32 s43, s37, 3\nv_add_u32 v6, s43, v5")
    if kind == "wo":
        P("s_mov_b32 m0, s48\nbuffer_load_dwordx4 v4, s[12:15], s46 offen lds")
        P("s_add_u32 m0, s48, 1024\ns_add_u32 s43, s46, 64\nbuffer_load_dwordx4 v4, s[12:15], s43 offen lds")
        P("s_add_u32 m0, s48, 2048\nbuffer_load_dwordx4 v4, s[12:15], s47 offen lds")
    if kind in ("w1", "w2", "w3"):
        P(f"s_lshl_b32 s43, s33, 10\ns_add_u32 s43, s43, {STX_OFF if kind=='w3' else STH_OFF}\nbuffer_load_dwordx4 {v(ST,4)}, v3, s[20:23], s43 offen")
    if kind in ("w1", "w3"):
        P(f"v_and_b32 v7, 0x30, v1\ns_lshl_b32 s43, s34, 6\ns_add_u32 s43, s43, {CS3_OFF if kind=='w3' else CS1_OFF}")
        for t in range(NT): P(f"buffer_load_dwordx4 {v(CS+4*t,4)}, v7, s[20:23], s43 offen offset:{t*64}")
    if kind in ("w2", "w4"): tile_load(HR, H_OFF)
    if kind == "w4": tile_load(XRg, X1_OFF)
    def group(st):
        slot = (st % R) * SLOT
        for i in range(CPW):
            if i % 4 == 0:
                P(f"s_add_u32 m0, s39, {slot + i*1024}\ns_add_u32 s43, s38, {st*SK*NTT*1024 + i*1024}")
            P(f"buffer_load_dwordx4 v3, s[20:23], s43 offen offset:{(i%4)*1024} lds")
        P(f"s_add_u32 s43, s40, {st*SK*1024}")
        for k in range(SK):
            P(f"buffer_load_dwordx4 {v(AF+((st%R)*SK+k)*4,4)}, v3, s[20:23], s43 offen offset:{k*1024}")
    G = CPW + SK
    INIT = min(R, NST)
    assert G * INIT <= 63 or True
    for st in range(INIT):
        if G * (st + 1) > 54: P(f"s_waitcnt vmcnt({63 - G})")
        group(st)
    stamp(P)
    P("v_add_u32 v8, 0x10000, v3\nv_add_u32 v9, 0x20000, v3")
    for r in range(NACC): P(f"v_mov_b32 v{ACC+r}, 0")
    items = [(ks, t) for ks in range(KS) for t in range(NT)]
    def rd(n):
        ks, t = items[n]
        st = ks // SK
        if ks % SK == 0 and t == 0:
            issued = min(NST, INIT + max(0, st - 2))
            P(f"s_waitcnt vmcnt({min(63, G*(issued-st-1))})\ns_barrier")
            if STAMP and st in (0, NST//2): stamp(P); P("s_waitcnt lgkmcnt(0)")
            nxt = st - 2 + R
            if st >= 2 and nxt < NST: group(nxt)
        off = (st % R) * SLOT + ((ks % SK) * NT + t) * 1024
        ar = 3 if off < 65536 else (8 if off < 131072 else 9)
        P(f"ds_read_b128 {v(BF+(n%(D+1))*4,4)}, v{ar} offset:{off % 65536}")
    for n in range(D): rd(n)
    for n in range(len(items)):
        ks, t = items[n]
        if n + D < len(items):
            rd(n + D); P(f"s_waitcnt lgkmcnt({D})")
        else:
            P(f"s_waitcnt lgkmcnt({len(items)-1-n})")
        st = ks // SK
        P(f"v_mfma_f32_16x16x32_bf16 {v(ACC+4*t,4)}, {v(BF+(n%(D+1))*4,4)}, {v(AF+((st%R)*SK+ks%SK)*4,4)}, {v(ACC+4*t,4)}")
    stamp(P)
    TMP = AF
    def unpack(dst, src, n):
        for i in range(n):
            P(f"v_lshlrev_b32 v{dst+2*i}, 16, v{src+i}\nv_and_b32 v{dst+2*i+1}, 0xffff0000, v{src+i}")
    def stats_in(double):
        P(f"v_add_f32 v{ST}, v{ST}, v{ST+2}\nv_add_f32 v{ST+1}, v{ST+1}, v{ST+3}")
        xg_reduce(P, [ST, ST+1], [ST+2, ST+3])
        P(f"v_mul_f32 v{ST}, {f2u(1/640)}, v{ST}\nv_mul_f32 v{ST+1}, {f2u(1/640)}, v{ST+1}\nv_fma_f32 v{ST+1}, -v{ST}, v{ST}, v{ST+1}\nv_max_f32 v{ST+1}, 0, v{ST+1}")
        P(f"v_add_f32 v{ST+2}, {f2u(EPS)}, v{ST+1}\nv_rsq_f32 v{ST+2}, v{ST+2}")
        if double:
            P(f"v_mul_f32 v{ST+1}, v{ST+1}, v{ST+2}\nv_mov_b32 v{ST+3}, {f2u(EPS)}\nv_fma_f32 v{ST+1}, v{ST+1}, v{ST+2}, v{ST+3}\nv_rsq_f32 v{ST+1}, v{ST+1}\nv_mul_f32 v{ST+2}, v{ST+2}, v{ST+1}")
        P(f"v_mul_f32 v{ST}, v{ST}, v{ST+2}\nv_mov_b32 v{ST+3}, v{ST+2}\nv_mov_b32 v{ST+1}, v{ST}")
    def pack(dst, n):
        for i in range(n): P(f"v_cvt_pk_bf16_f32 v{dst+i}, v{ACC+2*i}, v{ACC+2*i+1}")
    def stats_out(pk, off):
        P(f"v_mov_b32 v10, 0\nv_mov_b32 v11, 0\nv_mov_b32 v12, {ONES}")
        for i in range(10): P(f"v_dot2c_f32_bf16 v10, v{pk+i}, v12\nv_dot2c_f32_bf16 v11, v{pk+i}, v{pk+i}")
        xg_reduce(P, [10, 11], [12, 13])
        P(f"s_lshl_b32 s43, s33, 10\ns_lshr_b32 s44, s32, 1\ns_lshl_b32 s44, s44, 8\ns_add_u32 s43, s43, s44\ns_lshl_b32 s44, s37, 3\ns_add_u32 s43, s43, s44\ns_add_u32 s43, s43, {off}")
        P("s_mov_b64 exec, 0xffff\nbuffer_store_dwordx2 v[10:11], v3, s[20:23], s43 offen\ns_mov_b64 exec, -1")
    def tile_store(pk, off, vaddr=3):
        P(f"s_add_u32 s43, s41, {off}\ns_add_u32 s44, s42, {off}")
        P(f"buffer_store_dwordx4 {v(pk,4)}, v{vaddr}, s[20:23], s43 offen\nbuffer_store_dwordx4 {v(pk+4,4)}, v{vaddr}, s[20:23], s43 offen offset:1024\nbuffer_store_dwordx2 {v(pk+8,2)}, v{vaddr}, s[20:23], s44 offen")
    def gelu_ln():
        k = 2 * 0.7978845608028654 * LOG2E
        P(f"s_mov_b32 s50, {f2u(-k)}\ns_mov_b32 s51, {f2u(-k)}\nv_mov_b32 v10, {f2u(-k*0.044715)}\nv_mov_b32 v11, v10\nv_mov_b32 v12, {f2u(-k)}\nv_mov_b32 v13, v12")
        for i in range(0, NACC, 2):
            a = v(ACC+i, 2); c = v(CS+i, 2)
            P(f"v_pk_mul_f32 {c}, {c}, {v(ST,2)}\nv_pk_fma_f32 {a}, {a}, {v(ST+2,2)}, {c} neg_lo:[0,0,1] neg_hi:[0,0,1]")
        for i in range(0, NACC, 2):
            a = v(ACC+i, 2); c = v(CS+i, 2)
            P(f"v_pk_mul_f32 {c}, {a}, {a}\nv_pk_fma_f32 {c}, {c}, v[10:11], v[12:13]\nv_pk_mul_f32 {c}, {c}, {a}")
        for i in range(NACC): P(f"v_exp_f32 v{CS+i}, v{CS+i}")
        for i in range(0, NACC, 2):
            c = v(CS+i, 2); P(f"v_pk_add_f32 {c}, {c}, 1.0 op_sel_hi:[1,0]")
        for i in range(NACC): P(f"v_rcp_f32 v{CS+i}, v{CS+i}")
        for i in range(0, NACC, 2):
            a = v(ACC+i, 2); c = v(CS+i, 2); P(f"v_pk_mul_f32 {a}, {a}, {c}")
    PK = BF
    if kind == "wo":
        P(f"ds_read_b128 {v(HR,4)}, v5\nds_read_b128 {v(HR+4,4)}, v5 offset:1024\nds_read_b64 {v(HR+8,2)}, v6 offset:2048\ns_waitcnt lgkmcnt(0)")
        unpack(TMP, HR, 10)
        for i in range(0, 20, 2): P(f"v_pk_add_f32 {v(ACC+i,2)}, {v(ACC+i,2)}, {v(TMP+i,2)}")
        pack(PK, 10); tile_store(PK, H_OFF); stats_out(PK, STH_OFF)
    elif kind == "w1":
        stats_in(True); gelu_ln(); pack(PK, 10)
        P("s_lshr_b32 s43, s32, 2\ns_add_u32 s43, s43, 1\ns_sub_u32 s44, 0, s43\ns_bitcmp1_b32 s32, 1\ns_cselect_b32 s43, s44, s43")
        P("s_lshl_b32 s44, s33, 4\ns_add_u32 s44, s44, s43\nv_and_b32 v10, 15, v1\nv_add_u32 v10, s44, v10")
        P("v_cmp_gt_u32 vcc, 2048, v10\nv_and_b32 v10, 2047, v10\nv_lshrrev_b32 v11, 4, v10\nv_mul_u32_u24 v11, 20480, v11\nv_and_b32 v10, 15, v10\nv_lshl_add_u32 v11, v10, 4, v11\nv_and_b32 v10, 0x30, v1\nv_lshl_add_u32 v11, v10, 4, v11")
        for i in range(10): P(f"v_cndmask_b32 v{PK+i}, 0, v{PK+i}, vcc")
        P("s_mul_i32 s45, s33, 20480\ns_sub_u32 s41, s41, s45\ns_sub_u32 s42, s42, s45")
        tile_store(PK, T_OFF, 11)
    elif kind == "w2":
        stats_in(False)
        unpack(TMP, HR, 10)
        for i in range(0, 20, 2):
            P(f"v_pk_fma_f32 {v(TMP+i,2)}, {v(TMP+i,2)}, {v(ST+2,2)}, {v(ST,2)} neg_lo:[0,0,1] neg_hi:[0,0,1]\nv_pk_add_f32 {v(ACC+i,2)}, {v(ACC+i,2)}, {v(TMP+i,2)}")
        pack(PK, 10); tile_store(PK, X1_OFF); stats_out(PK, STX_OFF)
    elif kind == "w3":
        stats_in(False); gelu_ln(); pack(PK, 28)
        P(f"s_mul_i32 s43, s33, 54\ns_add_u32 s43, s43, s35\ns_lshl_b32 s43, s43, 10\ns_add_u32 s43, s43, {G_OFF}\ns_add_u32 s44, s43, 4096")
        for c in range(7): P(f"buffer_store_dwordx4 {v(PK+4*c,4)}, v3, s[20:23], s{43+c//4} offen offset:{(c%4)*1024}")
    elif kind == "w4":
        unpack(TMP, HR, 10); unpack(TMP+20, XRg, 10)
        for i in range(0, 20, 2):
            P(f"v_pk_add_f32 {v(ACC+i,2)}, {v(ACC+i,2)}, {v(TMP+20+i,2)}\nv_pk_add_f32 {v(ACC+i,2)}, {v(ACC+i,2)}, {v(TMP+i,2)}")
        pack(PK, 10)
        P(f"ds_write_b128 v5, {v(PK,4)}\nds_write_b128 v5, {v(PK+4,4)} offset:1024\nds_write_b64 v5, {v(PK+8,2)} offset:2048")
        P(f"v_add_u32 v10, s48, v3\ns_waitcnt lgkmcnt(0)")
        P(f"ds_read_b128 {v(TMP,4)}, v10\nds_read_b128 {v(TMP+4,4)}, v10 offset:1024\nds_read_b64 {v(TMP+8,2)}, v10 offset:2048")
        P("s_lshl_b32 s43, s37, 3\ns_add_u32 s47, s47, s43\ns_waitcnt lgkmcnt(0)")
        P(f"buffer_store_dwordx4 {v(TMP,4)}, v4, s[12:15], s46 offen\nbuffer_store_dwordx4 {v(TMP+4,4)}, v4, s[12:15], s46 offen offset:64\nbuffer_store_dwordx2 {v(TMP+8,2)}, v4, s[12:15], s47 offen")
    stamp(P); stamp_end(P, 3 + ["wo","w1","w2","w3","w4"].index(kind))
    P(f"{L}_end:\ns_endpgm")
    return (name, 256, 256, XR + 12288, NV)

def main(path):
    P = Prog()
    ks = []
    ks.append(gen_prep(P))
    ks.append(gen_qkv(P))
    ks.append(gen_attn(P))
    for kind in ("wo", "w1", "w2", "w3", "w4"):
        ks.append(gen_gemm(P, f"{kind}_kernel", kind))
    hdr = "; generated by gen1.py\n"
    for (n, g, b, lds, nv) in ks:
        hdr += f"; @launch kernel={n} grid=({g},1,1) block=({b},1,1) lds={lds}\n"
    txt = hdr + '.amdgcn_target "amdgcn-amd-amdhsa--gfx950"\n.text\n' + P.render() + '.section .rodata,"a"\n'
    for (n, g, b, lds, nv) in ks: txt += kdesc(n, nv)
    open(path, "w").write(txt)
    print(ks)

if __name__ == "__main__":
    if len(sys.argv) > 2 and sys.argv[2] == "stamp": STAMP = True
    main(sys.argv[1] if len(sys.argv) > 1 else f"cdna_kernels/{NAME}.s")
```

```python
import sys, math, struct
sys.path.insert(0, "gen")
from asmlib import *
import gen1
from gen1 import f2u, LOG2E, ONES, EPS, ARG, SZ, srd, header, xg_reduce, NAME

Q_OFF, K_OFF, V_OFF, TH_OFF = [i * SZ for i in range(4)]
O_OFF, H_OFF, T_OFF, X1_OFF = Q_OFF, K_OFF, V_OFF, Q_OFF
GX_OFF = 4 * SZ
DUMMY_OFF = GX_OFF + 128 * 16384
NSTG = 43
SLICE_B = NSTG * 20480
WS_OFF = DUMMY_OFF + 4096
CS1_OFF = WS_OFF + 8 * SLICE_B
CS3_OFF = CS1_OFF + 4096
FLAG_OFF = CS3_OFF + 8192
FO_OFF = FLAG_OFF
FR_OFF = FO_OFF + 8192
FHL_OFF = FR_OFF + 16384
FX_OFF = FHL_OFF + 16384
FLAG_BYTES = 8192 + 16384 + 16384 + 1024
WS_USED = FLAG_OFF + FLAG_BYTES
for n in ("Q_OFF","K_OFF","V_OFF","O_OFF","WS_USED"): setattr(gen1, n, globals()[n])
OVERLAY = True

STAMP = False
STAMP_OFF = 0x4000000
class Stamper:
    def __init__(s, P, base=70, n=16): s.P = P; s.i = 0; s.base = base; s.n = n
    def __call__(s, idx=None):
        if not STAMP: return
        if idx is not None: s.i = idx
        assert s.i < s.n
        s.P(f"s_memtime s[{s.base+2*s.i}:{s.base+2*s.i+1}]"); s.i += 1

def gen_prep(P):
    name = "prep_kernel"
    header(P, name)
    P("s_cmp_ge_u32 s2, 88\ns_cbranch_scc1 L_prep_end")
    P(f"s_load_dwordx2 s[4:5], s[0:1], {ARG['wo']}\ns_load_dwordx4 s[8:11], s[0:1], {ARG['w1']}\ns_load_dwordx4 s[12:15], s[0:1], {ARG['w3']}\ns_load_dwordx2 s[6:7], s[0:1], {ARG['ws']}")
    P("v_and_b32 v1, 63, v0\nv_lshrrev_b32 v2, 6, v0\nv_readfirstlane_b32 s30, v2")
    P("s_waitcnt lgkmcnt(0)")
    srd(P, 24, 6, WS_USED)
    P("s_cmp_lg_u32 s2, 87\ns_cbranch_scc1 L_prep_work")
    P("v_lshlrev_b32 v3, 4, v0\nv_mov_b32 v4, 0\nv_mov_b32 v5, 0\nv_mov_b32 v6, 0\nv_mov_b32 v7, 0")
    for i in range((FLAG_BYTES + 4095) // 4096):
        P(f"s_mov_b32 s31, {FLAG_OFF + i*4096}\nbuffer_store_dwordx4 v[4:7], v3, s[24:27], s31 offen")
    P("s_endpgm")
    P("L_prep_work:")
    P(f"""s_mov_b32 s16, s4
s_mov_b32 s17, s5
s_mov_b32 s31, s2
s_mov_b32 s32, 1280
s_mov_b32 s33, 0
s_mov_b32 s35, 0
s_mov_b32 s36, 10
s_mov_b32 s37, 0
s_mov_b32 s38, 819200
s_mov_b32 s39, 0
s_cmp_lt_u32 s2, 10
s_cbranch_scc1 L_prep_go
s_mov_b32 s16, s8
s_mov_b32 s17, s9
s_sub_u32 s31, s2, 10
s_mov_b32 s33, 5
s_mov_b32 s37, {CS1_OFF}
s_cmp_lt_u32 s2, 20
s_cbranch_scc1 L_prep_go
s_mov_b32 s16, s10
s_mov_b32 s17, s11
s_sub_u32 s31, s2, 20
s_mov_b32 s33, 10
s_mov_b32 s37, 0
s_cmp_lt_u32 s2, 30
s_cbranch_scc1 L_prep_go
s_mov_b32 s16, s12
s_mov_b32 s17, s13
s_sub_u32 s31, s2, 30
s_mov_b32 s32, 3456
s_mov_b32 s33, 15
s_mov_b32 s37, {CS3_OFF}
s_mov_b32 s38, 2211840
s_mov_b32 s39, 1
s_cmp_lt_u32 s2, 57
s_cbranch_scc1 L_prep_go
s_mov_b32 s16, s14
s_mov_b32 s17, s15
s_sub_u32 s31, s2, 57
s_mov_b32 s32, 1280
s_mov_b32 s33, 29
s_mov_b32 s36, 9
s_mov_b32 s37, 0
s_mov_b32 s39, 2
s_cmp_lt_u32 s31, 10
s_cbranch_scc1 L_prep_go
s_sub_u32 s31, s31, 10
s_mov_b32 s35, 576
s_cmp_lt_u32 s31, 10
s_cbranch_scc1 L_prep_go
s_sub_u32 s31, s31, 10
s_mov_b32 s35, 1152
L_prep_go:""")
    P("s_mov_b32 s20, s16\ns_and_b32 s21, s17, 0xffff\ns_mov_b32 s22, s38\ns_mov_b32 s23, 0x20000")
    P("v_and_b32 v3, 7, v1\nv_lshrrev_b32 v4, 3, v1")
    P("s_lshl_b32 s40, s32, 3\nv_mul_lo_u32 v5, v4, s40\nv_lshl_add_u32 v5, v3, 4, v5")
    P("s_lshl_b32 s41, s31, 2")
    def chunk_sq(c, sreg, qreg, t1):
        P(f"""v_mul_u32_u24 v{sreg}, 9363, v{c}
v_lshrrev_b32 v{sreg}, 16, v{sreg}
v_cmp_eq_u32 vcc, 48, v{c}
v_cndmask_b32 v{sreg}, v{sreg}, 7, vcc
v_mul_u32_u24 v{qreg}, 7, v{sreg}
v_sub_u32 v{qreg}, v{c}, v{qreg}
v_cmp_eq_u32 vcc, 7, v{sreg}
v_cndmask_b32 v{t1}, 0, 1, vcc
v_add_u32 v{qreg}, v{qreg}, v{t1}""")
    def tile_dest(T, out, pos):
        P(f"""v_mul_u32_u24 v8, 52429, v{T}
v_lshrrev_b32 v8, 18, v8
v_mul_u32_u24 v9, 5, v8
v_sub_u32 v9, v{T}, v9
v_cmp_eq_u32 vcc, 0, v9
v_mov_b32 v10, -1
v_cndmask_b32 v10, v10, 4, vcc
v_and_b32 v13, 1, v8
v_mul_i32_i24 v10, v10, v13
v_add_u32 v9, v9, v10
v_add_u32 v{pos}, v{T}, v10
v_mul_lo_u32 v8, v8, s48
v_lshl_add_u32 v{out}, v9, 10, v8
s_cmp_lg_u32 s39, 1""")
        lab = f"L_prep_td{out}_{pos}"
        P(f"s_cbranch_scc1 {lab}")
        P(f"v_lshrrev_b32 v13, 1, v{T}")
        chunk_sq(13, 8, 9, 10)
        P(f"v_and_b32 v10, 1, v{T}\nv_lshl_add_u32 v9, v9, 1, v10\nv_mul_lo_u32 v8, v8, s48\nv_mul_u32_u24 v9, 20480, v9\nv_add_u32 v{out}, v8, v9\nv_mov_b32 v{pos}, v{T}")
        P(f"{lab}:")
    P(f"s_mov_b32 s48, {SLICE_B}")
    P("v_lshrrev_b32 v6, 2, v3\nv_lshlrev_b32 v6, 1, v6\nv_add_u32 v6, s41, v6\nv_add_u32 v7, 1, v6")
    tile_dest(6, 11, 15); tile_dest(7, 12, 15)
    P("v_and_b32 v9, 3, v4\nv_lshlrev_b32 v9, 8, v9\nv_and_b32 v10, 3, v3\nv_lshl_add_u32 v9, v10, 6, v9\nv_add_u32 v11, v11, v9\nv_add_u32 v12, v12, v9")
    for x in range(8): P(f"v_mov_b32 v{16+x}, 0")
    P(f"v_mov_b32 v14, {ONES}\ns_mov_b32 s42, 0x05040100\ns_mov_b32 s43, 0x07060302")
    P(f"s_mul_i32 s49, s33, 20480\ns_add_u32 s49, s49, {WS_OFF}")
    P("s_cmp_eq_u32 s39, 1\ns_mov_b32 s50, 5120\ns_cmov_b32 s50, 1024")
    P("s_mov_b32 s44, s30")
    P("L_prep_loop:")
    P("s_cmp_ge_u32 s44, s36\ns_cbranch_scc1 L_prep_done")
    P("s_lshl_b32 s45, s44, 6\ns_add_u32 s45, s45, s35\ns_mul_i32 s46, s45, s32\ns_lshl_b32 s47, s31, 7\ns_add_u32 s46, s46, s47")
    for e in range(8):
        P(f"buffer_load_dwordx4 v[{32+4*e}:{35+4*e}], v5, s[20:23], s46 offen")
        if e < 7: P("s_add_u32 s46, s46, s32")
    P("s_lshr_b32 s45, s45, 5\nv_lshrrev_b32 v13, 2, v4\nv_add_u32 v13, s45, v13")
    P("s_cmp_lg_u32 s39, 2\ns_cbranch_scc1 L_prep_np")
    chunk_sq(13, 8, 9, 10)
    P("v_lshl_add_u32 v13, v9, 3, v8")
    P("L_prep_np:")
    P("v_mul_lo_u32 v13, v13, s50\nv_add_u32 v24, v13, v11\nv_add_u32 v25, v13, v12")
    P("s_waitcnt vmcnt(0)")
    for x in range(8):
        for m in range(4):
            sel = "s42" if x % 2 == 0 else "s43"
            P(f"v_perm_b32 v{64+4*x+m}, v{32+4*(2*m+1)+x//2}, v{32+4*(2*m)+x//2}, {sel}")
    for x in range(8):
        P(f"buffer_store_dwordx4 v[{64+4*x}:{67+4*x}], v{24 + x//4}, s[24:27], s49 offen offset:{(x&3)*16}")
    for m in range(4):
        for x in range(8):
            P(f"v_dot2c_f32_bf16 v{16+x}, v{64+4*x+m}, v14")
    P("s_add_u32 s44, s44, 4\ns_nop 4\ns_branch L_prep_loop")
    P("L_prep_done:")
    P("s_cmp_eq_u32 s37, 0\ns_cbranch_scc1 L_prep_end")
    P("s_nop 4\nv_lshrrev_b32 v8, 3, v0\nv_lshlrev_b32 v8, 8, v8\nv_lshl_add_u32 v8, v3, 5, v8")
    P("ds_write_b128 v8, v[16:19]\nds_write_b128 v8, v[20:23] offset:16\ns_waitcnt lgkmcnt(0)\ns_barrier")
    P("s_cmp_lg_u32 s30, 0\ns_cbranch_scc1 L_prep_end")
    P("v_lshlrev_b32 v8, 2, v1")
    for r in range(32): P(f"ds_read_b32 v{32+r}, v8 offset:{r*256}")
    P("s_waitcnt lgkmcnt(0)")
    for r in range(1, 32): P(f"v_add_f32 v32, v32, v{32+r}")
    P("v_lshrrev_b32 v6, 5, v1\nv_lshlrev_b32 v6, 1, v6\nv_bfe_u32 v7, v1, 2, 1\nv_add3_u32 v6, v6, v7, s41")
    tile_dest(6, 12, 26)
    P("""v_bfe_u32 v7, v1, 3, 2
v_and_b32 v9, 3, v1
v_lshl_add_u32 v7, v7, 2, v9
v_lshl_add_u32 v6, v26, 4, v7
v_lshlrev_b32 v6, 2, v6
buffer_store_dword v32, v6, s[24:27], s37 offen""")
    P("L_prep_end:\ns_endpgm")
    return (name, 88, 256, 8192, 96)

RING = 7
KV_LDS = 5 * 20480
EX_LDS = RING * 20480
XR_LDS = EX_LDS
CS1_LDS = EX_LDS + 12288
CS3_LDS = CS1_LDS + 1024
LDS_TOTAL = CS3_LDS + 1024
SPIN_MAX = 400000

class VM:
    def __init__(s, P): s.P = P; s.n = 0
    def op(s, text, k=1): s.P(text); s.n += k; return s.n - 1
    def wait(s, idx, extra=""):
        c = s.n - 1 - idx
        assert 0 <= c <= 63, c
        s.P(f"s_waitcnt vmcnt({c}){extra}")

_lab = [0]
def lab(p):
    _lab[0] += 1
    return f"L_{p}{_lab[0]}"

def store2(P, vm, lines):
    a, b = lab("sf"), lab("se")
    P(f"s_cmp_lg_u32 s24, 0\ns_cbranch_scc1 {a}")
    for l in lines: P(l)
    P(f"s_branch {b}\n{a}:")
    for l in lines: P(l + " sc1")
    P(f"{b}:")
    vm.n += len(lines)
    return vm.n - 1

def poll_loop(P, vaddr, vdata, soff, need):
    a, b = lab("pl"), lab("pd")
    P(f"s_mov_b32 s47, 0\n{a}:\nv_cmp_gt_u32 vcc, {need}, v{vdata}\ns_cbranch_vccz {b}")
    P(f"buffer_load_dword v{vdata}, v{vaddr}, s[20:23], {soff} offen sc1\ns_add_u32 s47, s47, 1\ns_cmp_lt_u32 s47, {SPIN_MAX}\ns_waitcnt vmcnt(0)\ns_cbranch_scc1 {a}\n{b}:")

def gen_main(P):
    name = "main_kernel"
    header(P, name)
    sa = Stamper(P, 80, 6)
    P("s_cmp_ge_u32 s2, 256\ns_cbranch_scc1 L_end")
    if STAMP: P("s_memrealtime s[100:101]")
    sa()
    P(f"s_load_dwordx2 s[8:9], s[0:1], {ARG['ws']}\ns_load_dwordx2 s[4:5], s[0:1], {ARG['x']}\ns_load_dwordx2 s[6:7], s[0:1], {ARG['out']}")
    P("v_and_b32 v1, 63, v0\nv_lshrrev_b32 v2, 6, v0\nv_readfirstlane_b32 s30, v2\nv_lshlrev_b32 v3, 4, v1")
    P("s_and_b32 s25, s2, 7\ns_lshr_b32 s26, s2, 3\ns_and_b32 s27, s26, 3\ns_lshl_b32 s28, s25, 2\ns_add_u32 s27, s27, s28\ns_lshr_b32 s28, s2, 5")
    P("s_cmp_ge_u32 s30, 4\ns_cselect_b32 s33, 9920, 0")
    for i in range(5):
        P(f"""v_add_u32 v13, {64*i}, v1
v_mul_u32_u24 v4, 52429, v13
v_lshrrev_b32 v4, 22, v4
v_mul_u32_u24 v5, 80, v4
v_sub_u32 v5, v13, v5
v_mul_u32_u24 v6, 52429, v5
v_lshrrev_b32 v6, 20, v6
v_mul_lo_u32 v6, v6, s33
v_mul_u32_u24 v4, 40960, v4
v_lshl_add_u32 v4, v5, 4, v4
v_add_u32 v{8+i}, v4, v6""")
    P(f"""s_cmp_ge_u32 s30, 4
s_mov_b32 s34, {K_OFF - 8*40960}
s_cmov_b32 s34, {V_OFF - 8*40960}
s_mov_b32 s35, 1280
s_cmov_b32 s35, 320
s_mul_i32 s35, s35, s26
s_add_u32 s34, s34, s35
s_and_b32 s36, s30, 3
s_lshl_b32 s37, s25, 1
s_add_u32 s36, s36, s37
s_mul_i32 s36, s36, {4*40960}
s_add_u32 s34, s34, s36
s_mul_i32 s38, s30, 5120
s_add_u32 s38, s38, {KV_LDS}
s_lshl_b32 s31, s25, 3
s_add_u32 s31, s31, s30
s_mul_i32 s40, s31, 40960
s_mul_i32 s41, s26, 1280
s_add_u32 s40, s40, s41
v_and_b32 v13, 31, v1
v_lshrrev_b32 v14, 5, v1
v_lshlrev_b32 v5, 3, v13
v_lshl_add_u32 v6, v14, 9, v5
s_waitcnt lgkmcnt(0)""")
    srd(P, 20, 8, WS_USED)
    P("""buffer_load_dwordx2 v[16:17], v6, s[20:23], s40 offen
buffer_load_dwordx2 v[18:19], v6, s[20:23], s40 offen offset:256
buffer_load_dwordx2 v[20:21], v5, s[20:23], s40 offen offset:1024""")
    P("s_mov_b32 s46, s34\ns_mov_b32 s47, s38")
    def kvdma():
        for i in range(5):
            P(f"s_add_u32 m0, s47, {i*1024}\nbuffer_load_dwordx4 v{8+i}, s[20:23], s46 offen lds")
    P("s_cmp_ge_u32 s30, 4\ns_cbranch_scc1 L_nok")
    kvdma()
    P("L_nok:")
    srd(P, 12, 4, SZ); srd(P, 16, 6, SZ)
    P(f"""v_mov_b32 v22, 0
v_mov_b32 v23, 0
s_mul_i32 s41, s30, 1280
s_add_u32 s41, s41, {KV_LDS}
v_add_u32 v24, s41, v6
v_add_u32 v25, s41, v5
v_mul_u32_u24 v26, 320, v14
v_lshl_add_u32 v26, v13, 4, v26
v_add_u32 v26, s41, v26""")
    S, KF, VF, OA = 32, 176, 192, 224
    for b in range(2): P(f"v_mov_b32 v{KF+b*8+6}, 0\nv_mov_b32 v{KF+b*8+7}, 0")
    for r in range(32): P(f"v_mov_b32 v{VF+r}, {ONES}")
    for r in range(16):
        m = 0
        for l in range(64):
            if 8*(r >> 2) + 4*(l >> 5) + (r & 3) <= (l & 31): m |= 1 << l
        P(f"s_mov_b32 s{48+2*r}, {m & 0xffffffff:#x}\ns_mov_b32 s{49+2*r}, {m >> 32:#x}")
    P("s_mov_b32 s44, 0x000fffff\ns_mov_b32 s45, 0x000fffff")
    P("s_and_b32 s29, s30, 3\ns_lshl_b32 s43, s27, 2\ns_add_u32 s29, s29, s43")
    P("s_mul_i32 s34, s28, 5\ns_and_b32 s37, s28, 1\ns_lshr_b32 s35, s34, 1\ns_add_u32 s36, s35, 2\ns_lshl_b32 s43, s37, 1\ns_sub_u32 s36, s36, s43\ns_add_u32 s35, s35, s37")
    P(f"s_mul_i32 s32, s28, {SLICE_B}\ns_add_u32 s32, s32, {WS_OFF}")
    P("s_mul_i32 s39, s30, 12\ns_mul_i32 s43, s30, 13\ns_sub_u32 s43, s43, 4\ns_cmp_ge_u32 s30, 4\ns_cselect_b32 s39, s43, s39\ns_lshl_b32 s39, s39, 10\ns_add_u32 s38, s32, s39")
    P("v_lshrrev_b32 v241, 2, v1\nv_mul_u32_u24 v241, 1280, v241\nv_and_b32 v4, 3, v1\nv_lshl_add_u32 v241, v4, 4, v241")
    P("v_and_b32 v242, 31, v1\nv_lshlrev_b32 v242, 2, v242")
    P("s_cmp_eq_u32 s25, 7\ns_cselect_b32 s43, 31, 63\nv_and_b32 v243, s43, v1\nv_lshlrev_b32 v243, 2, v243\nv_lshlrev_b32 v244, 7, v1")
    P("s_cmp_lt_u32 s30, 4\ns_cbranch_scc1 L_nov")
    kvdma()
    P("L_nov:")
    def publish_xcc():
        P(f"""s_cmp_lg_u32 s30, 0
s_cbranch_scc1 L_noxcc
s_getreg_b32 s42, hwreg(HW_REG_XCC_ID)
s_and_b32 s42, s42, 15
s_add_u32 s42, s42, 1
v_mov_b32 v7, s42
s_lshl_b32 s46, s25, 5
s_add_u32 s46, s46, s26
s_lshl_b32 s46, s46, 2
s_add_u32 s46, s46, {FX_OFF}
v_mov_b32 v4, 0
s_mov_b64 exec, 1
buffer_store_dword v7, v4, s[20:23], s46 offen sc1
s_mov_b64 exec, -1
L_noxcc:""")
    side = []
    for i in range(12):
        pre = f"s_add_u32 m0, s39, {i*1024}\ns_add_u32 s43, s38, {i*1024}\n" if i % 4 == 0 else ""
        side.append(pre + f"buffer_load_dwordx4 v3, s[20:23], s43 offen offset:{(i%4)*1024} lds")
    side.append(f"""s_cmp_ge_u32 s30, 4
s_cbranch_scc1 L_side_l
s_mul_i32 s46, s29, 20480
s_lshl_b32 s43, s35, 6
s_add_u32 s43, s43, s46
s_mul_i32 s47, s30, 3072
s_add_u32 m0, s47, {XR_LDS}
s_nop 0
buffer_load_dwordx4 v241, s[12:15], s43 offen lds
s_add_u32 m0, s47, {XR_LDS+1024}
s_add_u32 s43, s43, 64
buffer_load_dwordx4 v241, s[12:15], s43 offen lds
s_lshl_b32 s43, s36, 6
s_add_u32 s43, s43, s46
s_add_u32 m0, s47, {XR_LDS+2048}
s_nop 0
buffer_load_dwordx4 v241, s[12:15], s43 offen lds
s_branch L_side_e
L_side_l:
s_add_u32 m0, s39, {12*1024}
s_add_u32 s43, s38, {12*1024}
buffer_load_dwordx4 v3, s[20:23], s43 offen lds
s_cmp_lg_u32 s30, 4
s_cbranch_scc1 L_side_e
s_mul_i32 s43, s28, 320
s_add_u32 s43, s43, {CS1_OFF}
s_mov_b32 m0, {CS1_LDS}
s_nop 0
buffer_load_dwordx4 v3, s[20:23], s43 offen lds
s_mul_i32 s43, s28, 7
s_cmp_eq_u32 s28, 7
s_subb_u32 s43, s43, 0
s_lshl_b32 s43, s43, 7
s_add_u32 s43, s43, {CS3_OFF}
s_mov_b32 m0, {CS3_LDS}
s_nop 0
buffer_load_dwordx4 v3, s[20:23], s43 offen lds
L_side_e:""")
    side.insert(0, f"""s_lshl_b32 s46, s25, 5
s_add_u32 s46, s46, s26
s_lshl_b32 s46, s46, 3
s_add_u32 s46, s46, s30
s_lshl_b32 s46, s46, 10
s_add_u32 s46, s46, {GX_OFF}
buffer_load_dwordx4 v[248:251], v3, s[20:23], s46 offen
s_lshl_b32 s46, s29, 7
s_add_u32 s46, s46, {FR_OFF}
buffer_load_dword v245, v242, s[20:23], s46 offen
s_lshl_b32 s46, s31, 7
s_add_u32 s46, s46, {FO_OFF}
buffer_load_dword v246, v242, s[20:23], s46 offen""")
    for k in range(NTOUCH):
        side.append(f"""s_and_b32 s46, s27, 3
s_lshl_b32 s46, s46, 3
s_add_u32 s46, s46, s30
s_lshl_b32 s46, s46, 13
s_add_u32 s46, s46, s32
s_add_u32 s46, s46, {5*20480 + k*262144}
buffer_load_dword v247, v244, s[20:23], s46 offen""")
    late = f"s_lshl_b32 s43, s25, 7\ns_add_u32 s33, s43, {FX_OFF}\nbuffer_load_dword v240, v243, s[20:23], s33 offen sc1"
    nside = [0]
    def do_side(k=1):
        for _ in range(k):
            if side:
                t = side.pop(0); P(t); nside[0] += 3 if ("L_side_l" in t or "v245" in t) else 1
    sa()
    P("s_waitcnt vmcnt(5)\ns_cmp_ge_u32 s30, 4\ns_cbranch_scc1 L_b0\ns_waitcnt vmcnt(0)\nL_b0:")
    P("v_cmp_gt_u32 vcc, 32, v1\nv_cndmask_b32 v20, 0, v20, vcc\nv_cndmask_b32 v21, 0, v21, vcc")
    P("s_barrier")
    sa()
    if STAMP: P("s_waitcnt lgkmcnt(0)")
    def kread(t):
        b = t & 1
        P(f"ds_read_b64 v[{KF+b*8}:{KF+b*8+1}], v24 offset:{t*1280}\nds_read_b64 v[{KF+b*8+2}:{KF+b*8+3}], v24 offset:{t*1280+256}\nds_read_b64 v[{KF+b*8+4}:{KF+b*8+5}], v25 offset:{t*1280+1024}")
    kread(0)
    for t in range(9):
        b = t & 1
        if t + 1 < 9:
            kread(t + 1); P("s_waitcnt lgkmcnt(3)")
        else: P("s_waitcnt lgkmcnt(0)")
        d = v(S + 16*t, 16)
        P(f"v_mfma_f32_32x32x16_bf16 {d}, {v(KF+b*8,4)}, v[16:19], 0")
        P(f"v_mfma_f32_32x32x16_bf16 {d}, {v(KF+b*8+4,4)}, v[20:23], {d}")
        if t % 3 == 1: do_side()
    def vread(t, slot=None):
        b = (t & 3) if slot is None else slot
        P("s_mov_b64 exec, s[44:45]")
        P(f"ds_read_b128 {v(VF+b*8,4)}, v26 offset:{20480+t*1280}\nds_read_b128 {v(VF+b*8+4,4)}, v26 offset:{20480+t*1280+640}")
        P("s_mov_b64 exec, -1")
    P("s_cmp_ge_u32 s31, 8\ns_cbranch_scc1 L_at_full\ns_nop 15")
    for t in range(8):
        P(f"s_cmp_ge_u32 s31, {8-t}\ns_cbranch_scc1 L_at_full")
        for r in range(16): P(f"v_mov_b32 v{S+16*t+r}, 0xff800000")
    P("L_at_full:")
    M = 28
    P(f"v_max3_f32 v{M}, v{S+16}, v{S+17}, v{S+18}\nv_max3_f32 v{M+1}, v{S+19}, v{S+20}, v{S+21}")
    lst = list(range(S + 22, S + 128)); k = 0; cnt = 0
    while lst:
        a, b2 = lst.pop(0), lst.pop(0); P(f"v_max3_f32 v{M+k}, v{M+k}, v{a}, v{b2}"); k ^= 1
        cnt += 1
        if cnt % 20 == 0: do_side()
    for r in range(16): P(f"v_cndmask_b32 v{S+r}, v{S+r}, v{S+128+r}, s[{48+2*r}:{49+2*r}]")
    for r in range(0, 16, 2):
        P(f"v_max3_f32 v{M+k}, v{M+k}, v{S+r}, v{S+r+1}"); k ^= 1
    P(f"v_max_f32 v{M}, v{M}, v{M+1}\nv_mov_b32 v{M+1}, v{M}\nv_permlane32_swap_b32 v{M}, v{M+1}\nv_max_f32 v{M}, v{M}, v{M+1}\nv_mov_b32 v{M+1}, v{M}")
    assert not any("L_side_l" in t for t in [])
    P(f"s_waitcnt vmcnt({nside[0]})\ns_barrier")
    publish_xcc()
    vread(1); vread(2); vread(3)
    first = True
    for t in [1, 2, 3, 4, 5, 6, 7, 0]:
        base = S + 16*t
        for p in range(8):
            P(f"v_pk_add_f32 v[{base+2*p}:{base+2*p+1}], v[{base+2*p}:{base+2*p+1}], v[{M}:{M+1}] neg_lo:[0,1] neg_hi:[0,1]")
        do_side()
        for r in range(16): P(f"v_exp_f32 v{base+r}, v{base+r}")
        do_side()
        if t != 0:
            for p in range(8): P(f"v_cvt_pk_bf16_f32 v{base+p}, v{base+2*p}, v{base+2*p+1}")
            b = t & 3
            P("s_waitcnt lgkmcnt(4)")
            c = "0" if first else v(OA, 16)
            P(f"v_mfma_f32_32x32x16_bf16 {v(OA,16)}, {v(VF+b*8,4)}, {v(base,4)}, {c}")
            P(f"v_mfma_f32_32x32x16_bf16 {v(OA,16)}, {v(VF+b*8+4,4)}, {v(base+4,4)}, {v(OA,16)}")
            first = False
            nxt = t + 3
            if nxt <= 8: vread(nxt)
            elif nxt == 9: vread(0, 1)
        else:
            D = S + 128
            P(late)
            for r in range(16): P(f"v_cndmask_b32 v{D+r}, 0, v{base+r}, s[{48+2*r}:{49+2*r}]")
            for r in range(16): P(f"v_cndmask_b32 v{base+r}, v{base+r}, 0, s[{48+2*r}:{49+2*r}]")
            for p in range(8): P(f"v_cvt_pk_bf16_f32 v{base+p}, v{base+2*p}, v{base+2*p+1}")
            for p in range(8): P(f"v_cvt_pk_bf16_f32 v{D+p}, v{D+2*p}, v{D+2*p+1}")
            P("s_waitcnt lgkmcnt(0)")
            P(f"v_mfma_f32_32x32x16_bf16 {v(OA,16)}, {v(VF+0,4)}, {v(D,4)}, {v(OA,16)}")
            P(f"v_mfma_f32_32x32x16_bf16 {v(OA,16)}, {v(VF+4,4)}, {v(D+4,4)}, {v(OA,16)}")
            P(f"v_mfma_f32_32x32x16_bf16 {v(OA,16)}, {v(VF+8,4)}, {v(base,4)}, {v(OA,16)}")
            P(f"v_mfma_f32_32x32x16_bf16 {v(OA,16)}, {v(VF+12,4)}, {v(base+4,4)}, {v(OA,16)}")
    assert not side
    sa()
    P(f"""s_mul_i32 s41, s26, 5
v_add_u32 v8, s41, v14
v_lshrrev_b32 v9, 4, v13
v_mul_u32_u24 v9, 20480, v9
v_and_b32 v10, 15, v13
v_lshl_add_u32 v9, v10, 4, v9""")
    for b in range(3):
        P(f"""v_add_u32 v10, {2*b}, v8
v_lshrrev_b32 v11, 1, v10
v_lshl_add_u32 v11, v11, 8, v9
v_and_b32 v10, 1, v10
v_lshl_add_u32 v{16+b}, v10, 3, v11""")
    P("v_cmp_gt_u32 vcc, 32, v1\nv_mov_b32 v10, 0x7ffffff0\nv_cndmask_b32 v18, v10, v18, vcc")
    P(f"s_mul_i32 s41, s31, 40960\ns_add_u32 s41, s41, {O_OFF}")
    P("s_waitcnt vmcnt(0)")
    poll_loop(P, 243, 240, "s33", 1)
    P("v_readfirstlane_b32 s43, v240\nv_cmp_ne_u32 vcc, s43, v240\ns_cmp_lg_u32 vcc_lo, 0\ns_cselect_b32 s24, 1, 0")
    if FORCE_SAFE: P("s_mov_b32 s24, 1")
    P(f"v_rcp_f32 v28, v{OA+12}\nv_mov_b32 v29, v28")
    for p in range(6): P(f"v_pk_mul_f32 v[{OA+2*p}:{OA+2*p+1}], v[{OA+2*p}:{OA+2*p+1}], v[28:29]")
    for p in range(6): P(f"v_cvt_pk_bf16_f32 v{32+p}, v{OA+2*p}, v{OA+2*p+1}")
    vm = VM(P)
    store2(P, vm, [f"buffer_store_dwordx2 v[{32+2*b}:{33+2*b}], v{16+b}, s[20:23], s41 offen" for b in range(3)])
    P(f"s_lshl_b32 s43, s31, 5\ns_add_u32 s43, s43, s26\ns_lshl_b32 s43, s43, 2\ns_add_u32 s43, s43, {FO_OFF}\nv_mov_b32 v4, 0\nv_mov_b32 v7, 1")
    P("s_waitcnt vmcnt(0)\ns_mov_b64 exec, 1")
    store2(P, vm, ["buffer_store_dword v7, v4, s[20:23], s43 offen"])
    P("s_mov_b64 exec, -1")
    sa()
    P("s_barrier")
    P("s_cmp_ge_u32 s30, 4\ns_cbranch_scc1 L_loader")

    st0 = Stamper(P, 48, 16)
    class _S:
        i = 0
        def __call__(s):
            if FOCUS == 0: st0()
    st = _S()
    def sf(ph):
        if FOCUS == ph: st0()
    ACC, BF, ST, ST1, ST3, HP, ACC4, CS, PK, AF, A4 = 16, 40, 68, 72, 76, 80, 92, 112, 132, 144, 224
    D = 6
    P("s_mul_i32 s40, s29, 20480\ns_lshl_b32 s41, s35, 10\ns_add_u32 s41, s41, s40\ns_lshl_b32 s42, s36, 10\ns_add_u32 s42, s42, s40\ns_lshl_b32 s43, s37, 3\ns_add_u32 s42, s42, s43")
    P("v_add_u32 v8, 0x10000, v3\nv_add_u32 v9, 0x20000, v3\nv_mov_b32 v4, v241")
    P(f"s_mul_i32 s46, s30, 3072\ns_add_u32 s46, s46, {XR_LDS}")
    P("v_and_b32 v5, 15, v1\nv_lshlrev_b32 v5, 6, v5\nv_lshrrev_b32 v6, 4, v1\nv_lshl_add_u32 v5, v6, 4, v5\nv_add_u32 v5, s46, v5\ns_lshl_b32 s43, s37, 3\nv_add_u32 v6, s43, v5")
    P(f"v_and_b32 v7, 0x30, v1\nv_add_u32 v7, {CS1_LDS}, v7")
    P(f"s_lshl_b32 s33, s29, 7\ns_add_u32 s33, s33, {FR_OFF}")
    P("s_lshl_b32 s43, s28, 2\ns_add_u32 s34, s33, s43")
    P("v_and_b32 v14, 7, v1\nv_lshlrev_b32 v14, 2, v14\nv_mov_b32 v2, 0")
    def lds_off(stage, chunk):
        off = (stage % RING) * 20480 + chunk * 1024
        ar = 3 if off < 65536 else (8 if off < 131072 else 9)
        return ar, off % 65536
    def unpack(dst, src, n):
        for i in range(n): P(f"v_lshlrev_b32 v{dst+2*i}, 16, v{src+i}\nv_and_b32 v{dst+2*i+1}, 0xffff0000, v{src+i}")
    def set_flag(vm, val):
        P(f"v_mov_b32 v15, {val}\ns_mov_b64 exec, 1")
        store2(P, vm, ["buffer_store_dword v15, v2, s[20:23], s34 offen"])
        P("s_mov_b64 exec, -1")
    def small_phase(stage0, aoff, vaddr_of_ks, need_barrier, PRE=8):
        vm = VM(P)
        ids = {}
        def aload(ks):
            if ks % 4 == 0: P(f"s_add_u32 s43, s40, {aoff + ks*1024}")
            ids[ks] = vm.op(f"buffer_load_dwordx4 {v(AF+4*ks,4)}, v{vaddr_of_ks(ks)}, s[20:23], s43 offen offset:{(ks%4)*1024} sc1")
        ph = 1 + stage0 // 5
        sf(ph)
        for ks in range(PRE): aload(ks)
        sf(ph)
        if need_barrier: P("s_barrier")
        sf(ph)
        items = [(ks, t) for ks in range(20) for t in range(5)]
        def rd(n):
            ks, t = items[n]
            ar, off = lds_off(stage0 + ks // 4, (ks % 4) * 5 + t)
            P(f"ds_read_b128 {v(BF+(n%(D+1))*4,4)}, v{ar} offset:{off}")
        for n in range(D): rd(n)
        for n, (ks, t) in enumerate(items):
            if n + D < 100: rd(n + D)
            lg = min(D, 99 - n)
            if t == 0:
                if ks + PRE < 20: aload(ks + PRE)
                vm.wait(ids[ks], f" lgkmcnt({lg})")
                if ks in (0, 1, 2, 4, 6, 8, 10, 12, 16): sf(ph)
                if ks == 12: P("s_barrier"); sf(ph)
            else:
                P(f"s_waitcnt lgkmcnt({lg})")
            if n == 99: sf(ph); P("s_barrier"); sf(ph)
            P(f"v_mfma_f32_16x16x32_bf16 {v(ACC+4*t,4)}, {v(BF+(n%(D+1))*4,4)}, {v(AF+4*ks,4)}, {v(ACC+4*t,4)}")
    def stats_fin(R):
        P(f"v_add_f32 v{R}, v{R}, v{R+2}\nv_add_f32 v{R+1}, v{R+1}, v{R+3}")
        xg_reduce(P, [R, R+1], [R+2, R+3])
        P(f"v_mul_f32 v{R}, {f2u(1/640)}, v{R}\nv_mul_f32 v{R+1}, {f2u(1/640)}, v{R+1}\nv_fma_f32 v{R+1}, -v{R}, v{R}, v{R+1}\nv_max_f32 v{R+1}, 0, v{R+1}")
        P(f"v_add_f32 v{R+2}, {f2u(EPS)}, v{R+1}\nv_rsq_f32 v{R+2}, v{R+2}")
    def pack(dst, src, n):
        for i in range(n): P(f"v_cvt_pk_bf16_f32 v{dst+i}, v{src+2*i}, v{src+2*i+1}")
    def tile_and_stats(vm, pk, off, stoff):
        P(f"s_add_u32 s43, s41, {off}\ns_add_u32 s44, s42, {off}")
        store2(P, vm, [f"buffer_store_dwordx4 {v(pk,4)}, v3, s[20:23], s43 offen", f"buffer_store_dwordx4 {v(pk+4,4)}, v3, s[20:23], s43 offen offset:1024", f"buffer_store_dwordx2 {v(pk+8,2)}, v3, s[20:23], s44 offen"])
        P(f"v_mov_b32 v10, 0\nv_mov_b32 v11, 0\nv_mov_b32 v12, {ONES}")
        for i in range(10): P(f"v_dot2c_f32_bf16 v10, v{pk+i}, v12\nv_dot2c_f32_bf16 v11, v{pk+i}, v{pk+i}")
        xg_reduce(P, [10, 11], [12, 13])
        P(f"s_lshl_b32 s43, s29, 14\ns_lshr_b32 s44, s28, 1\ns_lshl_b32 s44, s44, 8\ns_add_u32 s43, s43, s44\ns_lshl_b32 s44, s37, 3\ns_add_u32 s43, s43, s44\ns_add_u32 s43, s43, {stoff}")
        P("s_mov_b64 exec, 0xffff")
        store2(P, vm, ["buffer_store_dwordx2 v[10:11], v3, s[20:23], s43 offen"])
        P("s_mov_b64 exec, -1\ns_waitcnt vmcnt(0)")
    kk = 2 * 0.7978845608028654 * LOG2E
    def gelu_items(a0, c0, n, STR, pk):
        L = []
        pr = range(0, n, 2)
        for i in pr: L.append(f"v_pk_mul_f32 {v(c0+i,2)}, {v(c0+i,2)}, {v(STR,2)}")
        for i in pr: L.append(f"v_pk_fma_f32 {v(a0+i,2)}, {v(a0+i,2)}, {v(STR+2,2)}, {v(c0+i,2)} neg_lo:[0,0,1] neg_hi:[0,0,1]")
        for i in pr: L.append(f"v_pk_mul_f32 {v(c0+i,2)}, {v(a0+i,2)}, {v(a0+i,2)}")
        for i in pr: L.append(f"v_pk_fma_f32 {v(c0+i,2)}, {v(c0+i,2)}, v[10:11], v[12:13]")
        for i in pr: L.append(f"v_pk_mul_f32 {v(c0+i,2)}, {v(c0+i,2)}, {v(a0+i,2)}")
        for i in range(n): L.append(f"v_exp_f32 v{c0+i}, v{c0+i}")
        for i in pr: L.append(f"v_pk_add_f32 {v(c0+i,2)}, {v(c0+i,2)}, 1.0 op_sel_hi:[1,0]")
        for i in range(n): L.append(f"v_rcp_f32 v{c0+i}, v{c0+i}")
        for i in pr: L.append(f"v_pk_mul_f32 {v(a0+i,2)}, {v(a0+i,2)}, {v(c0+i,2)}")
        for i in pr: L.append(f"v_cvt_pk_bf16_f32 v{pk+i//2}, v{a0+i}, v{a0+i+1}")
        return L
    def gelu_consts():
        P(f"v_mov_b32 v10, {f2u(-kk*0.044715)}\nv_mov_b32 v11, v10\nv_mov_b32 v12, {f2u(-kk)}\nv_mov_b32 v13, v12")

    P(f"s_lshr_b32 s43, s29, 1\ns_lshl_b32 s43, s43, 7\ns_add_u32 s45, s43, {FO_OFF}\nbuffer_load_dword v15, v242, s[20:23], s45 offen sc1")
    P(f"ds_read_b128 {v(HP,4)}, v5\nds_read_b128 {v(HP+4,4)}, v5 offset:1024\nds_read_b64 {v(HP+8,2)}, v6 offset:2048\ns_waitcnt lgkmcnt(0)")
    unpack(ACC, HP, 10)
    P("s_waitcnt vmcnt(0)")
    poll_loop(P, 242, 15, "s45", 1)
    st()
    small_phase(0, O_OFF, lambda ks: 3, False)
    st()
    vm = VM(P)
    pack(HP, ACC, 10)
    tile_and_stats(vm, HP, H_OFF, GX_OFF + 14336)
    set_flag(vm, 1)
    st()
    P("buffer_load_dword v15, v14, s[20:23], s33 offen sc1")
    for r in range(20): P(f"v_mov_b32 v{ACC+r}, 0")
    for t in range(5): P(f"ds_read_b128 {v(CS+4*t,4)}, v7 offset:{t*64}")
    P("s_waitcnt vmcnt(0) lgkmcnt(0)")
    poll_loop(P, 14, 15, "s33", 1)
    st()
    P(f"s_lshl_b32 s43, s29, 14\ns_add_u32 s43, s43, {GX_OFF + 14336}\nbuffer_load_dwordx4 {v(ST1,4)}, v3, s[20:23], s43 offen sc1")
    small_phase(5, H_OFF, lambda ks: 3, True)
    st()
    stats_fin(ST1)
    P(f"v_mul_f32 v{ST}, v{ST1+1}, v{ST1+2}\nv_mov_b32 v{ST+1}, {f2u(EPS)}\nv_fma_f32 v{ST}, v{ST}, v{ST1+2}, v{ST+1}\nv_rsq_f32 v{ST}, v{ST}\nv_mul_f32 v{ST+2}, v{ST}, v{ST1+2}")
    P(f"v_mul_f32 v{ST}, v{ST1}, v{ST+2}\nv_mov_b32 v{ST+3}, v{ST+2}\nv_mov_b32 v{ST+1}, v{ST}")
    P(f"v_mul_f32 v{ST1}, v{ST1}, v{ST1+2}\nv_mov_b32 v{ST1+3}, v{ST1+2}\nv_mov_b32 v{ST1+1}, v{ST1}")
    gelu_consts()
    for l in gelu_items(ACC, CS, 20, ST, PK): P(l)
    P("s_lshr_b32 s43, s28, 2\ns_add_u32 s43, s43, 1\ns_sub_u32 s44, 0, s43\ns_bitcmp1_b32 s28, 1\ns_cselect_b32 s43, s44, s43")
    P("s_lshl_b32 s44, s29, 4\ns_add_u32 s44, s44, s43\nv_and_b32 v10, 15, v1\nv_add_u32 v10, s44, v10")
    P("v_ashrrev_i32 v12, 8, v10\nv_cmp_eq_u32 vcc, s25, v12\nv_cmp_gt_u32 s[46:47], 8, v12")
    P("v_lshrrev_b32 v11, 4, v10\nv_mul_u32_u24 v11, 20480, v11\nv_and_b32 v10, 15, v10\nv_lshl_add_u32 v11, v10, 4, v11\nv_and_b32 v10, 0x30, v1\nv_lshl_add_u32 v11, v10, 4, v11")
    P(f"s_sub_u32 s43, s41, s40\ns_sub_u32 s44, s42, s40\ns_add_u32 s43, s43, {T_OFF}\ns_add_u32 s44, s44, {T_OFF}")
    P("s_andn2_b64 s[46:47], s[46:47], vcc\ns_mov_b64 exec, vcc")
    vm = VM(P)
    tl = [f"buffer_store_dwordx4 {v(PK,4)}, v11, s[20:23], s43 offen", f"buffer_store_dwordx4 {v(PK+4,4)}, v11, s[20:23], s43 offen offset:1024", f"buffer_store_dwordx2 {v(PK+8,2)}, v11, s[20:23], s44 offen"]
    store2(P, vm, tl)
    P("s_cmp_eq_u64 s[46:47], 0\ns_cbranch_scc1 L_nohalo\ns_mov_b64 exec, s[46:47]")
    P(f"s_add_u32 s43, s43, {TH_OFF - T_OFF}\ns_add_u32 s44, s44, {TH_OFF - T_OFF}")
    for l in tl: P(l + " sc1")
    P("L_nohalo:\ns_mov_b64 exec, -1\ns_waitcnt vmcnt(0)")
    set_flag(vm, 2)
    P("s_add_u32 s43, s29, 1\ns_and_b32 s43, s43, 14\ns_cmp_lg_u32 s43, 0\ns_cbranch_scc1 L_nohf")
    P(f"s_add_u32 s43, s34, {FHL_OFF - FR_OFF}\ns_mov_b64 exec, 1\nbuffer_store_dword v15, v2, s[20:23], s43 offen sc1\ns_mov_b64 exec, -1")
    P("L_nohf:")
    st()
    P(f"""s_and_b32 s43, s29, 15
s_cmp_eq_u32 s43, 0
s_cselect_b32 s44, {FHL_OFF - FR_OFF}, 0
s_sub_u32 s44, s44, 128
s_cmp_eq_u32 s29, 0
s_cselect_b32 s44, 0, s44
s_cmp_eq_u32 s43, 15
s_cselect_b32 s45, {FHL_OFF - FR_OFF}, 0
s_add_u32 s45, s45, 128
s_cmp_eq_u32 s29, 127
s_cselect_b32 s45, 0, s45
s_add_u32 s44, s44, s33
s_add_u32 s45, s45, s33
v_bfe_u32 v10, v1, 3, 2
v_mov_b32 v11, s33
v_mov_b32 v12, s44
v_cmp_eq_u32 vcc, 1, v10
v_cndmask_b32 v11, v11, v12, vcc
v_mov_b32 v12, s45
v_cmp_eq_u32 vcc, 2, v10
v_cndmask_b32 v11, v11, v12, vcc
v_add_u32 v228, v11, v14
buffer_load_dword v15, v228, s[20:23], 0 offen sc1""")
    P(f"""s_cmp_eq_u32 s43, 0
s_cselect_b32 s44, {TH_OFF - T_OFF}, 0
s_cmp_eq_u32 s29, 0
s_cselect_b32 s44, 0x40000000, s44
s_cmp_eq_u32 s43, 15
s_cselect_b32 s45, {TH_OFF - T_OFF}, 0
s_cmp_eq_u32 s29, 127
s_cselect_b32 s45, 0x40000000, s45
v_and_b32 v10, 15, v1
v_add_u32 v11, s44, v3
v_add_u32 v12, s45, v3
v_cmp_gt_u32 vcc, 1, v10
v_cndmask_b32 v224, v3, v11, vcc
v_cmp_lt_u32 vcc, 14, v10
v_cndmask_b32 v225, v3, v12, vcc
v_cmp_gt_u32 vcc, 2, v10
v_cndmask_b32 v226, v3, v11, vcc
v_cmp_lt_u32 vcc, 13, v10
v_cndmask_b32 v227, v3, v12, vcc""")
    unpack(ACC4, HP, 10)
    for i in range(0, 20, 2):
        P(f"v_pk_fma_f32 {v(ACC+i,2)}, {v(ACC4+i,2)}, {v(ST1+2,2)}, {v(ST1,2)} neg_lo:[0,0,1] neg_hi:[0,0,1]")
    P("s_waitcnt vmcnt(0)")
    poll_loop(P, 228, 15, "0", 2)
    st()
    small_phase(10, T_OFF, lambda ks: 224 + ks // 5, True)
    st()
    vm = VM(P)
    pack(PK, ACC, 10)
    tile_and_stats(vm, PK, X1_OFF, GX_OFF + 15360)
    set_flag(vm, 3)
    st()
    P("buffer_load_dword v15, v14, s[20:23], s33 offen sc1")
    unpack(CS, PK, 10)
    for i in range(0, 20, 2): P(f"v_pk_add_f32 {v(ACC4+i,2)}, {v(ACC4+i,2)}, {v(CS+i,2)}")
    gelu_consts()
    P(f"v_add_u32 v7, {CS3_LDS - CS1_LDS}, v7")
    P(f"s_lshl_b32 s46, s29, 14\ns_add_u32 s46, s46, {GX_OFF}\ns_lshl_b32 s45, s28, 10")
    P("s_waitcnt vmcnt(0)")
    poll_loop(P, 14, 15, "s33", 3)
    st()
    vm = VM(P)
    sid = vm.op(f"s_lshl_b32 s43, s29, 14\ns_add_u32 s43, s43, {GX_OFF + 15360}\nbuffer_load_dwordx4 {v(ST3,4)}, v3, s[20:23], s43 offen sc1")
    ids = {}
    def aload(ks):
        if ks % 4 == 0: P(f"s_add_u32 s43, s40, {X1_OFF + ks*1024}")
        ids[ks] = vm.op(f"buffer_load_dwordx4 {v(AF+4*ks,4)}, v3, s[20:23], s43 offen offset:{(ks%4)*1024} sc1")
    PRE = 8
    for ks in range(PRE): aload(ks)
    def a4reg(p):
        i = p % 28
        return A4 + 4*i if i < 8 else AF + 4*(i - 8)
    ids4 = {}
    def a4load(p):
        if p % 4 == 0:
            if p < 20: P(f"s_add_u32 s44, s40, {K_OFF + p*1024}")
            elif p < 40: P(f"s_add_u32 s44, s40, {V_OFF + (p-20)*1024}")
            else: P(f"s_add_u32 s44, s46, {(p-40)*1024}")
        ids4[p] = vm.op(f"buffer_load_dwordx4 {v(a4reg(p),4)}, v3, s[20:23], s44 offen offset:{(p%4)*1024} sc1")
    gst = {}
    def gstore(q):
        if q < 2: P(f"s_add_u32 s43, s45, s40\ns_add_u32 s43, s43, {K_OFF + q*8192}")
        elif q == 2: P(f"s_cmp_ge_u32 s28, 4\ns_mov_b32 s43, {K_OFF + 16384}\ns_cmov_b32 s43, {V_OFF - 4096}\ns_add_u32 s43, s43, s45\ns_add_u32 s43, s43, s40")
        elif q < 5: P(f"s_add_u32 s43, s45, s40\ns_add_u32 s43, s43, {V_OFF + q*8192 - 20480}")
        elif q == 5: P(f"s_add_u32 s43, s45, s46")
        else: P(f"s_add_u32 s43, s45, s46\ns_add_u32 s43, s43, 8192\ns_cmp_ge_u32 s28, 6\ns_cmov_b32 s43, {DUMMY_OFF}")
        gst[q] = store2(P, vm, [f"buffer_store_dwordx4 {v(PK+4*(q%2),4)}, v3, s[20:23], s43 offen"])
    groups = [[0, 1, 2, 3]] + [[t, t + 1] for t in range(4, 14, 2)]
    cnt = [0]
    def rdw(stage, chunk):
        ar, off = lds_off(stage, chunk)
        r = BF + (cnt[0] % (D + 1)) * 4; cnt[0] += 1
        P(f"ds_read_b128 {v(r,4)}, v{ar} offset:{off}")
        return r
    items4 = [(p, t) for p in range(54) for t in range(5)]
    seen4 = {29, 30}
    def rd4(n):
        p, t = items4[n]
        sg = 29 + p // 4
        if sg not in seen4:
            P("s_barrier"); seen4.update((sg, sg + 1))
        return rdw(sg, (p % 4) * 5 + t)
    PRE4 = 12
    P("s_barrier")
    its = [(ks, t) for ks in range(20) for t in groups[0]]
    regs = [rdw(15 + t, ks) for ks, t in its[:D]]
    for gi, g in enumerate(groups):
        n_it = len(its)
        for n, (ks, t) in enumerate(its):
            if n + D < n_it: regs.append(rdw(15 + its[n + D][1], its[n + D][0]))
            ex = f"lgkmcnt({min(D, n_it - 1 - n)})"
            if gi == 0 and t == 0:
                if ks + PRE < 20: aload(ks + PRE)
                vm.wait(ids[ks], " " + ex)
            else: P(f"s_waitcnt {ex}")
            if gi in (2, 3) and n in (0, 20, n_it - 1): sf(4)
            if n == n_it - 1: P("s_barrier")
            if gi in (2, 3) and n == n_it - 1: sf(4)
            acc = ACC + 4 * g.index(t)
            P(f"v_mfma_f32_16x16x32_bf16 {v(acc,4)}, {v(regs[n],4)}, {v(AF+4*ks,4)}, {'0' if ks == 0 else v(acc,4)}")
            if gi == 5 and n == 0:
                vm.wait(gst[4]); set_flag(vm, 4)
            if gi == 5 and n == 24: poll1 = vm.op("buffer_load_dword v15, v14, s[20:23], s33 offen sc1")
        for i, t in enumerate(g): P(f"ds_read_b128 {v(CS+4*i,4)}, v7 offset:{t*64}")
        if gi + 1 < len(groups):
            its = [(ks, t) for ks in range(20) for t in groups[gi + 1]]
            regs = [rdw(15 + t, ks) for ks, t in its[:D]]
        else:
            st()
            regs = [rd4(n) for n in range(D)]
            vm.wait(poll1)
            poll_loop(P, 14, 15, "s33", 4)
            for p in range(PRE4): a4load(p)
        if gi == 0:
            stats_fin(ST3)
            P(f"v_mul_f32 v{ST3}, v{ST3}, v{ST3+2}\nv_mov_b32 v{ST3+3}, v{ST3+2}\nv_mov_b32 v{ST3+1}, v{ST3}")
        P(f"s_waitcnt lgkmcnt({D})")
        if gi in (2, 3): sf(4)
        for l in gelu_items(ACC, CS, 4*len(g), ST3, PK + 4*((g[0]//2) % 2)): P(l)
        if gi in (2, 3): sf(4)
        for t in g[1::2]: gstore(t // 2)
    st()
    N4 = len(items4)
    for n, (p, t) in enumerate(items4):
        if n + D < N4: regs.append(rd4(n + D))
        ex = f"lgkmcnt({min(D, N4 - 1 - n)})"
        if t == 0:
            if p == 3:
                vm.wait(gst[6]); set_flag(vm, 5)
            if p == 20: poll2 = vm.op("buffer_load_dword v15, v14, s[20:23], s33 offen sc1")
            if p + PRE4 == 40:
                vm.wait(poll2); poll_loop(P, 14, 15, "s33", 5)
            if p + PRE4 < 54: a4load(p + PRE4)
            vm.wait(ids4[p], " " + ex)
        else: P(f"s_waitcnt {ex}")
        P(f"v_mfma_f32_16x16x32_bf16 {v(ACC4+4*t,4)}, {v(regs[n],4)}, {v(a4reg(p),4)}, {v(ACC4+4*t,4)}")
    st()
    pack(PK, ACC4, 10)
    P(f"ds_write_b128 v5, {v(PK,4)}\nds_write_b128 v5, {v(PK+4,4)} offset:1024\nds_write_b64 v5, {v(PK+8,2)} offset:2048")
    P(f"s_mul_i32 s46, s30, 3072\ns_add_u32 s46, s46, {XR_LDS}\nv_add_u32 v10, s46, v3")
    P("s_lshl_b32 s43, s35, 6\ns_add_u32 s43, s43, s40\ns_lshl_b32 s44, s36, 6\ns_add_u32 s44, s44, s40\ns_lshl_b32 s45, s37, 3\ns_add_u32 s44, s44, s45\ns_waitcnt lgkmcnt(0)")
    P(f"ds_read_b128 {v(CS,4)}, v10\nds_read_b128 {v(CS+4,4)}, v10 offset:1024\nds_read_b64 {v(CS+8,2)}, v10 offset:2048\ns_waitcnt lgkmcnt(0)")
    P(f"buffer_store_dwordx4 {v(CS,4)}, v4, s[16:19], s43 offen\nbuffer_store_dwordx4 {v(CS+4,4)}, v4, s[16:19], s43 offen offset:64\nbuffer_store_dwordx2 {v(CS+8,2)}, v4, s[16:19], s44 offen")
    if STAMP:
        P("s_waitcnt vmcnt(0)"); st0()
        nst = st0.i
        P("s_waitcnt lgkmcnt(0)\nv_mov_b32 v40, s100\ns_memrealtime s[100:101]\ns_waitcnt lgkmcnt(0)\nv_mov_b32 v41, s100")
        regs = [80 + 2*i for i in range(sa.i)] + [48 + 2*i for i in range(nst)]
        regs += [regs[-1]] * (22 - len(regs))
        for i, r in enumerate(regs): P(f"v_mov_b32 v{42+i}, s{r}")
        P("s_mov_b32 s22, 0x8000000")
        P(f"s_lshl_b32 s43, s2, 3\ns_add_u32 s43, s43, s30\ns_lshl_b32 s43, s43, 7\ns_add_u32 s43, s43, {STAMP_OFF + 2*0x100000}\ns_mov_b64 exec, 1")
        for i in range(6): P(f"buffer_store_dwordx4 v[{40+4*i}:{43+4*i}], v2, s[20:23], s43 offen offset:{16*i}")
    P("s_endpgm")

    P("L_loader:")
    if STAMP: P("s_waitcnt lgkmcnt(0)\ns_mov_b32 s98, s80")
    P("s_sub_u32 s43, s30, 4\ns_mul_i32 s39, s43, 5120\ns_add_u32 s38, s32, s39")
    vm = VM(P)
    last = {}
    def issue(sg, thin=False):
        if sg >= NSTG: return
        slot = (sg % RING) * 20480
        for i in range(5):
            if i % 4 == 0: P(f"s_add_u32 m0, s39, {slot + i*1024}\ns_add_u32 s43, s38, {sg*20480 + i*1024}")
            if thin: P(f"s_waitcnt vmcnt({THIN})")
            last[sg] = vm.op(f"buffer_load_dwordx4 v3, s[20:23], s43 offen offset:{(i%4)*1024} lds")
    sl = Stamper(P, 46, 26)
    issue(5, True); issue(6, True)
    for ph in range(3):
        b = 5 * ph
        if ph > 0:
            vm.wait(last[b + 4]); P("s_barrier")
        P("s_barrier")
        for sg in range(b + 7, b + 10): issue(sg)
        P("s_barrier")
        issue(b + 10, True); issue(b + 11, True)
    vm.wait(last[18]); P("s_barrier")
    nxt = 22
    for k in range(19, NSTG, 2):
        vm.wait(last[min(k + 1, NSTG - 1)])
        if k < 39: sl()
        P("s_barrier")
        if k < 39: sl()
        free_upto = (k - 1) if k <= 29 else (k - 2)
        while nxt < NSTG and nxt - RING <= free_upto:
            issue(nxt); nxt += 1
    if STAMP:
        P("s_waitcnt lgkmcnt(0)\nv_mov_b32 v40, 0\nv_mov_b32 v41, 0\nv_mov_b32 v42, s98\nv_mov_b32 v43, s98\nv_mov_b32 v2, 0")
        for i in range(20): P(f"v_mov_b32 v{44+i}, s{46+2*i}")
        P("s_mov_b32 s22, 0x8000000")
        P(f"s_lshl_b32 s43, s2, 3\ns_add_u32 s43, s43, s30\ns_lshl_b32 s43, s43, 7\ns_add_u32 s43, s43, {STAMP_OFF + 2*0x100000}\ns_mov_b64 exec, 1")
        for i in range(6): P(f"buffer_store_dwordx4 v[{40+4*i}:{43+4*i}], v2, s[20:23], s43 offen offset:{16*i}")
    P("L_end:\ns_endpgm")
    return (name, 256, 512, LDS_TOTAL, 256)

FORCE_SAFE = False
FOCUS = 0
NTOUCH = 1
THIN = 1
def main(path):
    P = Prog()
    ks = [gen_prep(P), gen1.gen_qkv(P), gen_main(P)]
    hdr = "; generated by gen3.py\n"
    for (n, g, b, lds, nv) in ks:
        hdr += f"; @launch kernel={n} grid=({g},1,1) block=({b},1,1) lds={lds}\n"
    txt = hdr + '.amdgcn_target "amdgcn-amd-amdhsa--gfx950"\n.text\n' + P.render() + '.section .rodata,"a"\n'
    for (n, g, b, lds, nv) in ks: txt += kdesc(n, nv)
    open(path, "w").write(txt)
    print(ks)

if __name__ == "__main__":
    if "stamp" in sys.argv[2:]: STAMP = True
    if "safe" in sys.argv[2:]: FORCE_SAFE = True
    for a in sys.argv[2:]:
        if "=" in a: k, val = a.split("="); globals()[k] = int(val)
    main(sys.argv[1])
```

```python
from asmlib import *
from gen1 import f2u, LOG2E, ONES, EPS, ARG, SZ, srd, header, xg_reduce

def gen_k1(P, L, opt):
    name = "qkv_kernel"
    STAMP = opt.get("STAMP", False)
    PI = opt.get("PI", 4)
    NTF = " nt" if opt.get("PREP_NT", 1) else ""
    ROT = opt.get("ROT", 1)
    FL = ["", " sc1", " nt", " sc0 sc1"]
    PSF = FL[opt.get("PSF", 0)]; QSF = FL[opt.get("QSF", 0)]
    PP = opt.get("PP", 10)
    header(P, name)
    PB = 131072
    STAT = PB + 24576
    sn = [0]
    def stamp():
        if STAMP:
            P(f"s_memtime s[{70+2*sn[0]}:{71+2*sn[0]}]"); sn[0] += 1
    def stamp_out():
        if not STAMP: return
        P("s_waitcnt vmcnt(0)"); stamp()
        P("s_waitcnt lgkmcnt(0)\nv_mov_b32 v40, s100\ns_memrealtime s[100:101]\ns_waitcnt lgkmcnt(0)\nv_mov_b32 v41, s100\nv_mov_b32 v39, 0")
        for i in range(14): P(f"v_mov_b32 v{42+i}, s{70+2*min(i, sn[0]-1)}")
        P(f"s_mov_b32 s22, 0x8000000\ns_lshl_b32 s43, s2, 3\ns_add_u32 s43, s43, s30\ns_lshl_b32 s43, s43, 7\ns_add_u32 s43, s43, {0x4000000 + 0x100000}\ns_mov_b64 exec, 1")
        for i in range(4): P(f"buffer_store_dwordx4 v[{40+4*i}:{43+4*i}], v39, s[20:23], s43 offen offset:{16*i}")
    P("s_cmp_ge_u32 s2, 256\ns_cbranch_scc1 L_k1_end")
    if STAMP: P("s_memrealtime s[100:101]")
    stamp()
    P(f"s_load_dwordx4 s[4:7], s[0:1], 0\ns_load_dwordx2 s[8:9], s[0:1], {ARG['ws']}\ns_load_dwordx2 s[10:11], s[0:1], {ARG['wo']}\ns_load_dwordx8 s[56:63], s[0:1], {ARG['w1']}")
    P("v_and_b32 v1, 63, v0\nv_lshrrev_b32 v2, 6, v0\nv_readfirstlane_b32 s30, v2")
    P("""s_and_b32 s25, s2, 7
s_lshr_b32 s26, s2, 3
s_and_b32 s27, s26, 3
s_lshr_b32 s28, s26, 2
s_lshr_b32 s31, s25, 1
s_lshl_b32 s31, s31, 2
s_add_u32 s31, s31, s27
s_and_b32 s32, s25, 1
s_lshl_b32 s32, s32, 3
s_add_u32 s32, s32, s28""")
    P("s_cmp_ge_u32 s30, 4\ns_cbranch_scc1 L_k1_helper")
    if opt.get("CPF", 1):
        NSEG = opt.get("NSEG", 8)
        P(f"""s_getpc_b64 s[48:49]
L_pc0:
s_sub_u32 s48, s48, L_pc0-qkv_kernel
s_subb_u32 s49, s49, 0
s_lshl_b32 s50, s26, 2
s_add_u32 s50, s50, s30
s_cmp_ge_u32 s50, {NSEG}
s_cbranch_scc1 L_nocpf
s_lshl_b32 s50, s50, 13
v_lshl_add_u32 v60, v1, 7, s50
v_min_u32 v60, L_code_end-qkv_kernel-4, v60
v_mov_b32 v61, s49
v_add_co_u32 v60, vcc, s48, v60
v_addc_co_u32 v61, vcc, 0, v61, vcc
global_load_dword v62, v[60:61], off
L_nocpf:""")
    P("s_cmp_eq_u32 s32, 15\ns_cbranch_scc1 L_k1_spare_c")
    P("s_lshr_b32 s34, s30, 1\ns_and_b32 s35, s30, 1")
    P("""v_and_b32 v36, 31, v1
v_lshrrev_b32 v39, 5, v1
s_lshl_b32 s41, s34, 6
v_add_u32 v10, s41, v36
v_bfe_u32 v11, v10, 1, 3
v_xor_b32 v11, v11, v39
v_lshlrev_b32 v11, 4, v11
v_lshl_add_u32 v20, v10, 7, v11
s_lshl_b32 s41, s35, 12
v_add_u32 v20, s41, v20""")
    for kk in range(1, 4): P(f"v_xor_b32 v{20+kk}, {kk*32}, v20")
    for kk in range(4): P(f"v_add_u32 v{24+kk}, 0x10000, v{20+kk}")
    for kk in range(8): P(f"v_xor_b32 v{40+kk}, 0x1000, v{20+kk}")
    P("""v_bfe_u32 v10, v1, 2, 2
v_lshl_add_u32 v11, v39, 3, v10
v_lshlrev_b32 v11, 8, v11
v_bfe_u32 v12, v1, 4, 1
v_lshl_add_u32 v11, v12, 5, v11
v_and_b32 v12, 3, v1
v_lshl_add_u32 v11, v12, 3, v11
s_lshl_b32 s41, s35, 1
s_add_u32 s41, s41, s34
v_xor_b32 v12, s41, v10
v_lshl_add_u32 v28, v12, 6, v11
v_xor_b32 v29, 64, v28
v_add_u32 v30, 0x10000, v28
v_add_u32 v31, 0x10000, v29""")
    ACC, FX, FW, SEL, CSA, AD = 64, 128, 144, 4, 32, 224
    P(f"v_and_b32 v10, 15, v1\nv_bfe_u32 v11, v1, 4, 1\nv_cmp_eq_u32 vcc, v10, v11\nv_mov_b32 v10, {ONES}")
    for i in range(4): P(f"v_cndmask_b32 v{SEL+i}, 0, v10, vcc")
    P("""s_lshl_b32 s43, s31, 2
s_lshl_b32 s44, s34, 1
s_add_u32 s43, s43, s44
s_add_u32 s43, s43, s35
s_lshr_b32 s44, s43, 3
s_mul_i32 s44, s44, 327680
s_and_b32 s45, s43, 7
s_xor_b32 s46, s45, 1
s_mul_i32 s45, s45, 1280
s_mul_i32 s46, s46, 1280
s_add_u32 s45, s45, s44
s_add_u32 s46, s46, s44""")
    P("s_waitcnt lgkmcnt(0)")
    srd(P, 20, 8, L.WS_USED)
    P("s_cmp_ge_u32 s32, 10\ns_cbranch_scc1 L_k1_v")
    for variant in ("qk", "v"):
        if variant == "v":
            P("L_k1_v:")
            sn[0] = 1
            P(f"s_sub_u32 s41, s32, 10\ns_lshl_b32 s41, s41, 7\ns_lshl_b32 s42, s35, 6\ns_add_u32 s41, s41, s42\ns_lshl_b32 s42, s34, 5\ns_add_u32 s41, s41, s42\ns_add_u32 s45, s45, {L.V_OFF}\ns_add_u32 s46, s46, {L.V_OFF}")
            for ct in range(2):
                P(f"v_add_u32 v10, s41, v36\nv_xor_b32 v10, {32*ct}, v10\nv_mul_u32_u24 v11, 52429, v10\nv_lshrrev_b32 v11, 20, v11\nv_mul_u32_u24 v11, {10240-320}, v11\nv_lshl_add_u32 v11, v10, 4, v11\nv_mul_u32_u24 v12, 320, v39\nv_add_u32 v{AD+ct}, v11, v12")
        else:
            P(f"s_cmp_ge_u32 s32, 5\ns_cselect_b32 s42, 5, 0\ns_cselect_b32 s47, {L.K_OFF}, {L.Q_OFF}\ns_sub_u32 s41, s32, s42\ns_lshl_b32 s41, s41, 5\ns_lshl_b32 s42, s35, 4\ns_add_u32 s41, s41, s42\ns_lshl_b32 s42, s34, 3\ns_add_u32 s41, s41, s42\ns_add_u32 s45, s45, s47\ns_add_u32 s46, s46, s47")
            for ct in range(2):
                for b in range(4):
                    P(f"v_add_u32 v10, s41, v39\nv_xor_b32 v10, {8*ct}, v10\nv_add_u32 v10, {2*b}, v10\nv_mul_u32_u24 v11, 52429, v10\nv_lshrrev_b32 v11, 18, v11\nv_mul_u32_u24 v11, {10240-1280}, v11\nv_lshl_add_u32 v11, v10, 8, v11\nv_lshl_add_u32 v{AD+ct*4+b}, v36, 3, v11")
        def reads(n):
            st, kk = divmod(n, 4)
            b = n & 1
            slot = (st % 4) * 32768
            hi = slot >= 65536
            off = slot - (65536 if hi else 0)
            for rt in range(2):
                P(f"ds_read_b128 v[{FX+b*8+rt*4}:{FX+b*8+rt*4+3}], v{(40 if rt else 20)+(4 if hi else 0)+kk} offset:{off}")
            for ct in range(2):
                ar = 28 + ct + (2 if hi else 0)
                P(f"ds_read_b64_tr_b16 v[{FW+b*8+ct*4}:{FW+b*8+ct*4+1}], v{ar} offset:{off+16384+kk*4096}")
                P(f"ds_read_b64_tr_b16 v[{FW+b*8+ct*4+2}:{FW+b*8+ct*4+3}], v{ar} offset:{off+16384+kk*4096+1024}")
        stamp()
        P("s_barrier"); stamp(); reads(0)
        for n in range(40):
            b = n & 1
            if n + 1 < 40:
                if (n + 1) % 4 == 0:
                    P("s_barrier")
                    if (n + 1) // 4 in (1, 2, 3, 5, 7, 9): stamp()
                reads(n + 1)
                P("s_waitcnt lgkmcnt(6)")
            else:
                P("s_waitcnt lgkmcnt(0)")
            for t in range(4):
                rt, ct = t >> 1, t & 1
                x = v(FX + b*8 + rt*4, 4); w = v(FW + b*8 + ct*4, 4); d = v(ACC + t*16, 16)
                c = "0" if n == 0 else d
                if variant == "qk": P(f"v_mfma_f32_32x32x16_bf16 {d}, {w}, {x}, {c}")
                else: P(f"v_mfma_f32_32x32x16_bf16 {d}, {x}, {w}, {c}")
                if t == 1 and not (opt.get("NOCS") and n > 0): P(f"v_mfma_f32_16x16x32_bf16 {v(CSA,4)}, {v(SEL,4)}, {v(FW+b*8,4)}, {'0' if n == 0 else v(CSA,4)}")
        stamp()
        P(f"""s_lshl_b32 s41, s35, 1
s_add_u32 s41, s41, s34
s_lshl_b32 s41, s41, 7
s_add_u32 s41, s41, {STAT+1024}
v_lshl_add_u32 v37, v36, 2, s41
s_mov_b64 exec, 0xffff
ds_write_b32 v37, v{CSA}
ds_write_b32 v37, v{CSA+1} offset:64
s_mov_b64 exec, -1
s_lshl_b32 s42, s34, 1
s_add_u32 s42, s42, s35
s_lshl_b32 s42, s42, 7
s_add_u32 s42, s42, {STAT}
s_waitcnt lgkmcnt(0)
s_barrier""")
        stamp()
        if variant == "qk":
            P(f"""v_lshl_add_u32 v37, v36, 2, s42
v_xor_b32 v38, 128, v37
ds_read_b32 v40, v37
ds_read_b32 v42, v37 offset:512
ds_read_b32 v44, v38
ds_read_b32 v46, v38 offset:512
v_lshl_add_u32 v37, v39, 4, s41
v_xor_b32 v38, 128, v37""")
            for ct in range(2):
                for b in range(4):
                    P(f"ds_read_b128 v[{128+ct*16+b*4}:{128+ct*16+b*4+3}], v{37+ct} offset:{b*32}")
            P(f"s_cmp_lt_u32 s32, 5\ns_cselect_b32 s41, {f2u(20**-0.5*LOG2E)}, 1.0\ns_waitcnt lgkmcnt(8)")
            for r in (40, 42, 44, 46): P(f"v_mul_f32 v{r}, s41, v{r}")
            for r in (40, 42, 44, 46): P(f"v_mov_b32 v{r+1}, v{r}")
            P("s_waitcnt lgkmcnt(0)")
            for t in range(4):
                rt, ct = t >> 1, t & 1
                A = v(40 + rt*4, 2); B = v(42 + rt*4, 2)
                for p in range(8):
                    r = ACC + t*16 + 2*p
                    P(f"v_pk_mul_f32 v[{48+2*(p&3)}:{49+2*(p&3)}], v[{128+ct*16+2*p}:{128+ct*16+2*p+1}], {B}")
                    P(f"v_pk_fma_f32 v[{r}:{r+1}], v[{r}:{r+1}], {A}, v[{48+2*(p&3)}:{49+2*(p&3)}] neg_lo:[0,0,1] neg_hi:[0,0,1]")
                for p in range(8):
                    r = ACC + t*16 + 2*p
                    P(f"v_cvt_pk_bf16_f32 v{160+t*8+p}, v{r}, v{r+1}")
                for b in range(4):
                    P(f"buffer_store_dwordx2 v[{160+t*8+2*b}:{160+t*8+2*b+1}], v{AD+ct*4+b}, s[20:23], s{45+rt} offen{QSF}")
        else:
            P(f"""v_lshl_add_u32 v37, v36, 2, s41
v_xor_b32 v38, 128, v37
ds_read_b32 v40, v37
ds_read_b32 v42, v38
v_lshl_add_u32 v37, v39, 4, s42
v_xor_b32 v38, 128, v37""")
            for rt in range(2):
                for b in range(4):
                    P(f"ds_read_b128 v[{128+rt*32+b*4}:{128+rt*32+b*4+3}], v{37+rt} offset:{b*32}")
                    P(f"ds_read_b128 v[{144+rt*32+b*4}:{144+rt*32+b*4+3}], v{37+rt} offset:{512+b*32}")
            P("s_waitcnt lgkmcnt(0)\nv_mov_b32 v41, v40\nv_mov_b32 v43, v42")
            for t in range(4):
                rt, ct = t >> 1, t & 1
                C = v(40 + ct*2, 2)
                for p in range(8):
                    r = ACC + t*16 + 2*p
                    P(f"v_pk_mul_f32 v[{48+2*(p&3)}:{49+2*(p&3)}], v[{144+rt*32+2*p}:{144+rt*32+2*p+1}], {C}")
                    P(f"v_pk_fma_f32 v[{r}:{r+1}], v[{r}:{r+1}], v[{128+rt*32+2*p}:{128+rt*32+2*p+1}], v[{48+2*(p&3)}:{49+2*(p&3)}] neg_lo:[0,0,1] neg_hi:[0,0,1]")
                for p in range(8):
                    r = ACC + t*16 + 2*p
                    P(f"v_cvt_pk_bf16_f32 v{192+t*8+p}, v{r}, v{r+1}")
                for u in range(2):
                    P(f"buffer_store_dwordx4 v[{192+t*8+4*u}:{192+t*8+4*u+3}], v{AD+ct}, s[20:23], s{45+rt} offen offset:{640*u}{QSF}")
        stamp(); stamp_out()
        P("s_endpgm")
    P("L_k1_spare_c:\ns_cmp_lg_u32 s31, 0\ns_cbranch_scc1 L_k1_end\ns_waitcnt lgkmcnt(0)")
    srd(P, 20, 8, L.WS_USED)
    P("v_lshlrev_b32 v3, 4, v0\nv_mov_b32 v4, 0\nv_mov_b32 v5, 0\nv_mov_b32 v6, 0\nv_mov_b32 v7, 0")
    for i in range((L.FLAG_BYTES + 4095) // 4096):
        P(f"s_mov_b32 s31, {L.FLAG_OFF + i*4096}\nbuffer_store_dwordx4 v[4:7], v3, s[20:23], s31 offen")
    P("s_endpgm")

    P("L_k1_helper:")
    sn[0] = 1
    P("s_sub_u32 s33, s30, 4")
    P("v_lshrrev_b32 v8, 3, v1\nv_and_b32 v9, 7, v1\nv_lshrrev_b32 v10, 4, v1\nv_lshlrev_b32 v14, 4, v1")
    P("s_cmp_eq_u32 s32, 15\ns_cbranch_scc1 L_k1_spare_h")
    for i in range(4):
        P(f"v_add_u32 v11, {8*i}, v8\nv_mul_u32_u24 v11, 1280, v11\nv_add_u32 v12, {4*i}, v10\nv_and_b32 v12, 7, v12\nv_xor_b32 v12, v12, v9\nv_lshl_add_u32 v{4+i}, v12, 4, v11")
    P("v_mul_u32_u24 v11, 3840, v10\nv_bfe_u32 v12, v1, 2, 2\nv_xor_b32 v12, v12, v10\nv_lshl_add_u32 v11, v12, 6, v11\nv_and_b32 v12, 3, v1\nv_lshl_add_u32 v3, v12, 4, v11")
    P("s_lshl_b32 s36, s31, 2\ns_add_u32 s36, s36, s33\ns_mul_i32 s36, s36, 40960")
    P("s_mul_i32 s37, s33, 61440\ns_lshl_b32 s38, s32, 8\ns_add_u32 s37, s37, s38")
    P("s_lshl_b32 s39, s33, 12")
    if ROT:
        P("s_mul_i32 s34, s27, 3\ns_add_u32 s34, s34, s28\ns_add_u32 s34, s34, s25\ns_cmp_ge_u32 s34, 20\ns_cselect_b32 s35, 20, 0\ns_sub_u32 s34, s34, s35\ns_cmp_ge_u32 s34, 10\ns_cselect_b32 s35, 10, 0\ns_sub_u32 s34, s34, s35")
    else: P("s_mov_b32 s34, 0")
    P("s_waitcnt lgkmcnt(0)")
    srd(P, 12, 4, SZ); srd(P, 16, 6, 640 * 3840); srd(P, 20, 8, L.WS_USED)
    nvm = [0]; last = {}
    def dma(i):
        slot = (i % 4) * 32768
        P("s_lshl_b32 s40, s34, 7\ns_add_u32 s40, s40, s36\ns_mul_i32 s41, s34, 245760\ns_add_u32 s41, s41, s37")
        for j in range(4):
            P(f"s_add_u32 m0, s39, {slot + j*1024}\ns_nop 0\nbuffer_load_dwordx4 v{4+j}, s[12:15], s40 offen lds")
            P(f"s_add_u32 m0, s39, {slot + 16384 + j*1024}\ns_nop 0\nbuffer_load_dwordx4 v3, s[16:19], s41 offen lds")
            if j < 3: P(f"s_add_u32 s41, s41, {4*3840}")
        P("s_add_u32 s34, s34, 1\ns_cmp_eq_u32 s34, 10\ns_cselect_b32 s34, 0, s34")
        nvm[0] += 8; last[i] = nvm[0] - 1
    dma(0); dma(1)
    stamp()
    def decode(tag):
        P(f"""s_mov_b32 s64, s10
s_mov_b32 s65, s11
s_mov_b32 s50, 1280
s_mov_b32 s51, 5
s_mov_b32 s52, 0
s_mov_b32 s53, 0
s_mov_b32 s55, 0
s_mov_b32 s66, 819200
s_mov_b32 s67, s48
s_cmp_lt_u32 s48, 40
s_cbranch_scc1 L_dec4{tag}
s_mov_b32 s64, s56
s_mov_b32 s65, s57
s_mov_b32 s52, 5
s_mov_b32 s55, {L.CS1_OFF}
s_sub_u32 s67, s48, 40
s_cmp_lt_u32 s48, 80
s_cbranch_scc1 L_dec4{tag}
s_mov_b32 s64, s58
s_mov_b32 s65, s59
s_mov_b32 s52, 10
s_mov_b32 s55, 0
s_sub_u32 s67, s48, 80
s_cmp_lt_u32 s48, 120
s_cbranch_scc1 L_dec4{tag}
s_mov_b32 s64, s60
s_mov_b32 s65, s61
s_mov_b32 s50, 3456
s_mov_b32 s52, 15
s_mov_b32 s53, 1
s_mov_b32 s55, {L.CS3_OFF}
s_mov_b32 s66, 2211840
s_sub_u32 s67, s48, 120
s_cmp_lt_u32 s48, 228
s_cbranch_scc1 L_dec4{tag}
s_mov_b32 s64, s62
s_mov_b32 s65, s63
s_mov_b32 s50, 1280
s_mov_b32 s51, 6
s_mov_b32 s52, 29
s_mov_b32 s53, 2
s_mov_b32 s55, 0
s_sub_u32 s67, s48, 228
s_mul_i32 s68, s67, 7282
s_lshr_b32 s68, s68, 16
s_mul_i32 s69, s68, 9
s_sub_u32 s69, s67, s69
s_branch L_decj{tag}
L_dec4{tag}:
s_lshr_b32 s68, s67, 2
s_and_b32 s69, s67, 3
L_decj{tag}:
s_mov_b32 s24, s64
s_and_b32 s25, s65, 0xffff
s_mov_b32 s26, s66
s_mov_b32 s27, 0x20000
s_mul_i32 s54, s69, s51
s_lshl_b32 s49, s54, 2
s_add_u32 s49, s49, s33
s_lshl_b32 s49, s49, 3
s_mul_i32 s49, s49, s50
s_lshl_b32 s42, s68, 7
s_add_u32 s49, s49, s42
v_mul_lo_u32 v13, v8, s50
v_lshl_add_u32 v13, v9, 4, v13""")
        P(f"""s_lshl_b32 s42, s68, 2
s_add_u32 s42, s42, s33
s_mul_i32 s52, s52, 20480
s_add_u32 s52, s52, {L.WS_OFF}
s_cmp_eq_u32 s53, 1
s_cbranch_scc1 L_dw3{tag}
s_mul_i32 s43, s42, 52429
s_lshr_b32 s43, s43, 18
s_mul_i32 s44, s43, 5
s_sub_u32 s44, s42, s44
s_cmp_eq_u32 s44, 0
s_cselect_b32 s45, 4, -1
s_bitcmp1_b32 s43, 0
s_cselect_b32 s45, s45, 0
s_add_u32 s44, s44, s45
s_add_u32 s42, s42, s45
s_lshl_b32 s44, s44, 10
s_mul_i32 s46, s69, 2560
s_branch L_dj2{tag}
L_dw3{tag}:
s_lshr_b32 s45, s42, 1
s_mul_i32 s43, s45, 9363
s_lshr_b32 s43, s43, 16
s_cmp_eq_u32 s45, 48
s_cselect_b32 s43, 7, s43
s_mul_i32 s44, s43, 7
s_sub_u32 s44, s45, s44
s_cmp_eq_u32 s43, 7
s_addc_u32 s44, s44, 0
s_lshl_b32 s44, s44, 1
s_and_b32 s45, s42, 1
s_add_u32 s44, s44, s45
s_mul_i32 s44, s44, 20480
s_mul_i32 s46, s69, 8192
L_dj2{tag}:
s_mul_i32 s43, s43, {L.SLICE_B}
s_add_u32 s52, s52, s43
s_add_u32 s52, s52, s44
s_lshl_b32 s42, s42, 6
s_add_u32 s42, s42, s46
s_cmp_eq_u32 s55, 0
s_cselect_b32 s42, 0, s42
s_add_u32 s55, s55, s42""")
    def prep_dma(ldsbase_sreg):
        P(f"s_lshl_b32 s42, s33, 10\ns_add_u32 s42, s42, {ldsbase_sreg}\ns_lshl_b32 s43, s50, 5\ns_mov_b32 s44, s49")
        for k in range(6):
            P(f"s_add_u32 m0, s42, {k*4096}\ns_nop 0\nbuffer_load_dwordx4 v13, s[24:27], s44 offen{NTF} lds")
            if k == 4: P("s_cmp_eq_u32 s51, 5\ns_cselect_b32 s43, 0, s43")
            if k < 5: P("s_add_u32 s44, s44, s43")
        nvm[0] += 6
    def prep_proc(tag, ldsbase_sreg):
        P(f"""v_bfe_u32 v11, v1, 2, 2
v_lshl_add_u32 v11, v10, 3, v11
v_lshlrev_b32 v11, 7, v11
v_and_b32 v12, 3, v1
v_lshl_add_u32 v11, v12, 4, v11
s_lshr_b32 s42, s33, 1
s_lshl_b32 s42, s42, 6
s_and_b32 s43, s33, 1
s_lshl_b32 s43, s43, 3
s_add_u32 s42, s42, s43
s_add_u32 s42, s42, {ldsbase_sreg}
v_add_u32 v11, s42, v11""")
        for k in range(6):
            P(f"ds_read_b64_tr_b16 v[{64+4*k}:{65+4*k}], v11 offset:{k*4096}\nds_read_b64_tr_b16 v[{66+4*k}:{67+4*k}], v11 offset:{k*4096+512}")
        P(f"s_cmp_eq_u32 s53, 1\ns_mov_b32 s46, 5120\ns_cmov_b32 s46, 1024\nv_mov_b32 v60, 0\nv_mov_b32 v62, {ONES}")
        for k in range(6):
            if k == 5: P(f"s_cmp_eq_u32 s51, 5\ns_cbranch_scc1 L_pp5{tag}")
            P(f"s_add_u32 s42, s54, {k}\ns_cmp_lg_u32 s53, 2\ns_cbranch_scc1 L_ppn{tag}_{k}")
            P("""s_mul_i32 s43, s42, 9363
s_lshr_b32 s43, s43, 16
s_cmp_eq_u32 s42, 48
s_cselect_b32 s43, 7, s43
s_mul_i32 s44, s43, 7
s_sub_u32 s44, s42, s44
s_cmp_eq_u32 s43, 7
s_addc_u32 s44, s44, 0
s_lshl_b32 s42, s44, 3
s_add_u32 s42, s42, s43""")
            P(f"L_ppn{tag}_{k}:\ns_mul_i32 s42, s42, s46\ns_add_u32 s42, s42, s52\ns_waitcnt lgkmcnt({10-2*k})")
            P(f"buffer_store_dwordx4 v[{64+4*k}:{67+4*k}], v14, s[20:23], s42 offen{PSF}")
        P(f"L_pp5{tag}:\ns_cmp_eq_u32 s55, 0\ns_cbranch_scc1 L_ppe{tag}")
        for r in range(20): P(f"v_dot2c_f32_bf16 v60, v{64+r}, v62")
        xg_reduce(P, [60], [61])
        P("v_lshlrev_b32 v61, 2, v1\ns_mov_b64 exec, 0xffff\nbuffer_store_dword v60, v61, s[20:23], s55 offen\ns_mov_b64 exec, -1")
        P(f"L_ppe{tag}:\ns_waitcnt lgkmcnt(0)")
    P("s_mul_i32 s48, s31, 15\ns_add_u32 s48, s48, s32")
    decode("m")
    for r in range(8): P(f"v_mov_b32 v{16+r}, 0")
    P("v_add_u32 v15, s39, v14\nv_add_u32 v24, 0x10000, v15")
    for i in range(10):
        P(f"s_waitcnt vmcnt({min(nvm[0]-1-last[i], nvm[0]-1-pid if i == PP else 99)})\ns_barrier")
        slot = (i % 4) * 32768
        for j in range(4):
            P(f"ds_read_b128 v[{32+4*j}:{35+4*j}], v{24 if slot >= 65536 else 15} offset:{slot % 65536 + j*1024}")
        if i + 2 < 10: dma(i + 2)
        if i == PI: prep_dma(PB); pid = nvm[0] - 1
        for j in range(4):
            if opt.get("NOSTAT"): break
            P(f"s_waitcnt lgkmcnt({3-j})")
            for r in range(4):
                s_ = 32 + 4*j + r
                P(f"v_lshlrev_b32 v{48+2*r}, 16, v{s_}\nv_and_b32 v{49+2*r}, 0xffff0000, v{s_}")
            for r in range(8):
                P(f"v_add_f32 v{16+j}, v{16+j}, v{48+r}\nv_fmac_f32 v{20+j}, v{48+r}, v{48+r}")
        if i == PP: prep_proc("m", PB); nvm[0] += 5
    stamp()
    for ctl in ("quad_perm:[1,0,3,2]", "quad_perm:[2,3,0,1]", "row_half_mirror"):
        for r in range(8): P(f"v_add_f32_dpp v{16+r}, v{16+r}, v{16+r} {ctl} row_mask:0xf bank_mask:0xf")
    for j in range(4):
        P(f"v_mul_f32 v{16+j}, {f2u(1/640)}, v{16+j}\nv_mul_f32 v{20+j}, {f2u(1/640)}, v{20+j}")
    for j in range(4):
        P(f"v_fma_f32 v{20+j}, -v{16+j}, v{16+j}, v{20+j}\nv_max_f32 v{20+j}, 0, v{20+j}\nv_add_f32 v{20+j}, {f2u(EPS)}, v{20+j}")
    for j in range(4): P(f"v_rsq_f32 v{20+j}, v{20+j}")
    for j in range(4): P(f"v_mul_f32 v{16+j}, v{16+j}, v{20+j}")
    P(f"s_lshl_b32 s42, s33, 7\ns_add_u32 s42, s42, {STAT}\nv_lshl_add_u32 v11, v8, 2, s42")
    for j in range(4): P(f"ds_write_b32 v11, v{20+j} offset:{32*j}\nds_write_b32 v11, v{16+j} offset:{512+32*j}")
    P("s_waitcnt vmcnt(0) lgkmcnt(0)\ns_barrier" if PP >= 10 else "s_waitcnt lgkmcnt(0)\ns_barrier")
    stamp()
    if PP >= 10: prep_proc("m", PB)
    stamp(); stamp_out()
    P("s_endpgm")
    P("L_k1_spare_h:\ns_waitcnt lgkmcnt(0)")
    srd(P, 20, 8, L.WS_USED)
    P("s_add_u32 s48, s31, 240\ns_mov_b32 s47, 0\nL_sp1:")
    decode("a")
    prep_dma("s47")
    P("s_add_u32 s48, s48, 16\ns_add_u32 s47, s47, 24576\ns_cmp_lt_u32 s48, 318\ns_cbranch_scc1 L_sp1")
    P("s_waitcnt vmcnt(0)\ns_barrier")
    P("s_add_u32 s48, s31, 240\ns_mov_b32 s47, 0\nL_sp2:")
    decode("b")
    prep_proc("b", "s47")
    P("s_nop 4\ns_add_u32 s48, s48, 16\ns_add_u32 s47, s47, 24576\ns_cmp_lt_u32 s48, 318\ns_cbranch_scc1 L_sp2")
    P("L_k1_end:\ns_endpgm")
    return (name, 256, 512, STAT + 2048, 256)
```

```python
from asmlib import *
from gen1 import f2u, LOG2E, ONES, EPS, ARG, SZ, srd, header, xg_reduce

RING = 7
KV_LDS = 5 * 20480
XR_LDS = RING * 20480
CS1_LDS = XR_LDS + 12288
CS3_LDS = CS1_LDS + 1024
SY_LDS = CS3_LDS + 1024
LDS_TOTAL = SY_LDS + 64
SPIN_MAX = 400000
STAMP_OFF = 0x4000000

class VM:
    def __init__(s, P): s.P = P; s.n = 0
    def op(s, text, k=1): s.P(text); s.n += k; return s.n - 1
    def cnt(s, idx):
        c = s.n - 1 - idx
        assert 0 <= c <= 63, c
        return c
    def wait(s, idx, extra=""): s.P(f"s_waitcnt vmcnt({s.cnt(idx)}){extra}")
class LG(VM):
    def cnt(s, idx): return min(15, s.n - 1 - idx)
    def wait(s, idx): s.P(f"s_waitcnt lgkmcnt({s.cnt(idx)})")

_lab = [0]
def lab(p):
    _lab[0] += 1
    return f"L_{p}{_lab[0]}"

def gen_k2(P, L, opt):
    STAMP = opt.get("STAMP", False); FOCUS = opt.get("FOCUS", 0)
    NTOUCH = opt.get("NTOUCH", 1); THIN = opt.get("THIN", 1); PRE = opt.get("PRE", 8); PRE4 = opt.get("PRE4", 12)
    NSTG = L.NSTG
    tails = []
    def store2(vm, lines):
        a, b = lab("sf"), lab("se")
        P(f"s_cbranch_scc1 {a}" if False else f"s_cmp_lg_u32 s24, 0\ns_cbranch_scc1 {a}")
        for l in lines: P(l)
        P(f"{b}:")
        tails.append(f"{a}:\ns_nop 4\n" + "\n".join(l + " sc1" for l in lines) + f"\ns_nop 1\ns_branch {b}")
        vm.n += len(lines)
        return vm.n - 1
    def poll_check(vaddr, vdata, soff, need):
        a, b, c = lab("pl"), lab("pd"), lab("pr")
        P(f"v_cmp_gt_u32 vcc, {need}, v{vdata}\ns_cbranch_vccnz {a}\n{b}:")
        tails.append(f"""{a}:
s_mov_b32 s47, 0
{c}:
buffer_load_dword v{vdata}, v{vaddr}, s[20:23], {soff} offen sc1
s_add_u32 s47, s47, 1
s_cmp_ge_u32 s47, {SPIN_MAX}
s_waitcnt vmcnt(0)
s_cbranch_scc1 {b}
v_cmp_gt_u32 vcc, {need}, v{vdata}
s_cbranch_vccnz {c}
s_branch {b}""")
    def lds_check(vaddr, vdata, off, need, back=''):
        a, b, c = lab("ll"), lab("ld"), lab("lr")
        P(f"v_cmp_gt_u32 vcc, {need}, v{vdata}\ns_cbranch_vccnz {a}\n{b}:")
        tails.append(f"""{a}:
s_mov_b32 s47, 0
{c}:
{back}ds_read_b32 v{vdata}, v{vaddr} offset:{off}
s_add_u32 s47, s47, 1
s_cmp_ge_u32 s47, {SPIN_MAX*4}
s_waitcnt lgkmcnt(0)
s_cbranch_scc1 {b}
v_cmp_gt_u32 vcc, {need}, v{vdata}
s_cbranch_vccnz {c}
s_branch {b}""")
    class Stamper:
        def __init__(s, base, n): s.i = 0; s.base = base; s.n = n
        def __call__(s):
            if not STAMP: return
            assert s.i < s.n
            P(f"s_memtime s[{s.base+2*s.i}:{s.base+2*s.i+1}]"); s.i += 1
    def stamp_dump(regs):
        regs = regs + [regs[-1]] * (22 - len(regs))
        P("s_waitcnt lgkmcnt(0)\nv_mov_b32 v40, s100\ns_memrealtime s[100:101]\ns_waitcnt lgkmcnt(0)\nv_mov_b32 v41, s100\nv_mov_b32 v2, 0")
        for i, r in enumerate(regs): P(f"v_mov_b32 v{42+i}, s{r}")
        P("s_mov_b32 s22, 0x8000000")
        P(f"s_lshl_b32 s43, s2, 3\ns_add_u32 s43, s43, s30\ns_lshl_b32 s43, s43, 7\ns_add_u32 s43, s43, {STAMP_OFF + 2*0x100000}\ns_mov_b64 exec, 1")
        for i in range(6): P(f"buffer_store_dwordx4 v[{40+4*i}:{43+4*i}], v2, s[20:23], s43 offen offset:{16*i}")

    name = "main_kernel"
    header(P, name)
    sa = Stamper(80, 8)
    P(f"s_load_dwordx2 s[8:9], s[0:1], {ARG['ws']}\ns_load_dwordx2 s[4:5], s[0:1], {ARG['x']}\ns_load_dwordx2 s[6:7], s[0:1], {ARG['out']}")
    P("s_cmp_ge_u32 s2, 256\ns_cbranch_scc1 L_end")
    if STAMP: P("s_memrealtime s[100:101]")
    sa()
    P("v_and_b32 v1, 63, v0\nv_lshrrev_b32 v2, 6, v0\nv_readfirstlane_b32 s30, v2\nv_lshlrev_b32 v3, 4, v1")
    P("s_and_b32 s25, s2, 7\ns_lshr_b32 s26, s2, 3")
    P(f"""s_cmp_ge_u32 s30, 4
s_mov_b32 s46, {L.K_OFF - 327680}
s_cmov_b32 s46, {L.V_OFF - 327680}
s_mul_i32 s35, s26, 10240
s_add_u32 s46, s46, s35
s_bfe_u32 s36, s30, 0x10001
s_add_u32 s36, s36, s25
s_mul_i32 s36, s36, 327680
s_add_u32 s46, s46, s36
s_and_b32 s36, s30, 1
s_mul_i32 s36, s36, 5120
s_add_u32 s46, s46, s36
s_mul_i32 s47, s30, 5120
s_add_u32 s47, s47, {KV_LDS}
s_mul_i32 s40, s25, 327680
s_add_u32 s40, s40, s35
s_mul_i32 s41, s30, 1280
s_add_u32 s40, s40, s41
v_and_b32 v13, 31, v1
v_lshrrev_b32 v14, 5, v1
v_lshlrev_b32 v5, 3, v13
v_lshl_add_u32 v6, v14, 9, v5
s_mov_b32 s22, {L.WS_USED}
s_mov_b32 s23, 0x20000
s_waitcnt lgkmcnt(0)
s_mov_b32 s20, s8
s_and_b32 s21, s9, 0xffff""")
    def kvdma():
        P("s_mov_b32 m0, s47")
        for i in range(4): P(f"buffer_load_dwordx4 v3, s[20:23], s46 offen offset:{i*1024} lds")
        P("s_add_u32 m0, s47, 4096\ns_add_u32 s46, s46, 4096\nbuffer_load_dwordx4 v3, s[20:23], s46 offen lds")
    P("""buffer_load_dwordx2 v[16:17], v6, s[20:23], s40 offen
buffer_load_dwordx2 v[18:19], v6, s[20:23], s40 offen offset:256
buffer_load_dwordx2 v[20:21], v5, s[20:23], s40 offen offset:1024""")
    P("s_cmp_ge_u32 s30, 4\ns_cbranch_scc1 L_nok")
    kvdma()
    P("L_nok:")
    srd(P, 12, 4, SZ); srd(P, 16, 6, SZ)
    P("s_and_b32 s27, s26, 3\ns_lshl_b32 s28, s25, 2\ns_add_u32 s27, s27, s28\ns_lshr_b32 s28, s2, 5\ns_lshl_b32 s31, s25, 3\ns_add_u32 s31, s31, s30")
    P(f"""v_mov_b32 v22, 0
v_mov_b32 v23, 0
s_add_u32 s41, s41, {KV_LDS}
v_add_u32 v24, s41, v6
v_add_u32 v25, s41, v5
v_mul_u32_u24 v26, 320, v14
v_lshl_add_u32 v26, v13, 4, v26
v_add_u32 v26, s41, v26""")
    S, KF, VF, OA, PM, CA = 32, 176, 200, 224, 240, 8
    RMV, L4V, FXV, L7V, MODEV = 248, 249, 250, 251, 252
    for r in range(16):
        m = 0
        for l in range(64):
            if 8*(r >> 2) + 4*(l >> 5) + (r & 3) <= (l & 31): m |= 1 << l
        P(f"s_mov_b32 s{48+2*r}, {m & 0xffffffff:#x}\ns_mov_b32 s{49+2*r}, {m >> 32:#x}")
    P("s_cmp_lt_u32 s30, 4\ns_cbranch_scc1 L_nov")
    kvdma()
    P("L_nov:")
    for b in range(3): P(f"v_mov_b32 v{KF+b*8+6}, 0\nv_mov_b32 v{KF+b*8+7}, 0")
    for r in range(24): P(f"v_mov_b32 v{VF+r}, {ONES}")
    for r in range(16): P(f"v_mov_b32 v{OA+r}, 0")
    P("v_mov_b32 v4, 0xffff\nv_mov_b32 v7, 0xffff0000")
    for p in range(8):
        P(f"v_cndmask_b32 v{PM+p}, 0, v4, s[{48+4*p}:{49+4*p}]\nv_cndmask_b32 v12, 0, v7, s[{50+4*p}:{51+4*p}]\nv_or_b32 v{PM+p}, v{PM+p}, v12")
    P(f"v_cmp_gt_u32 vcc, 32, v1\nv_mov_b32 v4, 0xbf80bf80\nv_mov_b32 v7, 0x0000bf80\nv_cndmask_b32 v{CA}, 0, v4, vcc\nv_cndmask_b32 v{CA+1}, 0, v7, vcc\nv_mov_b32 v{CA+2}, 0\nv_mov_b32 v{CA+3}, 0")
    P("s_mov_b32 s44, 0x000fffff\ns_mov_b32 s45, 0x000fffff")
    P("s_and_b32 s29, s30, 3\ns_lshl_b32 s43, s27, 2\ns_add_u32 s29, s29, s43")
    P("s_mul_i32 s34, s28, 5\ns_and_b32 s37, s28, 1\ns_lshr_b32 s35, s34, 1\ns_add_u32 s36, s35, 2\ns_lshl_b32 s43, s37, 1\ns_sub_u32 s36, s36, s43\ns_add_u32 s35, s35, s37")
    P(f"s_mul_i32 s32, s28, {L.SLICE_B}\ns_add_u32 s32, s32, {L.WS_OFF}")
    P("s_mul_i32 s39, s30, 12\ns_mul_i32 s43, s30, 13\ns_sub_u32 s43, s43, 4\ns_cmp_ge_u32 s30, 4\ns_cselect_b32 s39, s43, s39\ns_lshl_b32 s39, s39, 10\ns_add_u32 s38, s32, s39")
    P(f"v_lshrrev_b32 v{RMV}, 2, v1\nv_mul_u32_u24 v{RMV}, 1280, v{RMV}\nv_and_b32 v4, 3, v1\nv_lshl_add_u32 v{RMV}, v4, 4, v{RMV}")
    P(f"v_lshlrev_b32 v{L4V}, 2, v13\ns_cmp_eq_u32 s25, 7\ns_cselect_b32 s43, 31, 63\nv_and_b32 v{FXV}, s43, v1\nv_lshlrev_b32 v{FXV}, 2, v{FXV}\nv_lshlrev_b32 v{L7V}, 7, v1")
    P(f"v_cmp_gt_u32 vcc, 4, v1\nv_cndmask_b32 v4, 0, 5, vcc\nv_and_b32 v7, 7, v1\nv_lshlrev_b32 v7, 2, v7\nv_add_u32 v7, {SY_LDS}, v7\ns_mov_b64 exec, 0xff\nds_write_b32 v7, v4\ns_mov_b64 exec, -1")
    vm = VM(P)
    side = [(3, f"""s_lshl_b32 s46, s25, 5
s_add_u32 s46, s46, s26
s_lshl_b32 s46, s46, 3
s_add_u32 s46, s46, s30
s_lshl_b32 s46, s46, 10
s_add_u32 s46, s46, {L.GX_OFF}
buffer_load_dwordx4 v[4:7], v3, s[20:23], s46 offen
s_lshl_b32 s46, s29, 7
s_add_u32 s46, s46, {L.FR_OFF}
buffer_load_dword v253, v{L4V}, s[20:23], s46 offen
s_lshl_b32 s46, s31, 7
s_add_u32 s46, s46, {L.FO_OFF}
buffer_load_dword v253, v{L4V}, s[20:23], s46 offen""")]
    for i in range(12):
        pre = f"s_add_u32 m0, s39, {i*1024}\ns_add_u32 s43, s38, {i*1024}\n" if i % 4 == 0 else ""
        side.append((1, pre + f"buffer_load_dwordx4 v3, s[20:23], s43 offen offset:{(i%4)*1024} lds"))
    side.append((3, f"""s_cmp_ge_u32 s30, 4
s_cbranch_scc1 L_side_l
s_mul_i32 s46, s29, 20480
s_lshl_b32 s43, s35, 6
s_add_u32 s43, s43, s46
s_mul_i32 s47, s30, 3072
s_add_u32 m0, s47, {XR_LDS}
s_nop 0
buffer_load_dwordx4 v{RMV}, s[12:15], s43 offen lds
s_add_u32 m0, s47, {XR_LDS+1024}
s_add_u32 s43, s43, 64
buffer_load_dwordx4 v{RMV}, s[12:15], s43 offen lds
s_lshl_b32 s43, s36, 6
s_add_u32 s43, s43, s46
s_add_u32 m0, s47, {XR_LDS+2048}
s_nop 0
buffer_load_dwordx4 v{RMV}, s[12:15], s43 offen lds
s_branch L_side_e
L_side_l:
s_add_u32 m0, s39, {12*1024}
s_add_u32 s43, s38, {12*1024}
buffer_load_dwordx4 v3, s[20:23], s43 offen lds
s_and_b32 s46, s30, 3
s_mul_i32 s43, s46, 2560
s_mul_i32 s47, s28, 320
s_add_u32 s43, s43, s47
s_add_u32 s43, s43, {L.CS1_OFF}
buffer_load_dword v253, v3, s[20:23], s43 offen
s_lshl_b32 s43, s46, 13
s_mul_i32 s47, s28, 896
s_add_u32 s43, s43, s47
s_add_u32 s43, s43, {L.CS3_OFF - 128}
buffer_load_dword v253, v3, s[20:23], s43 offen
L_side_e:"""))
    for k in range(NTOUCH):
        side.append((1, f"""s_and_b32 s46, s27, 3
s_lshl_b32 s46, s46, 3
s_add_u32 s46, s46, s30
s_lshl_b32 s46, s46, 13
s_add_u32 s46, s46, s32
s_add_u32 s46, s46, {5*20480 + k*262144}
buffer_load_dword v253, v{L7V}, s[20:23], s46 offen"""))
    def do_side(k=1):
        for _ in range(k):
            if side:
                n, t = side.pop(0); vm.op(t, n)
    sa()
    P("s_waitcnt vmcnt(5)\ns_cmp_ge_u32 s30, 4\ns_cbranch_scc1 L_b0\ns_waitcnt vmcnt(0)\nL_b0:")
    P("v_cmp_gt_u32 vcc, 32, v1\nv_cndmask_b32 v20, 0, v20, vcc\nv_cndmask_b32 v21, 0, v21, vcc\ns_waitcnt lgkmcnt(0)")
    P("s_barrier")
    sa()
    if STAMP: P("s_waitcnt lgkmcnt(0)")
    lg = LG(P)
    kid = {}
    def kread(t):
        b = t % 3
        kid[t] = lg.op(f"ds_read_b64 v[{KF+b*8}:{KF+b*8+1}], v24 offset:{t*1280}\nds_read_b64 v[{KF+b*8+2}:{KF+b*8+3}], v24 offset:{t*1280+256}\nds_read_b64 v[{KF+b*8+4}:{KF+b*8+5}], v25 offset:{t*1280+1024}", 3)
    M = 28
    mstate = {"n": 0}
    def maxops(t):
        ops = []
        for r in range(0, 16, 2):
            k = mstate["n"] & 1
            a, b = S + 16*t + r, S + 16*t + r + 1
            if mstate["n"] < 2: ops.append(f"v_max_f32 v{M+k}, v{a}, v{b}")
            else: ops.append(f"v_max3_f32 v{M+k}, v{M+k}, v{a}, v{b}")
            mstate["n"] += 1
        return ops
    kread(8); kread(7)
    for t in range(8, -1, -1):
        b = t % 3
        d = v(S + 16*t, 16)
        if t < 8:
            a, e = lab("ab"), lab("ae")
            P(f"s_cmp_eq_u32 s31, {7-t}\ns_cbranch_scc1 {a}\n{e}:")
            tails.append(f"{a}:\ns_nop 7\n" + "\n".join(f"v_mov_b32 v{OA+r}, 0xff800000" for r in range(16)) + f"\ns_nop 1\ns_branch {e}")
        mo = maxops(t + 1) if 1 <= t + 1 <= 7 else []
        lg.wait(kid[t])
        P(f"v_mfma_f32_32x32x16_bf16 {d}, {v(KF+b*8,4)}, v[16:19], {v(OA,16)}")
        if t - 2 >= 0: kread(t - 2)
        P(f"v_mfma_f32_32x32x16_bf16 {d}, {v(KF+b*8+4,4)}, v[20:23], {d}")
        if t % 2 == 0: do_side()
        for o in mo: P(o)
    for r in range(16): P(f"v_cndmask_b32 v{S+r}, v{S+r}, v{S+128+r}, s[{48+2*r}:{49+2*r}]")
    for o in maxops(0): P(o)
    P(f"v_max_f32 v{M}, v{M}, v{M+1}\nv_mov_b32 v{M+1}, v{M}")
    P(f"s_waitcnt vmcnt({vm.n})")
    P(f"v_permlane32_swap_b32 v{M}, v{M+1}\nv_max_f32 v{M}, v{M}, v{M+1}")
    P("s_barrier")
    vid = {}
    def vread(t, slot):
        P("s_mov_b64 exec, s[44:45]")
        vid[t] = lg.op(f"ds_read_b128 {v(VF+slot*8,4)}, v26 offset:{20480+t*1280}\nds_read_b128 {v(VF+slot*8+4,4)}, v26 offset:{20480+t*1280+640}", 2)
        P("s_mov_b64 exec, -1")
    P(f"""v_and_b32 v29, 0xffff0000, v{M}
v_sub_f32 v30, v{M}, v29
v_and_b32 v31, 0xffff0000, v30
v_sub_f32 v30, v30, v31
v_lshrrev_b32 v29, 16, v29
v_or_b32 v20, v29, v31
v_lshrrev_b32 v21, 16, v30""")
    sa()
    order = [0, 1, 2, 3, 4, 5, 6, 7]
    slot_of = {8: 0, 0: 1}
    for i, t in enumerate(order[1:]): slot_of[t] = (2 + i) % 3
    def subm(t): P(f"v_mfma_f32_32x32x16_bf16 {v(S+16*t,16)}, {v(CA,4)}, v[20:23], {v(S+16*t,16)}")
    subm(0)
    vread(8, 0); vread(0, 1)
    P("s_cmp_eq_u32 s30, 0\ns_cbranch_scc1 L_xcc\nL_xcce:")
    tails.append(f"""L_xcc:
s_getreg_b32 s42, hwreg(HW_REG_XCC_ID)
s_and_b32 s42, s42, 15
s_add_u32 s42, s42, 1
v_mov_b32 v31, s42
s_lshl_b32 s46, s25, 5
s_add_u32 s46, s46, s26
s_lshl_b32 s46, s46, 2
s_add_u32 s46, s46, {L.FX_OFF}
v_mov_b32 v30, 0
s_mov_b64 exec, 1
buffer_store_dword v31, v30, s[20:23], s46 offen sc1
s_mov_b64 exec, -1
s_branch L_xcce""")
    pend = []
    firstpv = [True]
    def pv(vt, half, preg):
        def f():
            if half == 0: lg.wait(vid[vt])
            c = "0" if firstpv[0] else v(OA, 16); firstpv[0] = False
            P(f"v_mfma_f32_32x32x16_bf16 {v(OA,16)}, {v(VF+slot_of[vt]*8+4*half,4)}, {v(preg+4*half,4)}, {c}")
        return f
    D8 = S + 128
    for i, t in enumerate(order):
        base = S + 16*t
        ms = []
        if i + 1 < 8: ms.append(lambda tt=order[i+1]: (subm(tt), do_side()))
        ms += pend; pend = []
        nm = len(ms)
        pos = [int(k * 16 / nm) for k in range(nm)]
        for r in range(16):
            while pos and pos[0] == r:
                pos.pop(0); ms.pop(0)()
                if not pos and i + 1 < 8: vread(order[i+1], slot_of[order[i+1]]); do_side()
            P(f"v_exp_f32 v{base+r}, v{base+r}")
        if i == 5: fxp = vm.op(f"s_lshl_b32 s33, s25, 7\ns_add_u32 s33, s33, {L.FX_OFF}\nbuffer_load_dword v{MODEV}, v{FXV}, s[20:23], s33 offen sc1")
        for p in range(8): P(f"v_cvt_pk_bf16_f32 v{base+p}, v{base+2*p}, v{base+2*p+1}")
        if t == 0:
            for p in range(8): P(f"v_and_b32 v{D8+p}, v{PM+p}, v{base+p}\nv_bfi_b32 v{base+p}, v{PM+p}, 0, v{base+p}")
            pend = [pv(8, 0, D8), pv(8, 1, D8), pv(0, 0, base), pv(0, 1, base)]
        else:
            pend = [pv(t, 0, base), pv(t, 1, base)]
    assert not side, len(side)
    for f in pend: f()
    sa()
    P(f"""s_mul_i32 s41, s26, 5
v_add_u32 v8, s41, v14
v_lshrrev_b32 v9, 4, v13
v_mul_u32_u24 v9, 20480, v9
v_and_b32 v10, 15, v13
v_lshl_add_u32 v9, v10, 4, v9""")
    for b in range(3):
        P(f"v_add_u32 v10, {2*b}, v8\nv_lshrrev_b32 v11, 1, v10\nv_lshl_add_u32 v11, v11, 8, v9\nv_and_b32 v10, 1, v10\nv_lshl_add_u32 v{16+b}, v10, 3, v11")
    P("v_cmp_gt_u32 vcc, 32, v1\nv_mov_b32 v10, 0x7ffffff0\nv_cndmask_b32 v18, v10, v18, vcc")
    P(f"s_mul_i32 s41, s31, 40960\ns_add_u32 s41, s41, {L.O_OFF}")
    P("s_waitcnt vmcnt(0)")
    if FOCUS == 9: sa()
    poll_check(FXV, MODEV, "s33", 1)
    if FOCUS == 9: sa()
    P(f"v_readfirstlane_b32 s43, v{MODEV}\nv_rcp_f32 v28, v{OA+12}\nv_cmp_ne_u32 vcc, s43, v{MODEV}\nv_mov_b32 v29, v28\ns_cmp_lg_u32 vcc_lo, 0\ns_cselect_b32 s24, 1, 0")
    if opt.get("SAFE"): P("s_mov_b32 s24, 1")
    for p in range(6): P(f"v_pk_mul_f32 v[{OA+2*p}:{OA+2*p+1}], v[{OA+2*p}:{OA+2*p+1}], v[28:29]")
    for p in range(6): P(f"v_cvt_pk_bf16_f32 v{32+p}, v{OA+2*p}, v{OA+2*p+1}")
    store2(vm, [f"buffer_store_dwordx2 v[{32+2*b}:{33+2*b}], v{16+b}, s[20:23], s41 offen" for b in range(3)])
    P(f"s_lshl_b32 s43, s31, 5\ns_add_u32 s43, s43, s26\ns_lshl_b32 s43, s43, 2\ns_add_u32 s43, s43, {L.FO_OFF}\nv_mov_b32 v2, 0\nv_mov_b32 v7, 1")
    P("s_waitcnt vmcnt(0)\ns_mov_b64 exec, 1")
    store2(vm, ["buffer_store_dword v7, v2, s[20:23], s43 offen"])
    P("s_mov_b64 exec, -1")
    sa()
    P(f"v_and_b32 v254, 3, v1\nv_lshlrev_b32 v254, 2, v254\nv_add_u32 v254, {SY_LDS}, v254")
    P(f"s_and_b32 s43, s30, 3\ns_lshl_b32 s43, s43, 2\ns_add_u32 s43, s43, {SY_LDS}\nv_mov_b32 v255, s43")
    P("s_cmp_ge_u32 s30, 4\ns_cbranch_scc1 L_loader")

    st0 = Stamper(48, 16)
    def st():
        if FOCUS == 0: st0()
    def sf(ph):
        if FOCUS == ph: st0()
    ACC, BF, ST, ST1, ST3, HP, ACC4, CS, PK, AF, A4 = 16, 40, 68, 72, 76, 80, 92, 112, 132, 144, 224
    NA4 = 6
    SYA, SYW, SYD, SYV = 254, 255, 90, 91
    D = 6
    P(f"s_lshr_b32 s43, s29, 1\ns_lshl_b32 s43, s43, 7\ns_add_u32 s45, s43, {L.FO_OFF}\nbuffer_load_dword v15, v{L4V}, s[20:23], s45 offen sc1")
    P("s_mul_i32 s40, s29, 20480\ns_lshl_b32 s41, s35, 10\ns_add_u32 s41, s41, s40\ns_lshl_b32 s42, s36, 10\ns_add_u32 s42, s42, s40\ns_lshl_b32 s43, s37, 3\ns_add_u32 s42, s42, s43")
    P("v_add_u32 v8, 0x10000, v3\nv_add_u32 v9, 0x20000, v3")
    P(f"s_mul_i32 s46, s30, 3072\ns_add_u32 s46, s46, {XR_LDS}")
    P("v_and_b32 v5, 15, v1\nv_lshlrev_b32 v5, 6, v5\nv_lshrrev_b32 v6, 4, v1\nv_lshl_add_u32 v5, v6, 4, v5\nv_add_u32 v5, s46, v5\ns_lshl_b32 s43, s37, 3\nv_add_u32 v6, s43, v5")
    P(f"v_and_b32 v7, 0x30, v1\nv_add_u32 v7, {CS1_LDS}, v7")
    P(f"s_lshl_b32 s33, s29, 7\ns_add_u32 s33, s33, {L.FR_OFF}\ns_lshl_b32 s43, s28, 2\ns_add_u32 s34, s33, s43")
    P("v_and_b32 v14, 7, v1\nv_lshlrev_b32 v14, 2, v14")
    P(f"s_lshl_b32 s46, s29, 14\ns_add_u32 s46, s46, {L.GX_OFF}")
    def lds_off(stage, chunk):
        off = (stage % RING) * 20480 + chunk * 1024
        return (3 if off < 65536 else (8 if off < 131072 else 9)), off % 65536
    def unpack(dst, src, n):
        for i in range(n): P(f"v_lshlrev_b32 v{dst+2*i}, 16, v{src+i}\nv_and_b32 v{dst+2*i+1}, 0xffff0000, v{src+i}")
    def set_flag(vm, val):
        P(f"v_mov_b32 v4, {val}\ns_mov_b64 exec, 1")
        store2(vm, ["buffer_store_dword v4, v2, s[20:23], s34 offen"])
        P("s_mov_b64 exec, -1")
    cnt = [0]
    def rdw(lg, stage, chunk):
        ar, off = lds_off(stage, chunk)
        r = BF + (cnt[0] % (D + 1)) * 4; cnt[0] += 1
        return r, lg.op(f"ds_read_b128 {v(r,4)}, v{ar} offset:{off}")
    def free_sig(lg): lg.op(f"ds_write_b32 v{SYW}, v{SYV} offset:16")
    def rdy_read(lg): return lg.op(f"ds_read_b32 v{SYD}, v{SYA}")
    def stats_fin(R):
        P(f"v_add_f32 v{R}, v{R}, v{R+2}\nv_add_f32 v{R+1}, v{R+1}, v{R+3}")
        xg_reduce(P, [R, R+1], [R+2, R+3])
        P(f"v_mul_f32 v{R}, {f2u(1/640)}, v{R}\nv_mul_f32 v{R+1}, {f2u(1/640)}, v{R+1}\nv_fma_f32 v{R+1}, -v{R}, v{R}, v{R+1}\nv_max_f32 v{R+1}, 0, v{R+1}")
        P(f"v_add_f32 v{R+2}, {f2u(EPS)}, v{R+1}\nv_rsq_f32 v{R+2}, v{R+2}")
    def kloop(stage_chunk, tiles, aoff, vaddr_of_ks, accinit, frees, stat=None, ph=0, post=None):
        vm = VM(P); lg = LG(P)
        ids = {}
        def aload(ks):
            if ks % 4 == 0: P(f"s_add_u32 s43, s40, {aoff + ks*1024}")
            ids[ks] = vm.op(f"buffer_load_dwordx4 {v(AF+4*ks,4)}, v{vaddr_of_ks(ks)}, s[20:23], s43 offen offset:{(ks%4)*1024} sc1")
        sf(ph)
        for ks in range(PRE): aload(ks)
        sf(ph)
        nt = len(tiles)
        items = [(ks, t) for ks in range(20) for t in tiles]
        N = len(items)
        rr = []
        def rd(n):
            ks, t = items[n]
            if t == tiles[0] and ks in frees: free_sig(lg)
            rr.append(rdw(lg, *stage_chunk(ks, t)))
            if n == N - 1 and 20 in frees: free_sig(lg)
        for n in range(D): rd(n)
        for n, (ks, t) in enumerate(items):
            if n + D < N: rd(n + D)
            if t == tiles[0]:
                if ks + PRE < 20: aload(ks + PRE)
                if stat and ks == 3: sp = vm.op("buffer_load_dword v15, v14, s[20:23], s33 offen sc1")
                if stat and ks == 9:
                    vm.wait(sp); poll_check(14, 15, "s33", stat[0])
                    sl = vm.op(f"s_add_u32 s44, s46, {stat[2]}\nbuffer_load_dwordx4 {v(stat[1],4)}, v3, s[20:23], s44 offen sc1")
                P(f"s_waitcnt vmcnt({vm.cnt(ids[ks])}) lgkmcnt({lg.cnt(rr[n][1])})")
                if ks in (0, 1, 2, 4, 8, 12, 16): sf(ph)
                for fk, fv in frees.items():
                    if ks == fk - 3: P(f"v_mov_b32 v{SYV}, {fv}")
            else:
                lg.wait(rr[n][1])
            a = ACC + 4 * tiles.index(t)
            P(f"v_mfma_f32_16x16x32_bf16 {v(a,4)}, {v(rr[n][0],4)}, {v(AF+4*ks,4)}, {v(a,4) if (accinit or ks > 0) else '0'}")
        sf(ph)
        return vm, lg
    def pack(dst, src, n):
        for i in range(n): P(f"v_cvt_pk_bf16_f32 v{dst+i}, v{src+2*i}, v{src+2*i+1}")
    def tile_then_stats(pk, off, stoff, f1):
        vm = VM(P)
        P(f"s_add_u32 s43, s41, {off}\ns_add_u32 s44, s42, {off}")
        store2(vm, [f"buffer_store_dwordx4 {v(pk,4)}, v3, s[20:23], s43 offen", f"buffer_store_dwordx4 {v(pk+4,4)}, v3, s[20:23], s43 offen offset:1024", f"buffer_store_dwordx2 {v(pk+8,2)}, v3, s[20:23], s44 offen"])
        P(f"v_mov_b32 v10, 0\nv_mov_b32 v11, 0\nv_mov_b32 v12, {ONES}")
        for i in range(10): P(f"v_dot2c_f32_bf16 v10, v{pk+i}, v12\nv_dot2c_f32_bf16 v11, v{pk+i}, v{pk+i}")
        xg_reduce(P, [10, 11], [12, 13])
        P(f"s_lshr_b32 s44, s28, 1\ns_lshl_b32 s44, s44, 8\ns_add_u32 s43, s46, s44\ns_lshl_b32 s44, s37, 3\ns_add_u32 s43, s43, s44\ns_add_u32 s43, s43, {stoff}")
        sf(8)
        P("s_waitcnt vmcnt(0)")
        sf(8)
        set_flag(vm, f1)
        P("s_mov_b64 exec, 0xffff")
        store2(vm, ["buffer_store_dwordx2 v[10:11], v3, s[20:23], s43 offen"])
        P("s_mov_b64 exec, -1")
    kk = 2 * 0.7978845608028654 * LOG2E
    def gelu_items(a0, c0, n, STR, pk):
        Lx = []
        pr = range(0, n, 2)
        for i in pr: Lx.append(f"v_pk_mul_f32 {v(c0+i,2)}, {v(c0+i,2)}, {v(STR,2)}")
        for i in pr: Lx.append(f"v_pk_fma_f32 {v(a0+i,2)}, {v(a0+i,2)}, {v(STR+2,2)}, {v(c0+i,2)} neg_lo:[0,0,1] neg_hi:[0,0,1]")
        for i in pr: Lx.append(f"v_pk_mul_f32 {v(c0+i,2)}, {v(a0+i,2)}, {v(a0+i,2)}")
        for i in pr: Lx.append(f"v_pk_fma_f32 {v(c0+i,2)}, {v(c0+i,2)}, v[10:11], v[12:13]")
        for i in pr: Lx.append(f"v_pk_mul_f32 {v(c0+i,2)}, {v(c0+i,2)}, {v(a0+i,2)}")
        for i in range(n): Lx.append(f"v_exp_f32 v{c0+i}, v{c0+i}")
        for i in pr: Lx.append(f"v_pk_add_f32 {v(c0+i,2)}, {v(c0+i,2)}, 1.0 op_sel_hi:[1,0]")
        for i in range(n): Lx.append(f"v_rcp_f32 v{c0+i}, v{c0+i}")
        for i in pr: Lx.append(f"v_pk_mul_f32 {v(a0+i,2)}, {v(a0+i,2)}, {v(c0+i,2)}")
        for i in pr: Lx.append(f"v_cvt_pk_bf16_f32 v{pk+i//2}, v{a0+i}, v{a0+i+1}")
        return Lx
    def gelu_consts():
        P(f"v_mov_b32 v10, {f2u(-kk*0.044715)}\nv_mov_b32 v11, v10\nv_mov_b32 v12, {f2u(-kk)}\nv_mov_b32 v13, v12")
    small = lambda b: (lambda ks, t: (b + ks // 4, (ks % 4) * 5 + t))
    T5 = [0, 1, 2, 3, 4]

    P(f"ds_read_b128 {v(HP,4)}, v5\nds_read_b128 {v(HP+4,4)}, v5 offset:1024\nds_read_b64 {v(HP+8,2)}, v6 offset:2048\ns_waitcnt lgkmcnt(0)")
    unpack(ACC, HP, 10)
    P("s_barrier")
    P("s_waitcnt vmcnt(0)")
    poll_check(L4V, 15, "s45", 1)
    st()
    kloop(small(0), T5, L.O_OFF, lambda ks: 3, True, {12: 3, 20: 5}, ph=1)
    st()
    sf(8)
    pack(HP, ACC, 10)
    tile_then_stats(HP, L.H_OFF, 14336, 1)
    st(); sf(8)
    P("buffer_load_dword v15, v14, s[20:23], s33 offen sc1")
    P(f"ds_read_b32 v{SYD}, v{SYA}\ns_waitcnt vmcnt(1)")
    sf(8)
    vm = VM(P); set_flag(vm, 2)
    P("s_waitcnt lgkmcnt(0)")
    lds_check(SYA, SYD, 0, 10)
    sf(8)
    for t in range(5): P(f"ds_read_b128 {v(CS+4*t,4)}, v7 offset:{t*64}")
    P("s_waitcnt vmcnt(1) lgkmcnt(0)")
    sf(8)
    poll_check(14, 15, "s33", 1)
    st(); sf(8)
    kloop(small(5), T5, L.H_OFF, lambda ks: 3, False, {12: 8, 20: 10}, stat=(2, ST1, 14336), ph=2)
    st()
    stats_fin(ST1)
    P(f"v_mul_f32 v{ST}, v{ST1+1}, v{ST1+2}\nv_mov_b32 v{ST+1}, {f2u(EPS)}\nv_fma_f32 v{ST}, v{ST}, v{ST1+2}, v{ST+1}\nv_rsq_f32 v{ST}, v{ST}")
    gelu_consts()
    P(f"v_mul_f32 v{ST+2}, v{ST}, v{ST1+2}\nv_mul_f32 v{ST}, v{ST1}, v{ST+2}\nv_mov_b32 v{ST+3}, v{ST+2}\nv_mov_b32 v{ST+1}, v{ST}")
    for l in gelu_items(ACC, CS, 20, ST, PK): P(l)
    P("s_lshr_b32 s43, s28, 2\ns_add_u32 s43, s43, 1\ns_sub_u32 s44, 0, s43\ns_bitcmp1_b32 s28, 1\ns_cselect_b32 s43, s44, s43")
    P("s_lshl_b32 s44, s29, 4\ns_add_u32 s44, s44, s43\nv_and_b32 v10, 15, v1\nv_add_u32 v10, s44, v10")
    P("v_ashrrev_i32 v12, 8, v10\nv_cmp_eq_u32 vcc, s25, v12\nv_cmp_gt_u32 s[26:27], 8, v12")
    P("v_lshrrev_b32 v11, 4, v10\nv_mul_u32_u24 v11, 20480, v11\nv_and_b32 v10, 15, v10\nv_lshl_add_u32 v11, v10, 4, v11\nv_and_b32 v10, 0x30, v1\nv_lshl_add_u32 v11, v10, 4, v11")
    P(f"s_sub_u32 s43, s41, s40\ns_sub_u32 s44, s42, s40\ns_add_u32 s43, s43, {L.T_OFF}\ns_add_u32 s44, s44, {L.T_OFF}")
    P("s_andn2_b64 s[26:27], s[26:27], vcc\ns_mov_b64 exec, vcc")
    vm = VM(P)
    tl = [f"buffer_store_dwordx4 {v(PK,4)}, v11, s[20:23], s43 offen", f"buffer_store_dwordx4 {v(PK+4,4)}, v11, s[20:23], s43 offen offset:1024", f"buffer_store_dwordx2 {v(PK+8,2)}, v11, s[20:23], s44 offen"]
    store2(vm, tl)
    P("s_cmp_lg_u64 s[26:27], 0\ns_cbranch_scc1 L_halo\nL_haloe:\ns_mov_b64 exec, -1")
    tails.append(f"L_halo:\ns_mov_b64 exec, s[26:27]\ns_add_u32 s43, s43, {L.TH_OFF - L.T_OFF}\ns_add_u32 s44, s44, {L.TH_OFF - L.T_OFF}\n" + "\n".join(l + " sc1" for l in tl) + "\ns_nop 1\ns_branch L_haloe")
    P(f"v_mul_f32 v{ST1}, v{ST1}, v{ST1+2}\nv_mov_b32 v{ST1+3}, v{ST1+2}\nv_mov_b32 v{ST1+1}, v{ST1}")
    P(f"""s_and_b32 s43, s29, 15
s_cmp_eq_u32 s43, 0
s_cselect_b32 s44, {L.FHL_OFF - L.FR_OFF}, 0
s_sub_u32 s44, s44, 128
s_cmp_eq_u32 s29, 0
s_cselect_b32 s44, 0, s44
s_cmp_eq_u32 s43, 15
s_cselect_b32 s45, {L.FHL_OFF - L.FR_OFF}, 0
s_add_u32 s45, s45, 128
s_cmp_eq_u32 s29, 127
s_cselect_b32 s45, 0, s45
s_add_u32 s44, s44, s33
s_add_u32 s45, s45, s33
v_bfe_u32 v10, v1, 3, 2
v_mov_b32 v13, s33
v_mov_b32 v12, s44
v_cmp_eq_u32 vcc, 1, v10
v_cndmask_b32 v13, v13, v12, vcc
v_mov_b32 v12, s45
v_cmp_eq_u32 vcc, 2, v10
v_cndmask_b32 v13, v13, v12, vcc
v_add_u32 v228, v13, v14
s_waitcnt vmcnt(0)""")
    set_flag(vm, 3)
    P("s_add_u32 s44, s29, 1\ns_and_b32 s44, s44, 14\ns_cmp_eq_u32 s44, 0\ns_cbranch_scc1 L_hf\nL_hfe:")
    tails.append(f"L_hf:\ns_add_u32 s44, s34, {L.FHL_OFF - L.FR_OFF}\ns_mov_b64 exec, 1\nbuffer_store_dword v4, v2, s[20:23], s44 offen sc1\ns_mov_b64 exec, -1\ns_branch L_hfe")
    st()
    P(f"buffer_load_dword v15, v228, s[20:23], 0 offen sc1\nds_read_b32 v{SYD}, v{SYA}")
    P(f"""s_cmp_eq_u32 s43, 0
s_cselect_b32 s44, {L.TH_OFF - L.T_OFF}, 0
s_cmp_eq_u32 s29, 0
s_cselect_b32 s44, 0x40000000, s44
s_cmp_eq_u32 s43, 15
s_cselect_b32 s45, {L.TH_OFF - L.T_OFF}, 0
s_cmp_eq_u32 s29, 127
s_cselect_b32 s45, 0x40000000, s45
v_and_b32 v10, 15, v1
v_add_u32 v11, s44, v3
v_add_u32 v12, s45, v3
v_cmp_gt_u32 vcc, 1, v10
v_cndmask_b32 v224, v3, v11, vcc
v_cmp_lt_u32 vcc, 14, v10
v_cndmask_b32 v225, v3, v12, vcc
v_cmp_gt_u32 vcc, 2, v10
v_cndmask_b32 v226, v3, v11, vcc
v_cmp_lt_u32 vcc, 13, v10
v_cndmask_b32 v227, v3, v12, vcc""")
    unpack(ACC4, HP, 10)
    for i in range(0, 20, 2):
        P(f"v_pk_fma_f32 {v(ACC+i,2)}, {v(ACC4+i,2)}, {v(ST1+2,2)}, {v(ST1,2)} neg_lo:[0,0,1] neg_hi:[0,0,1]")
    P("s_waitcnt lgkmcnt(0)")
    lds_check(SYA, SYD, 0, 15)
    P("s_waitcnt vmcnt(0)")
    poll_check(228, 15, "0", 3)
    st()
    kloop(small(10), T5, L.T_OFF, lambda ks: 224 + ks // 5, True, {12: 13, 20: 15}, ph=3)
    st()
    pack(PK, ACC, 10)
    tile_then_stats(PK, L.X1_OFF, 15360, 4)
    st()
    P("buffer_load_dword v15, v14, s[20:23], s33 offen sc1")
    P(f"ds_read_b32 v{SYD}, v{SYA}")
    unpack(CS, PK, 10)
    for i in range(0, 20, 2): P(f"v_pk_add_f32 {v(ACC4+i,2)}, {v(ACC4+i,2)}, {v(CS+i,2)}")
    P("s_waitcnt vmcnt(1)")
    vm = VM(P); set_flag(vm, 5)
    gelu_consts()
    P(f"v_add_u32 v7, {CS3_LDS - CS1_LDS}, v7\ns_lshl_b32 s45, s28, 10\ns_waitcnt lgkmcnt(0)")
    sf(8)
    lds_check(SYA, SYD, 0, 19)
    sf(8)
    for i in range(4): P(f"ds_read_b128 {v(CS+4*i,4)}, v7 offset:{i*64}")
    P("s_waitcnt vmcnt(1) lgkmcnt(0)")
    sf(8)
    poll_check(14, 15, "s33", 4)
    st(); sf(8)
    vm, lg = kloop(lambda ks, t: (15 + t, ks), [0, 1, 2, 3], L.X1_OFF, lambda ks: 3, False, {20: 19}, stat=(5, ST3, 15360), ph=4)
    def a4reg(p):
        i = p % (NA4 + 20)
        return A4 + 4*i if i < NA4 else AF + 4*(i - NA4)
    ids4 = {}
    def a4load(p):
        if p % 4 == 0:
            if p < 20: P(f"s_add_u32 s44, s40, {L.K_OFF + p*1024}")
            elif p < 40: P(f"s_add_u32 s44, s40, {L.V_OFF + (p-20)*1024}")
            else: P(f"s_add_u32 s44, s46, {(p-40)*1024}")
        ids4[p] = vm.op(f"buffer_load_dwordx4 {v(a4reg(p),4)}, v3, s[20:23], s44 offen offset:{(p%4)*1024} sc1")
    gst = {}
    def gstore(q):
        if q < 2: P(f"s_add_u32 s43, s45, s40\ns_add_u32 s43, s43, {L.K_OFF + q*8192}")
        elif q == 2: P(f"s_cmp_ge_u32 s28, 4\ns_mov_b32 s43, {L.K_OFF + 16384}\ns_cmov_b32 s43, {L.V_OFF - 4096}\ns_add_u32 s43, s43, s45\ns_add_u32 s43, s43, s40")
        elif q < 5: P(f"s_add_u32 s43, s45, s40\ns_add_u32 s43, s43, {L.V_OFF + q*8192 - 20480}")
        elif q == 5: P("s_add_u32 s43, s45, s46")
        else: P(f"s_add_u32 s43, s45, s46\ns_add_u32 s43, s43, 8192\ns_cmp_ge_u32 s28, 6\ns_cmov_b32 s43, {L.DUMMY_OFF}")
        gst[q] = store2(vm, [f"buffer_store_dwordx4 {v(PK+4*(q%2),4)}, v3, s[20:23], s43 offen"])
    items4 = [(p, t) for p in range(54) for t in range(5)]
    N4 = len(items4)
    groups = [[0, 1, 2, 3]] + [[t, t + 1] for t in range(4, 14, 2)]
    ry = rdy_read(lg)
    stats_fin(ST3)
    P(f"v_mul_f32 v{ST3}, v{ST3}, v{ST3+2}\nv_mov_b32 v{ST3+3}, v{ST3+2}\nv_mov_b32 v{ST3+1}, v{ST3}")
    rr4 = []
    r4y = {}
    def rd4(n):
        p, t = items4[n]
        sg = 29 + p // 4
        if p % 8 == 0 and t == 0 and p > 0:
            free_sig(lg)
            lg.wait(r4y[sg]); lds_check(SYA, SYD, 0, min(sg + 2, NSTG))
        if p % 8 == 6 and t == 0 and p + 2 < 54: r4y[sg + 1] = rdy_read(lg)
        rr4.append(rdw(lg, sg, (p % 4) * 5 + t))
    for gi, g in enumerate(groups):
        if gi in (2, 3): sf(5)
        lg.wait(ry)
        if gi + 1 < len(groups):
            gn = groups[gi + 1]
            lds_check(SYA, SYD, 0, 15 + gn[-1] + 1)
            its = [(ks, t) for ks in range(20) for t in gn]
            rr = [rdw(lg, 15 + t, ks) for ks, t in its[:D]]
        else:
            st()
            lds_check(SYA, SYD, 0, 31)
            for n in range(D): rd4(n)
            vm.wait(poll1); poll_check(14, 15, "s33", 6)
            for p in range(PRE4): a4load(p)
        if gi in (2, 3): sf(5)
        for l in gelu_items(ACC, CS, 4*len(g), ST3, PK + 4*((g[0]//2) % 2)): P(l)
        if gi in (2, 3): sf(5)
        for t in g[1::2]: gstore(t // 2)
        if gi + 1 == len(groups): break
        P(f"v_mov_b32 v{SYV}, {15 + gn[-1] + 1}")
        if gi in (2, 3): sf(5)
        for n, (ks, t) in enumerate(its):
            if n + D < 40:
                rr.append(rdw(lg, 15 + its[n + D][1], its[n + D][0]))
                if n + D == 39: free_sig(lg); ry = rdy_read(lg)
            if n == 8:
                for i, tt in enumerate(gn): lg.op(f"ds_read_b128 {v(CS+4*i,4)}, v7 offset:{tt*64}")
            lg.wait(rr[n][1])
            acc = ACC + 4 * gn.index(t)
            P(f"v_mfma_f32_16x16x32_bf16 {v(acc,4)}, {v(rr[n][0],4)}, {v(AF+4*ks,4)}, {'0' if ks == 0 else v(acc,4)}")
            if gi == 4 and n == 0:
                vm.wait(gst[4]); set_flag(vm, 6)
            if gi == 4 and n == 22: poll1 = vm.op("buffer_load_dword v15, v14, s[20:23], s33 offen sc1")
    st()
    for n, (p, t) in enumerate(items4):
        if n + D < N4: rd4(n + D)
        if t == 0:
            if p == 3:
                vm.wait(gst[6]); set_flag(vm, 7)
            if p == 20: poll2 = vm.op("buffer_load_dword v15, v14, s[20:23], s33 offen sc1")
            if p + PRE4 == 40:
                vm.wait(poll2); poll_check(14, 15, "s33", 7)
            if p + PRE4 < 54: a4load(p + PRE4)
            P(f"s_waitcnt vmcnt({vm.cnt(ids4[p])}) lgkmcnt({lg.cnt(rr4[n][1])})")
            if p % 8 == 4: P(f"v_mov_b32 v{SYV}, {29 + p // 4 + 1}")
        else: lg.wait(rr4[n][1])
        P(f"v_mfma_f32_16x16x32_bf16 {v(ACC4+4*t,4)}, {v(rr4[n][0],4)}, {v(a4reg(p),4)}, {v(ACC4+4*t,4)}")
    st()
    P(f"s_mul_i32 s46, s30, 3072\ns_add_u32 s46, s46, {XR_LDS}\nv_add_u32 v10, s46, v3")
    P("s_lshl_b32 s43, s35, 6\ns_add_u32 s43, s43, s40\ns_lshl_b32 s44, s36, 6\ns_add_u32 s44, s44, s40\ns_lshl_b32 s45, s37, 3\ns_add_u32 s44, s44, s45")
    pack(PK, ACC4, 10)
    P(f"ds_write_b128 v5, {v(PK,4)}\nds_write_b128 v5, {v(PK+4,4)} offset:1024\nds_write_b64 v5, {v(PK+8,2)} offset:2048")
    P(f"ds_read_b128 {v(CS,4)}, v10\nds_read_b128 {v(CS+4,4)}, v10 offset:1024\nds_read_b64 {v(CS+8,2)}, v10 offset:2048")
    P(f"s_waitcnt lgkmcnt(2)\nbuffer_store_dwordx4 {v(CS,4)}, v{RMV}, s[16:19], s43 offen\ns_waitcnt lgkmcnt(1)\nbuffer_store_dwordx4 {v(CS+4,4)}, v{RMV}, s[16:19], s43 offen offset:64\ns_waitcnt lgkmcnt(0)\nbuffer_store_dwordx2 {v(CS+8,2)}, v{RMV}, s[16:19], s44 offen")
    if STAMP:
        P("s_waitcnt vmcnt(0)"); st0()
        stamp_dump([80 + 2*i for i in range(sa.i)] + [48 + 2*i for i in range(st0.i)])
    P("s_endpgm")

    P("L_loader:")
    P("s_sub_u32 s43, s30, 4\ns_mul_i32 s39, s43, 5120\ns_add_u32 s38, s32, s39")
    P(f"""s_cmp_ge_u32 s30, 6
s_cbranch_scc1 L_nocs
s_mul_i32 s44, s28, 320
s_add_u32 s44, s44, {L.CS1_OFF}
s_mov_b32 s45, 2560
s_mov_b32 s46, {CS1_LDS}
s_cmp_eq_u32 s30, 4
s_cbranch_scc1 L_cs1
s_mul_i32 s44, s28, 7
s_cmp_eq_u32 s28, 7
s_subb_u32 s44, s44, 0
s_lshl_b32 s44, s44, 7
s_add_u32 s44, s44, {L.CS3_OFF}
s_mov_b32 s45, 8192
s_mov_b32 s46, {CS3_LDS}
L_cs1:""")
    for i in range(4): P(f"buffer_load_dwordx4 {v(16+4*i,4)}, v3, s[20:23], s44 offen\ns_add_u32 s44, s44, s45")
    P("L_nocs:\ns_barrier")
    P("s_cmp_ge_u32 s30, 6\ns_cbranch_scc1 L_nocs2\nv_add_u32 v8, s46, v3\ns_waitcnt vmcnt(0)")
    for r in range(4): P(f"v_add_f32 v{16+r}, v{16+r}, v{20+r}\nv_add_f32 v{24+r}, v{24+r}, v{28+r}")
    for r in range(4): P(f"v_add_f32 v{16+r}, v{16+r}, v{24+r}")
    P("ds_write_b128 v8, v[16:19]\nL_nocs2:")
    sl = Stamper(48, 16)
    vm = VM(P); last = {}
    pub = [5]
    def issue(sg, thin=False):
        slot = (sg % RING) * 20480
        for i in range(5):
            if i % 4 == 0: P(f"s_add_u32 m0, s39, {slot + i*1024}\ns_add_u32 s43, s38, {sg*20480 + i*1024}")
            if thin: P(f"s_waitcnt vmcnt({THIN})")
            last[sg] = vm.op(f"buffer_load_dwordx4 v3, s[20:23], s43 offen offset:{(i%4)*1024} lds")
    def publish(upto):
        P(f"v_mov_b32 v10, {upto}"); vm.wait(last[upto - 1]); P("ds_write_b32 v255, v10")
    def wait_free(n):
        P("ds_read_b32 v11, v254 offset:16\ns_waitcnt lgkmcnt(0)"); lds_check(254, 11, 16, n, 's_sleep 1\n')
    issue(5, True); issue(6, True)
    for ph in range(3):
        b = 5 * ph
        wait_free(b + 3)
        for sg in range(b + 7, b + 10): issue(sg)
        publish(b + 10)
        wait_free(b + 5)
        issue(b + 10, True); issue(b + 11, True)
    publish(22)
    nxt = 22
    fr = [19, 21, 23, 25, 27, 29, 31, 33, 35, 37]
    for f in fr:
        if nxt >= NSTG: break
        sl(); wait_free(f);
        first = nxt
        while nxt < NSTG and nxt - RING < f:
            issue(nxt); nxt += 1
            if nxt - first == 2 and nxt < NSTG and nxt - RING < f: publish(nxt - 1)
        publish(nxt - 1)
    publish(NSTG)
    if STAMP:
        sl()
        stamp_dump(([80 + 2*i for i in range(sa.i)] if FOCUS == 9 else [80, 80]) + [48 + 2*i for i in range(sl.i)])
    P("L_end:\ns_endpgm")
    for t in tails: P(t)
    P("L_code_end:")
    return (name, 256, 512, LDS_TOTAL, 256)
```

```python
from asmlib import *
from gen1 import f2u, LOG2E, ONES, EPS, ARG, SZ, srd, header, xg_reduce

def gen_k1(P, L, opt):
    name = "qkv_kernel"
    STAMP = opt.get("STAMP", False)
    PI = opt.get("PI", 4)
    NTF = " nt" if opt.get("PREP_NT", 1) else ""
    ROT = opt.get("ROT", 1)
    FL = ["", " sc1", " nt", " sc0 sc1"]
    PSF = FL[opt.get("PSF", 0)]; QSF = FL[opt.get("QSF", 0)]
    PP = opt.get("PP", 10)
    header(P, name)
    PB = 131072
    STAT = PB + 24576
    sn = [0]
    DBG = opt.get("DBG", 0)
    def stamp():
        if DBG:
            P(f"s_memrealtime s[{70+2*sn[0]}:{71+2*sn[0]}]"); sn[0] += 1
        if STAMP:
            P(f"s_memtime s[{70+2*sn[0]}:{71+2*sn[0]}]"); sn[0] += 1
    def stamp_out():
        if DBG:
            e = f"L_dbg{len(P.items)}"
            P("s_waitcnt vmcnt(0)"); stamp()
            P(f"s_cmp_lg_u32 s2, {DBG}\ns_cbranch_scc1 {e}\ns_cmp_lg_u32 s30, 0\ns_cbranch_scc1 {e}\ns_load_dwordx2 s[4:5], s[0:1], 72\ns_waitcnt lgkmcnt(0)")
            P("s_mov_b32 s12, s4\ns_and_b32 s13, s5, 0xffff\ns_mov_b32 s14, 256\ns_mov_b32 s15, 0x20000\nv_mov_b32 v39, 0")
            for i, k in enumerate((0, 1, 2, 6, 9, sn[0]-1)): P(f"v_mov_b32 v{40+i}, s{70+2*min(k, sn[0]-1)}")
            P(f"s_mov_b64 exec, 1\nbuffer_store_dwordx4 v[40:43], v39, s[12:15], 0 offen\nbuffer_store_dwordx2 v[44:45], v39, s[12:15], 0 offen offset:16\n{e}:")
        if not STAMP: return
        P("s_waitcnt vmcnt(0)"); stamp()
        P("s_waitcnt lgkmcnt(0)\nv_mov_b32 v40, s100\ns_memrealtime s[100:101]\ns_waitcnt lgkmcnt(0)\nv_mov_b32 v41, s100\nv_mov_b32 v39, 0")
        for i in range(14): P(f"v_mov_b32 v{42+i}, s{70+2*min(i, sn[0]-1)}")
        P(f"s_mov_b32 s22, 0x8000000\ns_lshl_b32 s43, s2, 3\ns_add_u32 s43, s43, s30\ns_lshl_b32 s43, s43, 7\ns_add_u32 s43, s43, {0x4000000 + 0x100000}\ns_mov_b64 exec, 1")
        for i in range(4): P(f"buffer_store_dwordx4 v[{40+4*i}:{43+4*i}], v39, s[20:23], s43 offen offset:{16*i}")
    P("s_cmp_ge_u32 s2, 256\ns_cbranch_scc1 L_k1_end")
    if STAMP: P("s_memrealtime s[100:101]")
    stamp()
    P(f"s_load_dwordx4 s[4:7], s[0:1], 0\ns_load_dwordx2 s[8:9], s[0:1], {ARG['ws']}\ns_load_dwordx2 s[10:11], s[0:1], {ARG['wo']}\ns_load_dwordx8 s[56:63], s[0:1], {ARG['w1']}")
    P("v_and_b32 v1, 63, v0\nv_lshrrev_b32 v2, 6, v0\nv_readfirstlane_b32 s30, v2")
    P("""s_and_b32 s25, s2, 7
s_lshr_b32 s26, s2, 3
s_and_b32 s27, s26, 3
s_lshr_b32 s28, s26, 2
s_lshr_b32 s31, s25, 1
s_lshl_b32 s31, s31, 2
s_add_u32 s31, s31, s27
s_and_b32 s32, s25, 1
s_lshl_b32 s32, s32, 3
s_add_u32 s32, s32, s28""")
    P("s_cmp_ge_u32 s30, 4\ns_cbranch_scc1 L_k1_helper")
    if opt.get("CPF", 1):
        NSEG = opt.get("NSEG", 8)
        P(f"""s_getpc_b64 s[48:49]
L_pc0:
s_sub_u32 s48, s48, L_pc0-qkv_kernel
s_subb_u32 s49, s49, 0
s_lshl_b32 s50, s26, 2
s_add_u32 s50, s50, s30
s_cmp_ge_u32 s50, {NSEG}
s_cbranch_scc1 L_nocpf
s_lshl_b32 s50, s50, 13
v_lshl_add_u32 v60, v1, 7, s50
v_min_u32 v60, L_code_end-qkv_kernel-4, v60
v_mov_b32 v61, s49
v_add_co_u32 v60, vcc, s48, v60
v_addc_co_u32 v61, vcc, 0, v61, vcc
global_load_dword v62, v[60:61], off
L_nocpf:""")
    P("s_cmp_eq_u32 s32, 15\ns_cbranch_scc1 L_k1_spare_c")
    P("s_lshr_b32 s34, s30, 1\ns_and_b32 s35, s30, 1")
    P("""v_and_b32 v36, 31, v1
v_lshrrev_b32 v39, 5, v1
s_lshl_b32 s41, s34, 6
v_add_u32 v10, s41, v36
v_bfe_u32 v11, v10, 1, 3
v_xor_b32 v11, v11, v39
v_lshlrev_b32 v11, 4, v11
v_lshl_add_u32 v20, v10, 7, v11
s_lshl_b32 s41, s35, 12
v_add_u32 v20, s41, v20""")
    for kk in range(1, 4): P(f"v_xor_b32 v{20+kk}, {kk*32}, v20")
    for kk in range(4): P(f"v_add_u32 v{24+kk}, 0x10000, v{20+kk}")
    for kk in range(8): P(f"v_xor_b32 v{40+kk}, 0x1000, v{20+kk}")
    P("""v_bfe_u32 v10, v1, 2, 2
v_lshl_add_u32 v11, v39, 3, v10
v_lshlrev_b32 v11, 8, v11
v_bfe_u32 v12, v1, 4, 1
v_lshl_add_u32 v11, v12, 5, v11
v_and_b32 v12, 3, v1
v_lshl_add_u32 v11, v12, 3, v11
s_lshl_b32 s41, s35, 1
s_add_u32 s41, s41, s34
v_xor_b32 v12, s41, v10
v_lshl_add_u32 v28, v12, 6, v11
v_xor_b32 v29, 64, v28
v_add_u32 v30, 0x10000, v28
v_add_u32 v31, 0x10000, v29""")
    ACC, FX, FW, SEL, CSA, AD = 64, 128, 144, 4, 32, 224
    P(f"v_and_b32 v10, 15, v1\nv_bfe_u32 v11, v1, 4, 1\nv_cmp_eq_u32 vcc, v10, v11\nv_mov_b32 v10, {ONES}")
    for i in range(4): P(f"v_cndmask_b32 v{SEL+i}, 0, v10, vcc")
    P("""s_lshl_b32 s43, s31, 2
s_lshl_b32 s44, s34, 1
s_add_u32 s43, s43, s44
s_add_u32 s43, s43, s35
s_lshr_b32 s44, s43, 3
s_mul_i32 s44, s44, 327680
s_and_b32 s45, s43, 7
s_xor_b32 s46, s45, 1
s_mul_i32 s45, s45, 1280
s_mul_i32 s46, s46, 1280
s_add_u32 s45, s45, s44
s_add_u32 s46, s46, s44""")
    P("s_waitcnt lgkmcnt(0)")
    srd(P, 20, 8, L.WS_USED)
    P("s_cmp_ge_u32 s32, 10\ns_cbranch_scc1 L_k1_v")
    for variant in ("qk", "v"):
        if variant == "v":
            P("L_k1_v:")
            sn[0] = 1
            P(f"s_sub_u32 s41, s32, 10\ns_lshl_b32 s41, s41, 7\ns_lshl_b32 s42, s35, 6\ns_add_u32 s41, s41, s42\ns_lshl_b32 s42, s34, 5\ns_add_u32 s41, s41, s42\ns_add_u32 s45, s45, {L.V_OFF}\ns_add_u32 s46, s46, {L.V_OFF}")
            for ct in range(2):
                P(f"v_add_u32 v10, s41, v36\nv_xor_b32 v10, {32*ct}, v10\nv_mul_u32_u24 v11, 52429, v10\nv_lshrrev_b32 v11, 20, v11\nv_mul_u32_u24 v11, {10240-320}, v11\nv_lshl_add_u32 v11, v10, 4, v11\nv_mul_u32_u24 v12, 320, v39\nv_add_u32 v{AD+ct}, v11, v12")
        else:
            P(f"s_cmp_ge_u32 s32, 5\ns_cselect_b32 s42, 5, 0\ns_cselect_b32 s47, {L.K_OFF}, {L.Q_OFF}\ns_sub_u32 s41, s32, s42\ns_lshl_b32 s41, s41, 5\ns_lshl_b32 s42, s35, 4\ns_add_u32 s41, s41, s42\ns_lshl_b32 s42, s34, 3\ns_add_u32 s41, s41, s42\ns_add_u32 s45, s45, s47\ns_add_u32 s46, s46, s47")
            for ct in range(2):
                for b in range(4):
                    P(f"v_add_u32 v10, s41, v39\nv_xor_b32 v10, {8*ct}, v10\nv_add_u32 v10, {2*b}, v10\nv_mul_u32_u24 v11, 52429, v10\nv_lshrrev_b32 v11, 18, v11\nv_mul_u32_u24 v11, {10240-1280}, v11\nv_lshl_add_u32 v11, v10, 8, v11\nv_lshl_add_u32 v{AD+ct*4+b}, v36, 3, v11")
        def reads(n):
            st, kk = divmod(n, 4)
            b = n & 1
            slot = (st % 4) * 32768
            hi = slot >= 65536
            off = slot - (65536 if hi else 0)
            for rt in range(2):
                P(f"ds_read_b128 v[{FX+b*8+rt*4}:{FX+b*8+rt*4+3}], v{(40 if rt else 20)+(4 if hi else 0)+kk} offset:{off}")
            for ct in range(2):
                ar = 28 + ct + (2 if hi else 0)
                P(f"ds_read_b64_tr_b16 v[{FW+b*8+ct*4}:{FW+b*8+ct*4+1}], v{ar} offset:{off+16384+kk*4096}")
                P(f"ds_read_b64_tr_b16 v[{FW+b*8+ct*4+2}:{FW+b*8+ct*4+3}], v{ar} offset:{off+16384+kk*4096+1024}")
        stamp()
        P("s_barrier"); stamp(); reads(0)
        for n in range(40):
            b = n & 1
            if n + 1 < 40:
                if (n + 1) % 4 == 0:
                    P("s_barrier")
                    if (n + 1) // 4 in (1, 2, 3, 5, 7, 9): stamp()
                reads(n + 1)
                P("s_waitcnt lgkmcnt(6)")
            else:
                P("s_waitcnt lgkmcnt(0)")
            for t in range(4):
                rt, ct = t >> 1, t & 1
                x = v(FX + b*8 + rt*4, 4); w = v(FW + b*8 + ct*4, 4); d = v(ACC + t*16, 16)
                c = "0" if n == 0 else d
                if variant == "qk": P(f"v_mfma_f32_32x32x16_bf16 {d}, {w}, {x}, {c}")
                else: P(f"v_mfma_f32_32x32x16_bf16 {d}, {x}, {w}, {c}")
                if t == 1 and not (opt.get("NOCS") and n > 0): P(f"v_mfma_f32_16x16x32_bf16 {v(CSA,4)}, {v(SEL,4)}, {v(FW+b*8,4)}, {'0' if n == 0 else v(CSA,4)}")
        stamp()
        P(f"""s_lshl_b32 s41, s35, 1
s_add_u32 s41, s41, s34
s_lshl_b32 s41, s41, 7
s_add_u32 s41, s41, {STAT+1024}
v_lshl_add_u32 v37, v36, 2, s41
s_mov_b64 exec, 0xffff
ds_write_b32 v37, v{CSA}
ds_write_b32 v37, v{CSA+1} offset:64
s_mov_b64 exec, -1
s_lshl_b32 s42, s34, 1
s_add_u32 s42, s42, s35
s_lshl_b32 s42, s42, 7
s_add_u32 s42, s42, {STAT}
s_waitcnt lgkmcnt(0)
s_barrier""")
        stamp()
        if variant == "qk":
            P(f"""v_lshl_add_u32 v37, v36, 2, s42
v_xor_b32 v38, 128, v37
ds_read_b32 v40, v37
ds_read_b32 v42, v37 offset:512
ds_read_b32 v44, v38
ds_read_b32 v46, v38 offset:512
v_lshl_add_u32 v37, v39, 4, s41
v_xor_b32 v38, 128, v37""")
            for ct in range(2):
                for b in range(4):
                    P(f"ds_read_b128 v[{128+ct*16+b*4}:{128+ct*16+b*4+3}], v{37+ct} offset:{b*32}")
            P(f"s_cmp_lt_u32 s32, 5\ns_cselect_b32 s41, {f2u(20**-0.5*LOG2E)}, 1.0\ns_waitcnt lgkmcnt(8)")
            for r in (40, 42, 44, 46): P(f"v_mul_f32 v{r}, s41, v{r}")
            for r in (40, 42, 44, 46): P(f"v_mov_b32 v{r+1}, v{r}")
            P("s_waitcnt lgkmcnt(0)")
            for t in range(4):
                rt, ct = t >> 1, t & 1
                A = v(40 + rt*4, 2); B = v(42 + rt*4, 2)
                for p in range(8):
                    r = ACC + t*16 + 2*p
                    P(f"v_pk_mul_f32 v[{48+2*(p&3)}:{49+2*(p&3)}], v[{128+ct*16+2*p}:{128+ct*16+2*p+1}], {B}")
                    P(f"v_pk_fma_f32 v[{r}:{r+1}], v[{r}:{r+1}], {A}, v[{48+2*(p&3)}:{49+2*(p&3)}] neg_lo:[0,0,1] neg_hi:[0,0,1]")
                for p in range(8):
                    r = ACC + t*16 + 2*p
                    P(f"v_cvt_pk_bf16_f32 v{160+t*8+p}, v{r}, v{r+1}")
                for b in range(4):
                    P(f"buffer_store_dwordx2 v[{160+t*8+2*b}:{160+t*8+2*b+1}], v{AD+ct*4+b}, s[20:23], s{45+rt} offen{QSF}")
        else:
            P(f"""v_lshl_add_u32 v37, v36, 2, s41
v_xor_b32 v38, 128, v37
ds_read_b32 v40, v37
ds_read_b32 v42, v38
v_lshl_add_u32 v37, v39, 4, s42
v_xor_b32 v38, 128, v37""")
            for rt in range(2):
                for b in range(4):
                    P(f"ds_read_b128 v[{128+rt*32+b*4}:{128+rt*32+b*4+3}], v{37+rt} offset:{b*32}")
                    P(f"ds_read_b128 v[{144+rt*32+b*4}:{144+rt*32+b*4+3}], v{37+rt} offset:{512+b*32}")
            P("s_waitcnt lgkmcnt(0)\nv_mov_b32 v41, v40\nv_mov_b32 v43, v42")
            for t in range(4):
                rt, ct = t >> 1, t & 1
                C = v(40 + ct*2, 2)
                for p in range(8):
                    r = ACC + t*16 + 2*p
                    P(f"v_pk_mul_f32 v[{48+2*(p&3)}:{49+2*(p&3)}], v[{144+rt*32+2*p}:{144+rt*32+2*p+1}], {C}")
                    P(f"v_pk_fma_f32 v[{r}:{r+1}], v[{r}:{r+1}], v[{128+rt*32+2*p}:{128+rt*32+2*p+1}], v[{48+2*(p&3)}:{49+2*(p&3)}] neg_lo:[0,0,1] neg_hi:[0,0,1]")
                for p in range(8):
                    r = ACC + t*16 + 2*p
                    P(f"v_cvt_pk_bf16_f32 v{192+t*8+p}, v{r}, v{r+1}")
                for u in range(2):
                    P(f"buffer_store_dwordx4 v[{192+t*8+4*u}:{192+t*8+4*u+3}], v{AD+ct}, s[20:23], s{45+rt} offen offset:{640*u}{QSF}")
        stamp(); stamp_out()
        P("s_endpgm")
    P("L_k1_spare_c:\ns_cmp_lg_u32 s31, 0\ns_cbranch_scc1 L_k1_end\ns_waitcnt lgkmcnt(0)")
    srd(P, 20, 8, L.WS_USED)
    P("v_lshlrev_b32 v3, 4, v0\nv_mov_b32 v4, 0\nv_mov_b32 v5, 0\nv_mov_b32 v6, 0\nv_mov_b32 v7, 0")
    for i in range((L.FLAG_BYTES + 4095) // 4096):
        P(f"s_mov_b32 s31, {L.FLAG_OFF + i*4096}\nbuffer_store_dwordx4 v[4:7], v3, s[20:23], s31 offen")
    P("s_endpgm")

    P("L_k1_helper:")
    sn[0] = 1
    P("s_sub_u32 s33, s30, 4")
    P("v_lshrrev_b32 v8, 3, v1\nv_and_b32 v9, 7, v1\nv_lshrrev_b32 v10, 4, v1\nv_lshlrev_b32 v14, 4, v1")
    P("s_cmp_eq_u32 s32, 15\ns_cbranch_scc1 L_k1_spare_h")
    for i in range(4):
        P(f"v_add_u32 v11, {8*i}, v8\nv_mul_u32_u24 v11, 1280, v11\nv_add_u32 v12, {4*i}, v10\nv_and_b32 v12, 7, v12\nv_xor_b32 v12, v12, v9\nv_lshl_add_u32 v{4+i}, v12, 4, v11")
    P("v_mul_u32_u24 v11, 3840, v10\nv_bfe_u32 v12, v1, 2, 2\nv_xor_b32 v12, v12, v10\nv_lshl_add_u32 v11, v12, 6, v11\nv_and_b32 v12, 3, v1\nv_lshl_add_u32 v3, v12, 4, v11")
    P("s_lshl_b32 s36, s31, 2\ns_add_u32 s36, s36, s33\ns_mul_i32 s36, s36, 40960")
    P("s_mul_i32 s37, s33, 61440\ns_lshl_b32 s38, s32, 8\ns_add_u32 s37, s37, s38")
    P("s_lshl_b32 s39, s33, 12")
    if ROT:
        P("s_mul_i32 s34, s27, 3\ns_add_u32 s34, s34, s28\ns_add_u32 s34, s34, s25\ns_cmp_ge_u32 s34, 20\ns_cselect_b32 s35, 20, 0\ns_sub_u32 s34, s34, s35\ns_cmp_ge_u32 s34, 10\ns_cselect_b32 s35, 10, 0\ns_sub_u32 s34, s34, s35")
    else: P("s_mov_b32 s34, 0")
    P("s_waitcnt lgkmcnt(0)")
    srd(P, 12, 4, SZ); srd(P, 16, 6, 640 * 3840); srd(P, 20, 8, L.WS_USED)
    nvm = [0]; last = {}
    def dma(i):
        slot = (i % 4) * 32768
        P("s_lshl_b32 s40, s34, 7\ns_add_u32 s40, s40, s36\ns_mul_i32 s41, s34, 245760\ns_add_u32 s41, s41, s37")
        for j in range(4):
            P(f"s_add_u32 m0, s39, {slot + j*1024}\ns_nop 0\nbuffer_load_dwordx4 v{4+j}, s[12:15], s40 offen lds")
            P(f"s_add_u32 m0, s39, {slot + 16384 + j*1024}\ns_nop 0\nbuffer_load_dwordx4 v3, s[16:19], s41 offen lds")
            if j < 3: P(f"s_add_u32 s41, s41, {4*3840}")
        P("s_add_u32 s34, s34, 1\ns_cmp_eq_u32 s34, 10\ns_cselect_b32 s34, 0, s34")
        nvm[0] += 8; last[i] = nvm[0] - 1
    dma(0); dma(1)
    stamp()
    def decode(tag):
        P(f"""s_mov_b32 s64, s10
s_mov_b32 s65, s11
s_mov_b32 s50, 1280
s_mov_b32 s51, 5
s_mov_b32 s52, 0
s_mov_b32 s53, 0
s_mov_b32 s55, 0
s_mov_b32 s66, 819200
s_mov_b32 s67, s48
s_cmp_lt_u32 s48, 40
s_cbranch_scc1 L_dec4{tag}
s_mov_b32 s64, s56
s_mov_b32 s65, s57
s_mov_b32 s52, 5
s_mov_b32 s55, {L.CS1_OFF}
s_sub_u32 s67, s48, 40
s_cmp_lt_u32 s48, 80
s_cbranch_scc1 L_dec4{tag}
s_mov_b32 s64, s58
s_mov_b32 s65, s59
s_mov_b32 s52, 10
s_mov_b32 s55, 0
s_sub_u32 s67, s48, 80
s_cmp_lt_u32 s48, 120
s_cbranch_scc1 L_dec4{tag}
s_mov_b32 s64, s60
s_mov_b32 s65, s61
s_mov_b32 s50, 3456
s_mov_b32 s52, 15
s_mov_b32 s53, 1
s_mov_b32 s55, {L.CS3_OFF}
s_mov_b32 s66, 2211840
s_sub_u32 s67, s48, 120
s_cmp_lt_u32 s48, 228
s_cbranch_scc1 L_dec4{tag}
s_mov_b32 s64, s62
s_mov_b32 s65, s63
s_mov_b32 s50, 1280
s_mov_b32 s51, 6
s_mov_b32 s52, 29
s_mov_b32 s53, 2
s_mov_b32 s55, 0
s_sub_u32 s67, s48, 228
s_mul_i32 s68, s67, 7282
s_lshr_b32 s68, s68, 16
s_mul_i32 s69, s68, 9
s_sub_u32 s69, s67, s69
s_branch L_decj{tag}
L_dec4{tag}:
s_lshr_b32 s68, s67, 2
s_and_b32 s69, s67, 3
L_decj{tag}:
s_mov_b32 s24, s64
s_and_b32 s25, s65, 0xffff
s_mov_b32 s26, s66
s_mov_b32 s27, 0x20000
s_mul_i32 s54, s69, s51
s_lshl_b32 s49, s54, 2
s_add_u32 s49, s49, s33
s_lshl_b32 s49, s49, 3
s_mul_i32 s49, s49, s50
s_lshl_b32 s42, s68, 7
s_add_u32 s49, s49, s42
v_mul_lo_u32 v13, v8, s50
v_lshl_add_u32 v13, v9, 4, v13""")
        P(f"""s_lshl_b32 s42, s68, 2
s_add_u32 s42, s42, s33
s_mul_i32 s52, s52, 20480
s_add_u32 s52, s52, {L.WS_OFF}
s_cmp_eq_u32 s53, 1
s_cbranch_scc1 L_dw3{tag}
s_mul_i32 s43, s42, 52429
s_lshr_b32 s43, s43, 18
s_mul_i32 s44, s43, 5
s_sub_u32 s44, s42, s44
s_cmp_eq_u32 s44, 0
s_cselect_b32 s45, 4, -1
s_bitcmp1_b32 s43, 0
s_cselect_b32 s45, s45, 0
s_add_u32 s44, s44, s45
s_add_u32 s42, s42, s45
s_lshl_b32 s44, s44, 10
s_mul_i32 s46, s69, 2560
s_branch L_dj2{tag}
L_dw3{tag}:
s_lshr_b32 s45, s42, 1
s_mul_i32 s43, s45, 9363
s_lshr_b32 s43, s43, 16
s_cmp_eq_u32 s45, 48
s_cselect_b32 s43, 7, s43
s_mul_i32 s44, s43, 7
s_sub_u32 s44, s45, s44
s_cmp_eq_u32 s43, 7
s_addc_u32 s44, s44, 0
s_lshl_b32 s44, s44, 1
s_and_b32 s45, s42, 1
s_add_u32 s44, s44, s45
s_mul_i32 s44, s44, 20480
s_mul_i32 s46, s69, 8192
L_dj2{tag}:
s_mul_i32 s43, s43, {L.SLICE_B}
s_add_u32 s52, s52, s43
s_add_u32 s52, s52, s44
s_lshl_b32 s42, s42, 6
s_add_u32 s42, s42, s46
s_cmp_eq_u32 s55, 0
s_cselect_b32 s42, 0, s42
s_add_u32 s55, s55, s42""")
    def prep_dma(ldsbase_sreg):
        P(f"s_lshl_b32 s42, s33, 10\ns_add_u32 s42, s42, {ldsbase_sreg}\ns_lshl_b32 s43, s50, 5\ns_mov_b32 s44, s49")
        for k in range(6):
            P(f"s_add_u32 m0, s42, {k*4096}\ns_nop 0\nbuffer_load_dwordx4 v13, s[24:27], s44 offen{NTF} lds")
            if k == 4: P("s_cmp_eq_u32 s51, 5\ns_cselect_b32 s43, 0, s43")
            if k < 5: P("s_add_u32 s44, s44, s43")
        nvm[0] += 6
    def prep_proc(tag, ldsbase_sreg):
        P(f"""v_bfe_u32 v11, v1, 2, 2
v_lshl_add_u32 v11, v10, 3, v11
v_lshlrev_b32 v11, 7, v11
v_and_b32 v12, 3, v1
v_lshl_add_u32 v11, v12, 4, v11
s_lshr_b32 s42, s33, 1
s_lshl_b32 s42, s42, 6
s_and_b32 s43, s33, 1
s_lshl_b32 s43, s43, 3
s_add_u32 s42, s42, s43
s_add_u32 s42, s42, {ldsbase_sreg}
v_add_u32 v11, s42, v11""")
        for k in range(6):
            P(f"ds_read_b64_tr_b16 v[{64+4*k}:{65+4*k}], v11 offset:{k*4096}\nds_read_b64_tr_b16 v[{66+4*k}:{67+4*k}], v11 offset:{k*4096+512}")
        P(f"s_cmp_eq_u32 s53, 1\ns_mov_b32 s46, 5120\ns_cmov_b32 s46, 1024\nv_mov_b32 v60, 0\nv_mov_b32 v62, {ONES}")
        for k in range(6):
            if k == 5: P(f"s_cmp_eq_u32 s51, 5\ns_cbranch_scc1 L_pp5{tag}")
            P(f"s_add_u32 s42, s54, {k}\ns_cmp_lg_u32 s53, 2\ns_cbranch_scc1 L_ppn{tag}_{k}")
            P("""s_mul_i32 s43, s42, 9363
s_lshr_b32 s43, s43, 16
s_cmp_eq_u32 s42, 48
s_cselect_b32 s43, 7, s43
s_mul_i32 s44, s43, 7
s_sub_u32 s44, s42, s44
s_cmp_eq_u32 s43, 7
s_addc_u32 s44, s44, 0
s_lshl_b32 s42, s44, 3
s_add_u32 s42, s42, s43""")
            P(f"L_ppn{tag}_{k}:\ns_mul_i32 s42, s42, s46\ns_add_u32 s42, s42, s52\ns_waitcnt lgkmcnt({10-2*k})")
            P(f"buffer_store_dwordx4 v[{64+4*k}:{67+4*k}], v14, s[20:23], s42 offen{PSF}")
        P(f"L_pp5{tag}:\ns_cmp_eq_u32 s55, 0\ns_cbranch_scc1 L_ppe{tag}")
        for r in range(20): P(f"v_dot2c_f32_bf16 v60, v{64+r}, v62")
        xg_reduce(P, [60], [61])
        P("v_lshlrev_b32 v61, 2, v1\ns_mov_b64 exec, 0xffff\nbuffer_store_dword v60, v61, s[20:23], s55 offen\ns_mov_b64 exec, -1")
        P(f"L_ppe{tag}:\ns_waitcnt lgkmcnt(0)")
    P("s_mul_i32 s48, s31, 15\ns_add_u32 s48, s48, s32")
    decode("m")
    for r in range(8): P(f"v_mov_b32 v{16+r}, 0")
    P("v_add_u32 v15, s39, v14\nv_add_u32 v24, 0x10000, v15")
    for i in range(10):
        P(f"s_waitcnt vmcnt({min(nvm[0]-1-last[i], nvm[0]-1-pid if i == PP else 99)})\ns_barrier")
        slot = (i % 4) * 32768
        for j in range(4):
            P(f"ds_read_b128 v[{32+4*j}:{35+4*j}], v{24 if slot >= 65536 else 15} offset:{slot % 65536 + j*1024}")
        if i + 2 < 10: dma(i + 2)
        if i == PI: prep_dma(PB); pid = nvm[0] - 1
        for j in range(4):
            if opt.get("NOSTAT"): break
            P(f"s_waitcnt lgkmcnt({3-j})")
            for r in range(4):
                s_ = 32 + 4*j + r
                P(f"v_lshlrev_b32 v{48+2*r}, 16, v{s_}\nv_and_b32 v{49+2*r}, 0xffff0000, v{s_}")
            for r in range(8):
                P(f"v_add_f32 v{16+j}, v{16+j}, v{48+r}\nv_fmac_f32 v{20+j}, v{48+r}, v{48+r}")
        if i == PP: prep_proc("m", PB); nvm[0] += 5
    stamp()
    for ctl in ("quad_perm:[1,0,3,2]", "quad_perm:[2,3,0,1]", "row_half_mirror"):
        for r in range(8): P(f"v_add_f32_dpp v{16+r}, v{16+r}, v{16+r} {ctl} row_mask:0xf bank_mask:0xf")
    for j in range(4):
        P(f"v_mul_f32 v{16+j}, {f2u(1/640)}, v{16+j}\nv_mul_f32 v{20+j}, {f2u(1/640)}, v{20+j}")
    for j in range(4):
        P(f"v_fma_f32 v{20+j}, -v{16+j}, v{16+j}, v{20+j}\nv_max_f32 v{20+j}, 0, v{20+j}\nv_add_f32 v{20+j}, {f2u(EPS)}, v{20+j}")
    for j in range(4): P(f"v_rsq_f32 v{20+j}, v{20+j}")
    for j in range(4): P(f"v_mul_f32 v{16+j}, v{16+j}, v{20+j}")
    P(f"s_lshl_b32 s42, s33, 7\ns_add_u32 s42, s42, {STAT}\nv_lshl_add_u32 v11, v8, 2, s42")
    for j in range(4): P(f"ds_write_b32 v11, v{20+j} offset:{32*j}\nds_write_b32 v11, v{16+j} offset:{512+32*j}")
    P("s_waitcnt vmcnt(0) lgkmcnt(0)\ns_barrier" if PP >= 10 else "s_waitcnt lgkmcnt(0)\ns_barrier")
    stamp()
    if PP >= 10: prep_proc("m", PB)
    stamp(); stamp_out()
    P("s_endpgm")
    P("L_k1_spare_h:\ns_waitcnt lgkmcnt(0)")
    srd(P, 20, 8, L.WS_USED)
    P("s_add_u32 s48, s31, 240\ns_mov_b32 s47, 0\nL_sp1:")
    decode("a")
    prep_dma("s47")
    P("s_add_u32 s48, s48, 16\ns_add_u32 s47, s47, 24576\ns_cmp_lt_u32 s48, 318\ns_cbranch_scc1 L_sp1")
    P("s_waitcnt vmcnt(0)\ns_barrier")
    P("s_add_u32 s48, s31, 240\ns_mov_b32 s47, 0\nL_sp2:")
    decode("b")
    prep_proc("b", "s47")
    P("s_nop 4\ns_add_u32 s48, s48, 16\ns_add_u32 s47, s47, 24576\ns_cmp_lt_u32 s48, 318\ns_cbranch_scc1 L_sp2")
    P("L_k1_end:\ns_endpgm")
    return (name, 256, 512, STAT + 2048, 256)
```

```python
from asmlib import *
from gen1 import f2u, LOG2E, ONES, EPS, ARG, SZ, srd, header, xg_reduce

RING = 7
KV_LDS = 5 * 20480
XR_LDS = RING * 20480
CS1_LDS = XR_LDS + 12288
CS3_LDS = CS1_LDS + 1024
SY_LDS = CS3_LDS + 1024
LDS_TOTAL = SY_LDS + 64
SPIN_MAX = 400000
STAMP_OFF = 0x4000000

class VM:
    def __init__(s, P): s.P = P; s.n = 0
    def op(s, text, k=1): s.P(text); s.n += k; return s.n - 1
    def cnt(s, idx):
        c = s.n - 1 - idx
        assert 0 <= c <= 63, c
        return c
    def wait(s, idx, extra=""): s.P(f"s_waitcnt vmcnt({s.cnt(idx)}){extra}")
class LG(VM):
    def cnt(s, idx): return min(15, s.n - 1 - idx)
    def wait(s, idx): s.P(f"s_waitcnt lgkmcnt({s.cnt(idx)})")

_lab = [0]
def lab(p):
    _lab[0] += 1
    return f"L_{p}{_lab[0]}"

def gen_k2(P, L, opt):
    STAMP = opt.get("STAMP", False); FOCUS = opt.get("FOCUS", 0)
    NTOUCH = opt.get("NTOUCH", 1); THIN = opt.get("THIN", 1); PRE = opt.get("PRE", 8); PRE4 = opt.get("PRE4", 12)
    NSTG = L.NSTG; DBG = opt.get("DBG", 0)
    tails = []
    def store2(vm, lines):
        a, b = lab("sf"), lab("se")
        P(f"s_cbranch_scc1 {a}" if False else f"s_cmp_lg_u32 s24, 0\ns_cbranch_scc1 {a}")
        for l in lines: P(l)
        P(f"{b}:")
        tails.append(f"{a}:\ns_nop 4\n" + "\n".join(l + " sc1" for l in lines) + f"\ns_nop 1\ns_branch {b}")
        vm.n += len(lines)
        return vm.n - 1
    def poll_check(vaddr, vdata, soff, need):
        a, b, c = lab("pl"), lab("pd"), lab("pr")
        P(f"v_cmp_gt_u32 vcc, {need}, v{vdata}\ns_cbranch_vccnz {a}\n{b}:")
        tails.append(f"""{a}:
s_mov_b32 s47, 0
{c}:
buffer_load_dword v{vdata}, v{vaddr}, s[20:23], {soff} offen sc1
s_add_u32 s47, s47, 1
s_cmp_ge_u32 s47, {SPIN_MAX}
s_waitcnt vmcnt(0)
s_cbranch_scc1 {b}
v_cmp_gt_u32 vcc, {need}, v{vdata}
s_cbranch_vccnz {c}
s_branch {b}""")
    def lds_check(vaddr, vdata, off, need, back=''):
        a, b, c = lab("ll"), lab("ld"), lab("lr")
        P(f"v_cmp_gt_u32 vcc, {need}, v{vdata}\ns_cbranch_vccnz {a}\n{b}:")
        tails.append(f"""{a}:
s_mov_b32 s47, 0
{c}:
{back}ds_read_b32 v{vdata}, v{vaddr} offset:{off}
s_add_u32 s47, s47, 1
s_cmp_ge_u32 s47, {SPIN_MAX*4}
s_waitcnt lgkmcnt(0)
s_cbranch_scc1 {b}
v_cmp_gt_u32 vcc, {need}, v{vdata}
s_cbranch_vccnz {c}
s_branch {b}""")
    class Stamper:
        def __init__(s, base, n): s.i = 0; s.base = base; s.n = n
        def __call__(s):
            if not (STAMP or DBG): return
            assert s.i < s.n
            if DBG:
                P(f"s_memrealtime s[{s.base+2*s.i}:{s.base+2*s.i+1}]"); s.i += 1; return
            P(f"s_memtime s[{s.base+2*s.i}:{s.base+2*s.i+1}]"); s.i += 1
    def stamp_dump(regs):
        regs = regs + [regs[-1]] * (22 - len(regs))
        P("s_waitcnt lgkmcnt(0)\nv_mov_b32 v40, s100\ns_memrealtime s[100:101]\ns_waitcnt lgkmcnt(0)\nv_mov_b32 v41, s100\nv_mov_b32 v2, 0")
        for i, r in enumerate(regs): P(f"v_mov_b32 v{42+i}, s{r}")
        P("s_mov_b32 s22, 0x8000000")
        P(f"s_lshl_b32 s43, s2, 3\ns_add_u32 s43, s43, s30\ns_lshl_b32 s43, s43, 7\ns_add_u32 s43, s43, {STAMP_OFF + 2*0x100000}\ns_mov_b64 exec, 1")
        for i in range(6): P(f"buffer_store_dwordx4 v[{40+4*i}:{43+4*i}], v2, s[20:23], s43 offen offset:{16*i}")

    name = "main_kernel"
    header(P, name)
    sa = Stamper(80, 8)
    P(f"s_load_dwordx2 s[8:9], s[0:1], {ARG['ws']}\ns_load_dwordx2 s[4:5], s[0:1], {ARG['x']}\ns_load_dwordx2 s[6:7], s[0:1], {ARG['out']}")
    P("s_cmp_ge_u32 s2, 256\ns_cbranch_scc1 L_end")
    if STAMP: P("s_memrealtime s[100:101]")
    sa()
    P("v_and_b32 v1, 63, v0\nv_lshrrev_b32 v2, 6, v0\nv_readfirstlane_b32 s30, v2\nv_lshlrev_b32 v3, 4, v1")
    P("s_and_b32 s25, s2, 7\ns_lshr_b32 s26, s2, 3")
    P(f"""s_cmp_ge_u32 s30, 4
s_mov_b32 s46, {L.K_OFF - 327680}
s_cmov_b32 s46, {L.V_OFF - 327680}
s_mul_i32 s35, s26, 10240
s_add_u32 s46, s46, s35
s_bfe_u32 s36, s30, 0x10001
s_add_u32 s36, s36, s25
s_mul_i32 s36, s36, 327680
s_add_u32 s46, s46, s36
s_and_b32 s36, s30, 1
s_mul_i32 s36, s36, 5120
s_add_u32 s46, s46, s36
s_mul_i32 s47, s30, 5120
s_add_u32 s47, s47, {KV_LDS}
s_mul_i32 s40, s25, 327680
s_add_u32 s40, s40, s35
s_mul_i32 s41, s30, 1280
s_add_u32 s40, s40, s41
v_and_b32 v13, 31, v1
v_lshrrev_b32 v14, 5, v1
v_lshlrev_b32 v5, 3, v13
v_lshl_add_u32 v6, v14, 9, v5
s_mov_b32 s22, {L.WS_USED}
s_mov_b32 s23, 0x20000
s_waitcnt lgkmcnt(0)
s_mov_b32 s20, s8
s_and_b32 s21, s9, 0xffff""")
    def kvdma():
        P("s_mov_b32 m0, s47")
        for i in range(4): P(f"buffer_load_dwordx4 v3, s[20:23], s46 offen offset:{i*1024} lds")
        P("s_add_u32 m0, s47, 4096\ns_add_u32 s46, s46, 4096\nbuffer_load_dwordx4 v3, s[20:23], s46 offen lds")
    P("""buffer_load_dwordx2 v[16:17], v6, s[20:23], s40 offen
buffer_load_dwordx2 v[18:19], v6, s[20:23], s40 offen offset:256
buffer_load_dwordx2 v[20:21], v5, s[20:23], s40 offen offset:1024""")
    P("s_cmp_ge_u32 s30, 4\ns_cbranch_scc1 L_nok")
    kvdma()
    P("L_nok:")
    srd(P, 12, 4, SZ); srd(P, 16, 6, SZ)
    P("s_and_b32 s27, s26, 3\ns_lshl_b32 s28, s25, 2\ns_add_u32 s27, s27, s28\ns_lshr_b32 s28, s2, 5\ns_lshl_b32 s31, s25, 3\ns_add_u32 s31, s31, s30")
    P(f"""v_mov_b32 v22, 0
v_mov_b32 v23, 0
s_add_u32 s41, s41, {KV_LDS}
v_add_u32 v24, s41, v6
v_add_u32 v25, s41, v5
v_mul_u32_u24 v26, 320, v14
v_lshl_add_u32 v26, v13, 4, v26
v_add_u32 v26, s41, v26""")
    S, KF, VF, OA, PM, CA = 32, 176, 200, 224, 240, 8
    RMV, L4V, FXV, L7V, MODEV = 248, 249, 250, 251, 252
    for r in range(16):
        m = 0
        for l in range(64):
            if 8*(r >> 2) + 4*(l >> 5) + (r & 3) <= (l & 31): m |= 1 << l
        P(f"s_mov_b32 s{48+2*r}, {m & 0xffffffff:#x}\ns_mov_b32 s{49+2*r}, {m >> 32:#x}")
    P("s_cmp_lt_u32 s30, 4\ns_cbranch_scc1 L_nov")
    kvdma()
    P("L_nov:")
    for b in range(3): P(f"v_mov_b32 v{KF+b*8+6}, 0\nv_mov_b32 v{KF+b*8+7}, 0")
    for r in range(24): P(f"v_mov_b32 v{VF+r}, {ONES}")
    for r in range(16): P(f"v_mov_b32 v{OA+r}, 0")
    P("v_mov_b32 v4, 0xffff\nv_mov_b32 v7, 0xffff0000")
    for p in range(8):
        P(f"v_cndmask_b32 v{PM+p}, 0, v4, s[{48+4*p}:{49+4*p}]\nv_cndmask_b32 v12, 0, v7, s[{50+4*p}:{51+4*p}]\nv_or_b32 v{PM+p}, v{PM+p}, v12")
    P(f"v_cmp_gt_u32 vcc, 32, v1\nv_mov_b32 v4, 0xbf80bf80\nv_mov_b32 v7, 0x0000bf80\nv_cndmask_b32 v{CA}, 0, v4, vcc\nv_cndmask_b32 v{CA+1}, 0, v7, vcc\nv_mov_b32 v{CA+2}, 0\nv_mov_b32 v{CA+3}, 0")
    P("s_mov_b32 s44, 0x000fffff\ns_mov_b32 s45, 0x000fffff")
    P("s_and_b32 s29, s30, 3\ns_lshl_b32 s43, s27, 2\ns_add_u32 s29, s29, s43")
    P("s_mul_i32 s34, s28, 5\ns_and_b32 s37, s28, 1\ns_lshr_b32 s35, s34, 1\ns_add_u32 s36, s35, 2\ns_lshl_b32 s43, s37, 1\ns_sub_u32 s36, s36, s43\ns_add_u32 s35, s35, s37")
    P(f"s_mul_i32 s32, s28, {L.SLICE_B}\ns_add_u32 s32, s32, {L.WS_OFF}")
    P("s_mul_i32 s39, s30, 12\ns_mul_i32 s43, s30, 13\ns_sub_u32 s43, s43, 4\ns_cmp_ge_u32 s30, 4\ns_cselect_b32 s39, s43, s39\ns_lshl_b32 s39, s39, 10\ns_add_u32 s38, s32, s39")
    P(f"v_lshrrev_b32 v{RMV}, 2, v1\nv_mul_u32_u24 v{RMV}, 1280, v{RMV}\nv_and_b32 v4, 3, v1\nv_lshl_add_u32 v{RMV}, v4, 4, v{RMV}")
    P(f"v_lshlrev_b32 v{L4V}, 2, v13\ns_cmp_eq_u32 s25, 7\ns_cselect_b32 s43, 31, 63\nv_and_b32 v{FXV}, s43, v1\nv_lshlrev_b32 v{FXV}, 2, v{FXV}\nv_lshlrev_b32 v{L7V}, 7, v1")
    P(f"v_cmp_gt_u32 vcc, 4, v1\nv_cndmask_b32 v4, 0, 5, vcc\nv_and_b32 v7, 7, v1\nv_lshlrev_b32 v7, 2, v7\nv_add_u32 v7, {SY_LDS}, v7\ns_mov_b64 exec, 0xff\nds_write_b32 v7, v4\ns_mov_b64 exec, -1")
    vm = VM(P)
    side = [(3, f"""s_lshl_b32 s46, s25, 5
s_add_u32 s46, s46, s26
s_lshl_b32 s46, s46, 3
s_add_u32 s46, s46, s30
s_lshl_b32 s46, s46, 10
s_add_u32 s46, s46, {L.GX_OFF}
buffer_load_dwordx4 v[4:7], v3, s[20:23], s46 offen
s_lshl_b32 s46, s29, 7
s_add_u32 s46, s46, {L.FR_OFF}
buffer_load_dword v253, v{L4V}, s[20:23], s46 offen
s_lshl_b32 s46, s31, 7
s_add_u32 s46, s46, {L.FO_OFF}
buffer_load_dword v253, v{L4V}, s[20:23], s46 offen""")]
    for i in range(12):
        pre = f"s_add_u32 m0, s39, {i*1024}\ns_add_u32 s43, s38, {i*1024}\n" if i % 4 == 0 else ""
        side.append((1, pre + f"buffer_load_dwordx4 v3, s[20:23], s43 offen offset:{(i%4)*1024} lds"))
    side.append((3, f"""s_cmp_ge_u32 s30, 4
s_cbranch_scc1 L_side_l
s_mul_i32 s46, s29, 20480
s_lshl_b32 s43, s35, 6
s_add_u32 s43, s43, s46
s_mul_i32 s47, s30, 3072
s_add_u32 m0, s47, {XR_LDS}
s_nop 0
buffer_load_dwordx4 v{RMV}, s[12:15], s43 offen lds
s_add_u32 m0, s47, {XR_LDS+1024}
s_add_u32 s43, s43, 64
buffer_load_dwordx4 v{RMV}, s[12:15], s43 offen lds
s_lshl_b32 s43, s36, 6
s_add_u32 s43, s43, s46
s_add_u32 m0, s47, {XR_LDS+2048}
s_nop 0
buffer_load_dwordx4 v{RMV}, s[12:15], s43 offen lds
s_branch L_side_e
L_side_l:
s_add_u32 m0, s39, {12*1024}
s_add_u32 s43, s38, {12*1024}
buffer_load_dwordx4 v3, s[20:23], s43 offen lds
s_and_b32 s46, s30, 3
s_mul_i32 s43, s46, 2560
s_mul_i32 s47, s28, 320
s_add_u32 s43, s43, s47
s_add_u32 s43, s43, {L.CS1_OFF}
buffer_load_dword v253, v3, s[20:23], s43 offen
s_lshl_b32 s43, s46, 13
s_mul_i32 s47, s28, 896
s_add_u32 s43, s43, s47
s_add_u32 s43, s43, {L.CS3_OFF - 128}
buffer_load_dword v253, v3, s[20:23], s43 offen
L_side_e:"""))
    for k in range(NTOUCH):
        side.append((1, f"""s_and_b32 s46, s27, 3
s_lshl_b32 s46, s46, 3
s_add_u32 s46, s46, s30
s_lshl_b32 s46, s46, 13
s_add_u32 s46, s46, s32
s_add_u32 s46, s46, {5*20480 + k*262144}
buffer_load_dword v253, v{L7V}, s[20:23], s46 offen"""))
    def do_side(k=1):
        for _ in range(k):
            if side:
                n, t = side.pop(0); vm.op(t, n)
    sa()
    P("s_waitcnt vmcnt(5)\ns_cmp_ge_u32 s30, 4\ns_cbranch_scc1 L_b0\ns_waitcnt vmcnt(0)\nL_b0:")
    P("v_cmp_gt_u32 vcc, 32, v1\nv_cndmask_b32 v20, 0, v20, vcc\nv_cndmask_b32 v21, 0, v21, vcc\ns_waitcnt lgkmcnt(0)")
    P("s_barrier")
    sa()
    if STAMP or DBG: P("s_waitcnt lgkmcnt(0)")
    lg = LG(P)
    kid = {}
    def kread(t):
        b = t % 3
        kid[t] = lg.op(f"ds_read_b64 v[{KF+b*8}:{KF+b*8+1}], v24 offset:{t*1280}\nds_read_b64 v[{KF+b*8+2}:{KF+b*8+3}], v24 offset:{t*1280+256}\nds_read_b64 v[{KF+b*8+4}:{KF+b*8+5}], v25 offset:{t*1280+1024}", 3)
    M = 28
    mstate = {"n": 0}
    def maxops(t):
        ops = []
        for r in range(0, 16, 2):
            k = mstate["n"] & 1
            a, b = S + 16*t + r, S + 16*t + r + 1
            if mstate["n"] < 2: ops.append(f"v_max_f32 v{M+k}, v{a}, v{b}")
            else: ops.append(f"v_max3_f32 v{M+k}, v{M+k}, v{a}, v{b}")
            mstate["n"] += 1
        return ops
    kread(8); kread(7)
    for t in range(8, -1, -1):
        b = t % 3
        d = v(S + 16*t, 16)
        if t < 8:
            a, e = lab("ab"), lab("ae")
            P(f"s_cmp_eq_u32 s31, {7-t}\ns_cbranch_scc1 {a}\n{e}:")
            tails.append(f"{a}:\ns_nop 7\n" + "\n".join(f"v_mov_b32 v{OA+r}, 0xff800000" for r in range(16)) + f"\ns_nop 1\ns_branch {e}")
        mo = maxops(t + 1) if 1 <= t + 1 <= 7 else []
        lg.wait(kid[t])
        P(f"v_mfma_f32_32x32x16_bf16 {d}, {v(KF+b*8,4)}, v[16:19], {v(OA,16)}")
        if t - 2 >= 0: kread(t - 2)
        P(f"v_mfma_f32_32x32x16_bf16 {d}, {v(KF+b*8+4,4)}, v[20:23], {d}")
        if t % 2 == 0: do_side()
        for o in mo: P(o)
    for r in range(16): P(f"v_cndmask_b32 v{S+r}, v{S+r}, v{S+128+r}, s[{48+2*r}:{49+2*r}]")
    for o in maxops(0): P(o)
    P(f"v_max_f32 v{M}, v{M}, v{M+1}\nv_mov_b32 v{M+1}, v{M}")
    P(f"s_waitcnt vmcnt({vm.n})")
    P(f"v_permlane32_swap_b32 v{M}, v{M+1}\nv_max_f32 v{M}, v{M}, v{M+1}")
    P("s_barrier")
    vid = {}
    def vread(t, slot):
        P("s_mov_b64 exec, s[44:45]")
        vid[t] = lg.op(f"ds_read_b128 {v(VF+slot*8,4)}, v26 offset:{20480+t*1280}\nds_read_b128 {v(VF+slot*8+4,4)}, v26 offset:{20480+t*1280+640}", 2)
        P("s_mov_b64 exec, -1")
    P(f"""v_and_b32 v29, 0xffff0000, v{M}
v_sub_f32 v30, v{M}, v29
v_and_b32 v31, 0xffff0000, v30
v_sub_f32 v30, v30, v31
v_lshrrev_b32 v29, 16, v29
v_or_b32 v20, v29, v31
v_lshrrev_b32 v21, 16, v30""")
    sa()
    order = [0, 1, 2, 3, 4, 5, 6, 7]
    slot_of = {8: 0, 0: 1}
    for i, t in enumerate(order[1:]): slot_of[t] = (2 + i) % 3
    def subm(t): P(f"v_mfma_f32_32x32x16_bf16 {v(S+16*t,16)}, {v(CA,4)}, v[20:23], {v(S+16*t,16)}")
    subm(0)
    vread(8, 0); vread(0, 1)
    P("s_cmp_eq_u32 s30, 0\ns_cbranch_scc1 L_xcc\nL_xcce:")
    tails.append(f"""L_xcc:
s_getreg_b32 s42, hwreg(HW_REG_XCC_ID)
s_and_b32 s42, s42, 15
s_add_u32 s42, s42, 1
v_mov_b32 v31, s42
s_lshl_b32 s46, s25, 5
s_add_u32 s46, s46, s26
s_lshl_b32 s46, s46, 2
s_add_u32 s46, s46, {L.FX_OFF}
v_mov_b32 v30, 0
s_mov_b64 exec, 1
buffer_store_dword v31, v30, s[20:23], s46 offen sc1
s_mov_b64 exec, -1
s_branch L_xcce""")
    pend = []
    firstpv = [True]
    def pv(vt, half, preg):
        def f():
            if half == 0: lg.wait(vid[vt])
            c = "0" if firstpv[0] else v(OA, 16); firstpv[0] = False
            P(f"v_mfma_f32_32x32x16_bf16 {v(OA,16)}, {v(VF+slot_of[vt]*8+4*half,4)}, {v(preg+4*half,4)}, {c}")
        return f
    D8 = S + 128
    for i, t in enumerate(order):
        base = S + 16*t
        ms = []
        if i + 1 < 8: ms.append(lambda tt=order[i+1]: (subm(tt), do_side()))
        ms += pend; pend = []
        nm = len(ms)
        pos = [int(k * 16 / nm) for k in range(nm)]
        for r in range(16):
            while pos and pos[0] == r:
                pos.pop(0); ms.pop(0)()
                if not pos and i + 1 < 8: vread(order[i+1], slot_of[order[i+1]]); do_side()
            P(f"v_exp_f32 v{base+r}, v{base+r}")
        if i == 5: fxp = vm.op(f"s_lshl_b32 s33, s25, 7\ns_add_u32 s33, s33, {L.FX_OFF}\nbuffer_load_dword v{MODEV}, v{FXV}, s[20:23], s33 offen sc1")
        for p in range(8): P(f"v_cvt_pk_bf16_f32 v{base+p}, v{base+2*p}, v{base+2*p+1}")
        if t == 0:
            for p in range(8): P(f"v_and_b32 v{D8+p}, v{PM+p}, v{base+p}\nv_bfi_b32 v{base+p}, v{PM+p}, 0, v{base+p}")
            pend = [pv(8, 0, D8), pv(8, 1, D8), pv(0, 0, base), pv(0, 1, base)]
        else:
            pend = [pv(t, 0, base), pv(t, 1, base)]
    assert not side, len(side)
    for f in pend: f()
    sa()
    P(f"""s_mul_i32 s41, s26, 5
v_add_u32 v8, s41, v14
v_lshrrev_b32 v9, 4, v13
v_mul_u32_u24 v9, 20480, v9
v_and_b32 v10, 15, v13
v_lshl_add_u32 v9, v10, 4, v9""")
    for b in range(3):
        P(f"v_add_u32 v10, {2*b}, v8\nv_lshrrev_b32 v11, 1, v10\nv_lshl_add_u32 v11, v11, 8, v9\nv_and_b32 v10, 1, v10\nv_lshl_add_u32 v{16+b}, v10, 3, v11")
    P("v_cmp_gt_u32 vcc, 32, v1\nv_mov_b32 v10, 0x7ffffff0\nv_cndmask_b32 v18, v10, v18, vcc")
    P(f"s_mul_i32 s41, s31, 40960\ns_add_u32 s41, s41, {L.O_OFF}")
    P("s_waitcnt vmcnt(0)")
    if FOCUS == 9: sa()
    poll_check(FXV, MODEV, "s33", 1)
    if FOCUS == 9: sa()
    P(f"v_readfirstlane_b32 s43, v{MODEV}\nv_rcp_f32 v28, v{OA+12}\nv_cmp_ne_u32 vcc, s43, v{MODEV}\nv_mov_b32 v29, v28\ns_cmp_lg_u32 vcc_lo, 0\ns_cselect_b32 s24, 1, 0")
    if opt.get("SAFE"): P("s_mov_b32 s24, 1")
    for p in range(6): P(f"v_pk_mul_f32 v[{OA+2*p}:{OA+2*p+1}], v[{OA+2*p}:{OA+2*p+1}], v[28:29]")
    for p in range(6): P(f"v_cvt_pk_bf16_f32 v{32+p}, v{OA+2*p}, v{OA+2*p+1}")
    store2(vm, [f"buffer_store_dwordx2 v[{32+2*b}:{33+2*b}], v{16+b}, s[20:23], s41 offen" for b in range(3)])
    P(f"s_lshl_b32 s43, s31, 5\ns_add_u32 s43, s43, s26\ns_lshl_b32 s43, s43, 2\ns_add_u32 s43, s43, {L.FO_OFF}\nv_mov_b32 v2, 0\nv_mov_b32 v7, 1")
    P("s_waitcnt vmcnt(0)\ns_mov_b64 exec, 1")
    store2(vm, ["buffer_store_dword v7, v2, s[20:23], s43 offen"])
    P("s_mov_b64 exec, -1")
    sa()
    P(f"v_and_b32 v254, 3, v1\nv_lshlrev_b32 v254, 2, v254\nv_add_u32 v254, {SY_LDS}, v254")
    P(f"s_and_b32 s43, s30, 3\ns_lshl_b32 s43, s43, 2\ns_add_u32 s43, s43, {SY_LDS}\nv_mov_b32 v255, s43")
    P("s_cmp_ge_u32 s30, 4\ns_cbranch_scc1 L_loader")

    st0 = Stamper(48, 16)
    def st():
        if FOCUS == 0: st0()
    def sf(ph):
        if FOCUS == ph: st0()
    ACC, BF, ST, ST1, ST3, HP, ACC4, CS, PK, AF, A4 = 16, 40, 68, 72, 76, 80, 92, 112, 132, 144, 224
    NA4 = 6
    SYA, SYW, SYD, SYV = 254, 255, 90, 91
    D = 6
    P(f"s_lshr_b32 s43, s29, 1\ns_lshl_b32 s43, s43, 7\ns_add_u32 s45, s43, {L.FO_OFF}\nbuffer_load_dword v15, v{L4V}, s[20:23], s45 offen sc1")
    P("s_mul_i32 s40, s29, 20480\ns_lshl_b32 s41, s35, 10\ns_add_u32 s41, s41, s40\ns_lshl_b32 s42, s36, 10\ns_add_u32 s42, s42, s40\ns_lshl_b32 s43, s37, 3\ns_add_u32 s42, s42, s43")
    P("v_add_u32 v8, 0x10000, v3\nv_add_u32 v9, 0x20000, v3")
    P(f"s_mul_i32 s46, s30, 3072\ns_add_u32 s46, s46, {XR_LDS}")
    P("v_and_b32 v5, 15, v1\nv_lshlrev_b32 v5, 6, v5\nv_lshrrev_b32 v6, 4, v1\nv_lshl_add_u32 v5, v6, 4, v5\nv_add_u32 v5, s46, v5\ns_lshl_b32 s43, s37, 3\nv_add_u32 v6, s43, v5")
    P(f"v_and_b32 v7, 0x30, v1\nv_add_u32 v7, {CS1_LDS}, v7")
    P(f"s_lshl_b32 s33, s29, 7\ns_add_u32 s33, s33, {L.FR_OFF}\ns_lshl_b32 s43, s28, 2\ns_add_u32 s34, s33, s43")
    P("v_and_b32 v14, 7, v1\nv_lshlrev_b32 v14, 2, v14")
    P(f"s_lshl_b32 s46, s29, 14\ns_add_u32 s46, s46, {L.GX_OFF}")
    def lds_off(stage, chunk):
        off = (stage % RING) * 20480 + chunk * 1024
        return (3 if off < 65536 else (8 if off < 131072 else 9)), off % 65536
    def unpack(dst, src, n):
        for i in range(n): P(f"v_lshlrev_b32 v{dst+2*i}, 16, v{src+i}\nv_and_b32 v{dst+2*i+1}, 0xffff0000, v{src+i}")
    def set_flag(vm, val):
        P(f"v_mov_b32 v4, {val}\ns_mov_b64 exec, 1")
        store2(vm, ["buffer_store_dword v4, v2, s[20:23], s34 offen"])
        P("s_mov_b64 exec, -1")
    cnt = [0]
    def rdw(lg, stage, chunk):
        ar, off = lds_off(stage, chunk)
        r = BF + (cnt[0] % (D + 1)) * 4; cnt[0] += 1
        return r, lg.op(f"ds_read_b128 {v(r,4)}, v{ar} offset:{off}")
    def free_sig(lg): lg.op(f"ds_write_b32 v{SYW}, v{SYV} offset:16")
    def rdy_read(lg): return lg.op(f"ds_read_b32 v{SYD}, v{SYA}")
    def stats_fin(R):
        P(f"v_add_f32 v{R}, v{R}, v{R+2}\nv_add_f32 v{R+1}, v{R+1}, v{R+3}")
        xg_reduce(P, [R, R+1], [R+2, R+3])
        P(f"v_mul_f32 v{R}, {f2u(1/640)}, v{R}\nv_mul_f32 v{R+1}, {f2u(1/640)}, v{R+1}\nv_fma_f32 v{R+1}, -v{R}, v{R}, v{R+1}\nv_max_f32 v{R+1}, 0, v{R+1}")
        P(f"v_add_f32 v{R+2}, {f2u(EPS)}, v{R+1}\nv_rsq_f32 v{R+2}, v{R+2}")
    def kloop(stage_chunk, tiles, aoff, vaddr_of_ks, accinit, frees, stat=None, ph=0, post=None):
        vm = VM(P); lg = LG(P)
        ids = {}
        def aload(ks):
            if ks % 4 == 0: P(f"s_add_u32 s43, s40, {aoff + ks*1024}")
            ids[ks] = vm.op(f"buffer_load_dwordx4 {v(AF+4*ks,4)}, v{vaddr_of_ks(ks)}, s[20:23], s43 offen offset:{(ks%4)*1024} sc1")
        sf(ph)
        for ks in range(PRE): aload(ks)
        sf(ph)
        nt = len(tiles)
        items = [(ks, t) for ks in range(20) for t in tiles]
        N = len(items)
        rr = []
        def rd(n):
            ks, t = items[n]
            if t == tiles[0] and ks in frees: free_sig(lg)
            rr.append(rdw(lg, *stage_chunk(ks, t)))
            if n == N - 1 and 20 in frees: free_sig(lg)
        for n in range(D): rd(n)
        for n, (ks, t) in enumerate(items):
            if n + D < N: rd(n + D)
            if t == tiles[0]:
                if ks + PRE < 20: aload(ks + PRE)
                if stat and ks == 3: sp = vm.op("buffer_load_dword v15, v14, s[20:23], s33 offen sc1")
                if stat and ks == 9:
                    vm.wait(sp); poll_check(14, 15, "s33", stat[0])
                    sl = vm.op(f"s_add_u32 s44, s46, {stat[2]}\nbuffer_load_dwordx4 {v(stat[1],4)}, v3, s[20:23], s44 offen sc1")
                P(f"s_waitcnt vmcnt({vm.cnt(ids[ks])}) lgkmcnt({lg.cnt(rr[n][1])})")
                if ks in (0, 1, 2, 4, 8, 12, 16): sf(ph)
                for fk, fv in frees.items():
                    if ks == fk - 3: P(f"v_mov_b32 v{SYV}, {fv}")
            else:
                lg.wait(rr[n][1])
            a = ACC + 4 * tiles.index(t)
            P(f"v_mfma_f32_16x16x32_bf16 {v(a,4)}, {v(rr[n][0],4)}, {v(AF+4*ks,4)}, {v(a,4) if (accinit or ks > 0) else '0'}")
        sf(ph)
        return vm, lg
    def pack(dst, src, n):
        for i in range(n): P(f"v_cvt_pk_bf16_f32 v{dst+i}, v{src+2*i}, v{src+2*i+1}")
    def tile_then_stats(pk, off, stoff, f1):
        vm = VM(P)
        P(f"s_add_u32 s43, s41, {off}\ns_add_u32 s44, s42, {off}")
        store2(vm, [f"buffer_store_dwordx4 {v(pk,4)}, v3, s[20:23], s43 offen", f"buffer_store_dwordx4 {v(pk+4,4)}, v3, s[20:23], s43 offen offset:1024", f"buffer_store_dwordx2 {v(pk+8,2)}, v3, s[20:23], s44 offen"])
        P(f"v_mov_b32 v10, 0\nv_mov_b32 v11, 0\nv_mov_b32 v12, {ONES}")
        for i in range(10): P(f"v_dot2c_f32_bf16 v10, v{pk+i}, v12\nv_dot2c_f32_bf16 v11, v{pk+i}, v{pk+i}")
        xg_reduce(P, [10, 11], [12, 13])
        P(f"s_lshr_b32 s44, s28, 1\ns_lshl_b32 s44, s44, 8\ns_add_u32 s43, s46, s44\ns_lshl_b32 s44, s37, 3\ns_add_u32 s43, s43, s44\ns_add_u32 s43, s43, {stoff}")
        sf(8)
        P("s_waitcnt vmcnt(0)")
        sf(8)
        set_flag(vm, f1)
        P("s_mov_b64 exec, 0xffff")
        store2(vm, ["buffer_store_dwordx2 v[10:11], v3, s[20:23], s43 offen"])
        P("s_mov_b64 exec, -1")
    kk = 2 * 0.7978845608028654 * LOG2E
    def gelu_items(a0, c0, n, STR, pk):
        Lx = []
        pr = range(0, n, 2)
        for i in pr: Lx.append(f"v_pk_mul_f32 {v(c0+i,2)}, {v(c0+i,2)}, {v(STR,2)}")
        for i in pr: Lx.append(f"v_pk_fma_f32 {v(a0+i,2)}, {v(a0+i,2)}, {v(STR+2,2)}, {v(c0+i,2)} neg_lo:[0,0,1] neg_hi:[0,0,1]")
        for i in pr: Lx.append(f"v_pk_mul_f32 {v(c0+i,2)}, {v(a0+i,2)}, {v(a0+i,2)}")
        for i in pr: Lx.append(f"v_pk_fma_f32 {v(c0+i,2)}, {v(c0+i,2)}, v[10:11], v[12:13]")
        for i in pr: Lx.append(f"v_pk_mul_f32 {v(c0+i,2)}, {v(c0+i,2)}, {v(a0+i,2)}")
        for i in range(n): Lx.append(f"v_exp_f32 v{c0+i}, v{c0+i}")
        for i in pr: Lx.append(f"v_pk_add_f32 {v(c0+i,2)}, {v(c0+i,2)}, 1.0 op_sel_hi:[1,0]")
        for i in range(n): Lx.append(f"v_rcp_f32 v{c0+i}, v{c0+i}")
        for i in pr: Lx.append(f"v_pk_mul_f32 {v(a0+i,2)}, {v(a0+i,2)}, {v(c0+i,2)}")
        for i in pr: Lx.append(f"v_cvt_pk_bf16_f32 v{pk+i//2}, v{a0+i}, v{a0+i+1}")
        return Lx
    def gelu_consts():
        P(f"v_mov_b32 v10, {f2u(-kk*0.044715)}\nv_mov_b32 v11, v10\nv_mov_b32 v12, {f2u(-kk)}\nv_mov_b32 v13, v12")
    small = lambda b: (lambda ks, t: (b + ks // 4, (ks % 4) * 5 + t))
    T5 = [0, 1, 2, 3, 4]

    P(f"ds_read_b128 {v(HP,4)}, v5\nds_read_b128 {v(HP+4,4)}, v5 offset:1024\nds_read_b64 {v(HP+8,2)}, v6 offset:2048\ns_waitcnt lgkmcnt(0)")
    unpack(ACC, HP, 10)
    P("s_barrier")
    P("s_waitcnt vmcnt(0)")
    poll_check(L4V, 15, "s45", 1)
    st()
    kloop(small(0), T5, L.O_OFF, lambda ks: 3, True, {12: 3, 20: 5}, ph=1)
    st()
    sf(8)
    pack(HP, ACC, 10)
    tile_then_stats(HP, L.H_OFF, 14336, 1)
    st(); sf(8)
    P("buffer_load_dword v15, v14, s[20:23], s33 offen sc1")
    P(f"ds_read_b32 v{SYD}, v{SYA}\ns_waitcnt vmcnt(1)")
    sf(8)
    vm = VM(P); set_flag(vm, 2)
    P("s_waitcnt lgkmcnt(0)")
    lds_check(SYA, SYD, 0, 10)
    sf(8)
    for t in range(5): P(f"ds_read_b128 {v(CS+4*t,4)}, v7 offset:{t*64}")
    P("s_waitcnt vmcnt(1) lgkmcnt(0)")
    sf(8)
    poll_check(14, 15, "s33", 1)
    st(); sf(8)
    kloop(small(5), T5, L.H_OFF, lambda ks: 3, False, {12: 8, 20: 10}, stat=(2, ST1, 14336), ph=2)
    st()
    stats_fin(ST1)
    P(f"v_mul_f32 v{ST}, v{ST1+1}, v{ST1+2}\nv_mov_b32 v{ST+1}, {f2u(EPS)}\nv_fma_f32 v{ST}, v{ST}, v{ST1+2}, v{ST+1}\nv_rsq_f32 v{ST}, v{ST}")
    gelu_consts()
    P(f"v_mul_f32 v{ST+2}, v{ST}, v{ST1+2}\nv_mul_f32 v{ST}, v{ST1}, v{ST+2}\nv_mov_b32 v{ST+3}, v{ST+2}\nv_mov_b32 v{ST+1}, v{ST}")
    for l in gelu_items(ACC, CS, 20, ST, PK): P(l)
    P("s_lshr_b32 s43, s28, 2\ns_add_u32 s43, s43, 1\ns_sub_u32 s44, 0, s43\ns_bitcmp1_b32 s28, 1\ns_cselect_b32 s43, s44, s43")
    P("s_lshl_b32 s44, s29, 4\ns_add_u32 s44, s44, s43\nv_and_b32 v10, 15, v1\nv_add_u32 v10, s44, v10")
    P("v_ashrrev_i32 v12, 8, v10\nv_cmp_eq_u32 vcc, s25, v12\nv_cmp_gt_u32 s[26:27], 8, v12")
    P("v_lshrrev_b32 v11, 4, v10\nv_mul_u32_u24 v11, 20480, v11\nv_and_b32 v10, 15, v10\nv_lshl_add_u32 v11, v10, 4, v11\nv_and_b32 v10, 0x30, v1\nv_lshl_add_u32 v11, v10, 4, v11")
    P(f"s_sub_u32 s43, s41, s40\ns_sub_u32 s44, s42, s40\ns_add_u32 s43, s43, {L.T_OFF}\ns_add_u32 s44, s44, {L.T_OFF}")
    P("s_andn2_b64 s[26:27], s[26:27], vcc\ns_mov_b64 exec, vcc")
    vm = VM(P)
    tl = [f"buffer_store_dwordx4 {v(PK,4)}, v11, s[20:23], s43 offen", f"buffer_store_dwordx4 {v(PK+4,4)}, v11, s[20:23], s43 offen offset:1024", f"buffer_store_dwordx2 {v(PK+8,2)}, v11, s[20:23], s44 offen"]
    store2(vm, tl)
    P("s_cmp_lg_u64 s[26:27], 0\ns_cbranch_scc1 L_halo\nL_haloe:\ns_mov_b64 exec, -1")
    tails.append(f"L_halo:\ns_mov_b64 exec, s[26:27]\ns_add_u32 s43, s43, {L.TH_OFF - L.T_OFF}\ns_add_u32 s44, s44, {L.TH_OFF - L.T_OFF}\n" + "\n".join(l + " sc1" for l in tl) + "\ns_nop 1\ns_branch L_haloe")
    P(f"v_mul_f32 v{ST1}, v{ST1}, v{ST1+2}\nv_mov_b32 v{ST1+3}, v{ST1+2}\nv_mov_b32 v{ST1+1}, v{ST1}")
    P(f"""s_and_b32 s43, s29, 15
s_cmp_eq_u32 s43, 0
s_cselect_b32 s44, {L.FHL_OFF - L.FR_OFF}, 0
s_sub_u32 s44, s44, 128
s_cmp_eq_u32 s29, 0
s_cselect_b32 s44, 0, s44
s_cmp_eq_u32 s43, 15
s_cselect_b32 s45, {L.FHL_OFF - L.FR_OFF}, 0
s_add_u32 s45, s45, 128
s_cmp_eq_u32 s29, 127
s_cselect_b32 s45, 0, s45
s_add_u32 s44, s44, s33
s_add_u32 s45, s45, s33
v_bfe_u32 v10, v1, 3, 2
v_mov_b32 v13, s33
v_mov_b32 v12, s44
v_cmp_eq_u32 vcc, 1, v10
v_cndmask_b32 v13, v13, v12, vcc
v_mov_b32 v12, s45
v_cmp_eq_u32 vcc, 2, v10
v_cndmask_b32 v13, v13, v12, vcc
v_add_u32 v228, v13, v14
s_waitcnt vmcnt(0)""")
    set_flag(vm, 3)
    P("s_add_u32 s44, s29, 1\ns_and_b32 s44, s44, 14\ns_cmp_eq_u32 s44, 0\ns_cbranch_scc1 L_hf\nL_hfe:")
    tails.append(f"L_hf:\ns_add_u32 s44, s34, {L.FHL_OFF - L.FR_OFF}\ns_mov_b64 exec, 1\nbuffer_store_dword v4, v2, s[20:23], s44 offen sc1\ns_mov_b64 exec, -1\ns_branch L_hfe")
    st()
    P(f"buffer_load_dword v15, v228, s[20:23], 0 offen sc1\nds_read_b32 v{SYD}, v{SYA}")
    P(f"""s_cmp_eq_u32 s43, 0
s_cselect_b32 s44, {L.TH_OFF - L.T_OFF}, 0
s_cmp_eq_u32 s29, 0
s_cselect_b32 s44, 0x40000000, s44
s_cmp_eq_u32 s43, 15
s_cselect_b32 s45, {L.TH_OFF - L.T_OFF}, 0
s_cmp_eq_u32 s29, 127
s_cselect_b32 s45, 0x40000000, s45
v_and_b32 v10, 15, v1
v_add_u32 v11, s44, v3
v_add_u32 v12, s45, v3
v_cmp_gt_u32 vcc, 1, v10
v_cndmask_b32 v224, v3, v11, vcc
v_cmp_lt_u32 vcc, 14, v10
v_cndmask_b32 v225, v3, v12, vcc
v_cmp_gt_u32 vcc, 2, v10
v_cndmask_b32 v226, v3, v11, vcc
v_cmp_lt_u32 vcc, 13, v10
v_cndmask_b32 v227, v3, v12, vcc""")
    unpack(ACC4, HP, 10)
    for i in range(0, 20, 2):
        P(f"v_pk_fma_f32 {v(ACC+i,2)}, {v(ACC4+i,2)}, {v(ST1+2,2)}, {v(ST1,2)} neg_lo:[0,0,1] neg_hi:[0,0,1]")
    P("s_waitcnt lgkmcnt(0)")
    lds_check(SYA, SYD, 0, 15)
    P("s_waitcnt vmcnt(0)")
    poll_check(228, 15, "0", 3)
    st()
    kloop(small(10), T5, L.T_OFF, lambda ks: 224 + ks // 5, True, {12: 13, 20: 15}, ph=3)
    st()
    pack(PK, ACC, 10)
    tile_then_stats(PK, L.X1_OFF, 15360, 4)
    st()
    P("buffer_load_dword v15, v14, s[20:23], s33 offen sc1")
    P(f"ds_read_b32 v{SYD}, v{SYA}")
    unpack(CS, PK, 10)
    for i in range(0, 20, 2): P(f"v_pk_add_f32 {v(ACC4+i,2)}, {v(ACC4+i,2)}, {v(CS+i,2)}")
    P("s_waitcnt vmcnt(1)")
    vm = VM(P); set_flag(vm, 5)
    gelu_consts()
    P(f"v_add_u32 v7, {CS3_LDS - CS1_LDS}, v7\ns_lshl_b32 s45, s28, 10\ns_waitcnt lgkmcnt(0)")
    sf(8)
    lds_check(SYA, SYD, 0, 19)
    sf(8)
    for i in range(4): P(f"ds_read_b128 {v(CS+4*i,4)}, v7 offset:{i*64}")
    P("s_waitcnt vmcnt(1) lgkmcnt(0)")
    sf(8)
    poll_check(14, 15, "s33", 4)
    st(); sf(8)
    vm, lg = kloop(lambda ks, t: (15 + t, ks), [0, 1, 2, 3], L.X1_OFF, lambda ks: 3, False, {20: 19}, stat=(5, ST3, 15360), ph=4)
    def a4reg(p):
        i = p % (NA4 + 20)
        return A4 + 4*i if i < NA4 else AF + 4*(i - NA4)
    ids4 = {}
    def a4load(p):
        if p % 4 == 0:
            if p < 20: P(f"s_add_u32 s44, s40, {L.K_OFF + p*1024}")
            elif p < 40: P(f"s_add_u32 s44, s40, {L.V_OFF + (p-20)*1024}")
            else: P(f"s_add_u32 s44, s46, {(p-40)*1024}")
        ids4[p] = vm.op(f"buffer_load_dwordx4 {v(a4reg(p),4)}, v3, s[20:23], s44 offen offset:{(p%4)*1024} sc1")
    gst = {}
    def gstore(q):
        if q < 2: P(f"s_add_u32 s43, s45, s40\ns_add_u32 s43, s43, {L.K_OFF + q*8192}")
        elif q == 2: P(f"s_cmp_ge_u32 s28, 4\ns_mov_b32 s43, {L.K_OFF + 16384}\ns_cmov_b32 s43, {L.V_OFF - 4096}\ns_add_u32 s43, s43, s45\ns_add_u32 s43, s43, s40")
        elif q < 5: P(f"s_add_u32 s43, s45, s40\ns_add_u32 s43, s43, {L.V_OFF + q*8192 - 20480}")
        elif q == 5: P("s_add_u32 s43, s45, s46")
        else: P(f"s_add_u32 s43, s45, s46\ns_add_u32 s43, s43, 8192\ns_cmp_ge_u32 s28, 6\ns_cmov_b32 s43, {L.DUMMY_OFF}")
        gst[q] = store2(vm, [f"buffer_store_dwordx4 {v(PK+4*(q%2),4)}, v3, s[20:23], s43 offen"])
    items4 = [(p, t) for p in range(54) for t in range(5)]
    N4 = len(items4)
    groups = [[0, 1, 2, 3]] + [[t, t + 1] for t in range(4, 14, 2)]
    ry = rdy_read(lg)
    stats_fin(ST3)
    P(f"v_mul_f32 v{ST3}, v{ST3}, v{ST3+2}\nv_mov_b32 v{ST3+3}, v{ST3+2}\nv_mov_b32 v{ST3+1}, v{ST3}")
    rr4 = []
    r4y = {}
    def rd4(n):
        p, t = items4[n]
        sg = 29 + p // 4
        if p % 8 == 0 and t == 0 and p > 0:
            free_sig(lg)
            lg.wait(r4y[sg]); lds_check(SYA, SYD, 0, min(sg + 2, NSTG))
        if p % 8 == 6 and t == 0 and p + 2 < 54: r4y[sg + 1] = rdy_read(lg)
        rr4.append(rdw(lg, sg, (p % 4) * 5 + t))
    for gi, g in enumerate(groups):
        if gi in (2, 3): sf(5)
        lg.wait(ry)
        if gi + 1 < len(groups):
            gn = groups[gi + 1]
            lds_check(SYA, SYD, 0, 15 + gn[-1] + 1)
            its = [(ks, t) for ks in range(20) for t in gn]
            rr = [rdw(lg, 15 + t, ks) for ks, t in its[:D]]
        else:
            st()
            lds_check(SYA, SYD, 0, 31)
            for n in range(D): rd4(n)
            vm.wait(poll1); poll_check(14, 15, "s33", 6)
            for p in range(PRE4): a4load(p)
        if gi in (2, 3): sf(5)
        for l in gelu_items(ACC, CS, 4*len(g), ST3, PK + 4*((g[0]//2) % 2)): P(l)
        if gi in (2, 3): sf(5)
        for t in g[1::2]: gstore(t // 2)
        if gi + 1 == len(groups): break
        P(f"v_mov_b32 v{SYV}, {15 + gn[-1] + 1}")
        if gi in (2, 3): sf(5)
        for n, (ks, t) in enumerate(its):
            if n + D < 40:
                rr.append(rdw(lg, 15 + its[n + D][1], its[n + D][0]))
                if n + D == 39: free_sig(lg); ry = rdy_read(lg)
            if n == 8:
                for i, tt in enumerate(gn): lg.op(f"ds_read_b128 {v(CS+4*i,4)}, v7 offset:{tt*64}")
            lg.wait(rr[n][1])
            acc = ACC + 4 * gn.index(t)
            P(f"v_mfma_f32_16x16x32_bf16 {v(acc,4)}, {v(rr[n][0],4)}, {v(AF+4*ks,4)}, {'0' if ks == 0 else v(acc,4)}")
            if gi == 4 and n == 0:
                vm.wait(gst[4]); set_flag(vm, 6)
            if gi == 4 and n == 22: poll1 = vm.op("buffer_load_dword v15, v14, s[20:23], s33 offen sc1")
    st()
    for n, (p, t) in enumerate(items4):
        if n + D < N4: rd4(n + D)
        if t == 0:
            if p == 3:
                vm.wait(gst[6]); set_flag(vm, 7)
            if p == 20: poll2 = vm.op("buffer_load_dword v15, v14, s[20:23], s33 offen sc1")
            if p + PRE4 == 40:
                vm.wait(poll2); poll_check(14, 15, "s33", 7)
            if p + PRE4 < 54: a4load(p + PRE4)
            P(f"s_waitcnt vmcnt({vm.cnt(ids4[p])}) lgkmcnt({lg.cnt(rr4[n][1])})")
            if p % 8 == 4: P(f"v_mov_b32 v{SYV}, {29 + p // 4 + 1}")
        else: lg.wait(rr4[n][1])
        P(f"v_mfma_f32_16x16x32_bf16 {v(ACC4+4*t,4)}, {v(rr4[n][0],4)}, {v(a4reg(p),4)}, {v(ACC4+4*t,4)}")
    st()
    P(f"s_mul_i32 s46, s30, 3072\ns_add_u32 s46, s46, {XR_LDS}\nv_add_u32 v10, s46, v3")
    P("s_lshl_b32 s43, s35, 6\ns_add_u32 s43, s43, s40\ns_lshl_b32 s44, s36, 6\ns_add_u32 s44, s44, s40\ns_lshl_b32 s45, s37, 3\ns_add_u32 s44, s44, s45")
    pack(PK, ACC4, 10)
    P(f"ds_write_b128 v5, {v(PK,4)}\nds_write_b128 v5, {v(PK+4,4)} offset:1024\nds_write_b64 v5, {v(PK+8,2)} offset:2048")
    P(f"ds_read_b128 {v(CS,4)}, v10\nds_read_b128 {v(CS+4,4)}, v10 offset:1024\nds_read_b64 {v(CS+8,2)}, v10 offset:2048")
    P(f"s_waitcnt lgkmcnt(2)\nbuffer_store_dwordx4 {v(CS,4)}, v{RMV}, s[16:19], s43 offen\ns_waitcnt lgkmcnt(1)\nbuffer_store_dwordx4 {v(CS+4,4)}, v{RMV}, s[16:19], s43 offen offset:64\ns_waitcnt lgkmcnt(0)\nbuffer_store_dwordx2 {v(CS+8,2)}, v{RMV}, s[16:19], s44 offen")
    if DBG:
        P("s_waitcnt vmcnt(0)"); st0()
        P(f"s_cmp_lg_u32 s2, {DBG}\ns_cbranch_scc1 L_end\ns_cmp_lg_u32 s30, 0\ns_cbranch_scc1 L_end\ns_load_dwordx2 s[4:5], s[0:1], 72\ns_waitcnt lgkmcnt(0)")
        P(f"s_mov_b32 s12, s4\ns_and_b32 s13, s5, 0xffff\ns_mov_b32 s14, 256\ns_mov_b32 s15, 0x20000\nv_mov_b32 v39, {L.DUMMY_OFF + 2048}\nbuffer_load_dwordx4 v[52:55], v39, s[20:23], 0 offen\nbuffer_load_dwordx2 v[56:57], v39, s[20:23], 0 offen offset:16\ns_waitcnt vmcnt(0)\nv_mov_b32 v39, 0")
        regs = [80, 82, 84, 90, 48, 54, 60, 66, 70, 48 + 2*(st0.i-1)]
        for i, r in enumerate(regs): P(f"v_mov_b32 v{40+i}, s{r}")
        P("s_mov_b64 exec, 1\nbuffer_store_dwordx4 v[52:55], v39, s[12:15], 0 offen\nbuffer_store_dwordx2 v[56:57], v39, s[12:15], 0 offen offset:16\nbuffer_store_dwordx2 v[40:41], v39, s[12:15], 0 offen offset:24\nbuffer_store_dwordx4 v[42:45], v39, s[12:15], 0 offen offset:32\nbuffer_store_dwordx4 v[46:49], v39, s[12:15], 0 offen offset:48")
    if STAMP:
        P("s_waitcnt vmcnt(0)"); st0()
        stamp_dump([80 + 2*i for i in range(sa.i)] + [48 + 2*i for i in range(st0.i)])
    P("s_endpgm")

    P("L_loader:")
    P("s_sub_u32 s43, s30, 4\ns_mul_i32 s39, s43, 5120\ns_add_u32 s38, s32, s39")
    P(f"""s_cmp_ge_u32 s30, 6
s_cbranch_scc1 L_nocs
s_mul_i32 s44, s28, 320
s_add_u32 s44, s44, {L.CS1_OFF}
s_mov_b32 s45, 2560
s_mov_b32 s46, {CS1_LDS}
s_cmp_eq_u32 s30, 4
s_cbranch_scc1 L_cs1
s_mul_i32 s44, s28, 7
s_cmp_eq_u32 s28, 7
s_subb_u32 s44, s44, 0
s_lshl_b32 s44, s44, 7
s_add_u32 s44, s44, {L.CS3_OFF}
s_mov_b32 s45, 8192
s_mov_b32 s46, {CS3_LDS}
L_cs1:""")
    for i in range(4): P(f"buffer_load_dwordx4 {v(16+4*i,4)}, v3, s[20:23], s44 offen\ns_add_u32 s44, s44, s45")
    P("L_nocs:\ns_barrier")
    P("s_cmp_ge_u32 s30, 6\ns_cbranch_scc1 L_nocs2\nv_add_u32 v8, s46, v3\ns_waitcnt vmcnt(0)")
    for r in range(4): P(f"v_add_f32 v{16+r}, v{16+r}, v{20+r}\nv_add_f32 v{24+r}, v{24+r}, v{28+r}")
    for r in range(4): P(f"v_add_f32 v{16+r}, v{16+r}, v{24+r}")
    P("ds_write_b128 v8, v[16:19]\nL_nocs2:")
    sl = Stamper(48, 16)
    vm = VM(P); last = {}
    pub = [5]
    def issue(sg, thin=False):
        slot = (sg % RING) * 20480
        for i in range(5):
            if i % 4 == 0: P(f"s_add_u32 m0, s39, {slot + i*1024}\ns_add_u32 s43, s38, {sg*20480 + i*1024}")
            if thin: P(f"s_waitcnt vmcnt({THIN})")
            last[sg] = vm.op(f"buffer_load_dwordx4 v3, s[20:23], s43 offen offset:{(i%4)*1024} lds")
    def publish(upto):
        P(f"v_mov_b32 v10, {upto}"); vm.wait(last[upto - 1]); P("ds_write_b32 v255, v10")
    def wait_free(n):
        P("ds_read_b32 v11, v254 offset:16\ns_waitcnt lgkmcnt(0)"); lds_check(254, 11, 16, n, 's_sleep 1\n')
    issue(5, True); issue(6, True)
    for ph in range(3):
        b = 5 * ph
        wait_free(b + 3)
        for sg in range(b + 7, b + 10): issue(sg)
        publish(b + 10)
        wait_free(b + 5)
        issue(b + 10, True); issue(b + 11, True)
    publish(22)
    nxt = 22
    fr = [19, 21, 23, 25, 27, 29, 31, 33, 35, 37]
    for f in fr:
        if nxt >= NSTG: break
        sl(); wait_free(f);
        first = nxt
        while nxt < NSTG and nxt - RING < f:
            issue(nxt); nxt += 1
            if nxt - first == 2 and nxt < NSTG and nxt - RING < f: publish(nxt - 1)
        publish(nxt - 1)
    publish(NSTG)
    if STAMP:
        sl()
        stamp_dump(([80 + 2*i for i in range(sa.i)] if FOCUS == 9 else [80, 80]) + [48 + 2*i for i in range(sl.i)])
    P("L_end:\ns_endpgm")
    for t in tails: P(t)
    P("L_code_end:")
    return (name, 256, 512, LDS_TOTAL, 256)
```

```python
from asmlib import *
from gen1 import f2u, LOG2E, ONES, EPS, ARG, SZ, srd, header, xg_reduce

def gen_k1(P, L, opt):
    name = "qkv_kernel"
    STAMP = opt.get("STAMP", False)
    PI = opt.get("PI", 4)
    NTF = " nt" if opt.get("PREP_NT", 1) else ""
    ROT = opt.get("ROT", 1)
    FL = ["", " sc1", " nt", " sc0 sc1"]
    PSF = FL[opt.get("PSF", 0)]; QSF = FL[opt.get("QSF", 0)]
    PP = opt.get("PP", 10)
    header(P, name)
    PB = 131072
    STAT = PB + 24576
    sn = [0]
    DBG = opt.get("DBG", 0)
    def stamp():
        if DBG:
            P(f"s_memrealtime s[{70+2*sn[0]}:{71+2*sn[0]}]"); sn[0] += 1
        if STAMP:
            P(f"s_memtime s[{70+2*sn[0]}:{71+2*sn[0]}]"); sn[0] += 1
    def stamp_out():
        if DBG:
            e = f"L_dbg{len(P.items)}"
            P("s_waitcnt vmcnt(0)"); stamp()
            P(f"s_cmp_lg_u32 s2, {DBG}\ns_cbranch_scc1 {e}\ns_cmp_lg_u32 s30, 0\ns_cbranch_scc1 {e}\ns_waitcnt lgkmcnt(0)")
            P(f"v_mov_b32 v39, {L.DUMMY_OFF + 2048}")
            for i, k in enumerate((0, 1, 2, 6, 9, sn[0]-1)): P(f"v_mov_b32 v{40+i}, s{70+2*min(k, sn[0]-1)}")
            P(f"s_mov_b64 exec, 1\nbuffer_store_dwordx4 v[40:43], v39, s[20:23], 0 offen\nbuffer_store_dwordx2 v[44:45], v39, s[20:23], 0 offen offset:16\n{e}:")
        if not STAMP: return
        P("s_waitcnt vmcnt(0)"); stamp()
        P("s_waitcnt lgkmcnt(0)\nv_mov_b32 v40, s100\ns_memrealtime s[100:101]\ns_waitcnt lgkmcnt(0)\nv_mov_b32 v41, s100\nv_mov_b32 v39, 0")
        for i in range(14): P(f"v_mov_b32 v{42+i}, s{70+2*min(i, sn[0]-1)}")
        P(f"s_mov_b32 s22, 0x8000000\ns_lshl_b32 s43, s2, 3\ns_add_u32 s43, s43, s30\ns_lshl_b32 s43, s43, 7\ns_add_u32 s43, s43, {0x4000000 + 0x100000}\ns_mov_b64 exec, 1")
        for i in range(4): P(f"buffer_store_dwordx4 v[{40+4*i}:{43+4*i}], v39, s[20:23], s43 offen offset:{16*i}")
    P("s_cmp_ge_u32 s2, 256\ns_cbranch_scc1 L_k1_end")
    if STAMP: P("s_memrealtime s[100:101]")
    stamp()
    P(f"s_load_dwordx4 s[4:7], s[0:1], 0\ns_load_dwordx2 s[8:9], s[0:1], {ARG['ws']}\ns_load_dwordx2 s[10:11], s[0:1], {ARG['wo']}\ns_load_dwordx8 s[56:63], s[0:1], {ARG['w1']}")
    P("v_and_b32 v1, 63, v0\nv_lshrrev_b32 v2, 6, v0\nv_readfirstlane_b32 s30, v2")
    P("""s_and_b32 s25, s2, 7
s_lshr_b32 s26, s2, 3
s_and_b32 s27, s26, 3
s_lshr_b32 s28, s26, 2
s_lshr_b32 s31, s25, 1
s_lshl_b32 s31, s31, 2
s_add_u32 s31, s31, s27
s_and_b32 s32, s25, 1
s_lshl_b32 s32, s32, 3
s_add_u32 s32, s32, s28""")
    P("s_cmp_ge_u32 s30, 4\ns_cbranch_scc1 L_k1_helper")
    if opt.get("CPF", 1):
        NSEG = opt.get("NSEG", 8)
        P(f"""s_getpc_b64 s[48:49]
L_pc0:
s_sub_u32 s48, s48, L_pc0-qkv_kernel
s_subb_u32 s49, s49, 0
s_lshl_b32 s50, s26, 2
s_add_u32 s50, s50, s30
s_cmp_ge_u32 s50, {NSEG}
s_cbranch_scc1 L_nocpf
s_lshl_b32 s50, s50, 13
v_lshl_add_u32 v60, v1, 7, s50
v_min_u32 v60, L_code_end-qkv_kernel-4, v60
v_mov_b32 v61, s49
v_add_co_u32 v60, vcc, s48, v60
v_addc_co_u32 v61, vcc, 0, v61, vcc
global_load_dword v62, v[60:61], off
L_nocpf:""")
    P("s_cmp_eq_u32 s32, 15\ns_cbranch_scc1 L_k1_spare_c")
    P("s_lshr_b32 s34, s30, 1\ns_and_b32 s35, s30, 1")
    P("""v_and_b32 v36, 31, v1
v_lshrrev_b32 v39, 5, v1
s_lshl_b32 s41, s34, 6
v_add_u32 v10, s41, v36
v_bfe_u32 v11, v10, 1, 3
v_xor_b32 v11, v11, v39
v_lshlrev_b32 v11, 4, v11
v_lshl_add_u32 v20, v10, 7, v11
s_lshl_b32 s41, s35, 12
v_add_u32 v20, s41, v20""")
    for kk in range(1, 4): P(f"v_xor_b32 v{20+kk}, {kk*32}, v20")
    for kk in range(4): P(f"v_add_u32 v{24+kk}, 0x10000, v{20+kk}")
    for kk in range(8): P(f"v_xor_b32 v{40+kk}, 0x1000, v{20+kk}")
    P("""v_bfe_u32 v10, v1, 2, 2
v_lshl_add_u32 v11, v39, 3, v10
v_lshlrev_b32 v11, 8, v11
v_bfe_u32 v12, v1, 4, 1
v_lshl_add_u32 v11, v12, 5, v11
v_and_b32 v12, 3, v1
v_lshl_add_u32 v11, v12, 3, v11
s_lshl_b32 s41, s35, 1
s_add_u32 s41, s41, s34
v_xor_b32 v12, s41, v10
v_lshl_add_u32 v28, v12, 6, v11
v_xor_b32 v29, 64, v28
v_add_u32 v30, 0x10000, v28
v_add_u32 v31, 0x10000, v29""")
    ACC, FX, FW, SEL, CSA, AD = 64, 128, 144, 4, 32, 224
    P(f"v_and_b32 v10, 15, v1\nv_bfe_u32 v11, v1, 4, 1\nv_cmp_eq_u32 vcc, v10, v11\nv_mov_b32 v10, {ONES}")
    for i in range(4): P(f"v_cndmask_b32 v{SEL+i}, 0, v10, vcc")
    P("""s_lshl_b32 s43, s31, 2
s_lshl_b32 s44, s34, 1
s_add_u32 s43, s43, s44
s_add_u32 s43, s43, s35
s_lshr_b32 s44, s43, 3
s_mul_i32 s44, s44, 327680
s_and_b32 s45, s43, 7
s_xor_b32 s46, s45, 1
s_mul_i32 s45, s45, 1280
s_mul_i32 s46, s46, 1280
s_add_u32 s45, s45, s44
s_add_u32 s46, s46, s44""")
    P("s_waitcnt lgkmcnt(0)")
    srd(P, 20, 8, L.WS_USED)
    P("s_cmp_ge_u32 s32, 10\ns_cbranch_scc1 L_k1_v")
    for variant in ("qk", "v"):
        if variant == "v":
            P("L_k1_v:")
            sn[0] = 1
            P(f"s_sub_u32 s41, s32, 10\ns_lshl_b32 s41, s41, 7\ns_lshl_b32 s42, s35, 6\ns_add_u32 s41, s41, s42\ns_lshl_b32 s42, s34, 5\ns_add_u32 s41, s41, s42\ns_add_u32 s45, s45, {L.V_OFF}\ns_add_u32 s46, s46, {L.V_OFF}")
            for ct in range(2):
                P(f"v_add_u32 v10, s41, v36\nv_xor_b32 v10, {32*ct}, v10\nv_mul_u32_u24 v11, 52429, v10\nv_lshrrev_b32 v11, 20, v11\nv_mul_u32_u24 v11, {10240-320}, v11\nv_lshl_add_u32 v11, v10, 4, v11\nv_mul_u32_u24 v12, 320, v39\nv_add_u32 v{AD+ct}, v11, v12")
        else:
            P(f"s_cmp_ge_u32 s32, 5\ns_cselect_b32 s42, 5, 0\ns_cselect_b32 s47, {L.K_OFF}, {L.Q_OFF}\ns_sub_u32 s41, s32, s42\ns_lshl_b32 s41, s41, 5\ns_lshl_b32 s42, s35, 4\ns_add_u32 s41, s41, s42\ns_lshl_b32 s42, s34, 3\ns_add_u32 s41, s41, s42\ns_add_u32 s45, s45, s47\ns_add_u32 s46, s46, s47")
            for ct in range(2):
                for b in range(4):
                    P(f"v_add_u32 v10, s41, v39\nv_xor_b32 v10, {8*ct}, v10\nv_add_u32 v10, {2*b}, v10\nv_mul_u32_u24 v11, 52429, v10\nv_lshrrev_b32 v11, 18, v11\nv_mul_u32_u24 v11, {10240-1280}, v11\nv_lshl_add_u32 v11, v10, 8, v11\nv_lshl_add_u32 v{AD+ct*4+b}, v36, 3, v11")
        def reads(n):
            st, kk = divmod(n, 4)
            b = n & 1
            slot = (st % 4) * 32768
            hi = slot >= 65536
            off = slot - (65536 if hi else 0)
            for rt in range(2):
                P(f"ds_read_b128 v[{FX+b*8+rt*4}:{FX+b*8+rt*4+3}], v{(40 if rt else 20)+(4 if hi else 0)+kk} offset:{off}")
            for ct in range(2):
                ar = 28 + ct + (2 if hi else 0)
                P(f"ds_read_b64_tr_b16 v[{FW+b*8+ct*4}:{FW+b*8+ct*4+1}], v{ar} offset:{off+16384+kk*4096}")
                P(f"ds_read_b64_tr_b16 v[{FW+b*8+ct*4+2}:{FW+b*8+ct*4+3}], v{ar} offset:{off+16384+kk*4096+1024}")
        stamp()
        P("s_barrier"); stamp(); reads(0)
        for n in range(40):
            b = n & 1
            if n + 1 < 40:
                if (n + 1) % 4 == 0:
                    P("s_barrier")
                    if (n + 1) // 4 in (1, 2, 3, 5, 7, 9): stamp()
                reads(n + 1)
                P("s_waitcnt lgkmcnt(6)")
            else:
                P("s_waitcnt lgkmcnt(0)")
            for t in range(4):
                rt, ct = t >> 1, t & 1
                x = v(FX + b*8 + rt*4, 4); w = v(FW + b*8 + ct*4, 4); d = v(ACC + t*16, 16)
                c = "0" if n == 0 else d
                if variant == "qk": P(f"v_mfma_f32_32x32x16_bf16 {d}, {w}, {x}, {c}")
                else: P(f"v_mfma_f32_32x32x16_bf16 {d}, {x}, {w}, {c}")
                if t == 1 and not (opt.get("NOCS") and n > 0): P(f"v_mfma_f32_16x16x32_bf16 {v(CSA,4)}, {v(SEL,4)}, {v(FW+b*8,4)}, {'0' if n == 0 else v(CSA,4)}")
        stamp()
        P(f"""s_lshl_b32 s41, s35, 1
s_add_u32 s41, s41, s34
s_lshl_b32 s41, s41, 7
s_add_u32 s41, s41, {STAT+1024}
v_lshl_add_u32 v37, v36, 2, s41
s_mov_b64 exec, 0xffff
ds_write_b32 v37, v{CSA}
ds_write_b32 v37, v{CSA+1} offset:64
s_mov_b64 exec, -1
s_lshl_b32 s42, s34, 1
s_add_u32 s42, s42, s35
s_lshl_b32 s42, s42, 7
s_add_u32 s42, s42, {STAT}
s_waitcnt lgkmcnt(0)
s_barrier""")
        stamp()
        if variant == "qk":
            P(f"""v_lshl_add_u32 v37, v36, 2, s42
v_xor_b32 v38, 128, v37
ds_read_b32 v40, v37
ds_read_b32 v42, v37 offset:512
ds_read_b32 v44, v38
ds_read_b32 v46, v38 offset:512
v_lshl_add_u32 v37, v39, 4, s41
v_xor_b32 v38, 128, v37""")
            for ct in range(2):
                for b in range(4):
                    P(f"ds_read_b128 v[{128+ct*16+b*4}:{128+ct*16+b*4+3}], v{37+ct} offset:{b*32}")
            P(f"s_cmp_lt_u32 s32, 5\ns_cselect_b32 s41, {f2u(20**-0.5*LOG2E)}, 1.0\ns_waitcnt lgkmcnt(8)")
            for r in (40, 42, 44, 46): P(f"v_mul_f32 v{r}, s41, v{r}")
            for r in (40, 42, 44, 46): P(f"v_mov_b32 v{r+1}, v{r}")
            P("s_waitcnt lgkmcnt(0)")
            for t in range(4):
                rt, ct = t >> 1, t & 1
                A = v(40 + rt*4, 2); B = v(42 + rt*4, 2)
                for p in range(8):
                    r = ACC + t*16 + 2*p
                    P(f"v_pk_mul_f32 v[{48+2*(p&3)}:{49+2*(p&3)}], v[{128+ct*16+2*p}:{128+ct*16+2*p+1}], {B}")
                    P(f"v_pk_fma_f32 v[{r}:{r+1}], v[{r}:{r+1}], {A}, v[{48+2*(p&3)}:{49+2*(p&3)}] neg_lo:[0,0,1] neg_hi:[0,0,1]")
                for p in range(8):
                    r = ACC + t*16 + 2*p
                    P(f"v_cvt_pk_bf16_f32 v{160+t*8+p}, v{r}, v{r+1}")
                for b in range(4):
                    P(f"buffer_store_dwordx2 v[{160+t*8+2*b}:{160+t*8+2*b+1}], v{AD+ct*4+b}, s[20:23], s{45+rt} offen{QSF}")
        else:
            P(f"""v_lshl_add_u32 v37, v36, 2, s41
v_xor_b32 v38, 128, v37
ds_read_b32 v40, v37
ds_read_b32 v42, v38
v_lshl_add_u32 v37, v39, 4, s42
v_xor_b32 v38, 128, v37""")
            for rt in range(2):
                for b in range(4):
                    P(f"ds_read_b128 v[{128+rt*32+b*4}:{128+rt*32+b*4+3}], v{37+rt} offset:{b*32}")
                    P(f"ds_read_b128 v[{144+rt*32+b*4}:{144+rt*32+b*4+3}], v{37+rt} offset:{512+b*32}")
            P("s_waitcnt lgkmcnt(0)\nv_mov_b32 v41, v40\nv_mov_b32 v43, v42")
            for t in range(4):
                rt, ct = t >> 1, t & 1
                C = v(40 + ct*2, 2)
                for p in range(8):
                    r = ACC + t*16 + 2*p
                    P(f"v_pk_mul_f32 v[{48+2*(p&3)}:{49+2*(p&3)}], v[{144+rt*32+2*p}:{144+rt*32+2*p+1}], {C}")
                    P(f"v_pk_fma_f32 v[{r}:{r+1}], v[{r}:{r+1}], v[{128+rt*32+2*p}:{128+rt*32+2*p+1}], v[{48+2*(p&3)}:{49+2*(p&3)}] neg_lo:[0,0,1] neg_hi:[0,0,1]")
                for p in range(8):
                    r = ACC + t*16 + 2*p
                    P(f"v_cvt_pk_bf16_f32 v{192+t*8+p}, v{r}, v{r+1}")
                for u in range(2):
                    P(f"buffer_store_dwordx4 v[{192+t*8+4*u}:{192+t*8+4*u+3}], v{AD+ct}, s[20:23], s{45+rt} offen offset:{640*u}{QSF}")
        stamp(); stamp_out()
        P("s_endpgm")
    P("L_k1_spare_c:\ns_cmp_lg_u32 s31, 0\ns_cbranch_scc1 L_k1_end\ns_waitcnt lgkmcnt(0)")
    srd(P, 20, 8, L.WS_USED)
    P("v_lshlrev_b32 v3, 4, v0\nv_mov_b32 v4, 0\nv_mov_b32 v5, 0\nv_mov_b32 v6, 0\nv_mov_b32 v7, 0")
    for i in range((L.FLAG_BYTES + 4095) // 4096):
        P(f"s_mov_b32 s31, {L.FLAG_OFF + i*4096}\nbuffer_store_dwordx4 v[4:7], v3, s[20:23], s31 offen")
    P("s_endpgm")

    P("L_k1_helper:")
    sn[0] = 1
    P("s_sub_u32 s33, s30, 4")
    P("v_lshrrev_b32 v8, 3, v1\nv_and_b32 v9, 7, v1\nv_lshrrev_b32 v10, 4, v1\nv_lshlrev_b32 v14, 4, v1")
    P("s_cmp_eq_u32 s32, 15\ns_cbranch_scc1 L_k1_spare_h")
    for i in range(4):
        P(f"v_add_u32 v11, {8*i}, v8\nv_mul_u32_u24 v11, 1280, v11\nv_add_u32 v12, {4*i}, v10\nv_and_b32 v12, 7, v12\nv_xor_b32 v12, v12, v9\nv_lshl_add_u32 v{4+i}, v12, 4, v11")
    P("v_mul_u32_u24 v11, 3840, v10\nv_bfe_u32 v12, v1, 2, 2\nv_xor_b32 v12, v12, v10\nv_lshl_add_u32 v11, v12, 6, v11\nv_and_b32 v12, 3, v1\nv_lshl_add_u32 v3, v12, 4, v11")
    P("s_lshl_b32 s36, s31, 2\ns_add_u32 s36, s36, s33\ns_mul_i32 s36, s36, 40960")
    P("s_mul_i32 s37, s33, 61440\ns_lshl_b32 s38, s32, 8\ns_add_u32 s37, s37, s38")
    P("s_lshl_b32 s39, s33, 12")
    if ROT:
        P("s_mul_i32 s34, s27, 3\ns_add_u32 s34, s34, s28\ns_add_u32 s34, s34, s25\ns_cmp_ge_u32 s34, 20\ns_cselect_b32 s35, 20, 0\ns_sub_u32 s34, s34, s35\ns_cmp_ge_u32 s34, 10\ns_cselect_b32 s35, 10, 0\ns_sub_u32 s34, s34, s35")
    else: P("s_mov_b32 s34, 0")
    P("s_waitcnt lgkmcnt(0)")
    srd(P, 12, 4, SZ); srd(P, 16, 6, 640 * 3840); srd(P, 20, 8, L.WS_USED)
    nvm = [0]; last = {}
    def dma(i):
        slot = (i % 4) * 32768
        P("s_lshl_b32 s40, s34, 7\ns_add_u32 s40, s40, s36\ns_mul_i32 s41, s34, 245760\ns_add_u32 s41, s41, s37")
        for j in range(4):
            P(f"s_add_u32 m0, s39, {slot + j*1024}\ns_nop 0\nbuffer_load_dwordx4 v{4+j}, s[12:15], s40 offen lds")
            P(f"s_add_u32 m0, s39, {slot + 16384 + j*1024}\ns_nop 0\nbuffer_load_dwordx4 v3, s[16:19], s41 offen lds")
            if j < 3: P(f"s_add_u32 s41, s41, {4*3840}")
        P("s_add_u32 s34, s34, 1\ns_cmp_eq_u32 s34, 10\ns_cselect_b32 s34, 0, s34")
        nvm[0] += 8; last[i] = nvm[0] - 1
    dma(0); dma(1)
    stamp()
    def decode(tag):
        P(f"""s_mov_b32 s64, s10
s_mov_b32 s65, s11
s_mov_b32 s50, 1280
s_mov_b32 s51, 5
s_mov_b32 s52, 0
s_mov_b32 s53, 0
s_mov_b32 s55, 0
s_mov_b32 s66, 819200
s_mov_b32 s67, s48
s_cmp_lt_u32 s48, 40
s_cbranch_scc1 L_dec4{tag}
s_mov_b32 s64, s56
s_mov_b32 s65, s57
s_mov_b32 s52, 5
s_mov_b32 s55, {L.CS1_OFF}
s_sub_u32 s67, s48, 40
s_cmp_lt_u32 s48, 80
s_cbranch_scc1 L_dec4{tag}
s_mov_b32 s64, s58
s_mov_b32 s65, s59
s_mov_b32 s52, 10
s_mov_b32 s55, 0
s_sub_u32 s67, s48, 80
s_cmp_lt_u32 s48, 120
s_cbranch_scc1 L_dec4{tag}
s_mov_b32 s64, s60
s_mov_b32 s65, s61
s_mov_b32 s50, 3456
s_mov_b32 s52, 15
s_mov_b32 s53, 1
s_mov_b32 s55, {L.CS3_OFF}
s_mov_b32 s66, 2211840
s_sub_u32 s67, s48, 120
s_cmp_lt_u32 s48, 228
s_cbranch_scc1 L_dec4{tag}
s_mov_b32 s64, s62
s_mov_b32 s65, s63
s_mov_b32 s50, 1280
s_mov_b32 s51, 6
s_mov_b32 s52, 29
s_mov_b32 s53, 2
s_mov_b32 s55, 0
s_sub_u32 s67, s48, 228
s_mul_i32 s68, s67, 7282
s_lshr_b32 s68, s68, 16
s_mul_i32 s69, s68, 9
s_sub_u32 s69, s67, s69
s_branch L_decj{tag}
L_dec4{tag}:
s_lshr_b32 s68, s67, 2
s_and_b32 s69, s67, 3
L_decj{tag}:
s_mov_b32 s24, s64
s_and_b32 s25, s65, 0xffff
s_mov_b32 s26, s66
s_mov_b32 s27, 0x20000
s_mul_i32 s54, s69, s51
s_lshl_b32 s49, s54, 2
s_add_u32 s49, s49, s33
s_lshl_b32 s49, s49, 3
s_mul_i32 s49, s49, s50
s_lshl_b32 s42, s68, 7
s_add_u32 s49, s49, s42
v_mul_lo_u32 v13, v8, s50
v_lshl_add_u32 v13, v9, 4, v13""")
        P(f"""s_lshl_b32 s42, s68, 2
s_add_u32 s42, s42, s33
s_mul_i32 s52, s52, 20480
s_add_u32 s52, s52, {L.WS_OFF}
s_cmp_eq_u32 s53, 1
s_cbranch_scc1 L_dw3{tag}
s_mul_i32 s43, s42, 52429
s_lshr_b32 s43, s43, 18
s_mul_i32 s44, s43, 5
s_sub_u32 s44, s42, s44
s_cmp_eq_u32 s44, 0
s_cselect_b32 s45, 4, -1
s_bitcmp1_b32 s43, 0
s_cselect_b32 s45, s45, 0
s_add_u32 s44, s44, s45
s_add_u32 s42, s42, s45
s_lshl_b32 s44, s44, 10
s_mul_i32 s46, s69, 2560
s_branch L_dj2{tag}
L_dw3{tag}:
s_lshr_b32 s45, s42, 1
s_mul_i32 s43, s45, 9363
s_lshr_b32 s43, s43, 16
s_cmp_eq_u32 s45, 48
s_cselect_b32 s43, 7, s43
s_mul_i32 s44, s43, 7
s_sub_u32 s44, s45, s44
s_cmp_eq_u32 s43, 7
s_addc_u32 s44, s44, 0
s_lshl_b32 s44, s44, 1
s_and_b32 s45, s42, 1
s_add_u32 s44, s44, s45
s_mul_i32 s44, s44, 20480
s_mul_i32 s46, s69, 8192
L_dj2{tag}:
s_mul_i32 s43, s43, {L.SLICE_B}
s_add_u32 s52, s52, s43
s_add_u32 s52, s52, s44
s_lshl_b32 s42, s42, 6
s_add_u32 s42, s42, s46
s_cmp_eq_u32 s55, 0
s_cselect_b32 s42, 0, s42
s_add_u32 s55, s55, s42""")
    def prep_dma(ldsbase_sreg):
        P(f"s_lshl_b32 s42, s33, 10\ns_add_u32 s42, s42, {ldsbase_sreg}\ns_lshl_b32 s43, s50, 5\ns_mov_b32 s44, s49")
        for k in range(6):
            P(f"s_add_u32 m0, s42, {k*4096}\ns_nop 0\nbuffer_load_dwordx4 v13, s[24:27], s44 offen{NTF} lds")
            if k == 4: P("s_cmp_eq_u32 s51, 5\ns_cselect_b32 s43, 0, s43")
            if k < 5: P("s_add_u32 s44, s44, s43")
        nvm[0] += 6
    def prep_proc(tag, ldsbase_sreg):
        P(f"""v_bfe_u32 v11, v1, 2, 2
v_lshl_add_u32 v11, v10, 3, v11
v_lshlrev_b32 v11, 7, v11
v_and_b32 v12, 3, v1
v_lshl_add_u32 v11, v12, 4, v11
s_lshr_b32 s42, s33, 1
s_lshl_b32 s42, s42, 6
s_and_b32 s43, s33, 1
s_lshl_b32 s43, s43, 3
s_add_u32 s42, s42, s43
s_add_u32 s42, s42, {ldsbase_sreg}
v_add_u32 v11, s42, v11""")
        for k in range(6):
            P(f"ds_read_b64_tr_b16 v[{64+4*k}:{65+4*k}], v11 offset:{k*4096}\nds_read_b64_tr_b16 v[{66+4*k}:{67+4*k}], v11 offset:{k*4096+512}")
        P(f"s_cmp_eq_u32 s53, 1\ns_mov_b32 s46, 5120\ns_cmov_b32 s46, 1024\nv_mov_b32 v60, 0\nv_mov_b32 v62, {ONES}")
        for k in range(6):
            if k == 5: P(f"s_cmp_eq_u32 s51, 5\ns_cbranch_scc1 L_pp5{tag}")
            P(f"s_add_u32 s42, s54, {k}\ns_cmp_lg_u32 s53, 2\ns_cbranch_scc1 L_ppn{tag}_{k}")
            P("""s_mul_i32 s43, s42, 9363
s_lshr_b32 s43, s43, 16
s_cmp_eq_u32 s42, 48
s_cselect_b32 s43, 7, s43
s_mul_i32 s44, s43, 7
s_sub_u32 s44, s42, s44
s_cmp_eq_u32 s43, 7
s_addc_u32 s44, s44, 0
s_lshl_b32 s42, s44, 3
s_add_u32 s42, s42, s43""")
            P(f"L_ppn{tag}_{k}:\ns_mul_i32 s42, s42, s46\ns_add_u32 s42, s42, s52\ns_waitcnt lgkmcnt({10-2*k})")
            P(f"buffer_store_dwordx4 v[{64+4*k}:{67+4*k}], v14, s[20:23], s42 offen{PSF}")
        P(f"L_pp5{tag}:\ns_cmp_eq_u32 s55, 0\ns_cbranch_scc1 L_ppe{tag}")
        for r in range(20): P(f"v_dot2c_f32_bf16 v60, v{64+r}, v62")
        xg_reduce(P, [60], [61])
        P("v_lshlrev_b32 v61, 2, v1\ns_mov_b64 exec, 0xffff\nbuffer_store_dword v60, v61, s[20:23], s55 offen\ns_mov_b64 exec, -1")
        P(f"L_ppe{tag}:\ns_waitcnt lgkmcnt(0)")
    P("s_mul_i32 s48, s31, 15\ns_add_u32 s48, s48, s32")
    decode("m")
    for r in range(8): P(f"v_mov_b32 v{16+r}, 0")
    P("v_add_u32 v15, s39, v14\nv_add_u32 v24, 0x10000, v15")
    for i in range(10):
        P(f"s_waitcnt vmcnt({min(nvm[0]-1-last[i], nvm[0]-1-pid if i == PP else 99)})\ns_barrier")
        slot = (i % 4) * 32768
        for j in range(4):
            P(f"ds_read_b128 v[{32+4*j}:{35+4*j}], v{24 if slot >= 65536 else 15} offset:{slot % 65536 + j*1024}")
        if i + 2 < 10: dma(i + 2)
        if i == PI: prep_dma(PB); pid = nvm[0] - 1
        for j in range(4):
            if opt.get("NOSTAT"): break
            P(f"s_waitcnt lgkmcnt({3-j})")
            for r in range(4):
                s_ = 32 + 4*j + r
                P(f"v_lshlrev_b32 v{48+2*r}, 16, v{s_}\nv_and_b32 v{49+2*r}, 0xffff0000, v{s_}")
            for r in range(8):
                P(f"v_add_f32 v{16+j}, v{16+j}, v{48+r}\nv_fmac_f32 v{20+j}, v{48+r}, v{48+r}")
        if i == PP: prep_proc("m", PB); nvm[0] += 5
    stamp()
    for ctl in ("quad_perm:[1,0,3,2]", "quad_perm:[2,3,0,1]", "row_half_mirror"):
        for r in range(8): P(f"v_add_f32_dpp v{16+r}, v{16+r}, v{16+r} {ctl} row_mask:0xf bank_mask:0xf")
    for j in range(4):
        P(f"v_mul_f32 v{16+j}, {f2u(1/640)}, v{16+j}\nv_mul_f32 v{20+j}, {f2u(1/640)}, v{20+j}")
    for j in range(4):
        P(f"v_fma_f32 v{20+j}, -v{16+j}, v{16+j}, v{20+j}\nv_max_f32 v{20+j}, 0, v{20+j}\nv_add_f32 v{20+j}, {f2u(EPS)}, v{20+j}")
    for j in range(4): P(f"v_rsq_f32 v{20+j}, v{20+j}")
    for j in range(4): P(f"v_mul_f32 v{16+j}, v{16+j}, v{20+j}")
    P(f"s_lshl_b32 s42, s33, 7\ns_add_u32 s42, s42, {STAT}\nv_lshl_add_u32 v11, v8, 2, s42")
    for j in range(4): P(f"ds_write_b32 v11, v{20+j} offset:{32*j}\nds_write_b32 v11, v{16+j} offset:{512+32*j}")
    P("s_waitcnt vmcnt(0) lgkmcnt(0)\ns_barrier" if PP >= 10 else "s_waitcnt lgkmcnt(0)\ns_barrier")
    stamp()
    if PP >= 10: prep_proc("m", PB)
    stamp(); stamp_out()
    P("s_endpgm")
    P("L_k1_spare_h:\ns_waitcnt lgkmcnt(0)")
    srd(P, 20, 8, L.WS_USED)
    P("s_add_u32 s48, s31, 240\ns_mov_b32 s47, 0\nL_sp1:")
    decode("a")
    prep_dma("s47")
    P("s_add_u32 s48, s48, 16\ns_add_u32 s47, s47, 24576\ns_cmp_lt_u32 s48, 318\ns_cbranch_scc1 L_sp1")
    P("s_waitcnt vmcnt(0)\ns_barrier")
    P("s_add_u32 s48, s31, 240\ns_mov_b32 s47, 0\nL_sp2:")
    decode("b")
    prep_proc("b", "s47")
    P("s_nop 4\ns_add_u32 s48, s48, 16\ns_add_u32 s47, s47, 24576\ns_cmp_lt_u32 s48, 318\ns_cbranch_scc1 L_sp2")
    P("L_k1_end:\ns_endpgm")
    return (name, 256, 512, STAT + 2048, 256)
```

```python
from asmlib import *
from gen1 import f2u, LOG2E, ONES, EPS, ARG, SZ, srd, header, xg_reduce

def gen_k1(P, L, opt):
    name = "qkv_kernel"
    STAMP = opt.get("STAMP", False)
    PI = opt.get("PI", 4)
    NTF = " nt" if opt.get("PREP_NT", 1) else ""
    ROT = opt.get("ROT", 1)
    FL = ["", " sc1", " nt", " sc0 sc1"]
    PSF = FL[opt.get("PSF", 0)]; QSF = FL[opt.get("QSF", 0)]
    PP = opt.get("PP", 10)
    header(P, name)
    PB = 131072
    STAT = PB + 24576
    sn = [0]
    DBG = opt.get("DBG", 0)
    def stamp():
        if DBG:
            P(f"s_memrealtime s[{70+2*sn[0]}:{71+2*sn[0]}]"); sn[0] += 1
        if STAMP:
            P(f"s_memtime s[{70+2*sn[0]}:{71+2*sn[0]}]"); sn[0] += 1
    def stamp_out():
        if DBG:
            e = f"L_dbg{len(P.items)}"
            P("s_waitcnt vmcnt(0)"); stamp()
            P(f"s_cmp_lg_u32 s2, {DBG}\ns_cbranch_scc1 {e}\ns_cmp_lg_u32 s30, 0\ns_cbranch_scc1 {e}\ns_waitcnt lgkmcnt(0)")
            P(f"v_mov_b32 v39, {L.DUMMY_OFF + 2048}")
            for i, k in enumerate((0, 1, 2, 6, 9, sn[0]-1)): P(f"v_mov_b32 v{40+i}, s{70+2*min(k, sn[0]-1)}")
            P(f"s_mov_b64 exec, 1\nbuffer_store_dwordx4 v[40:43], v39, s[20:23], 0 offen\nbuffer_store_dwordx2 v[44:45], v39, s[20:23], 0 offen offset:16\n{e}:")
        if not STAMP: return
        P("s_waitcnt vmcnt(0)"); stamp()
        P("s_waitcnt lgkmcnt(0)\nv_mov_b32 v40, s100\ns_memrealtime s[100:101]\ns_waitcnt lgkmcnt(0)\nv_mov_b32 v41, s100\nv_mov_b32 v39, 0")
        for i in range(14): P(f"v_mov_b32 v{42+i}, s{70+2*min(i, sn[0]-1)}")
        P(f"s_mov_b32 s22, 0x8000000\ns_lshl_b32 s43, s2, 3\ns_add_u32 s43, s43, s30\ns_lshl_b32 s43, s43, 7\ns_add_u32 s43, s43, {0x4000000 + 0x100000}\ns_mov_b64 exec, 1")
        for i in range(4): P(f"buffer_store_dwordx4 v[{40+4*i}:{43+4*i}], v39, s[20:23], s43 offen offset:{16*i}")
    P("s_cmp_ge_u32 s2, 256\ns_cbranch_scc1 L_k1_end")
    if STAMP: P("s_memrealtime s[100:101]")
    stamp()
    P(f"s_load_dwordx4 s[4:7], s[0:1], 0\ns_load_dwordx2 s[8:9], s[0:1], {ARG['ws']}\ns_load_dwordx2 s[10:11], s[0:1], {ARG['wo']}\ns_load_dwordx8 s[56:63], s[0:1], {ARG['w1']}")
    P("v_and_b32 v1, 63, v0\nv_lshrrev_b32 v2, 6, v0\nv_readfirstlane_b32 s30, v2")
    P("""s_and_b32 s25, s2, 7
s_lshr_b32 s26, s2, 3
s_and_b32 s27, s26, 3
s_lshr_b32 s28, s26, 2
s_lshr_b32 s31, s25, 1
s_lshl_b32 s31, s31, 2
s_add_u32 s31, s31, s27
s_and_b32 s32, s25, 1
s_lshl_b32 s32, s32, 3
s_add_u32 s32, s32, s28""")
    P("s_cmp_ge_u32 s30, 4\ns_cbranch_scc1 L_k1_helper")
    if opt.get("CPF", 1):
        NSEG = opt.get("NSEG", 8)
        P(f"""s_getpc_b64 s[48:49]
L_pc0:
s_sub_u32 s48, s48, L_pc0-qkv_kernel
s_subb_u32 s49, s49, 0
s_lshl_b32 s50, s26, 2
s_add_u32 s50, s50, s30
s_cmp_ge_u32 s50, {NSEG}
s_cbranch_scc1 L_nocpf
s_lshl_b32 s50, s50, 13
v_lshl_add_u32 v60, v1, 7, s50
v_min_u32 v60, L_code_end-qkv_kernel-4, v60
v_mov_b32 v61, s49
v_add_co_u32 v60, vcc, s48, v60
v_addc_co_u32 v61, vcc, 0, v61, vcc
global_load_dword v62, v[60:61], off
L_nocpf:""")
    P("s_cmp_eq_u32 s32, 15\ns_cbranch_scc1 L_k1_spare_c")
    P("s_lshr_b32 s34, s30, 1\ns_and_b32 s35, s30, 1")
    P("""v_and_b32 v36, 31, v1
v_lshrrev_b32 v39, 5, v1
s_lshl_b32 s41, s34, 6
v_add_u32 v10, s41, v36
v_bfe_u32 v11, v10, 1, 3
v_xor_b32 v11, v11, v39
v_lshlrev_b32 v11, 4, v11
v_lshl_add_u32 v20, v10, 7, v11
s_lshl_b32 s41, s35, 12
v_add_u32 v20, s41, v20""")
    for kk in range(1, 4): P(f"v_xor_b32 v{20+kk}, {kk*32}, v20")
    for kk in range(4): P(f"v_add_u32 v{24+kk}, 0x10000, v{20+kk}")
    for kk in range(8): P(f"v_xor_b32 v{40+kk}, 0x1000, v{20+kk}")
    P("""v_bfe_u32 v10, v1, 2, 2
v_lshl_add_u32 v11, v39, 3, v10
v_lshlrev_b32 v11, 8, v11
v_bfe_u32 v12, v1, 4, 1
v_lshl_add_u32 v11, v12, 5, v11
v_and_b32 v12, 3, v1
v_lshl_add_u32 v11, v12, 3, v11
s_lshl_b32 s41, s35, 1
s_add_u32 s41, s41, s34
v_xor_b32 v12, s41, v10
v_lshl_add_u32 v28, v12, 6, v11
v_xor_b32 v29, 64, v28
v_add_u32 v30, 0x10000, v28
v_add_u32 v31, 0x10000, v29""")
    ACC, FX, FW, SEL, CSA, AD = 64, 128, 144, 4, 32, 224
    P(f"v_and_b32 v10, 15, v1\nv_bfe_u32 v11, v1, 4, 1\nv_cmp_eq_u32 vcc, v10, v11\nv_mov_b32 v10, {ONES}")
    for i in range(4): P(f"v_cndmask_b32 v{SEL+i}, 0, v10, vcc")
    P("""s_lshl_b32 s43, s31, 2
s_lshl_b32 s44, s34, 1
s_add_u32 s43, s43, s44
s_add_u32 s43, s43, s35
s_lshr_b32 s44, s43, 3
s_mul_i32 s44, s44, 327680
s_and_b32 s45, s43, 7
s_xor_b32 s46, s45, 1
s_mul_i32 s45, s45, 1280
s_mul_i32 s46, s46, 1280
s_add_u32 s45, s45, s44
s_add_u32 s46, s46, s44""")
    P("s_waitcnt lgkmcnt(0)")
    srd(P, 20, 8, L.WS_USED)
    if opt.get("TLBW", 0):
        st_ = opt.get("TLBS", 16)
        P(f"""s_sub_u32 s50, s26, 2
s_lshl_b32 s50, s50, 2
s_add_u32 s50, s50, s30
s_cmp_ge_u32 s50, {(L.WS_USED >> (st_ + 6)) + 2}
s_cbranch_scc1 L_notlb
v_lshlrev_b32 v60, {st_}, v1
s_cmp_eq_u32 s50, 0
s_cbranch_scc1 L_tlbo
s_sub_u32 s50, s50, 1
s_lshl_b32 s50, s50, {st_ + 6}
v_add_u32 v60, s50, v60
buffer_load_dword v63, v60, s[20:23], 0 offen
s_branch L_notlb
L_tlbo:
s_load_dwordx2 s[52:53], s[0:1], {ARG['out']}
s_waitcnt lgkmcnt(0)
s_and_b32 s53, s53, 0xffff
s_mov_b32 s54, {SZ}
s_mov_b32 s55, 0x20000
v_lshlrev_b32 v60, 16, v1
buffer_load_dword v63, v60, s[52:55], 0 offen
L_notlb:""")
    P("s_cmp_ge_u32 s32, 10\ns_cbranch_scc1 L_k1_v")
    for variant in ("qk", "v"):
        if variant == "v":
            P("L_k1_v:")
            sn[0] = 1
            P(f"s_sub_u32 s41, s32, 10\ns_lshl_b32 s41, s41, 7\ns_lshl_b32 s42, s35, 6\ns_add_u32 s41, s41, s42\ns_lshl_b32 s42, s34, 5\ns_add_u32 s41, s41, s42\ns_add_u32 s45, s45, {L.V_OFF}\ns_add_u32 s46, s46, {L.V_OFF}")
            for ct in range(2):
                P(f"v_add_u32 v10, s41, v36\nv_xor_b32 v10, {32*ct}, v10\nv_mul_u32_u24 v11, 52429, v10\nv_lshrrev_b32 v11, 20, v11\nv_mul_u32_u24 v11, {10240-320}, v11\nv_lshl_add_u32 v11, v10, 4, v11\nv_mul_u32_u24 v12, 320, v39\nv_add_u32 v{AD+ct}, v11, v12")
        else:
            P(f"s_cmp_ge_u32 s32, 5\ns_cselect_b32 s42, 5, 0\ns_cselect_b32 s47, {L.K_OFF}, {L.Q_OFF}\ns_sub_u32 s41, s32, s42\ns_lshl_b32 s41, s41, 5\ns_lshl_b32 s42, s35, 4\ns_add_u32 s41, s41, s42\ns_lshl_b32 s42, s34, 3\ns_add_u32 s41, s41, s42\ns_add_u32 s45, s45, s47\ns_add_u32 s46, s46, s47")
            for ct in range(2):
                for b in range(4):
                    P(f"v_add_u32 v10, s41, v39\nv_xor_b32 v10, {8*ct}, v10\nv_add_u32 v10, {2*b}, v10\nv_mul_u32_u24 v11, 52429, v10\nv_lshrrev_b32 v11, 18, v11\nv_mul_u32_u24 v11, {10240-1280}, v11\nv_lshl_add_u32 v11, v10, 8, v11\nv_lshl_add_u32 v{AD+ct*4+b}, v36, 3, v11")
        def reads(n):
            st, kk = divmod(n, 4)
            b = n & 1
            slot = (st % 4) * 32768
            hi = slot >= 65536
            off = slot - (65536 if hi else 0)
            for rt in range(2):
                P(f"ds_read_b128 v[{FX+b*8+rt*4}:{FX+b*8+rt*4+3}], v{(40 if rt else 20)+(4 if hi else 0)+kk} offset:{off}")
            for ct in range(2):
                ar = 28 + ct + (2 if hi else 0)
                P(f"ds_read_b64_tr_b16 v[{FW+b*8+ct*4}:{FW+b*8+ct*4+1}], v{ar} offset:{off+16384+kk*4096}")
                P(f"ds_read_b64_tr_b16 v[{FW+b*8+ct*4+2}:{FW+b*8+ct*4+3}], v{ar} offset:{off+16384+kk*4096+1024}")
        stamp()
        P("s_barrier"); stamp(); reads(0)
        for n in range(40):
            b = n & 1
            if n + 1 < 40:
                if (n + 1) % 4 == 0:
                    P("s_barrier")
                    if (n + 1) // 4 in (1, 2, 3, 5, 7, 9): stamp()
                reads(n + 1)
                P("s_waitcnt lgkmcnt(6)")
            else:
                P("s_waitcnt lgkmcnt(0)")
            for t in range(4):
                rt, ct = t >> 1, t & 1
                x = v(FX + b*8 + rt*4, 4); w = v(FW + b*8 + ct*4, 4); d = v(ACC + t*16, 16)
                c = "0" if n == 0 else d
                if variant == "qk": P(f"v_mfma_f32_32x32x16_bf16 {d}, {w}, {x}, {c}")
                else: P(f"v_mfma_f32_32x32x16_bf16 {d}, {x}, {w}, {c}")
                if t == 1 and not (opt.get("NOCS") and n > 0): P(f"v_mfma_f32_16x16x32_bf16 {v(CSA,4)}, {v(SEL,4)}, {v(FW+b*8,4)}, {'0' if n == 0 else v(CSA,4)}")
        stamp()
        P(f"""s_lshl_b32 s41, s35, 1
s_add_u32 s41, s41, s34
s_lshl_b32 s41, s41, 7
s_add_u32 s41, s41, {STAT+1024}
v_lshl_add_u32 v37, v36, 2, s41
s_mov_b64 exec, 0xffff
ds_write_b32 v37, v{CSA}
ds_write_b32 v37, v{CSA+1} offset:64
s_mov_b64 exec, -1
s_lshl_b32 s42, s34, 1
s_add_u32 s42, s42, s35
s_lshl_b32 s42, s42, 7
s_add_u32 s42, s42, {STAT}
s_waitcnt lgkmcnt(0)
s_barrier""")
        stamp()
        if variant == "qk":
            P(f"""v_lshl_add_u32 v37, v36, 2, s42
v_xor_b32 v38, 128, v37
ds_read_b32 v40, v37
ds_read_b32 v42, v37 offset:512
ds_read_b32 v44, v38
ds_read_b32 v46, v38 offset:512
v_lshl_add_u32 v37, v39, 4, s41
v_xor_b32 v38, 128, v37""")
            for ct in range(2):
                for b in range(4):
                    P(f"ds_read_b128 v[{128+ct*16+b*4}:{128+ct*16+b*4+3}], v{37+ct} offset:{b*32}")
            P(f"s_cmp_lt_u32 s32, 5\ns_cselect_b32 s41, {f2u(20**-0.5*LOG2E)}, 1.0\ns_waitcnt lgkmcnt(8)")
            for r in (40, 42, 44, 46): P(f"v_mul_f32 v{r}, s41, v{r}")
            for r in (40, 42, 44, 46): P(f"v_mov_b32 v{r+1}, v{r}")
            P("s_waitcnt lgkmcnt(0)")
            for t in range(4):
                rt, ct = t >> 1, t & 1
                A = v(40 + rt*4, 2); B = v(42 + rt*4, 2)
                for p in range(8):
                    r = ACC + t*16 + 2*p
                    P(f"v_pk_mul_f32 v[{48+2*(p&3)}:{49+2*(p&3)}], v[{128+ct*16+2*p}:{128+ct*16+2*p+1}], {B}")
                    P(f"v_pk_fma_f32 v[{r}:{r+1}], v[{r}:{r+1}], {A}, v[{48+2*(p&3)}:{49+2*(p&3)}] neg_lo:[0,0,1] neg_hi:[0,0,1]")
                for p in range(8):
                    r = ACC + t*16 + 2*p
                    P(f"v_cvt_pk_bf16_f32 v{160+t*8+p}, v{r}, v{r+1}")
                for b in range(4):
                    P(f"buffer_store_dwordx2 v[{160+t*8+2*b}:{160+t*8+2*b+1}], v{AD+ct*4+b}, s[20:23], s{45+rt} offen{QSF}")
        else:
            P(f"""v_lshl_add_u32 v37, v36, 2, s41
v_xor_b32 v38, 128, v37
ds_read_b32 v40, v37
ds_read_b32 v42, v38
v_lshl_add_u32 v37, v39, 4, s42
v_xor_b32 v38, 128, v37""")
            for rt in range(2):
                for b in range(4):
                    P(f"ds_read_b128 v[{128+rt*32+b*4}:{128+rt*32+b*4+3}], v{37+rt} offset:{b*32}")
                    P(f"ds_read_b128 v[{144+rt*32+b*4}:{144+rt*32+b*4+3}], v{37+rt} offset:{512+b*32}")
            P("s_waitcnt lgkmcnt(0)\nv_mov_b32 v41, v40\nv_mov_b32 v43, v42")
            for t in range(4):
                rt, ct = t >> 1, t & 1
                C = v(40 + ct*2, 2)
                for p in range(8):
                    r = ACC + t*16 + 2*p
                    P(f"v_pk_mul_f32 v[{48+2*(p&3)}:{49+2*(p&3)}], v[{144+rt*32+2*p}:{144+rt*32+2*p+1}], {C}")
                    P(f"v_pk_fma_f32 v[{r}:{r+1}], v[{r}:{r+1}], v[{128+rt*32+2*p}:{128+rt*32+2*p+1}], v[{48+2*(p&3)}:{49+2*(p&3)}] neg_lo:[0,0,1] neg_hi:[0,0,1]")
                for p in range(8):
                    r = ACC + t*16 + 2*p
                    P(f"v_cvt_pk_bf16_f32 v{192+t*8+p}, v{r}, v{r+1}")
                for u in range(2):
                    P(f"buffer_store_dwordx4 v[{192+t*8+4*u}:{192+t*8+4*u+3}], v{AD+ct}, s[20:23], s{45+rt} offen offset:{640*u}{QSF}")
        stamp(); stamp_out()
        P("s_endpgm")
    P("L_k1_spare_c:\ns_cmp_lg_u32 s31, 0\ns_cbranch_scc1 L_k1_end\ns_waitcnt lgkmcnt(0)")
    srd(P, 20, 8, L.WS_USED)
    P("v_lshlrev_b32 v3, 4, v0\nv_mov_b32 v4, 0\nv_mov_b32 v5, 0\nv_mov_b32 v6, 0\nv_mov_b32 v7, 0")
    for i in range((L.FLAG_BYTES + 4095) // 4096):
        P(f"s_mov_b32 s31, {L.FLAG_OFF + i*4096}\nbuffer_store_dwordx4 v[4:7], v3, s[20:23], s31 offen")
    P("s_endpgm")

    P("L_k1_helper:")
    sn[0] = 1
    P("s_sub_u32 s33, s30, 4")
    P("v_lshrrev_b32 v8, 3, v1\nv_and_b32 v9, 7, v1\nv_lshrrev_b32 v10, 4, v1\nv_lshlrev_b32 v14, 4, v1")
    P("s_cmp_eq_u32 s32, 15\ns_cbranch_scc1 L_k1_spare_h")
    for i in range(4):
        P(f"v_add_u32 v11, {8*i}, v8\nv_mul_u32_u24 v11, 1280, v11\nv_add_u32 v12, {4*i}, v10\nv_and_b32 v12, 7, v12\nv_xor_b32 v12, v12, v9\nv_lshl_add_u32 v{4+i}, v12, 4, v11")
    P("v_mul_u32_u24 v11, 3840, v10\nv_bfe_u32 v12, v1, 2, 2\nv_xor_b32 v12, v12, v10\nv_lshl_add_u32 v11, v12, 6, v11\nv_and_b32 v12, 3, v1\nv_lshl_add_u32 v3, v12, 4, v11")
    P("s_lshl_b32 s36, s31, 2\ns_add_u32 s36, s36, s33\ns_mul_i32 s36, s36, 40960")
    P("s_mul_i32 s37, s33, 61440\ns_lshl_b32 s38, s32, 8\ns_add_u32 s37, s37, s38")
    P("s_lshl_b32 s39, s33, 12")
    if ROT:
        P("s_mul_i32 s34, s27, 3\ns_add_u32 s34, s34, s28\ns_add_u32 s34, s34, s25\ns_cmp_ge_u32 s34, 20\ns_cselect_b32 s35, 20, 0\ns_sub_u32 s34, s34, s35\ns_cmp_ge_u32 s34, 10\ns_cselect_b32 s35, 10, 0\ns_sub_u32 s34, s34, s35")
    else: P("s_mov_b32 s34, 0")
    P("s_waitcnt lgkmcnt(0)")
    srd(P, 12, 4, SZ); srd(P, 16, 6, 640 * 3840); srd(P, 20, 8, L.WS_USED)
    nvm = [0]; last = {}
    def dma(i):
        slot = (i % 4) * 32768
        P("s_lshl_b32 s40, s34, 7\ns_add_u32 s40, s40, s36\ns_mul_i32 s41, s34, 245760\ns_add_u32 s41, s41, s37")
        for j in range(4):
            P(f"s_add_u32 m0, s39, {slot + j*1024}\ns_nop 0\nbuffer_load_dwordx4 v{4+j}, s[12:15], s40 offen lds")
            P(f"s_add_u32 m0, s39, {slot + 16384 + j*1024}\ns_nop 0\nbuffer_load_dwordx4 v3, s[16:19], s41 offen lds")
            if j < 3: P(f"s_add_u32 s41, s41, {4*3840}")
        P("s_add_u32 s34, s34, 1\ns_cmp_eq_u32 s34, 10\ns_cselect_b32 s34, 0, s34")
        nvm[0] += 8; last[i] = nvm[0] - 1
    dma(0); dma(1)
    stamp()
    def decode(tag):
        P(f"""s_mov_b32 s64, s10
s_mov_b32 s65, s11
s_mov_b32 s50, 1280
s_mov_b32 s51, 5
s_mov_b32 s52, 0
s_mov_b32 s53, 0
s_mov_b32 s55, 0
s_mov_b32 s66, 819200
s_mov_b32 s67, s48
s_cmp_lt_u32 s48, 40
s_cbranch_scc1 L_dec4{tag}
s_mov_b32 s64, s56
s_mov_b32 s65, s57
s_mov_b32 s52, 5
s_mov_b32 s55, {L.CS1_OFF}
s_sub_u32 s67, s48, 40
s_cmp_lt_u32 s48, 80
s_cbranch_scc1 L_dec4{tag}
s_mov_b32 s64, s58
s_mov_b32 s65, s59
s_mov_b32 s52, 10
s_mov_b32 s55, 0
s_sub_u32 s67, s48, 80
s_cmp_lt_u32 s48, 120
s_cbranch_scc1 L_dec4{tag}
s_mov_b32 s64, s60
s_mov_b32 s65, s61
s_mov_b32 s50, 3456
s_mov_b32 s52, 15
s_mov_b32 s53, 1
s_mov_b32 s55, {L.CS3_OFF}
s_mov_b32 s66, 2211840
s_sub_u32 s67, s48, 120
s_cmp_lt_u32 s48, 228
s_cbranch_scc1 L_dec4{tag}
s_mov_b32 s64, s62
s_mov_b32 s65, s63
s_mov_b32 s50, 1280
s_mov_b32 s51, 6
s_mov_b32 s52, 29
s_mov_b32 s53, 2
s_mov_b32 s55, 0
s_sub_u32 s67, s48, 228
s_mul_i32 s68, s67, 7282
s_lshr_b32 s68, s68, 16
s_mul_i32 s69, s68, 9
s_sub_u32 s69, s67, s69
s_branch L_decj{tag}
L_dec4{tag}:
s_lshr_b32 s68, s67, 2
s_and_b32 s69, s67, 3
L_decj{tag}:
s_mov_b32 s24, s64
s_and_b32 s25, s65, 0xffff
s_mov_b32 s26, s66
s_mov_b32 s27, 0x20000
s_mul_i32 s54, s69, s51
s_lshl_b32 s49, s54, 2
s_add_u32 s49, s49, s33
s_lshl_b32 s49, s49, 3
s_mul_i32 s49, s49, s50
s_lshl_b32 s42, s68, 7
s_add_u32 s49, s49, s42
v_mul_lo_u32 v13, v8, s50
v_lshl_add_u32 v13, v9, 4, v13""")
        P(f"""s_lshl_b32 s42, s68, 2
s_add_u32 s42, s42, s33
s_mul_i32 s52, s52, 20480
s_add_u32 s52, s52, {L.WS_OFF}
s_cmp_eq_u32 s53, 1
s_cbranch_scc1 L_dw3{tag}
s_mul_i32 s43, s42, 52429
s_lshr_b32 s43, s43, 18
s_mul_i32 s44, s43, 5
s_sub_u32 s44, s42, s44
s_cmp_eq_u32 s44, 0
s_cselect_b32 s45, 4, -1
s_bitcmp1_b32 s43, 0
s_cselect_b32 s45, s45, 0
s_add_u32 s44, s44, s45
s_add_u32 s42, s42, s45
s_lshl_b32 s44, s44, 10
s_mul_i32 s46, s69, 2560
s_branch L_dj2{tag}
L_dw3{tag}:
s_lshr_b32 s45, s42, 1
s_mul_i32 s43, s45, 9363
s_lshr_b32 s43, s43, 16
s_cmp_eq_u32 s45, 48
s_cselect_b32 s43, 7, s43
s_mul_i32 s44, s43, 7
s_sub_u32 s44, s45, s44
s_cmp_eq_u32 s43, 7
s_addc_u32 s44, s44, 0
s_lshl_b32 s44, s44, 1
s_and_b32 s45, s42, 1
s_add_u32 s44, s44, s45
s_mul_i32 s44, s44, 20480
s_mul_i32 s46, s69, 8192
L_dj2{tag}:
s_mul_i32 s43, s43, {L.SLICE_B}
s_add_u32 s52, s52, s43
s_add_u32 s52, s52, s44
s_lshl_b32 s42, s42, 6
s_add_u32 s42, s42, s46
s_cmp_eq_u32 s55, 0
s_cselect_b32 s42, 0, s42
s_add_u32 s55, s55, s42""")
    def prep_dma(ldsbase_sreg):
        P(f"s_lshl_b32 s42, s33, 10\ns_add_u32 s42, s42, {ldsbase_sreg}\ns_lshl_b32 s43, s50, 5\ns_mov_b32 s44, s49")
        for k in range(6):
            P(f"s_add_u32 m0, s42, {k*4096}\ns_nop 0\nbuffer_load_dwordx4 v13, s[24:27], s44 offen{NTF} lds")
            if k == 4: P("s_cmp_eq_u32 s51, 5\ns_cselect_b32 s43, 0, s43")
            if k < 5: P("s_add_u32 s44, s44, s43")
        nvm[0] += 6
    def prep_proc(tag, ldsbase_sreg):
        P(f"""v_bfe_u32 v11, v1, 2, 2
v_lshl_add_u32 v11, v10, 3, v11
v_lshlrev_b32 v11, 7, v11
v_and_b32 v12, 3, v1
v_lshl_add_u32 v11, v12, 4, v11
s_lshr_b32 s42, s33, 1
s_lshl_b32 s42, s42, 6
s_and_b32 s43, s33, 1
s_lshl_b32 s43, s43, 3
s_add_u32 s42, s42, s43
s_add_u32 s42, s42, {ldsbase_sreg}
v_add_u32 v11, s42, v11""")
        for k in range(6):
            P(f"ds_read_b64_tr_b16 v[{64+4*k}:{65+4*k}], v11 offset:{k*4096}\nds_read_b64_tr_b16 v[{66+4*k}:{67+4*k}], v11 offset:{k*4096+512}")
        P(f"s_cmp_eq_u32 s53, 1\ns_mov_b32 s46, 5120\ns_cmov_b32 s46, 1024\nv_mov_b32 v60, 0\nv_mov_b32 v62, {ONES}")
        for k in range(6):
            if k == 5: P(f"s_cmp_eq_u32 s51, 5\ns_cbranch_scc1 L_pp5{tag}")
            P(f"s_add_u32 s42, s54, {k}\ns_cmp_lg_u32 s53, 2\ns_cbranch_scc1 L_ppn{tag}_{k}")
            P("""s_mul_i32 s43, s42, 9363
s_lshr_b32 s43, s43, 16
s_cmp_eq_u32 s42, 48
s_cselect_b32 s43, 7, s43
s_mul_i32 s44, s43, 7
s_sub_u32 s44, s42, s44
s_cmp_eq_u32 s43, 7
s_addc_u32 s44, s44, 0
s_lshl_b32 s42, s44, 3
s_add_u32 s42, s42, s43""")
            P(f"L_ppn{tag}_{k}:\ns_mul_i32 s42, s42, s46\ns_add_u32 s42, s42, s52\ns_waitcnt lgkmcnt({10-2*k})")
            P(f"buffer_store_dwordx4 v[{64+4*k}:{67+4*k}], v14, s[20:23], s42 offen{PSF}")
        P(f"L_pp5{tag}:\ns_cmp_eq_u32 s55, 0\ns_cbranch_scc1 L_ppe{tag}")
        for r in range(20): P(f"v_dot2c_f32_bf16 v60, v{64+r}, v62")
        xg_reduce(P, [60], [61])
        P("v_lshlrev_b32 v61, 2, v1\ns_mov_b64 exec, 0xffff\nbuffer_store_dword v60, v61, s[20:23], s55 offen\ns_mov_b64 exec, -1")
        P(f"L_ppe{tag}:\ns_waitcnt lgkmcnt(0)")
    P("s_mul_i32 s48, s31, 15\ns_add_u32 s48, s48, s32")
    decode("m")
    for r in range(8): P(f"v_mov_b32 v{16+r}, 0")
    P("v_add_u32 v15, s39, v14\nv_add_u32 v24, 0x10000, v15")
    for i in range(10):
        P(f"s_waitcnt vmcnt({min(nvm[0]-1-last[i], nvm[0]-1-pid if i == PP else 99)})\ns_barrier")
        slot = (i % 4) * 32768
        for j in range(4):
            P(f"ds_read_b128 v[{32+4*j}:{35+4*j}], v{24 if slot >= 65536 else 15} offset:{slot % 65536 + j*1024}")
        if i + 2 < 10: dma(i + 2)
        if i == PI: prep_dma(PB); pid = nvm[0] - 1
        for j in range(4):
            if opt.get("NOSTAT"): break
            P(f"s_waitcnt lgkmcnt({3-j})")
            for r in range(4):
                s_ = 32 + 4*j + r
                P(f"v_lshlrev_b32 v{48+2*r}, 16, v{s_}\nv_and_b32 v{49+2*r}, 0xffff0000, v{s_}")
            for r in range(8):
                P(f"v_add_f32 v{16+j}, v{16+j}, v{48+r}\nv_fmac_f32 v{20+j}, v{48+r}, v{48+r}")
        if i == PP: prep_proc("m", PB); nvm[0] += 5
    stamp()
    for ctl in ("quad_perm:[1,0,3,2]", "quad_perm:[2,3,0,1]", "row_half_mirror"):
        for r in range(8): P(f"v_add_f32_dpp v{16+r}, v{16+r}, v{16+r} {ctl} row_mask:0xf bank_mask:0xf")
    for j in range(4):
        P(f"v_mul_f32 v{16+j}, {f2u(1/640)}, v{16+j}\nv_mul_f32 v{20+j}, {f2u(1/640)}, v{20+j}")
    for j in range(4):
        P(f"v_fma_f32 v{20+j}, -v{16+j}, v{16+j}, v{20+j}\nv_max_f32 v{20+j}, 0, v{20+j}\nv_add_f32 v{20+j}, {f2u(EPS)}, v{20+j}")
    for j in range(4): P(f"v_rsq_f32 v{20+j}, v{20+j}")
    for j in range(4): P(f"v_mul_f32 v{16+j}, v{16+j}, v{20+j}")
    P(f"s_lshl_b32 s42, s33, 7\ns_add_u32 s42, s42, {STAT}\nv_lshl_add_u32 v11, v8, 2, s42")
    for j in range(4): P(f"ds_write_b32 v11, v{20+j} offset:{32*j}\nds_write_b32 v11, v{16+j} offset:{512+32*j}")
    P("s_waitcnt vmcnt(0) lgkmcnt(0)\ns_barrier" if PP >= 10 else "s_waitcnt lgkmcnt(0)\ns_barrier")
    stamp()
    if PP >= 10: prep_proc("m", PB)
    stamp(); stamp_out()
    P("s_endpgm")
    P("L_k1_spare_h:\ns_waitcnt lgkmcnt(0)")
    srd(P, 20, 8, L.WS_USED)
    P("s_add_u32 s48, s31, 240\ns_mov_b32 s47, 0\nL_sp1:")
    decode("a")
    prep_dma("s47")
    P("s_add_u32 s48, s48, 16\ns_add_u32 s47, s47, 24576\ns_cmp_lt_u32 s48, 318\ns_cbranch_scc1 L_sp1")
    P("s_waitcnt vmcnt(0)\ns_barrier")
    P("s_add_u32 s48, s31, 240\ns_mov_b32 s47, 0\nL_sp2:")
    decode("b")
    prep_proc("b", "s47")
    P("s_nop 4\ns_add_u32 s48, s48, 16\ns_add_u32 s47, s47, 24576\ns_cmp_lt_u32 s48, 318\ns_cbranch_scc1 L_sp2")
    P("L_k1_end:\ns_endpgm")
    return (name, 256, 512, STAT + 2048, 256)
```

```python
from asmlib import *
from gen1 import f2u, LOG2E, ONES, EPS, ARG, SZ, srd, header, xg_reduce

RING = 7
KV_LDS = 5 * 20480
XR_LDS = RING * 20480
CS1_LDS = XR_LDS + 12288
CS3_LDS = CS1_LDS + 1024
SY_LDS = CS3_LDS + 1024
LDS_TOTAL = SY_LDS + 64
SPIN_MAX = 400000
STAMP_OFF = 0x4000000

class VM:
    def __init__(s, P): s.P = P; s.n = 0
    def op(s, text, k=1): s.P(text); s.n += k; return s.n - 1
    def cnt(s, idx):
        c = s.n - 1 - idx
        assert 0 <= c <= 63, c
        return c
    def wait(s, idx, extra=""): s.P(f"s_waitcnt vmcnt({s.cnt(idx)}){extra}")
class LG(VM):
    def cnt(s, idx): return min(15, s.n - 1 - idx)
    def wait(s, idx): s.P(f"s_waitcnt lgkmcnt({s.cnt(idx)})")

_lab = [0]
def lab(p):
    _lab[0] += 1
    return f"L_{p}{_lab[0]}"

def gen_k2(P, L, opt):
    STAMP = opt.get("STAMP", False); FOCUS = opt.get("FOCUS", 0)
    NTOUCH = opt.get("NTOUCH", 1); THIN = opt.get("THIN", 1); PRE = opt.get("PRE", 8); PRE4 = opt.get("PRE4", 12)
    NSTG = L.NSTG; DBG = opt.get("DBG", 0)
    tails = []
    def store2(vm, lines):
        a, b = lab("sf"), lab("se")
        P(f"s_cbranch_scc1 {a}" if False else f"s_cmp_lg_u32 s24, 0\ns_cbranch_scc1 {a}")
        for l in lines: P(l)
        P(f"{b}:")
        tails.append(f"{a}:\ns_nop 4\n" + "\n".join(l + " sc1" for l in lines) + f"\ns_nop 1\ns_branch {b}")
        vm.n += len(lines)
        return vm.n - 1
    def poll_check(vaddr, vdata, soff, need):
        a, b, c = lab("pl"), lab("pd"), lab("pr")
        P(f"v_cmp_gt_u32 vcc, {need}, v{vdata}\ns_cbranch_vccnz {a}\n{b}:")
        tails.append(f"""{a}:
s_mov_b32 s47, 0
{c}:
buffer_load_dword v{vdata}, v{vaddr}, s[20:23], {soff} offen sc1
s_add_u32 s47, s47, 1
s_cmp_ge_u32 s47, {SPIN_MAX}
s_waitcnt vmcnt(0)
s_cbranch_scc1 {b}
v_cmp_gt_u32 vcc, {need}, v{vdata}
s_cbranch_vccnz {c}
s_branch {b}""")
    def lds_check(vaddr, vdata, off, need, back=''):
        a, b, c = lab("ll"), lab("ld"), lab("lr")
        P(f"v_cmp_gt_u32 vcc, {need}, v{vdata}\ns_cbranch_vccnz {a}\n{b}:")
        tails.append(f"""{a}:
s_mov_b32 s47, 0
{c}:
{back}ds_read_b32 v{vdata}, v{vaddr} offset:{off}
s_add_u32 s47, s47, 1
s_cmp_ge_u32 s47, {SPIN_MAX*4}
s_waitcnt lgkmcnt(0)
s_cbranch_scc1 {b}
v_cmp_gt_u32 vcc, {need}, v{vdata}
s_cbranch_vccnz {c}
s_branch {b}""")
    class Stamper:
        def __init__(s, base, n): s.i = 0; s.base = base; s.n = n
        def __call__(s):
            if not (STAMP or DBG): return
            assert s.i < s.n
            if DBG:
                P(f"s_memrealtime s[{s.base+2*s.i}:{s.base+2*s.i+1}]"); s.i += 1; return
            P(f"s_memtime s[{s.base+2*s.i}:{s.base+2*s.i+1}]"); s.i += 1
    def stamp_dump(regs):
        regs = regs + [regs[-1]] * (22 - len(regs))
        P("s_waitcnt lgkmcnt(0)\nv_mov_b32 v40, s100\ns_memrealtime s[100:101]\ns_waitcnt lgkmcnt(0)\nv_mov_b32 v41, s100\nv_mov_b32 v2, 0")
        for i, r in enumerate(regs): P(f"v_mov_b32 v{42+i}, s{r}")
        P("s_mov_b32 s22, 0x8000000")
        P(f"s_lshl_b32 s43, s2, 3\ns_add_u32 s43, s43, s30\ns_lshl_b32 s43, s43, 7\ns_add_u32 s43, s43, {STAMP_OFF + 2*0x100000}\ns_mov_b64 exec, 1")
        for i in range(6): P(f"buffer_store_dwordx4 v[{40+4*i}:{43+4*i}], v2, s[20:23], s43 offen offset:{16*i}")

    name = "main_kernel"
    header(P, name)
    sa = Stamper(80, 8)
    P(f"s_load_dwordx2 s[8:9], s[0:1], {ARG['ws']}\ns_load_dwordx2 s[4:5], s[0:1], {ARG['x']}\ns_load_dwordx2 s[6:7], s[0:1], {ARG['out']}")
    P("s_cmp_ge_u32 s2, 256\ns_cbranch_scc1 L_end")
    if STAMP: P("s_memrealtime s[100:101]")
    sa()
    P("v_and_b32 v1, 63, v0\nv_lshrrev_b32 v2, 6, v0\nv_readfirstlane_b32 s30, v2\nv_lshlrev_b32 v3, 4, v1")
    P("s_and_b32 s25, s2, 7\ns_lshr_b32 s26, s2, 3")
    P(f"""s_cmp_ge_u32 s30, 4
s_mov_b32 s46, {L.K_OFF - 327680}
s_cmov_b32 s46, {L.V_OFF - 327680}
s_mul_i32 s35, s26, 10240
s_add_u32 s46, s46, s35
s_bfe_u32 s36, s30, 0x10001
s_add_u32 s36, s36, s25
s_mul_i32 s36, s36, 327680
s_add_u32 s46, s46, s36
s_and_b32 s36, s30, 1
s_mul_i32 s36, s36, 5120
s_add_u32 s46, s46, s36
s_mul_i32 s47, s30, 5120
s_add_u32 s47, s47, {KV_LDS}
s_mul_i32 s40, s25, 327680
s_add_u32 s40, s40, s35
s_mul_i32 s41, s30, 1280
s_add_u32 s40, s40, s41
v_and_b32 v13, 31, v1
v_lshrrev_b32 v14, 5, v1
v_lshlrev_b32 v5, 3, v13
v_lshl_add_u32 v6, v14, 9, v5
s_mov_b32 s22, {L.WS_USED}
s_mov_b32 s23, 0x20000
s_waitcnt lgkmcnt(0)
s_mov_b32 s20, s8
s_and_b32 s21, s9, 0xffff""")
    def kvdma():
        P("s_mov_b32 m0, s47")
        for i in range(4): P(f"buffer_load_dwordx4 v3, s[20:23], s46 offen offset:{i*1024} lds")
        P("s_add_u32 m0, s47, 4096\ns_add_u32 s46, s46, 4096\nbuffer_load_dwordx4 v3, s[20:23], s46 offen lds")
    P("""buffer_load_dwordx2 v[16:17], v6, s[20:23], s40 offen
buffer_load_dwordx2 v[18:19], v6, s[20:23], s40 offen offset:256
buffer_load_dwordx2 v[20:21], v5, s[20:23], s40 offen offset:1024""")
    P("s_cmp_ge_u32 s30, 4\ns_cbranch_scc1 L_nok")
    kvdma()
    P("L_nok:")
    srd(P, 12, 4, SZ); srd(P, 16, 6, SZ)
    P("s_and_b32 s27, s26, 3\ns_lshl_b32 s28, s25, 2\ns_add_u32 s27, s27, s28\ns_lshr_b32 s28, s2, 5\ns_lshl_b32 s31, s25, 3\ns_add_u32 s31, s31, s30")
    P(f"""v_mov_b32 v22, 0
v_mov_b32 v23, 0
s_add_u32 s41, s41, {KV_LDS}
v_add_u32 v24, s41, v6
v_add_u32 v25, s41, v5
v_mul_u32_u24 v26, 320, v14
v_lshl_add_u32 v26, v13, 4, v26
v_add_u32 v26, s41, v26""")
    S, KF, VF, OA, PM, CA = 32, 176, 200, 224, 240, 8
    RMV, L4V, FXV, L7V, MODEV = 248, 249, 250, 251, 252
    for r in range(16):
        m = 0
        for l in range(64):
            if 8*(r >> 2) + 4*(l >> 5) + (r & 3) <= (l & 31): m |= 1 << l
        P(f"s_mov_b32 s{48+2*r}, {m & 0xffffffff:#x}\ns_mov_b32 s{49+2*r}, {m >> 32:#x}")
    P("s_cmp_lt_u32 s30, 4\ns_cbranch_scc1 L_nov")
    kvdma()
    P("L_nov:")
    for b in range(3): P(f"v_mov_b32 v{KF+b*8+6}, 0\nv_mov_b32 v{KF+b*8+7}, 0")
    for r in range(24): P(f"v_mov_b32 v{VF+r}, {ONES}")
    for r in range(16): P(f"v_mov_b32 v{OA+r}, 0")
    P("v_mov_b32 v4, 0xffff\nv_mov_b32 v7, 0xffff0000")
    for p in range(8):
        P(f"v_cndmask_b32 v{PM+p}, 0, v4, s[{48+4*p}:{49+4*p}]\nv_cndmask_b32 v12, 0, v7, s[{50+4*p}:{51+4*p}]\nv_or_b32 v{PM+p}, v{PM+p}, v12")
    P(f"v_cmp_gt_u32 vcc, 32, v1\nv_mov_b32 v4, 0xbf80bf80\nv_mov_b32 v7, 0x0000bf80\nv_cndmask_b32 v{CA}, 0, v4, vcc\nv_cndmask_b32 v{CA+1}, 0, v7, vcc\nv_mov_b32 v{CA+2}, 0\nv_mov_b32 v{CA+3}, 0")
    P("s_mov_b32 s44, 0x000fffff\ns_mov_b32 s45, 0x000fffff")
    P("s_and_b32 s29, s30, 3\ns_lshl_b32 s43, s27, 2\ns_add_u32 s29, s29, s43")
    P("s_mul_i32 s34, s28, 5\ns_and_b32 s37, s28, 1\ns_lshr_b32 s35, s34, 1\ns_add_u32 s36, s35, 2\ns_lshl_b32 s43, s37, 1\ns_sub_u32 s36, s36, s43\ns_add_u32 s35, s35, s37")
    P(f"s_mul_i32 s32, s28, {L.SLICE_B}\ns_add_u32 s32, s32, {L.WS_OFF}")
    P("s_mul_i32 s39, s30, 12\ns_mul_i32 s43, s30, 13\ns_sub_u32 s43, s43, 4\ns_cmp_ge_u32 s30, 4\ns_cselect_b32 s39, s43, s39\ns_lshl_b32 s39, s39, 10\ns_add_u32 s38, s32, s39")
    P(f"v_lshrrev_b32 v{RMV}, 2, v1\nv_mul_u32_u24 v{RMV}, 1280, v{RMV}\nv_and_b32 v4, 3, v1\nv_lshl_add_u32 v{RMV}, v4, 4, v{RMV}")
    P(f"v_lshlrev_b32 v{L4V}, 2, v13\ns_cmp_eq_u32 s25, 7\ns_cselect_b32 s43, 31, 63\nv_and_b32 v{FXV}, s43, v1\nv_lshlrev_b32 v{FXV}, 2, v{FXV}\nv_lshlrev_b32 v{L7V}, 7, v1")
    P(f"v_cmp_gt_u32 vcc, 4, v1\nv_cndmask_b32 v4, 0, 5, vcc\nv_and_b32 v7, 7, v1\nv_lshlrev_b32 v7, 2, v7\nv_add_u32 v7, {SY_LDS}, v7\ns_mov_b64 exec, 0xff\nds_write_b32 v7, v4\ns_mov_b64 exec, -1")
    vm = VM(P)
    side = [(3, f"""s_lshl_b32 s46, s25, 5
s_add_u32 s46, s46, s26
s_lshl_b32 s46, s46, 3
s_add_u32 s46, s46, s30
s_lshl_b32 s46, s46, 10
s_add_u32 s46, s46, {L.GX_OFF}
buffer_load_dwordx4 v[4:7], v3, s[20:23], s46 offen
s_lshl_b32 s46, s29, 7
s_add_u32 s46, s46, {L.FR_OFF}
buffer_load_dword v253, v{L4V}, s[20:23], s46 offen
s_lshl_b32 s46, s31, 7
s_add_u32 s46, s46, {L.FO_OFF}
buffer_load_dword v253, v{L4V}, s[20:23], s46 offen""")]
    for i in range(12):
        pre = f"s_add_u32 m0, s39, {i*1024}\ns_add_u32 s43, s38, {i*1024}\n" if i % 4 == 0 else ""
        side.append((1, pre + f"buffer_load_dwordx4 v3, s[20:23], s43 offen offset:{(i%4)*1024} lds"))
    side.append((3, f"""s_cmp_ge_u32 s30, 4
s_cbranch_scc1 L_side_l
s_mul_i32 s46, s29, 20480
s_lshl_b32 s43, s35, 6
s_add_u32 s43, s43, s46
s_mul_i32 s47, s30, 3072
s_add_u32 m0, s47, {XR_LDS}
s_nop 0
buffer_load_dwordx4 v{RMV}, s[12:15], s43 offen lds
s_add_u32 m0, s47, {XR_LDS+1024}
s_add_u32 s43, s43, 64
buffer_load_dwordx4 v{RMV}, s[12:15], s43 offen lds
s_lshl_b32 s43, s36, 6
s_add_u32 s43, s43, s46
s_add_u32 m0, s47, {XR_LDS+2048}
s_nop 0
buffer_load_dwordx4 v{RMV}, s[12:15], s43 offen lds
s_branch L_side_e
L_side_l:
s_add_u32 m0, s39, {12*1024}
s_add_u32 s43, s38, {12*1024}
buffer_load_dwordx4 v3, s[20:23], s43 offen lds
s_and_b32 s46, s30, 3
s_mul_i32 s43, s46, 2560
s_mul_i32 s47, s28, 320
s_add_u32 s43, s43, s47
s_add_u32 s43, s43, {L.CS1_OFF}
buffer_load_dword v253, v3, s[20:23], s43 offen
s_lshl_b32 s43, s46, 13
s_mul_i32 s47, s28, 896
s_add_u32 s43, s43, s47
s_add_u32 s43, s43, {L.CS3_OFF - 128}
buffer_load_dword v253, v3, s[20:23], s43 offen
L_side_e:"""))
    for k in range(NTOUCH):
        side.append((1, f"""s_and_b32 s46, s27, 3
s_lshl_b32 s46, s46, 3
s_add_u32 s46, s46, s30
s_lshl_b32 s46, s46, 13
s_add_u32 s46, s46, s32
s_add_u32 s46, s46, {5*20480 + k*262144}
buffer_load_dword v253, v{L7V}, s[20:23], s46 offen"""))
    def do_side(k=1):
        for _ in range(k):
            if side:
                n, t = side.pop(0); vm.op(t, n)
    sa()
    P("s_waitcnt vmcnt(5)\ns_cmp_ge_u32 s30, 4\ns_cbranch_scc1 L_b0\ns_waitcnt vmcnt(0)\nL_b0:")
    P("v_cmp_gt_u32 vcc, 32, v1\nv_cndmask_b32 v20, 0, v20, vcc\nv_cndmask_b32 v21, 0, v21, vcc\ns_waitcnt lgkmcnt(0)")
    P("s_barrier")
    sa()
    if STAMP or DBG: P("s_waitcnt lgkmcnt(0)")
    lg = LG(P)
    kid = {}
    def kread(t):
        b = t % 3
        kid[t] = lg.op(f"ds_read_b64 v[{KF+b*8}:{KF+b*8+1}], v24 offset:{t*1280}\nds_read_b64 v[{KF+b*8+2}:{KF+b*8+3}], v24 offset:{t*1280+256}\nds_read_b64 v[{KF+b*8+4}:{KF+b*8+5}], v25 offset:{t*1280+1024}", 3)
    M = 28
    mstate = {"n": 0}
    def maxops(t):
        ops = []
        for r in range(0, 16, 2):
            k = mstate["n"] & 1
            a, b = S + 16*t + r, S + 16*t + r + 1
            if mstate["n"] < 2: ops.append(f"v_max_f32 v{M+k}, v{a}, v{b}")
            else: ops.append(f"v_max3_f32 v{M+k}, v{M+k}, v{a}, v{b}")
            mstate["n"] += 1
        return ops
    kread(8); kread(7)
    for t in range(8, -1, -1):
        b = t % 3
        d = v(S + 16*t, 16)
        if t < 8:
            a, e = lab("ab"), lab("ae")
            P(f"s_cmp_eq_u32 s31, {7-t}\ns_cbranch_scc1 {a}\n{e}:")
            tails.append(f"{a}:\ns_nop 7\n" + "\n".join(f"v_mov_b32 v{OA+r}, 0xff800000" for r in range(16)) + f"\ns_nop 1\ns_branch {e}")
        mo = maxops(t + 1) if 1 <= t + 1 <= 7 else []
        lg.wait(kid[t])
        P(f"v_mfma_f32_32x32x16_bf16 {d}, {v(KF+b*8,4)}, v[16:19], {v(OA,16)}")
        if t - 2 >= 0: kread(t - 2)
        P(f"v_mfma_f32_32x32x16_bf16 {d}, {v(KF+b*8+4,4)}, v[20:23], {d}")
        if t % 2 == 0: do_side()
        for o in mo: P(o)
    for r in range(16): P(f"v_cndmask_b32 v{S+r}, v{S+r}, v{S+128+r}, s[{48+2*r}:{49+2*r}]")
    for o in maxops(0): P(o)
    P(f"v_max_f32 v{M}, v{M}, v{M+1}\nv_mov_b32 v{M+1}, v{M}")
    P(f"s_waitcnt vmcnt({vm.n})")
    P(f"v_permlane32_swap_b32 v{M}, v{M+1}\nv_max_f32 v{M}, v{M}, v{M+1}")
    P("s_barrier")
    vid = {}
    def vread(t, slot):
        P("s_mov_b64 exec, s[44:45]")
        vid[t] = lg.op(f"ds_read_b128 {v(VF+slot*8,4)}, v26 offset:{20480+t*1280}\nds_read_b128 {v(VF+slot*8+4,4)}, v26 offset:{20480+t*1280+640}", 2)
        P("s_mov_b64 exec, -1")
    P(f"""v_and_b32 v29, 0xffff0000, v{M}
v_sub_f32 v30, v{M}, v29
v_and_b32 v31, 0xffff0000, v30
v_sub_f32 v30, v30, v31
v_lshrrev_b32 v29, 16, v29
v_or_b32 v20, v29, v31
v_lshrrev_b32 v21, 16, v30""")
    sa()
    order = [0, 1, 2, 3, 4, 5, 6, 7]
    slot_of = {8: 0, 0: 1}
    for i, t in enumerate(order[1:]): slot_of[t] = (2 + i) % 3
    def subm(t): P(f"v_mfma_f32_32x32x16_bf16 {v(S+16*t,16)}, {v(CA,4)}, v[20:23], {v(S+16*t,16)}")
    subm(0)
    vread(8, 0); vread(0, 1)
    P("s_cmp_eq_u32 s30, 0\ns_cbranch_scc1 L_xcc\nL_xcce:")
    tails.append(f"""L_xcc:
s_getreg_b32 s42, hwreg(HW_REG_XCC_ID)
s_and_b32 s42, s42, 15
s_add_u32 s42, s42, 1
v_mov_b32 v31, s42
s_lshl_b32 s46, s25, 5
s_add_u32 s46, s46, s26
s_lshl_b32 s46, s46, 2
s_add_u32 s46, s46, {L.FX_OFF}
v_mov_b32 v30, 0
s_mov_b64 exec, 1
buffer_store_dword v31, v30, s[20:23], s46 offen sc1
s_mov_b64 exec, -1
s_branch L_xcce""")
    pend = []
    firstpv = [True]
    def pv(vt, half, preg):
        def f():
            if half == 0: lg.wait(vid[vt])
            c = "0" if firstpv[0] else v(OA, 16); firstpv[0] = False
            P(f"v_mfma_f32_32x32x16_bf16 {v(OA,16)}, {v(VF+slot_of[vt]*8+4*half,4)}, {v(preg+4*half,4)}, {c}")
        return f
    D8 = S + 128
    for i, t in enumerate(order):
        base = S + 16*t
        ms = []
        if i + 1 < 8: ms.append(lambda tt=order[i+1]: (subm(tt), do_side()))
        ms += pend; pend = []
        nm = len(ms)
        pos = [int(k * 16 / nm) for k in range(nm)]
        for r in range(16):
            while pos and pos[0] == r:
                pos.pop(0); ms.pop(0)()
                if not pos and i + 1 < 8: vread(order[i+1], slot_of[order[i+1]]); do_side()
            P(f"v_exp_f32 v{base+r}, v{base+r}")
        if i == 5: fxp = vm.op(f"s_lshl_b32 s33, s25, 7\ns_add_u32 s33, s33, {L.FX_OFF}\nbuffer_load_dword v{MODEV}, v{FXV}, s[20:23], s33 offen sc1")
        for p in range(8): P(f"v_cvt_pk_bf16_f32 v{base+p}, v{base+2*p}, v{base+2*p+1}")
        if t == 0:
            for p in range(8): P(f"v_and_b32 v{D8+p}, v{PM+p}, v{base+p}\nv_bfi_b32 v{base+p}, v{PM+p}, 0, v{base+p}")
            pend = [pv(8, 0, D8), pv(8, 1, D8), pv(0, 0, base), pv(0, 1, base)]
        else:
            pend = [pv(t, 0, base), pv(t, 1, base)]
    assert not side, len(side)
    for f in pend: f()
    sa()
    P(f"""s_mul_i32 s41, s26, 5
v_add_u32 v8, s41, v14
v_lshrrev_b32 v9, 4, v13
v_mul_u32_u24 v9, 20480, v9
v_and_b32 v10, 15, v13
v_lshl_add_u32 v9, v10, 4, v9""")
    for b in range(3):
        P(f"v_add_u32 v10, {2*b}, v8\nv_lshrrev_b32 v11, 1, v10\nv_lshl_add_u32 v11, v11, 8, v9\nv_and_b32 v10, 1, v10\nv_lshl_add_u32 v{16+b}, v10, 3, v11")
    P("v_cmp_gt_u32 vcc, 32, v1\nv_mov_b32 v10, 0x7ffffff0\nv_cndmask_b32 v18, v10, v18, vcc")
    P(f"s_mul_i32 s41, s31, 40960\ns_add_u32 s41, s41, {L.O_OFF}")
    P("s_waitcnt vmcnt(0)")
    if FOCUS == 9: sa()
    poll_check(FXV, MODEV, "s33", 1)
    if FOCUS == 9: sa()
    P(f"v_readfirstlane_b32 s43, v{MODEV}\nv_rcp_f32 v28, v{OA+12}\nv_cmp_ne_u32 vcc, s43, v{MODEV}\nv_mov_b32 v29, v28\ns_cmp_lg_u32 vcc_lo, 0\ns_cselect_b32 s24, 1, 0")
    if opt.get("SAFE"): P("s_mov_b32 s24, 1")
    for p in range(6): P(f"v_pk_mul_f32 v[{OA+2*p}:{OA+2*p+1}], v[{OA+2*p}:{OA+2*p+1}], v[28:29]")
    for p in range(6): P(f"v_cvt_pk_bf16_f32 v{32+p}, v{OA+2*p}, v{OA+2*p+1}")
    store2(vm, [f"buffer_store_dwordx2 v[{32+2*b}:{33+2*b}], v{16+b}, s[20:23], s41 offen" for b in range(3)])
    P(f"s_lshl_b32 s43, s31, 5\ns_add_u32 s43, s43, s26\ns_lshl_b32 s43, s43, 2\ns_add_u32 s43, s43, {L.FO_OFF}\nv_mov_b32 v2, 0\nv_mov_b32 v7, 1")
    P("s_waitcnt vmcnt(0)\ns_mov_b64 exec, 1")
    store2(vm, ["buffer_store_dword v7, v2, s[20:23], s43 offen"])
    P("s_mov_b64 exec, -1")
    sa()
    P(f"v_and_b32 v254, 3, v1\nv_lshlrev_b32 v254, 2, v254\nv_add_u32 v254, {SY_LDS}, v254")
    P(f"s_and_b32 s43, s30, 3\ns_lshl_b32 s43, s43, 2\ns_add_u32 s43, s43, {SY_LDS}\nv_mov_b32 v255, s43")
    P("s_cmp_ge_u32 s30, 4\ns_cbranch_scc1 L_loader")

    st0 = Stamper(48, 16)
    def st():
        if FOCUS == 0: st0()
    def sf(ph):
        if FOCUS == ph: st0()
    ACC, BF, ST, ST1, ST3, HP, ACC4, CS, PK, AF, A4 = 16, 40, 68, 72, 76, 80, 92, 112, 132, 144, 224
    NA4 = 6
    SYA, SYW, SYD, SYV = 254, 255, 90, 91
    D = 6
    P(f"s_lshr_b32 s43, s29, 1\ns_lshl_b32 s43, s43, 7\ns_add_u32 s45, s43, {L.FO_OFF}\nbuffer_load_dword v15, v{L4V}, s[20:23], s45 offen sc1")
    P("s_mul_i32 s40, s29, 20480\ns_lshl_b32 s41, s35, 10\ns_add_u32 s41, s41, s40\ns_lshl_b32 s42, s36, 10\ns_add_u32 s42, s42, s40\ns_lshl_b32 s43, s37, 3\ns_add_u32 s42, s42, s43")
    P("v_add_u32 v8, 0x10000, v3\nv_add_u32 v9, 0x20000, v3")
    P(f"s_mul_i32 s46, s30, 3072\ns_add_u32 s46, s46, {XR_LDS}")
    P("v_and_b32 v5, 15, v1\nv_lshlrev_b32 v5, 6, v5\nv_lshrrev_b32 v6, 4, v1\nv_lshl_add_u32 v5, v6, 4, v5\nv_add_u32 v5, s46, v5\ns_lshl_b32 s43, s37, 3\nv_add_u32 v6, s43, v5")
    P(f"v_and_b32 v7, 0x30, v1\nv_add_u32 v7, {CS1_LDS}, v7")
    P(f"s_lshl_b32 s33, s29, 7\ns_add_u32 s33, s33, {L.FR_OFF}\ns_lshl_b32 s43, s28, 2\ns_add_u32 s34, s33, s43")
    P("v_and_b32 v14, 7, v1\nv_lshlrev_b32 v14, 2, v14")
    P(f"s_lshl_b32 s46, s29, 14\ns_add_u32 s46, s46, {L.GX_OFF}")
    def lds_off(stage, chunk):
        off = (stage % RING) * 20480 + chunk * 1024
        return (3 if off < 65536 else (8 if off < 131072 else 9)), off % 65536
    def unpack(dst, src, n):
        for i in range(n): P(f"v_lshlrev_b32 v{dst+2*i}, 16, v{src+i}\nv_and_b32 v{dst+2*i+1}, 0xffff0000, v{src+i}")
    def set_flag(vm, val):
        P(f"v_mov_b32 v4, {val}\ns_mov_b64 exec, 1")
        store2(vm, ["buffer_store_dword v4, v2, s[20:23], s34 offen"])
        P("s_mov_b64 exec, -1")
    cnt = [0]
    def rdw(lg, stage, chunk):
        ar, off = lds_off(stage, chunk)
        r = BF + (cnt[0] % (D + 1)) * 4; cnt[0] += 1
        return r, lg.op(f"ds_read_b128 {v(r,4)}, v{ar} offset:{off}")
    def free_sig(lg): lg.op(f"ds_write_b32 v{SYW}, v{SYV} offset:16")
    def rdy_read(lg): return lg.op(f"ds_read_b32 v{SYD}, v{SYA}")
    def stats_fin(R):
        P(f"v_add_f32 v{R}, v{R}, v{R+2}\nv_add_f32 v{R+1}, v{R+1}, v{R+3}")
        xg_reduce(P, [R, R+1], [R+2, R+3])
        P(f"v_mul_f32 v{R}, {f2u(1/640)}, v{R}\nv_mul_f32 v{R+1}, {f2u(1/640)}, v{R+1}\nv_fma_f32 v{R+1}, -v{R}, v{R}, v{R+1}\nv_max_f32 v{R+1}, 0, v{R+1}")
        P(f"v_add_f32 v{R+2}, {f2u(EPS)}, v{R+1}\nv_rsq_f32 v{R+2}, v{R+2}")
    def kloop(stage_chunk, tiles, aoff, vaddr_of_ks, accinit, frees, stat=None, ph=0, post=None):
        vm = VM(P); lg = LG(P)
        ids = {}
        def aload(ks):
            if ks % 4 == 0: P(f"s_add_u32 s43, s40, {aoff + ks*1024}")
            ids[ks] = vm.op(f"buffer_load_dwordx4 {v(AF+4*ks,4)}, v{vaddr_of_ks(ks)}, s[20:23], s43 offen offset:{(ks%4)*1024} sc1")
        sf(ph)
        for ks in range(PRE): aload(ks)
        sf(ph)
        nt = len(tiles)
        items = [(ks, t) for ks in range(20) for t in tiles]
        N = len(items)
        rr = []
        def rd(n):
            ks, t = items[n]
            if t == tiles[0] and ks in frees: free_sig(lg)
            rr.append(rdw(lg, *stage_chunk(ks, t)))
            if n == N - 1 and 20 in frees: free_sig(lg)
        for n in range(D): rd(n)
        for n, (ks, t) in enumerate(items):
            if n + D < N: rd(n + D)
            if t == tiles[0]:
                if ks + PRE < 20: aload(ks + PRE)
                if stat and ks == 3: sp = vm.op("buffer_load_dword v15, v14, s[20:23], s33 offen sc1")
                if stat and ks == 9:
                    vm.wait(sp); poll_check(14, 15, "s33", stat[0])
                    sl = vm.op(f"s_add_u32 s44, s46, {stat[2]}\nbuffer_load_dwordx4 {v(stat[1],4)}, v3, s[20:23], s44 offen sc1")
                P(f"s_waitcnt vmcnt({vm.cnt(ids[ks])}) lgkmcnt({lg.cnt(rr[n][1])})")
                if ks in (0, 1, 2, 4, 8, 12, 16): sf(ph)
                for fk, fv in frees.items():
                    if ks == fk - 3: P(f"v_mov_b32 v{SYV}, {fv}")
            else:
                lg.wait(rr[n][1])
            a = ACC + 4 * tiles.index(t)
            P(f"v_mfma_f32_16x16x32_bf16 {v(a,4)}, {v(rr[n][0],4)}, {v(AF+4*ks,4)}, {v(a,4) if (accinit or ks > 0) else '0'}")
        sf(ph)
        return vm, lg
    def pack(dst, src, n):
        for i in range(n): P(f"v_cvt_pk_bf16_f32 v{dst+i}, v{src+2*i}, v{src+2*i+1}")
    def tile_then_stats(pk, off, stoff, f1):
        vm = VM(P)
        P(f"s_add_u32 s43, s41, {off}\ns_add_u32 s44, s42, {off}")
        store2(vm, [f"buffer_store_dwordx4 {v(pk,4)}, v3, s[20:23], s43 offen", f"buffer_store_dwordx4 {v(pk+4,4)}, v3, s[20:23], s43 offen offset:1024", f"buffer_store_dwordx2 {v(pk+8,2)}, v3, s[20:23], s44 offen"])
        P(f"v_mov_b32 v10, 0\nv_mov_b32 v11, 0\nv_mov_b32 v12, {ONES}")
        for i in range(10): P(f"v_dot2c_f32_bf16 v10, v{pk+i}, v12\nv_dot2c_f32_bf16 v11, v{pk+i}, v{pk+i}")
        xg_reduce(P, [10, 11], [12, 13])
        P(f"s_lshr_b32 s44, s28, 1\ns_lshl_b32 s44, s44, 8\ns_add_u32 s43, s46, s44\ns_lshl_b32 s44, s37, 3\ns_add_u32 s43, s43, s44\ns_add_u32 s43, s43, {stoff}")
        sf(8)
        P("s_waitcnt vmcnt(0)")
        sf(8)
        set_flag(vm, f1)
        P("s_mov_b64 exec, 0xffff")
        store2(vm, ["buffer_store_dwordx2 v[10:11], v3, s[20:23], s43 offen"])
        P("s_mov_b64 exec, -1")
    kk = 2 * 0.7978845608028654 * LOG2E
    def gelu_items(a0, c0, n, STR, pk):
        Lx = []
        pr = range(0, n, 2)
        for i in pr: Lx.append(f"v_pk_mul_f32 {v(c0+i,2)}, {v(c0+i,2)}, {v(STR,2)}")
        for i in pr: Lx.append(f"v_pk_fma_f32 {v(a0+i,2)}, {v(a0+i,2)}, {v(STR+2,2)}, {v(c0+i,2)} neg_lo:[0,0,1] neg_hi:[0,0,1]")
        for i in pr: Lx.append(f"v_pk_mul_f32 {v(c0+i,2)}, {v(a0+i,2)}, {v(a0+i,2)}")
        for i in pr: Lx.append(f"v_pk_fma_f32 {v(c0+i,2)}, {v(c0+i,2)}, v[10:11], v[12:13]")
        for i in pr: Lx.append(f"v_pk_mul_f32 {v(c0+i,2)}, {v(c0+i,2)}, {v(a0+i,2)}")
        for i in range(n): Lx.append(f"v_exp_f32 v{c0+i}, v{c0+i}")
        for i in pr: Lx.append(f"v_pk_add_f32 {v(c0+i,2)}, {v(c0+i,2)}, 1.0 op_sel_hi:[1,0]")
        for i in range(n): Lx.append(f"v_rcp_f32 v{c0+i}, v{c0+i}")
        for i in pr: Lx.append(f"v_pk_mul_f32 {v(a0+i,2)}, {v(a0+i,2)}, {v(c0+i,2)}")
        for i in pr: Lx.append(f"v_cvt_pk_bf16_f32 v{pk+i//2}, v{a0+i}, v{a0+i+1}")
        return Lx
    def gelu_consts():
        P(f"v_mov_b32 v10, {f2u(-kk*0.044715)}\nv_mov_b32 v11, v10\nv_mov_b32 v12, {f2u(-kk)}\nv_mov_b32 v13, v12")
    small = lambda b: (lambda ks, t: (b + ks // 4, (ks % 4) * 5 + t))
    T5 = [0, 1, 2, 3, 4]

    P(f"ds_read_b128 {v(HP,4)}, v5\nds_read_b128 {v(HP+4,4)}, v5 offset:1024\nds_read_b64 {v(HP+8,2)}, v6 offset:2048\ns_waitcnt lgkmcnt(0)")
    unpack(ACC, HP, 10)
    P("s_barrier")
    P("s_waitcnt vmcnt(0)")
    poll_check(L4V, 15, "s45", 1)
    st()
    kloop(small(0), T5, L.O_OFF, lambda ks: 3, True, {12: 3, 20: 5}, ph=1)
    st()
    sf(8)
    pack(HP, ACC, 10)
    tile_then_stats(HP, L.H_OFF, 14336, 1)
    st(); sf(8)
    P("buffer_load_dword v15, v14, s[20:23], s33 offen sc1")
    P(f"ds_read_b32 v{SYD}, v{SYA}\ns_waitcnt vmcnt(1)")
    sf(8)
    vm = VM(P); set_flag(vm, 2)
    P("s_waitcnt lgkmcnt(0)")
    lds_check(SYA, SYD, 0, 10)
    sf(8)
    for t in range(5): P(f"ds_read_b128 {v(CS+4*t,4)}, v7 offset:{t*64}")
    P("s_waitcnt vmcnt(1) lgkmcnt(0)")
    sf(8)
    poll_check(14, 15, "s33", 1)
    st(); sf(8)
    kloop(small(5), T5, L.H_OFF, lambda ks: 3, False, {12: 8, 20: 10}, stat=(2, ST1, 14336), ph=2)
    st()
    stats_fin(ST1)
    P(f"v_mul_f32 v{ST}, v{ST1+1}, v{ST1+2}\nv_mov_b32 v{ST+1}, {f2u(EPS)}\nv_fma_f32 v{ST}, v{ST}, v{ST1+2}, v{ST+1}\nv_rsq_f32 v{ST}, v{ST}")
    gelu_consts()
    P(f"v_mul_f32 v{ST+2}, v{ST}, v{ST1+2}\nv_mul_f32 v{ST}, v{ST1}, v{ST+2}\nv_mov_b32 v{ST+3}, v{ST+2}\nv_mov_b32 v{ST+1}, v{ST}")
    for l in gelu_items(ACC, CS, 20, ST, PK): P(l)
    P("s_lshr_b32 s43, s28, 2\ns_add_u32 s43, s43, 1\ns_sub_u32 s44, 0, s43\ns_bitcmp1_b32 s28, 1\ns_cselect_b32 s43, s44, s43")
    P("s_lshl_b32 s44, s29, 4\ns_add_u32 s44, s44, s43\nv_and_b32 v10, 15, v1\nv_add_u32 v10, s44, v10")
    P("v_ashrrev_i32 v12, 8, v10\nv_cmp_eq_u32 vcc, s25, v12\nv_cmp_gt_u32 s[26:27], 8, v12")
    P("v_lshrrev_b32 v11, 4, v10\nv_mul_u32_u24 v11, 20480, v11\nv_and_b32 v10, 15, v10\nv_lshl_add_u32 v11, v10, 4, v11\nv_and_b32 v10, 0x30, v1\nv_lshl_add_u32 v11, v10, 4, v11")
    P(f"s_sub_u32 s43, s41, s40\ns_sub_u32 s44, s42, s40\ns_add_u32 s43, s43, {L.T_OFF}\ns_add_u32 s44, s44, {L.T_OFF}")
    P("s_andn2_b64 s[26:27], s[26:27], vcc\ns_mov_b64 exec, vcc")
    vm = VM(P)
    tl = [f"buffer_store_dwordx4 {v(PK,4)}, v11, s[20:23], s43 offen", f"buffer_store_dwordx4 {v(PK+4,4)}, v11, s[20:23], s43 offen offset:1024", f"buffer_store_dwordx2 {v(PK+8,2)}, v11, s[20:23], s44 offen"]
    store2(vm, tl)
    P("s_cmp_lg_u64 s[26:27], 0\ns_cbranch_scc1 L_halo\nL_haloe:\ns_mov_b64 exec, -1")
    tails.append(f"L_halo:\ns_mov_b64 exec, s[26:27]\ns_add_u32 s43, s43, {L.TH_OFF - L.T_OFF}\ns_add_u32 s44, s44, {L.TH_OFF - L.T_OFF}\n" + "\n".join(l + " sc1" for l in tl) + "\ns_nop 1\ns_branch L_haloe")
    P(f"v_mul_f32 v{ST1}, v{ST1}, v{ST1+2}\nv_mov_b32 v{ST1+3}, v{ST1+2}\nv_mov_b32 v{ST1+1}, v{ST1}")
    P(f"""s_and_b32 s43, s29, 15
s_cmp_eq_u32 s43, 0
s_cselect_b32 s44, {L.FHL_OFF - L.FR_OFF}, 0
s_sub_u32 s44, s44, 128
s_cmp_eq_u32 s29, 0
s_cselect_b32 s44, 0, s44
s_cmp_eq_u32 s43, 15
s_cselect_b32 s45, {L.FHL_OFF - L.FR_OFF}, 0
s_add_u32 s45, s45, 128
s_cmp_eq_u32 s29, 127
s_cselect_b32 s45, 0, s45
s_add_u32 s44, s44, s33
s_add_u32 s45, s45, s33
v_bfe_u32 v10, v1, 3, 2
v_mov_b32 v13, s33
v_mov_b32 v12, s44
v_cmp_eq_u32 vcc, 1, v10
v_cndmask_b32 v13, v13, v12, vcc
v_mov_b32 v12, s45
v_cmp_eq_u32 vcc, 2, v10
v_cndmask_b32 v13, v13, v12, vcc
v_add_u32 v228, v13, v14
s_waitcnt vmcnt(0)""")
    set_flag(vm, 3)
    P("s_add_u32 s44, s29, 1\ns_and_b32 s44, s44, 14\ns_cmp_eq_u32 s44, 0\ns_cbranch_scc1 L_hf\nL_hfe:")
    tails.append(f"L_hf:\ns_add_u32 s44, s34, {L.FHL_OFF - L.FR_OFF}\ns_mov_b64 exec, 1\nbuffer_store_dword v4, v2, s[20:23], s44 offen sc1\ns_mov_b64 exec, -1\ns_branch L_hfe")
    st()
    P(f"buffer_load_dword v15, v228, s[20:23], 0 offen sc1\nds_read_b32 v{SYD}, v{SYA}")
    P(f"""s_cmp_eq_u32 s43, 0
s_cselect_b32 s44, {L.TH_OFF - L.T_OFF}, 0
s_cmp_eq_u32 s29, 0
s_cselect_b32 s44, 0x40000000, s44
s_cmp_eq_u32 s43, 15
s_cselect_b32 s45, {L.TH_OFF - L.T_OFF}, 0
s_cmp_eq_u32 s29, 127
s_cselect_b32 s45, 0x40000000, s45
v_and_b32 v10, 15, v1
v_add_u32 v11, s44, v3
v_add_u32 v12, s45, v3
v_cmp_gt_u32 vcc, 1, v10
v_cndmask_b32 v224, v3, v11, vcc
v_cmp_lt_u32 vcc, 14, v10
v_cndmask_b32 v225, v3, v12, vcc
v_cmp_gt_u32 vcc, 2, v10
v_cndmask_b32 v226, v3, v11, vcc
v_cmp_lt_u32 vcc, 13, v10
v_cndmask_b32 v227, v3, v12, vcc""")
    unpack(ACC4, HP, 10)
    for i in range(0, 20, 2):
        P(f"v_pk_fma_f32 {v(ACC+i,2)}, {v(ACC4+i,2)}, {v(ST1+2,2)}, {v(ST1,2)} neg_lo:[0,0,1] neg_hi:[0,0,1]")
    P("s_waitcnt lgkmcnt(0)")
    lds_check(SYA, SYD, 0, 15)
    P("s_waitcnt vmcnt(0)")
    poll_check(228, 15, "0", 3)
    st()
    kloop(small(10), T5, L.T_OFF, lambda ks: 224 + ks // 5, True, {12: 13, 20: 15}, ph=3)
    st()
    pack(PK, ACC, 10)
    tile_then_stats(PK, L.X1_OFF, 15360, 4)
    st()
    P("buffer_load_dword v15, v14, s[20:23], s33 offen sc1")
    P(f"ds_read_b32 v{SYD}, v{SYA}")
    unpack(CS, PK, 10)
    for i in range(0, 20, 2): P(f"v_pk_add_f32 {v(ACC4+i,2)}, {v(ACC4+i,2)}, {v(CS+i,2)}")
    P("s_waitcnt vmcnt(1)")
    vm = VM(P); set_flag(vm, 5)
    gelu_consts()
    P(f"v_add_u32 v7, {CS3_LDS - CS1_LDS}, v7\ns_lshl_b32 s45, s28, 10\ns_waitcnt lgkmcnt(0)")
    sf(8)
    lds_check(SYA, SYD, 0, 19)
    sf(8)
    for i in range(4): P(f"ds_read_b128 {v(CS+4*i,4)}, v7 offset:{i*64}")
    P("s_waitcnt vmcnt(1) lgkmcnt(0)")
    sf(8)
    poll_check(14, 15, "s33", 4)
    st(); sf(8)
    vm, lg = kloop(lambda ks, t: (15 + t, ks), [0, 1, 2, 3], L.X1_OFF, lambda ks: 3, False, {20: 19}, stat=(5, ST3, 15360), ph=4)
    def a4reg(p):
        i = p % (NA4 + 20)
        return A4 + 4*i if i < NA4 else AF + 4*(i - NA4)
    ids4 = {}
    def a4load(p):
        if p % 4 == 0:
            if p < 20: P(f"s_add_u32 s44, s40, {L.K_OFF + p*1024}")
            elif p < 40: P(f"s_add_u32 s44, s40, {L.V_OFF + (p-20)*1024}")
            else: P(f"s_add_u32 s44, s46, {(p-40)*1024}")
        ids4[p] = vm.op(f"buffer_load_dwordx4 {v(a4reg(p),4)}, v3, s[20:23], s44 offen offset:{(p%4)*1024} sc1")
    gst = {}
    def gstore(q):
        if q < 2: P(f"s_add_u32 s43, s45, s40\ns_add_u32 s43, s43, {L.K_OFF + q*8192}")
        elif q == 2: P(f"s_cmp_ge_u32 s28, 4\ns_mov_b32 s43, {L.K_OFF + 16384}\ns_cmov_b32 s43, {L.V_OFF - 4096}\ns_add_u32 s43, s43, s45\ns_add_u32 s43, s43, s40")
        elif q < 5: P(f"s_add_u32 s43, s45, s40\ns_add_u32 s43, s43, {L.V_OFF + q*8192 - 20480}")
        elif q == 5: P("s_add_u32 s43, s45, s46")
        else: P(f"s_add_u32 s43, s45, s46\ns_add_u32 s43, s43, 8192\ns_cmp_ge_u32 s28, 6\ns_cmov_b32 s43, {L.DUMMY_OFF}")
        gst[q] = store2(vm, [f"buffer_store_dwordx4 {v(PK+4*(q%2),4)}, v3, s[20:23], s43 offen"])
    items4 = [(p, t) for p in range(54) for t in range(5)]
    N4 = len(items4)
    groups = [[0, 1, 2, 3]] + [[t, t + 1] for t in range(4, 14, 2)]
    ry = rdy_read(lg)
    stats_fin(ST3)
    P(f"v_mul_f32 v{ST3}, v{ST3}, v{ST3+2}\nv_mov_b32 v{ST3+3}, v{ST3+2}\nv_mov_b32 v{ST3+1}, v{ST3}")
    rr4 = []
    r4y = {}
    def rd4(n):
        p, t = items4[n]
        sg = 29 + p // 4
        if p % 8 == 0 and t == 0 and p > 0:
            free_sig(lg)
            lg.wait(r4y[sg]); lds_check(SYA, SYD, 0, min(sg + 2, NSTG))
        if p % 8 == 6 and t == 0 and p + 2 < 54: r4y[sg + 1] = rdy_read(lg)
        rr4.append(rdw(lg, sg, (p % 4) * 5 + t))
    for gi, g in enumerate(groups):
        if gi in (2, 3): sf(5)
        lg.wait(ry)
        if gi + 1 < len(groups):
            gn = groups[gi + 1]
            lds_check(SYA, SYD, 0, 15 + gn[-1] + 1)
            its = [(ks, t) for ks in range(20) for t in gn]
            rr = [rdw(lg, 15 + t, ks) for ks, t in its[:D]]
        else:
            st()
            lds_check(SYA, SYD, 0, 31)
            for n in range(D): rd4(n)
            vm.wait(poll1); poll_check(14, 15, "s33", 6)
            for p in range(PRE4): a4load(p)
        if gi in (2, 3): sf(5)
        for l in gelu_items(ACC, CS, 4*len(g), ST3, PK + 4*((g[0]//2) % 2)): P(l)
        if gi in (2, 3): sf(5)
        for t in g[1::2]: gstore(t // 2)
        if gi + 1 == len(groups): break
        P(f"v_mov_b32 v{SYV}, {15 + gn[-1] + 1}")
        if gi in (2, 3): sf(5)
        for n, (ks, t) in enumerate(its):
            if n + D < 40:
                rr.append(rdw(lg, 15 + its[n + D][1], its[n + D][0]))
                if n + D == 39: free_sig(lg); ry = rdy_read(lg)
            if n == 8:
                for i, tt in enumerate(gn): lg.op(f"ds_read_b128 {v(CS+4*i,4)}, v7 offset:{tt*64}")
            lg.wait(rr[n][1])
            acc = ACC + 4 * gn.index(t)
            P(f"v_mfma_f32_16x16x32_bf16 {v(acc,4)}, {v(rr[n][0],4)}, {v(AF+4*ks,4)}, {'0' if ks == 0 else v(acc,4)}")
            if gi == 4 and n == 0:
                vm.wait(gst[4]); set_flag(vm, 6)
            if gi == 4 and n == 22: poll1 = vm.op("buffer_load_dword v15, v14, s[20:23], s33 offen sc1")
    st()
    for n, (p, t) in enumerate(items4):
        if n + D < N4: rd4(n + D)
        if t == 0:
            if p == 3:
                vm.wait(gst[6]); set_flag(vm, 7)
            if p == 20: poll2 = vm.op("buffer_load_dword v15, v14, s[20:23], s33 offen sc1")
            if p + PRE4 == 40:
                vm.wait(poll2); poll_check(14, 15, "s33", 7)
            if p + PRE4 < 54: a4load(p + PRE4)
            P(f"s_waitcnt vmcnt({vm.cnt(ids4[p])}) lgkmcnt({lg.cnt(rr4[n][1])})")
            if p % 8 == 4: P(f"v_mov_b32 v{SYV}, {29 + p // 4 + 1}")
        else: lg.wait(rr4[n][1])
        P(f"v_mfma_f32_16x16x32_bf16 {v(ACC4+4*t,4)}, {v(rr4[n][0],4)}, {v(a4reg(p),4)}, {v(ACC4+4*t,4)}")
    st()
    P(f"s_mul_i32 s46, s30, 3072\ns_add_u32 s46, s46, {XR_LDS}\nv_add_u32 v10, s46, v3")
    P("s_lshl_b32 s43, s35, 6\ns_add_u32 s43, s43, s40\ns_lshl_b32 s44, s36, 6\ns_add_u32 s44, s44, s40\ns_lshl_b32 s45, s37, 3\ns_add_u32 s44, s44, s45")
    pack(PK, ACC4, 10)
    P(f"ds_write_b128 v5, {v(PK,4)}\nds_write_b128 v5, {v(PK+4,4)} offset:1024\nds_write_b64 v5, {v(PK+8,2)} offset:2048")
    P(f"ds_read_b128 {v(CS,4)}, v10\nds_read_b128 {v(CS+4,4)}, v10 offset:1024\nds_read_b64 {v(CS+8,2)}, v10 offset:2048")
    P(f"s_waitcnt lgkmcnt(2)\nbuffer_store_dwordx4 {v(CS,4)}, v{RMV}, s[16:19], s43 offen\ns_waitcnt lgkmcnt(1)\nbuffer_store_dwordx4 {v(CS+4,4)}, v{RMV}, s[16:19], s43 offen offset:64\ns_waitcnt lgkmcnt(0)\nbuffer_store_dwordx2 {v(CS+8,2)}, v{RMV}, s[16:19], s44 offen")
    if DBG:
        P("s_waitcnt vmcnt(0)"); st0()
        P(f"s_cmp_lg_u32 s2, {DBG}\ns_cbranch_scc1 L_end\ns_cmp_lg_u32 s30, 0\ns_cbranch_scc1 L_end\ns_load_dwordx2 s[4:5], s[0:1], 72\ns_waitcnt lgkmcnt(0)")
        P(f"s_mov_b32 s12, s4\ns_and_b32 s13, s5, 0xffff\ns_mov_b32 s14, 256\ns_mov_b32 s15, 0x20000\nv_mov_b32 v39, {L.DUMMY_OFF + 2048}\nbuffer_load_dwordx4 v[52:55], v39, s[20:23], 0 offen\nbuffer_load_dwordx2 v[56:57], v39, s[20:23], 0 offen offset:16\ns_waitcnt vmcnt(0)\nv_mov_b32 v39, 0")
        regs = [80, 82, 84, 90, 48, 54, 60, 66, 70, 48 + 2*(st0.i-1)]
        for i, r in enumerate(regs): P(f"v_mov_b32 v{40+i}, s{r}")
        if "XA" in opt:
            vr = lambda k: 52 + k if k < 6 else 40 + k - 6
            P(f"v_readfirstlane_b32 s60, v{vr(opt['XA'])}\nv_readfirstlane_b32 s61, v{vr(opt['XB'])}\nv_readfirstlane_b32 s62, v49\ns_sub_u32 s60, s61, s60\ns_lshl_b32 s60, s60, 2\ns_min_u32 s60, s60, 100000")
            P("L_xspin:\ns_memrealtime s[64:65]\ns_waitcnt lgkmcnt(0)\ns_sub_u32 s64, s64, s62\ns_cmp_lt_u32 s64, s60\ns_cbranch_scc1 L_xspin")
        P("s_mov_b64 exec, 1\nbuffer_store_dwordx4 v[52:55], v39, s[12:15], 0 offen\nbuffer_store_dwordx2 v[56:57], v39, s[12:15], 0 offen offset:16\nbuffer_store_dwordx2 v[40:41], v39, s[12:15], 0 offen offset:24\nbuffer_store_dwordx4 v[42:45], v39, s[12:15], 0 offen offset:32\nbuffer_store_dwordx4 v[46:49], v39, s[12:15], 0 offen offset:48")
    if STAMP:
        P("s_waitcnt vmcnt(0)"); st0()
        stamp_dump([80 + 2*i for i in range(sa.i)] + [48 + 2*i for i in range(st0.i)])
    P("s_endpgm")

    P("L_loader:")
    P("s_sub_u32 s43, s30, 4\ns_mul_i32 s39, s43, 5120\ns_add_u32 s38, s32, s39")
    P(f"""s_cmp_ge_u32 s30, 6
s_cbranch_scc1 L_nocs
s_mul_i32 s44, s28, 320
s_add_u32 s44, s44, {L.CS1_OFF}
s_mov_b32 s45, 2560
s_mov_b32 s46, {CS1_LDS}
s_cmp_eq_u32 s30, 4
s_cbranch_scc1 L_cs1
s_mul_i32 s44, s28, 7
s_cmp_eq_u32 s28, 7
s_subb_u32 s44, s44, 0
s_lshl_b32 s44, s44, 7
s_add_u32 s44, s44, {L.CS3_OFF}
s_mov_b32 s45, 8192
s_mov_b32 s46, {CS3_LDS}
L_cs1:""")
    for i in range(4): P(f"buffer_load_dwordx4 {v(16+4*i,4)}, v3, s[20:23], s44 offen\ns_add_u32 s44, s44, s45")
    P("L_nocs:\ns_barrier")
    P("s_cmp_ge_u32 s30, 6\ns_cbranch_scc1 L_nocs2\nv_add_u32 v8, s46, v3\ns_waitcnt vmcnt(0)")
    for r in range(4): P(f"v_add_f32 v{16+r}, v{16+r}, v{20+r}\nv_add_f32 v{24+r}, v{24+r}, v{28+r}")
    for r in range(4): P(f"v_add_f32 v{16+r}, v{16+r}, v{24+r}")
    P("ds_write_b128 v8, v[16:19]\nL_nocs2:")
    sl = Stamper(48, 16)
    vm = VM(P); last = {}
    pub = [5]
    def issue(sg, thin=False):
        slot = (sg % RING) * 20480
        for i in range(5):
            if i % 4 == 0: P(f"s_add_u32 m0, s39, {slot + i*1024}\ns_add_u32 s43, s38, {sg*20480 + i*1024}")
            if thin: P(f"s_waitcnt vmcnt({THIN})")
            last[sg] = vm.op(f"buffer_load_dwordx4 v3, s[20:23], s43 offen offset:{(i%4)*1024} lds")
    def publish(upto):
        P(f"v_mov_b32 v10, {upto}"); vm.wait(last[upto - 1]); P("ds_write_b32 v255, v10")
    def wait_free(n):
        P("ds_read_b32 v11, v254 offset:16\ns_waitcnt lgkmcnt(0)"); lds_check(254, 11, 16, n, 's_sleep 1\n')
    issue(5, True); issue(6, True)
    for ph in range(3):
        b = 5 * ph
        wait_free(b + 3)
        for sg in range(b + 7, b + 10): issue(sg)
        publish(b + 10)
        wait_free(b + 5)
        issue(b + 10, True); issue(b + 11, True)
    publish(22)
    nxt = 22
    fr = [19, 21, 23, 25, 27, 29, 31, 33, 35, 37]
    for f in fr:
        if nxt >= NSTG: break
        sl(); wait_free(f);
        first = nxt
        while nxt < NSTG and nxt - RING < f:
            issue(nxt); nxt += 1
            if nxt - first == 2 and nxt < NSTG and nxt - RING < f: publish(nxt - 1)
        publish(nxt - 1)
    publish(NSTG)
    if STAMP:
        sl()
        stamp_dump(([80 + 2*i for i in range(sa.i)] if FOCUS == 9 else [80, 80]) + [48 + 2*i for i in range(sl.i)])
    P("L_end:\ns_endpgm")
    for t in tails: P(t)
    P("L_code_end:")
    return (name, 256, 512, LDS_TOTAL, 256)
```

```python
from asmlib import *
from gen1 import f2u, LOG2E, ONES, EPS, ARG, SZ, srd, header, xg_reduce

def gen_k1(P, L, opt):
    name = "qkv_kernel"
    STAMP = opt.get("STAMP", False)
    PI = opt.get("PI", 4)
    NTF = " nt" if opt.get("PREP_NT", 1) else ""
    ROT = opt.get("ROT", 1)
    FL = ["", " sc1", " nt", " sc0 sc1"]
    PSF = FL[opt.get("PSF", 0)]; QSF = FL[opt.get("QSF", 0)]
    PP = opt.get("PP", 10)
    header(P, name)
    PB = 131072
    STAT = PB + 24576
    sn = [0]
    DBG = opt.get("DBG", 0)
    def stamp():
        if DBG:
            P(f"s_memrealtime s[{70+2*sn[0]}:{71+2*sn[0]}]"); sn[0] += 1
        if STAMP:
            P(f"s_memtime s[{70+2*sn[0]}:{71+2*sn[0]}]"); sn[0] += 1
    def stamp_out():
        if DBG:
            e = f"L_dbg{len(P.items)}"
            P("s_waitcnt vmcnt(0)"); stamp()
            P(f"s_cmp_lg_u32 s2, {DBG}\ns_cbranch_scc1 {e}\ns_cmp_lg_u32 s30, 0\ns_cbranch_scc1 {e}\ns_waitcnt lgkmcnt(0)")
            P(f"v_mov_b32 v39, {L.DUMMY_OFF + 2048}")
            for i, k in enumerate((0, 1, 2, 6, 9, sn[0]-1)): P(f"v_mov_b32 v{40+i}, s{70+2*min(k, sn[0]-1)}")
            P(f"s_mov_b64 exec, 1\nbuffer_store_dwordx4 v[40:43], v39, s[20:23], 0 offen\nbuffer_store_dwordx2 v[44:45], v39, s[20:23], 0 offen offset:16\n{e}:")
        if not STAMP: return
        P("s_waitcnt vmcnt(0)"); stamp()
        P("s_waitcnt lgkmcnt(0)\nv_mov_b32 v40, s100\ns_memrealtime s[100:101]\ns_waitcnt lgkmcnt(0)\nv_mov_b32 v41, s100\nv_mov_b32 v39, 0")
        for i in range(14): P(f"v_mov_b32 v{42+i}, s{70+2*min(i, sn[0]-1)}")
        P(f"s_mov_b32 s22, 0x8000000\ns_lshl_b32 s43, s2, 3\ns_add_u32 s43, s43, s30\ns_lshl_b32 s43, s43, 7\ns_add_u32 s43, s43, {0x4000000 + 0x100000}\ns_mov_b64 exec, 1")
        for i in range(4): P(f"buffer_store_dwordx4 v[{40+4*i}:{43+4*i}], v39, s[20:23], s43 offen offset:{16*i}")
    P("s_cmp_ge_u32 s2, 256\ns_cbranch_scc1 L_k1_end")
    if STAMP: P("s_memrealtime s[100:101]")
    stamp()
    P(f"s_load_dwordx4 s[4:7], s[0:1], 0\ns_load_dwordx2 s[8:9], s[0:1], {ARG['ws']}\ns_load_dwordx2 s[10:11], s[0:1], {ARG['wo']}\ns_load_dwordx8 s[56:63], s[0:1], {ARG['w1']}")
    P("v_and_b32 v1, 63, v0\nv_lshrrev_b32 v2, 6, v0\nv_readfirstlane_b32 s30, v2")
    P("""s_and_b32 s25, s2, 7
s_lshr_b32 s26, s2, 3
s_and_b32 s27, s26, 3
s_lshr_b32 s28, s26, 2
s_lshr_b32 s31, s25, 1
s_lshl_b32 s31, s31, 2
s_add_u32 s31, s31, s27
s_and_b32 s32, s25, 1
s_lshl_b32 s32, s32, 3
s_add_u32 s32, s32, s28""")
    P("s_cmp_ge_u32 s30, 4\ns_cbranch_scc1 L_k1_helper")
    if opt.get("CPF", 1):
        NSEG = opt.get("NSEG", 8)
        P(f"""s_getpc_b64 s[48:49]
L_pc0:
s_sub_u32 s48, s48, L_pc0-qkv_kernel
s_subb_u32 s49, s49, 0
s_lshl_b32 s50, s26, 2
s_add_u32 s50, s50, s30
s_cmp_ge_u32 s50, {NSEG}
s_cbranch_scc1 L_nocpf
s_lshl_b32 s50, s50, 13
v_lshl_add_u32 v60, v1, 7, s50
v_min_u32 v60, L_code_end-qkv_kernel-4, v60
v_mov_b32 v61, s49
v_add_co_u32 v60, vcc, s48, v60
v_addc_co_u32 v61, vcc, 0, v61, vcc
global_load_dword v62, v[60:61], off
L_nocpf:""")
    P("s_cmp_eq_u32 s32, 15\ns_cbranch_scc1 L_k1_spare_c")
    P("s_lshr_b32 s34, s30, 1\ns_and_b32 s35, s30, 1")
    P("""v_and_b32 v36, 31, v1
v_lshrrev_b32 v39, 5, v1
s_lshl_b32 s41, s34, 6
v_add_u32 v10, s41, v36
v_bfe_u32 v11, v10, 1, 3
v_xor_b32 v11, v11, v39
v_lshlrev_b32 v11, 4, v11
v_lshl_add_u32 v20, v10, 7, v11
s_lshl_b32 s41, s35, 12
v_add_u32 v20, s41, v20""")
    for kk in range(1, 4): P(f"v_xor_b32 v{20+kk}, {kk*32}, v20")
    for kk in range(4): P(f"v_add_u32 v{24+kk}, 0x10000, v{20+kk}")
    for kk in range(8): P(f"v_xor_b32 v{40+kk}, 0x1000, v{20+kk}")
    P("""v_bfe_u32 v10, v1, 2, 2
v_lshl_add_u32 v11, v39, 3, v10
v_lshlrev_b32 v11, 8, v11
v_bfe_u32 v12, v1, 4, 1
v_lshl_add_u32 v11, v12, 5, v11
v_and_b32 v12, 3, v1
v_lshl_add_u32 v11, v12, 3, v11
s_lshl_b32 s41, s35, 1
s_add_u32 s41, s41, s34
v_xor_b32 v12, s41, v10
v_lshl_add_u32 v28, v12, 6, v11
v_xor_b32 v29, 64, v28
v_add_u32 v30, 0x10000, v28
v_add_u32 v31, 0x10000, v29""")
    ACC, FX, FW, SEL, CSA, AD, RSA = 64, 128, 144, 4, 32, 224, 16
    P(f"v_and_b32 v10, 15, v1\nv_bfe_u32 v11, v1, 4, 1\nv_cmp_eq_u32 vcc, v10, v11\nv_mov_b32 v10, {ONES}")
    for i in range(4): P(f"v_cndmask_b32 v{SEL+i}, 0, v10, vcc")
    P("""s_lshl_b32 s43, s31, 2
s_lshl_b32 s44, s34, 1
s_add_u32 s43, s43, s44
s_add_u32 s43, s43, s35
s_lshr_b32 s44, s43, 3
s_mul_i32 s44, s44, 327680
s_and_b32 s45, s43, 7
s_xor_b32 s46, s45, 1
s_mul_i32 s45, s45, 1280
s_mul_i32 s46, s46, 1280
s_add_u32 s45, s45, s44
s_add_u32 s46, s46, s44""")
    P("s_waitcnt lgkmcnt(0)")
    srd(P, 20, 8, L.WS_USED)
    if opt.get("TLBW", 0):
        st_ = opt.get("TLBS", 16)
        P(f"""s_sub_u32 s50, s26, 2
s_lshl_b32 s50, s50, 2
s_add_u32 s50, s50, s30
s_cmp_ge_u32 s50, {(L.WS_USED >> (st_ + 6)) + 2}
s_cbranch_scc1 L_notlb
v_lshlrev_b32 v60, {st_}, v1
s_cmp_eq_u32 s50, 0
s_cbranch_scc1 L_tlbo
s_sub_u32 s50, s50, 1
s_lshl_b32 s50, s50, {st_ + 6}
v_add_u32 v60, s50, v60
buffer_load_dword v63, v60, s[20:23], 0 offen
s_branch L_notlb
L_tlbo:
s_load_dwordx2 s[52:53], s[0:1], {ARG['out']}
s_waitcnt lgkmcnt(0)
s_and_b32 s53, s53, 0xffff
s_mov_b32 s54, {SZ}
s_mov_b32 s55, 0x20000
v_lshlrev_b32 v60, 16, v1
buffer_load_dword v63, v60, s[52:55], 0 offen
L_notlb:""")
    P("s_cmp_ge_u32 s32, 10\ns_cbranch_scc1 L_k1_v")
    for variant in ("qk", "v"):
        if variant == "v":
            P("L_k1_v:")
            sn[0] = 1
            P(f"s_sub_u32 s41, s32, 10\ns_lshl_b32 s41, s41, 7\ns_lshl_b32 s42, s35, 6\ns_add_u32 s41, s41, s42\ns_lshl_b32 s42, s34, 5\ns_add_u32 s41, s41, s42\ns_add_u32 s45, s45, {L.V_OFF}\ns_add_u32 s46, s46, {L.V_OFF}")
            for ct in range(2):
                P(f"v_add_u32 v10, s41, v36\nv_xor_b32 v10, {32*ct}, v10\nv_mul_u32_u24 v11, 52429, v10\nv_lshrrev_b32 v11, 20, v11\nv_mul_u32_u24 v11, {10240-320}, v11\nv_lshl_add_u32 v11, v10, 4, v11\nv_mul_u32_u24 v12, 320, v39\nv_add_u32 v{AD+ct}, v11, v12")
        else:
            P(f"s_cmp_ge_u32 s32, 5\ns_cselect_b32 s42, 5, 0\ns_cselect_b32 s47, {L.K_OFF}, {L.Q_OFF}\ns_sub_u32 s41, s32, s42\ns_lshl_b32 s41, s41, 5\ns_lshl_b32 s42, s35, 4\ns_add_u32 s41, s41, s42\ns_lshl_b32 s42, s34, 3\ns_add_u32 s41, s41, s42\ns_add_u32 s45, s45, s47\ns_add_u32 s46, s46, s47")
            for ct in range(2):
                for b in range(4):
                    P(f"v_add_u32 v10, s41, v39\nv_xor_b32 v10, {8*ct}, v10\nv_add_u32 v10, {2*b}, v10\nv_mul_u32_u24 v11, 52429, v10\nv_lshrrev_b32 v11, 18, v11\nv_mul_u32_u24 v11, {10240-1280}, v11\nv_lshl_add_u32 v11, v10, 8, v11\nv_lshl_add_u32 v{AD+ct*4+b}, v36, 3, v11")
        def rlist(n):
            st, kk = divmod(n, 4)
            b = n & 1
            slot = (st % 4) * 32768
            hi = slot >= 65536
            off = slot - (65536 if hi else 0)
            def xr(rt): return f"ds_read_b128 v[{FX+b*8+rt*4}:{FX+b*8+rt*4+3}], v{(40 if rt else 20)+(4 if hi else 0)+kk} offset:{off}"
            def wr(ct, h):
                ar = 28 + ct + (2 if hi else 0)
                return f"ds_read_b64_tr_b16 v[{FW+b*8+ct*4+2*h}:{FW+b*8+ct*4+2*h+1}], v{ar} offset:{off+16384+kk*4096+1024*h}"
            return [xr(0), wr(0, 0), wr(0, 1), wr(1, 0), wr(1, 1), xr(1)]
        stamp()
        P("s_barrier"); stamp()
        for l in rlist(0): P(l)
        for n in range(40):
            b = n & 1
            nx = rlist(n + 1) if n + 1 < 40 else []
            def mf(t):
                rt, ct = t >> 1, t & 1
                x = v(FX + b*8 + rt*4, 4); w = v(FW + b*8 + ct*4, 4); d = v(ACC + t*16, 16)
                c = "0" if n == 0 else d
                if variant == "qk": P(f"v_mfma_f32_32x32x16_bf16 {d}, {w}, {x}, {c}")
                else: P(f"v_mfma_f32_32x32x16_bf16 {d}, {x}, {w}, {c}")
            P("s_waitcnt lgkmcnt(3)")
            mf(0)
            if nx and (n + 1) % 4 == 0:
                P("s_barrier")
                if (n + 1) // 4 in (1, 2, 3, 5, 7, 9): stamp()
            k = 0
            for l in nx[:2]: P(l); k += 1
            P(f"s_waitcnt lgkmcnt({1 + k})")
            mf(1)
            for l in nx[2:4]: P(l); k += 1
            P(f"s_waitcnt lgkmcnt({k})")
            mf(2)
            for l in nx[4:6]: P(l)
            P(f"v_mfma_f32_16x16x32_bf16 {v(RSA,4)}, {v(SEL,4)}, {v(FX+b*8,4)}, {'0' if n == 0 else v(RSA,4)}")
            mf(3)
            P(f"v_mfma_f32_16x16x32_bf16 {v(CSA,4)}, {v(SEL,4)}, {v(FW+b*8,4)}, {'0' if n == 0 else v(CSA,4)}")
        stamp()
        P(f"""s_lshl_b32 s41, s35, 1
s_add_u32 s41, s41, s34
s_lshl_b32 s41, s41, 7
s_add_u32 s41, s41, {STAT+1024}
v_lshl_add_u32 v37, v36, 2, s41
s_mov_b64 exec, 0xffff
ds_write_b32 v37, v{CSA}
ds_write_b32 v37, v{CSA+1} offset:64
s_mov_b64 exec, -1
s_lshl_b32 s42, s34, 1
s_add_u32 s42, s42, s35
s_lshl_b32 s42, s42, 7
s_add_u32 s42, s42, {STAT}
v_lshl_add_u32 v38, v36, 2, s42
s_barrier
ds_read_b32 v50, v38 offset:1536
ds_read_b32 v51, v38 offset:1600
v_mul_f32 v{RSA}, {f2u(1/640)}, v{RSA}
v_mul_f32 v{RSA+1}, {f2u(1/640)}, v{RSA+1}
s_waitcnt lgkmcnt(0)
v_fma_f32 v50, -v{RSA}, v{RSA}, v50
v_fma_f32 v51, -v{RSA+1}, v{RSA+1}, v51
v_max_f32 v50, 0, v50
v_max_f32 v51, 0, v51
v_add_f32 v50, {f2u(EPS)}, v50
v_add_f32 v51, {f2u(EPS)}, v51
v_rsq_f32 v50, v50
v_rsq_f32 v51, v51
v_mul_f32 v52, v50, v{RSA}
v_mul_f32 v53, v51, v{RSA+1}
s_mov_b64 exec, 0xffff
ds_write_b32 v38, v50
ds_write_b32 v38, v51 offset:64
ds_write_b32 v38, v52 offset:512
ds_write_b32 v38, v53 offset:576
s_mov_b64 exec, -1
s_waitcnt lgkmcnt(0)
s_barrier""")
        stamp()
        if variant == "qk":
            P(f"""v_lshl_add_u32 v37, v36, 2, s42
v_xor_b32 v38, 128, v37
ds_read_b32 v40, v37
ds_read_b32 v42, v37 offset:512
ds_read_b32 v44, v38
ds_read_b32 v46, v38 offset:512
v_lshl_add_u32 v37, v39, 4, s41
v_xor_b32 v38, 128, v37""")
            for ct in range(2):
                for b in range(4):
                    P(f"ds_read_b128 v[{128+ct*16+b*4}:{128+ct*16+b*4+3}], v{37+ct} offset:{b*32}")
            P(f"s_cmp_lt_u32 s32, 5\ns_cselect_b32 s41, {f2u(20**-0.5*LOG2E)}, 1.0\ns_waitcnt lgkmcnt(8)")
            for r in (40, 42, 44, 46): P(f"v_mul_f32 v{r}, s41, v{r}")
            for r in (40, 42, 44, 46): P(f"v_mov_b32 v{r+1}, v{r}")
            P("s_waitcnt lgkmcnt(0)")
            for t in range(4):
                rt, ct = t >> 1, t & 1
                A = v(40 + rt*4, 2); B = v(42 + rt*4, 2)
                for p in range(8):
                    r = ACC + t*16 + 2*p
                    P(f"v_pk_mul_f32 v[{48+2*(p&3)}:{49+2*(p&3)}], v[{128+ct*16+2*p}:{128+ct*16+2*p+1}], {B}")
                    P(f"v_pk_fma_f32 v[{r}:{r+1}], v[{r}:{r+1}], {A}, v[{48+2*(p&3)}:{49+2*(p&3)}] neg_lo:[0,0,1] neg_hi:[0,0,1]")
                for p in range(8):
                    r = ACC + t*16 + 2*p
                    P(f"v_cvt_pk_bf16_f32 v{160+t*8+p}, v{r}, v{r+1}")
                for b in range(4):
                    P(f"buffer_store_dwordx2 v[{160+t*8+2*b}:{160+t*8+2*b+1}], v{AD+ct*4+b}, s[20:23], s{45+rt} offen{QSF}")
        else:
            P(f"""v_lshl_add_u32 v37, v36, 2, s41
v_xor_b32 v38, 128, v37
ds_read_b32 v40, v37
ds_read_b32 v42, v38
v_lshl_add_u32 v37, v39, 4, s42
v_xor_b32 v38, 128, v37""")
            for rt in range(2):
                for b in range(4):
                    P(f"ds_read_b128 v[{128+rt*32+b*4}:{128+rt*32+b*4+3}], v{37+rt} offset:{b*32}")
                    P(f"ds_read_b128 v[{144+rt*32+b*4}:{144+rt*32+b*4+3}], v{37+rt} offset:{512+b*32}")
            P("s_waitcnt lgkmcnt(0)\nv_mov_b32 v41, v40\nv_mov_b32 v43, v42")
            for t in range(4):
                rt, ct = t >> 1, t & 1
                C = v(40 + ct*2, 2)
                for p in range(8):
                    r = ACC + t*16 + 2*p
                    P(f"v_pk_mul_f32 v[{48+2*(p&3)}:{49+2*(p&3)}], v[{144+rt*32+2*p}:{144+rt*32+2*p+1}], {C}")
                    P(f"v_pk_fma_f32 v[{r}:{r+1}], v[{r}:{r+1}], v[{128+rt*32+2*p}:{128+rt*32+2*p+1}], v[{48+2*(p&3)}:{49+2*(p&3)}] neg_lo:[0,0,1] neg_hi:[0,0,1]")
                for p in range(8):
                    r = ACC + t*16 + 2*p
                    P(f"v_cvt_pk_bf16_f32 v{192+t*8+p}, v{r}, v{r+1}")
                for u in range(2):
                    P(f"buffer_store_dwordx4 v[{192+t*8+4*u}:{192+t*8+4*u+3}], v{AD+ct}, s[20:23], s{45+rt} offen offset:{640*u}{QSF}")
        stamp(); stamp_out()
        P("s_endpgm")
    P("L_k1_spare_c:\ns_cmp_lg_u32 s31, 0\ns_cbranch_scc1 L_k1_end\ns_waitcnt lgkmcnt(0)")
    srd(P, 20, 8, L.WS_USED)
    P("v_lshlrev_b32 v3, 4, v0\nv_mov_b32 v4, 0\nv_mov_b32 v5, 0\nv_mov_b32 v6, 0\nv_mov_b32 v7, 0")
    for i in range((L.FLAG_BYTES + 4095) // 4096):
        P(f"s_mov_b32 s31, {L.FLAG_OFF + i*4096}\nbuffer_store_dwordx4 v[4:7], v3, s[20:23], s31 offen")
    P("s_endpgm")

    P("L_k1_helper:")
    sn[0] = 1
    if opt.get("FOCUS") == 20: stamp()
    P("s_sub_u32 s33, s30, 4")
    P("v_lshrrev_b32 v8, 3, v1\nv_and_b32 v9, 7, v1\nv_lshrrev_b32 v10, 4, v1\nv_lshlrev_b32 v14, 4, v1")
    P("s_cmp_eq_u32 s32, 15\ns_cbranch_scc1 L_k1_spare_h")
    for i in range(4):
        P(f"v_add_u32 v11, {8*i}, v8\nv_mul_u32_u24 v11, 1280, v11\nv_add_u32 v12, {4*i}, v10\nv_and_b32 v12, 7, v12\nv_xor_b32 v12, v12, v9\nv_lshl_add_u32 v{4+i}, v12, 4, v11")
    P("v_mul_u32_u24 v11, 3840, v10\nv_bfe_u32 v12, v1, 2, 2\nv_xor_b32 v12, v12, v10\nv_lshl_add_u32 v11, v12, 6, v11\nv_and_b32 v12, 3, v1\nv_lshl_add_u32 v3, v12, 4, v11")
    P("s_lshl_b32 s36, s31, 2\ns_add_u32 s36, s36, s33\ns_mul_i32 s36, s36, 40960")
    P("s_mul_i32 s37, s33, 61440\ns_lshl_b32 s38, s32, 8\ns_add_u32 s37, s37, s38")
    P("s_lshl_b32 s39, s33, 12")
    if ROT:
        P("s_mul_i32 s34, s27, 3\ns_add_u32 s34, s34, s28\ns_add_u32 s34, s34, s25\ns_cmp_ge_u32 s34, 20\ns_cselect_b32 s35, 20, 0\ns_sub_u32 s34, s34, s35\ns_cmp_ge_u32 s34, 10\ns_cselect_b32 s35, 10, 0\ns_sub_u32 s34, s34, s35")
    else: P("s_mov_b32 s34, 0")
    if opt.get("FOCUS") == 20: stamp()
    P("s_waitcnt lgkmcnt(0)")
    if opt.get("FOCUS") == 20: stamp()
    srd(P, 12, 4, SZ); srd(P, 16, 6, 640 * 3840); srd(P, 20, 8, L.WS_USED)
    nvm = [0]; last = {}
    def dma_list(i):
        slot = (i % 4) * 32768
        Lx = []
        for j in range(4):
            pre = "s_lshl_b32 s40, s34, 7\ns_add_u32 s40, s40, s36\ns_mul_i32 s41, s34, 245760\ns_add_u32 s41, s41, s37\n" if j == 0 else ""
            Lx.append(pre + f"s_add_u32 m0, s39, {slot + j*1024}\ns_nop 0\nbuffer_load_dwordx4 v{4+j}, s[12:15], s40 offen lds")
            post = f"\ns_add_u32 s41, s41, {4*3840}" if j < 3 else "\ns_add_u32 s34, s34, 1\ns_cmp_eq_u32 s34, 10\ns_cselect_b32 s34, 0, s34"
            Lx.append(f"s_add_u32 m0, s39, {slot + 16384 + j*1024}\ns_nop 0\nbuffer_load_dwordx4 v3, s[16:19], s41 offen lds" + post)
        nvm[0] += 8; last[i] = nvm[0] - 1
        return Lx
    def dma(i):
        for l in dma_list(i): P(l)
    RAMP = opt.get('RAMP', 1)
    dma(0)
    if not RAMP: dma(1)
    stamp()
    def decode(tag):
        P(f"""s_mov_b32 s64, s10
s_mov_b32 s65, s11
s_mov_b32 s50, 1280
s_mov_b32 s51, 5
s_mov_b32 s52, 0
s_mov_b32 s53, 0
s_mov_b32 s55, 0
s_mov_b32 s66, 819200
s_mov_b32 s67, s48
s_cmp_lt_u32 s48, 40
s_cbranch_scc1 L_dec4{tag}
s_mov_b32 s64, s56
s_mov_b32 s65, s57
s_mov_b32 s52, 5
s_mov_b32 s55, {L.CS1_OFF}
s_sub_u32 s67, s48, 40
s_cmp_lt_u32 s48, 80
s_cbranch_scc1 L_dec4{tag}
s_mov_b32 s64, s58
s_mov_b32 s65, s59
s_mov_b32 s52, 10
s_mov_b32 s55, 0
s_sub_u32 s67, s48, 80
s_cmp_lt_u32 s48, 120
s_cbranch_scc1 L_dec4{tag}
s_mov_b32 s64, s60
s_mov_b32 s65, s61
s_mov_b32 s50, 3456
s_mov_b32 s52, 15
s_mov_b32 s53, 1
s_mov_b32 s55, {L.CS3_OFF}
s_mov_b32 s66, 2211840
s_sub_u32 s67, s48, 120
s_cmp_lt_u32 s48, 228
s_cbranch_scc1 L_dec4{tag}
s_mov_b32 s64, s62
s_mov_b32 s65, s63
s_mov_b32 s50, 1280
s_mov_b32 s51, 6
s_mov_b32 s52, 29
s_mov_b32 s53, 2
s_mov_b32 s55, 0
s_sub_u32 s67, s48, 228
s_mul_i32 s68, s67, 7282
s_lshr_b32 s68, s68, 16
s_mul_i32 s69, s68, 9
s_sub_u32 s69, s67, s69
s_branch L_decj{tag}
L_dec4{tag}:
s_lshr_b32 s68, s67, 2
s_and_b32 s69, s67, 3
L_decj{tag}:
s_mov_b32 s24, s64
s_and_b32 s25, s65, 0xffff
s_mov_b32 s26, s66
s_mov_b32 s27, 0x20000
s_mul_i32 s54, s69, s51
s_lshl_b32 s49, s54, 2
s_add_u32 s49, s49, s33
s_lshl_b32 s49, s49, 3
s_mul_i32 s49, s49, s50
s_lshl_b32 s42, s68, 7
s_add_u32 s49, s49, s42
v_mul_lo_u32 v13, v8, s50
v_lshl_add_u32 v13, v9, 4, v13""")
        P(f"""s_lshl_b32 s42, s68, 2
s_add_u32 s42, s42, s33
s_mul_i32 s52, s52, 20480
s_add_u32 s52, s52, {L.WS_OFF}
s_cmp_eq_u32 s53, 1
s_cbranch_scc1 L_dw3{tag}
s_mul_i32 s43, s42, 52429
s_lshr_b32 s43, s43, 18
s_mul_i32 s44, s43, 5
s_sub_u32 s44, s42, s44
s_cmp_eq_u32 s44, 0
s_cselect_b32 s45, 4, -1
s_bitcmp1_b32 s43, 0
s_cselect_b32 s45, s45, 0
s_add_u32 s44, s44, s45
s_add_u32 s42, s42, s45
s_lshl_b32 s44, s44, 10
s_mul_i32 s46, s69, 2560
s_branch L_dj2{tag}
L_dw3{tag}:
s_lshr_b32 s45, s42, 1
s_mul_i32 s43, s45, 9363
s_lshr_b32 s43, s43, 16
s_cmp_eq_u32 s45, 48
s_cselect_b32 s43, 7, s43
s_mul_i32 s44, s43, 7
s_sub_u32 s44, s45, s44
s_cmp_eq_u32 s43, 7
s_addc_u32 s44, s44, 0
s_lshl_b32 s44, s44, 1
s_and_b32 s45, s42, 1
s_add_u32 s44, s44, s45
s_mul_i32 s44, s44, 20480
s_mul_i32 s46, s69, 8192
L_dj2{tag}:
s_mul_i32 s43, s43, {L.SLICE_B}
s_add_u32 s52, s52, s43
s_add_u32 s52, s52, s44
s_lshl_b32 s42, s42, 6
s_add_u32 s42, s42, s46
s_cmp_eq_u32 s55, 0
s_cselect_b32 s42, 0, s42
s_add_u32 s55, s55, s42""")
    def prep_dma(ldsbase_sreg):
        P(f"s_lshl_b32 s42, s33, 10\ns_add_u32 s42, s42, {ldsbase_sreg}\ns_lshl_b32 s43, s50, 5\ns_mov_b32 s44, s49")
        for k in range(6):
            P(f"s_add_u32 m0, s42, {k*4096}\ns_nop 0\nbuffer_load_dwordx4 v13, s[24:27], s44 offen{NTF} lds")
            if k == 4: P("s_cmp_eq_u32 s51, 5\ns_cselect_b32 s43, 0, s43")
            if k < 5: P("s_add_u32 s44, s44, s43")
        nvm[0] += 6
    def prep_addr(tag, ldsbase_sreg):
        P(f"""v_bfe_u32 v11, v1, 2, 2
v_lshl_add_u32 v11, v10, 3, v11
v_lshlrev_b32 v11, 7, v11
v_and_b32 v12, 3, v1
v_lshl_add_u32 v11, v12, 4, v11
s_lshr_b32 s42, s33, 1
s_lshl_b32 s42, s42, 6
s_and_b32 s43, s33, 1
s_lshl_b32 s43, s43, 3
s_add_u32 s42, s42, s43
s_add_u32 s42, s42, {ldsbase_sreg}
v_add_u32 v11, s42, v11
s_cmp_eq_u32 s53, 1
s_mov_b32 s46, 5120
s_cmov_b32 s46, 1024""")
        for k in range(6):
            P(f"""s_add_u32 s42, s54, {k}
s_mul_i32 s43, s42, 9363
s_lshr_b32 s43, s43, 16
s_cmp_eq_u32 s42, 48
s_cselect_b32 s43, 7, s43
s_mul_i32 s44, s43, 7
s_sub_u32 s44, s42, s44
s_cmp_eq_u32 s43, 7
s_addc_u32 s44, s44, 0
s_lshl_b32 s44, s44, 3
s_add_u32 s44, s44, s43
s_cmp_eq_u32 s53, 2
s_cselect_b32 s42, s44, s42
s_mul_i32 s42, s42, s46
s_add_u32 s{92+k}, s42, s52""")
    def prep_reads():
        for k in range(6):
            P(f"ds_read_b64_tr_b16 v[{64+4*k}:{65+4*k}], v11 offset:{k*4096}\nds_read_b64_tr_b16 v[{66+4*k}:{67+4*k}], v11 offset:{k*4096+512}")
    def prep_stores(tag):
        P("s_waitcnt lgkmcnt(0)")
        for k in range(6):
            if k == 5: P(f"s_cmp_eq_u32 s51, 5\ns_cbranch_scc1 L_pp5{tag}")
            P(f"buffer_store_dwordx4 v[{64+4*k}:{67+4*k}], v14, s[20:23], s{92+k} offen{PSF}")
        P(f"L_pp5{tag}:")
    def prep_cs(tag):
        P(f"s_cmp_eq_u32 s55, 0\ns_cbranch_scc1 L_ppe{tag}\nv_mov_b32 v60, 0\nv_mov_b32 v62, {ONES}")
        for r in range(20): P(f"v_dot2c_f32_bf16 v60, v{64+r}, v62")
        xg_reduce(P, [60], [61])
        P("v_lshlrev_b32 v61, 2, v1\ns_mov_b64 exec, 0xffff\nbuffer_store_dword v60, v61, s[20:23], s55 offen\ns_mov_b64 exec, -1")
        P(f"L_ppe{tag}:")
    P("s_mul_i32 s48, s31, 15\ns_add_u32 s48, s48, s32")
    decode("m")
    prep_addr("m", PB)
    for r in range(8): P(f"v_mov_b32 v{16+r}, 0")
    P("v_add_u32 v15, s39, v14\nv_add_u32 v63, 0x10000, v15")
    XS = 96
    pid = None
    for i in range(10):
        w = nvm[0] - 1 - last[i]
        if i == PP: w = min(w, nvm[0] - 1 - pid)
        P(f"s_waitcnt vmcnt({w})\ns_barrier")
        slot = (i % 4) * 32768
        for j in range(4):
            P(f"ds_read_b128 v[{XS+4*j}:{XS+4*j+3}], v{63 if slot >= 65536 else 15} offset:{slot % 65536 + j*1024}")
        if i == PP: prep_reads()
        dl = (dma_list(1) + dma_list(2)) if (i == 0 and RAMP) else (dma_list(i + 2) if i + 2 < 10 else [])
        for l in dl[:2]: P(l)
        dl = dl[2:]
        for j in range(4):
            if opt.get("NOSTAT"): break
            P(f"s_waitcnt lgkmcnt({3 - j + (12 if i == PP else 0)})")
            for r in range(4):
                s_ = XS + 4*j + r
                P(f"v_lshlrev_b32 v{48+2*r}, 16, v{s_}\nv_and_b32 v{49+2*r}, 0xffff0000, v{s_}")
            if dl: P(dl.pop(0))
            for r in range(4):
                P(f"v_fmac_f32 v{16+j}, v{48+2*r}, v{48+2*r}\nv_fmac_f32 v{20+j}, v{49+2*r}, v{49+2*r}")
            if dl: P(dl.pop(0))
        for l in dl: P(l)
        if i == PI: prep_dma(PB); pid = nvm[0] - 1
        if i == PP: prep_stores("m"); nvm[0] += 5
    stamp()
    for r in range(4): P(f"v_add_f32 v{16+r}, v{16+r}, v{20+r}")
    for ctl in ("quad_perm:[1,0,3,2]", "quad_perm:[2,3,0,1]", "row_half_mirror"):
        for r in range(4): P(f"v_add_f32_dpp v{16+r}, v{16+r}, v{16+r} {ctl} row_mask:0xf bank_mask:0xf")
    for j in range(4): P(f"v_mul_f32 v{16+j}, {f2u(1/640)}, v{16+j}")
    P(f"s_lshl_b32 s42, s33, 7\ns_add_u32 s42, s42, {STAT+1536}\nv_lshl_add_u32 v12, v8, 2, s42")
    for j in range(4): P(f"ds_write_b32 v12, v{16+j} offset:{32*j}")
    P("s_waitcnt lgkmcnt(0)\ns_barrier\ns_barrier")
    stamp()
    prep_cs("m")
    stamp(); stamp_out()
    P("s_endpgm")
    P("L_k1_spare_h:\ns_waitcnt lgkmcnt(0)")
    srd(P, 20, 8, L.WS_USED)
    P("s_add_u32 s48, s31, 240\ns_mov_b32 s47, 0\nL_sp1:")
    decode("a")
    prep_dma("s47")
    P("s_add_u32 s48, s48, 16\ns_add_u32 s47, s47, 24576\ns_cmp_lt_u32 s48, 318\ns_cbranch_scc1 L_sp1")
    P("s_waitcnt vmcnt(0)\ns_barrier")
    P("s_add_u32 s48, s31, 240\ns_mov_b32 s47, 0\nL_sp2:")
    decode("b")
    prep_addr("b", "s47"); prep_reads(); prep_stores("b"); prep_cs("b")
    P("s_nop 4\ns_add_u32 s48, s48, 16\ns_add_u32 s47, s47, 24576\ns_cmp_lt_u32 s48, 318\ns_cbranch_scc1 L_sp2")
    P("L_k1_end:\ns_endpgm")
    return (name, 256, 512, STAT + 2048 + 128, 256)
```

```python
from asmlib import *
from gen1 import f2u, LOG2E, ONES, EPS, ARG, SZ, srd, header, xg_reduce

RING = 7
KV_LDS = 5 * 20480
XR_LDS = RING * 20480
CS1_LDS = XR_LDS + 12288
CS3_LDS = CS1_LDS + 1024
SY_LDS = CS3_LDS + 1024
LDS_TOTAL = SY_LDS + 64
SPIN_MAX = 400000
STAMP_OFF = 0x4000000

class VM:
    def __init__(s, P): s.P = P; s.n = 0
    def op(s, text, k=1): s.P(text); s.n += k; return s.n - 1
    def cnt(s, idx):
        c = s.n - 1 - idx
        assert 0 <= c <= 63, c
        return c
    def wait(s, idx, extra=""): s.P(f"s_waitcnt vmcnt({s.cnt(idx)}){extra}")
class LG(VM):
    def cnt(s, idx): return min(15, s.n - 1 - idx)
    def wait(s, idx): s.P(f"s_waitcnt lgkmcnt({s.cnt(idx)})")

_lab = [0]
def lab(p):
    _lab[0] += 1
    return f"L_{p}{_lab[0]}"

def gen_k2(P, L, opt):
    STAMP = opt.get("STAMP", False); FOCUS = opt.get("FOCUS", 0)
    NTOUCH = opt.get("NTOUCH", 1); THIN = opt.get("THIN", 1); PRE = opt.get("PRE", 8); PRE4 = opt.get("PRE4", 12)
    OSF = ["", " sc1", " nt"][opt.get("OSF", 0)]
    NSTG = L.NSTG; DBG = opt.get("DBG", 0)
    tails = []
    def store2(vm, lines):
        a, b = lab("sf"), lab("se")
        P(f"s_cbranch_scc1 {a}" if False else f"s_cmp_lg_u32 s24, 0\ns_cbranch_scc1 {a}")
        for l in lines: P(l)
        P(f"{b}:")
        tails.append(f"{a}:\ns_nop 4\n" + "\n".join(l + " sc1" for l in lines) + f"\ns_nop 1\ns_branch {b}")
        vm.n += len(lines)
        return vm.n - 1
    def poll_check(vaddr, vdata, soff, need):
        a, b, c = lab("pl"), lab("pd"), lab("pr")
        P(f"v_cmp_gt_u32 vcc, {need}, v{vdata}\ns_cbranch_vccnz {a}\n{b}:")
        tails.append(f"""{a}:
s_mov_b32 s47, 0
{c}:
buffer_load_dword v{vdata}, v{vaddr}, s[20:23], {soff} offen sc1
s_add_u32 s47, s47, 1
s_cmp_ge_u32 s47, {SPIN_MAX}
s_waitcnt vmcnt(0)
s_cbranch_scc1 {b}
v_cmp_gt_u32 vcc, {need}, v{vdata}
s_cbranch_vccnz {c}
s_branch {b}""")
    def lds_check(vaddr, vdata, off, need, back=''):
        a, b, c = lab("ll"), lab("ld"), lab("lr")
        P(f"v_cmp_gt_u32 vcc, {need}, v{vdata}\ns_cbranch_vccnz {a}\n{b}:")
        tails.append(f"""{a}:
s_mov_b32 s47, 0
{c}:
{back}ds_read_b32 v{vdata}, v{vaddr} offset:{off}
s_add_u32 s47, s47, 1
s_cmp_ge_u32 s47, {SPIN_MAX*4}
s_waitcnt lgkmcnt(0)
s_cbranch_scc1 {b}
v_cmp_gt_u32 vcc, {need}, v{vdata}
s_cbranch_vccnz {c}
s_branch {b}""")
    class Stamper:
        def __init__(s, base, n): s.i = 0; s.base = base; s.n = n
        def __call__(s):
            if not (STAMP or DBG): return
            assert s.i < s.n
            if DBG:
                P(f"s_memrealtime s[{s.base+2*s.i}:{s.base+2*s.i+1}]"); s.i += 1; return
            P(f"s_memtime s[{s.base+2*s.i}:{s.base+2*s.i+1}]"); s.i += 1
    def stamp_dump(regs):
        regs = regs + [regs[-1]] * (22 - len(regs))
        P("s_waitcnt lgkmcnt(0)\nv_mov_b32 v40, s100\ns_memrealtime s[100:101]\ns_waitcnt lgkmcnt(0)\nv_mov_b32 v41, s100\nv_mov_b32 v2, 0")
        for i, r in enumerate(regs): P(f"v_mov_b32 v{42+i}, s{r}")
        P("s_mov_b32 s22, 0x8000000")
        P(f"s_lshl_b32 s43, s2, 3\ns_add_u32 s43, s43, s30\ns_lshl_b32 s43, s43, 7\ns_add_u32 s43, s43, {STAMP_OFF + 2*0x100000}\ns_mov_b64 exec, 1")
        for i in range(6): P(f"buffer_store_dwordx4 v[{40+4*i}:{43+4*i}], v2, s[20:23], s43 offen offset:{16*i}")

    name = "main_kernel"
    header(P, name)
    sa = Stamper(80, 8)
    P(f"s_load_dwordx2 s[8:9], s[0:1], {ARG['ws']}\ns_load_dwordx2 s[4:5], s[0:1], {ARG['x']}\ns_load_dwordx2 s[6:7], s[0:1], {ARG['out']}")
    P("s_cmp_ge_u32 s2, 256\ns_cbranch_scc1 L_end")
    if STAMP: P("s_memrealtime s[100:101]")
    sa()
    P("v_and_b32 v1, 63, v0\nv_lshrrev_b32 v2, 6, v0\nv_readfirstlane_b32 s30, v2\nv_lshlrev_b32 v3, 4, v1")
    P("s_and_b32 s25, s2, 7\ns_lshr_b32 s26, s2, 3")
    P(f"""s_cmp_ge_u32 s30, 4
s_mov_b32 s46, {L.K_OFF - 327680}
s_cmov_b32 s46, {L.V_OFF - 327680}
s_mul_i32 s35, s26, 10240
s_add_u32 s46, s46, s35
s_bfe_u32 s36, s30, 0x10001
s_add_u32 s36, s36, s25
s_mul_i32 s36, s36, 327680
s_add_u32 s46, s46, s36
s_and_b32 s36, s30, 1
s_mul_i32 s36, s36, 5120
s_add_u32 s46, s46, s36
s_mul_i32 s47, s30, 5120
s_add_u32 s47, s47, {KV_LDS}
s_mul_i32 s40, s25, 327680
s_add_u32 s40, s40, s35
s_mul_i32 s41, s30, 1280
s_add_u32 s40, s40, s41
v_and_b32 v13, 31, v1
v_lshrrev_b32 v14, 5, v1
v_lshlrev_b32 v5, 3, v13
v_lshl_add_u32 v6, v14, 9, v5
s_mov_b32 s22, {L.WS_USED}
s_mov_b32 s23, 0x20000
s_waitcnt lgkmcnt(0)
s_mov_b32 s20, s8
s_and_b32 s21, s9, 0xffff""")
    def kvdma():
        P("s_mov_b32 m0, s47")
        for i in range(4): P(f"buffer_load_dwordx4 v3, s[20:23], s46 offen offset:{i*1024} lds")
        P("s_add_u32 m0, s47, 4096\ns_add_u32 s46, s46, 4096\nbuffer_load_dwordx4 v3, s[20:23], s46 offen lds")
    P("""buffer_load_dwordx2 v[16:17], v6, s[20:23], s40 offen
buffer_load_dwordx2 v[18:19], v6, s[20:23], s40 offen offset:256
buffer_load_dwordx2 v[20:21], v5, s[20:23], s40 offen offset:1024""")
    P("s_cmp_ge_u32 s30, 4\ns_cbranch_scc1 L_nok")
    kvdma()
    P("L_nok:")
    srd(P, 12, 4, SZ); srd(P, 16, 6, SZ)
    P("s_and_b32 s27, s26, 3\ns_lshl_b32 s28, s25, 2\ns_add_u32 s27, s27, s28\ns_lshr_b32 s28, s2, 5\ns_lshl_b32 s31, s25, 3\ns_add_u32 s31, s31, s30")
    P(f"""v_mov_b32 v22, 0
v_mov_b32 v23, 0
s_add_u32 s41, s41, {KV_LDS}
v_add_u32 v24, s41, v6
v_add_u32 v25, s41, v5
v_mul_u32_u24 v26, 320, v14
v_lshl_add_u32 v26, v13, 4, v26
v_add_u32 v26, s41, v26""")
    S, KF, VF, OA, PM, CA = 32, 176, 200, 224, 240, 8
    RMV, L4V, FXV, L7V, MODEV = 248, 249, 250, 251, 252
    for r in range(16):
        m = 0
        for l in range(64):
            if 8*(r >> 2) + 4*(l >> 5) + (r & 3) <= (l & 31): m |= 1 << l
        P(f"s_mov_b32 s{48+2*r}, {m & 0xffffffff:#x}\ns_mov_b32 s{49+2*r}, {m >> 32:#x}")
    P("s_cmp_lt_u32 s30, 4\ns_cbranch_scc1 L_nov")
    kvdma()
    P("L_nov:")
    for b in range(3): P(f"v_mov_b32 v{KF+b*8+6}, 0\nv_mov_b32 v{KF+b*8+7}, 0")
    for r in range(24): P(f"v_mov_b32 v{VF+r}, {ONES}")
    for r in range(16): P(f"v_mov_b32 v{OA+r}, 0")
    P("v_mov_b32 v4, 0xffff\nv_mov_b32 v7, 0xffff0000")
    for p in range(8):
        P(f"v_cndmask_b32 v{PM+p}, 0, v4, s[{48+4*p}:{49+4*p}]\nv_cndmask_b32 v12, 0, v7, s[{50+4*p}:{51+4*p}]\nv_or_b32 v{PM+p}, v{PM+p}, v12")
    P(f"v_cmp_gt_u32 vcc, 32, v1\nv_mov_b32 v4, 0xbf80bf80\nv_mov_b32 v7, 0x0000bf80\nv_cndmask_b32 v{CA}, 0, v4, vcc\nv_cndmask_b32 v{CA+1}, 0, v7, vcc\nv_mov_b32 v{CA+2}, 0\nv_mov_b32 v{CA+3}, 0")
    P("s_mov_b32 s44, 0x000fffff\ns_mov_b32 s45, 0x000fffff")
    P("s_and_b32 s29, s30, 3\ns_lshl_b32 s43, s27, 2\ns_add_u32 s29, s29, s43")
    P("s_mul_i32 s34, s28, 5\ns_and_b32 s37, s28, 1\ns_lshr_b32 s35, s34, 1\ns_add_u32 s36, s35, 2\ns_lshl_b32 s43, s37, 1\ns_sub_u32 s36, s36, s43\ns_add_u32 s35, s35, s37")
    P(f"s_mul_i32 s32, s28, {L.SLICE_B}\ns_add_u32 s32, s32, {L.WS_OFF}")
    P("s_mul_i32 s39, s30, 12\ns_mul_i32 s43, s30, 13\ns_sub_u32 s43, s43, 4\ns_cmp_ge_u32 s30, 4\ns_cselect_b32 s39, s43, s39\ns_lshl_b32 s39, s39, 10\ns_add_u32 s38, s32, s39")
    P(f"v_lshrrev_b32 v{RMV}, 2, v1\nv_mul_u32_u24 v{RMV}, 1280, v{RMV}\nv_and_b32 v4, 3, v1\nv_lshl_add_u32 v{RMV}, v4, 4, v{RMV}")
    P(f"v_lshlrev_b32 v{L4V}, 2, v13\ns_cmp_eq_u32 s25, 7\ns_cselect_b32 s43, 31, 63\nv_and_b32 v{FXV}, s43, v1\nv_lshlrev_b32 v{FXV}, 2, v{FXV}\nv_lshlrev_b32 v{L7V}, 7, v1")
    P(f"v_cmp_gt_u32 vcc, 4, v1\nv_cndmask_b32 v4, 0, 5, vcc\nv_and_b32 v7, 7, v1\nv_lshlrev_b32 v7, 2, v7\nv_add_u32 v7, {SY_LDS}, v7\ns_mov_b64 exec, 0xff\nds_write_b32 v7, v4\ns_mov_b64 exec, -1")
    vm = VM(P)
    side = [(3, f"""s_lshl_b32 s46, s25, 5
s_add_u32 s46, s46, s26
s_lshl_b32 s46, s46, 3
s_add_u32 s46, s46, s30
s_lshl_b32 s46, s46, 10
s_add_u32 s46, s46, {L.GX_OFF}
buffer_load_dwordx4 v[4:7], v3, s[20:23], s46 offen
s_lshl_b32 s46, s29, 7
s_add_u32 s46, s46, {L.FR_OFF}
buffer_load_dword v253, v{L4V}, s[20:23], s46 offen
s_lshl_b32 s46, s31, 7
s_add_u32 s46, s46, {L.FO_OFF}
buffer_load_dword v253, v{L4V}, s[20:23], s46 offen""")]
    for i in range(12):
        pre = f"s_add_u32 m0, s39, {i*1024}\ns_add_u32 s43, s38, {i*1024}\n" if i % 4 == 0 else ""
        side.append((1, pre + f"buffer_load_dwordx4 v3, s[20:23], s43 offen offset:{(i%4)*1024} lds"))
    side.append((3, f"""s_cmp_ge_u32 s30, 4
s_cbranch_scc1 L_side_l
s_mul_i32 s46, s29, 20480
s_lshl_b32 s43, s35, 6
s_add_u32 s43, s43, s46
s_mul_i32 s47, s30, 3072
s_add_u32 m0, s47, {XR_LDS}
s_nop 0
buffer_load_dwordx4 v{RMV}, s[12:15], s43 offen lds
s_add_u32 m0, s47, {XR_LDS+1024}
s_add_u32 s43, s43, 64
buffer_load_dwordx4 v{RMV}, s[12:15], s43 offen lds
s_lshl_b32 s43, s36, 6
s_add_u32 s43, s43, s46
s_add_u32 m0, s47, {XR_LDS+2048}
s_nop 0
buffer_load_dwordx4 v{RMV}, s[12:15], s43 offen lds
s_branch L_side_e
L_side_l:
s_add_u32 m0, s39, {12*1024}
s_add_u32 s43, s38, {12*1024}
buffer_load_dwordx4 v3, s[20:23], s43 offen lds
s_and_b32 s46, s30, 3
s_mul_i32 s43, s46, 2560
s_mul_i32 s47, s28, 320
s_add_u32 s43, s43, s47
s_add_u32 s43, s43, {L.CS1_OFF}
buffer_load_dword v253, v3, s[20:23], s43 offen
s_lshl_b32 s43, s46, 13
s_mul_i32 s47, s28, 896
s_add_u32 s43, s43, s47
s_add_u32 s43, s43, {L.CS3_OFF - 128}
buffer_load_dword v253, v3, s[20:23], s43 offen
L_side_e:"""))
    for k in range(NTOUCH):
        side.append((1, f"""s_and_b32 s46, s27, 3
s_lshl_b32 s46, s46, 3
s_add_u32 s46, s46, s30
s_lshl_b32 s46, s46, 13
s_add_u32 s46, s46, s32
s_add_u32 s46, s46, {5*20480 + k*262144}
buffer_load_dword v253, v{L7V}, s[20:23], s46 offen"""))
    def do_side(k=1):
        for _ in range(k):
            if side:
                n, t = side.pop(0); vm.op(t, n)
    sa()
    P("s_waitcnt vmcnt(5)\ns_cmp_ge_u32 s30, 4\ns_cbranch_scc1 L_b0\ns_waitcnt vmcnt(0)\nL_b0:")
    P("v_cmp_gt_u32 vcc, 32, v1\nv_cndmask_b32 v20, 0, v20, vcc\nv_cndmask_b32 v21, 0, v21, vcc\ns_waitcnt lgkmcnt(0)")
    P("s_barrier")
    sa()
    if STAMP or DBG: P("s_waitcnt lgkmcnt(0)")
    lg = LG(P)
    kid = {}
    def kread(t):
        b = t % 3
        kid[t] = lg.op(f"ds_read_b64 v[{KF+b*8}:{KF+b*8+1}], v24 offset:{t*1280}\nds_read_b64 v[{KF+b*8+2}:{KF+b*8+3}], v24 offset:{t*1280+256}\nds_read_b64 v[{KF+b*8+4}:{KF+b*8+5}], v25 offset:{t*1280+1024}", 3)
    M = 28
    mstate = {"n": 0}
    def maxops(t):
        ops = []
        for r in range(0, 16, 2):
            k = mstate["n"] & 1
            a, b = S + 16*t + r, S + 16*t + r + 1
            if mstate["n"] < 2: ops.append(f"v_max_f32 v{M+k}, v{a}, v{b}")
            else: ops.append(f"v_max3_f32 v{M+k}, v{M+k}, v{a}, v{b}")
            mstate["n"] += 1
        return ops
    kread(8); kread(7)
    for t in range(8, -1, -1):
        b = t % 3
        d = v(S + 16*t, 16)
        if t < 8:
            a, e = lab("ab"), lab("ae")
            P(f"s_cmp_eq_u32 s31, {7-t}\ns_cbranch_scc1 {a}\n{e}:")
            tails.append(f"{a}:\ns_nop 7\n" + "\n".join(f"v_mov_b32 v{OA+r}, 0xff800000" for r in range(16)) + f"\ns_nop 1\ns_branch {e}")
        mo = maxops(t + 1) if 1 <= t + 1 <= 7 else []
        lg.wait(kid[t])
        P(f"v_mfma_f32_32x32x16_bf16 {d}, {v(KF+b*8,4)}, v[16:19], {v(OA,16)}")
        if t - 2 >= 0: kread(t - 2)
        P(f"v_mfma_f32_32x32x16_bf16 {d}, {v(KF+b*8+4,4)}, v[20:23], {d}")
        if t % 2 == 0: do_side()
        for o in mo: P(o)
    for r in range(16): P(f"v_cndmask_b32 v{S+r}, v{S+r}, v{S+128+r}, s[{48+2*r}:{49+2*r}]")
    for o in maxops(0): P(o)
    P(f"v_max_f32 v{M}, v{M}, v{M+1}\nv_mov_b32 v{M+1}, v{M}")
    P(f"s_waitcnt vmcnt({vm.n})")
    P(f"v_permlane32_swap_b32 v{M}, v{M+1}\nv_max_f32 v{M}, v{M}, v{M+1}")
    P("s_barrier")
    vid = {}
    def vread(t, slot):
        P("s_mov_b64 exec, s[44:45]")
        vid[t] = lg.op(f"ds_read_b128 {v(VF+slot*8,4)}, v26 offset:{20480+t*1280}\nds_read_b128 {v(VF+slot*8+4,4)}, v26 offset:{20480+t*1280+640}", 2)
        P("s_mov_b64 exec, -1")
    P(f"""v_and_b32 v29, 0xffff0000, v{M}
v_sub_f32 v30, v{M}, v29
v_and_b32 v31, 0xffff0000, v30
v_sub_f32 v30, v30, v31
v_lshrrev_b32 v29, 16, v29
v_or_b32 v20, v29, v31
v_lshrrev_b32 v21, 16, v30""")
    sa()
    order = [0, 1, 2, 3, 4, 5, 6, 7]
    slot_of = {8: 0, 0: 1}
    for i, t in enumerate(order[1:]): slot_of[t] = (2 + i) % 3
    def subm(t): P(f"v_mfma_f32_32x32x16_bf16 {v(S+16*t,16)}, {v(CA,4)}, v[20:23], {v(S+16*t,16)}")
    subm(0)
    vread(8, 0); vread(0, 1)
    P("s_cmp_eq_u32 s30, 0\ns_cbranch_scc1 L_xcc\nL_xcce:")
    tails.append(f"""L_xcc:
s_getreg_b32 s42, hwreg(HW_REG_XCC_ID)
s_and_b32 s42, s42, 15
s_add_u32 s42, s42, 1
v_mov_b32 v31, s42
s_lshl_b32 s46, s25, 5
s_add_u32 s46, s46, s26
s_lshl_b32 s46, s46, 2
s_add_u32 s46, s46, {L.FX_OFF}
v_mov_b32 v30, 0
s_mov_b64 exec, 1
buffer_store_dword v31, v30, s[20:23], s46 offen sc1
s_mov_b64 exec, -1
s_branch L_xcce""")
    pend = []
    firstpv = [True]
    def pv(vt, half, preg):
        def f():
            if half == 0: lg.wait(vid[vt])
            c = "0" if firstpv[0] else v(OA, 16); firstpv[0] = False
            P(f"v_mfma_f32_32x32x16_bf16 {v(OA,16)}, {v(VF+slot_of[vt]*8+4*half,4)}, {v(preg+4*half,4)}, {c}")
        return f
    D8 = S + 128
    for i, t in enumerate(order):
        base = S + 16*t
        ms = []
        if i + 1 < 8: ms.append(lambda tt=order[i+1]: (subm(tt), do_side()))
        ms += pend; pend = []
        nm = len(ms)
        pos = [int(k * 16 / nm) for k in range(nm)]
        for r in range(16):
            while pos and pos[0] == r:
                pos.pop(0); ms.pop(0)()
                if not pos and i + 1 < 8: vread(order[i+1], slot_of[order[i+1]]); do_side()
            P(f"v_exp_f32 v{base+r}, v{base+r}")
        if i == 5: fxp = vm.op(f"s_lshl_b32 s33, s25, 7\ns_add_u32 s33, s33, {L.FX_OFF}\nbuffer_load_dword v{MODEV}, v{FXV}, s[20:23], s33 offen sc1")
        for p in range(8): P(f"v_cvt_pk_bf16_f32 v{base+p}, v{base+2*p}, v{base+2*p+1}")
        if t == 0:
            for p in range(8): P(f"v_and_b32 v{D8+p}, v{PM+p}, v{base+p}\nv_bfi_b32 v{base+p}, v{PM+p}, 0, v{base+p}")
            pend = [pv(8, 0, D8), pv(8, 1, D8), pv(0, 0, base), pv(0, 1, base)]
        else:
            pend = [pv(t, 0, base), pv(t, 1, base)]
    assert not side, len(side)
    for f in pend: f()
    sa()
    P(f"""s_mul_i32 s41, s26, 5
v_add_u32 v8, s41, v14
v_lshrrev_b32 v9, 4, v13
v_mul_u32_u24 v9, 20480, v9
v_and_b32 v10, 15, v13
v_lshl_add_u32 v9, v10, 4, v9""")
    for b in range(3):
        P(f"v_add_u32 v10, {2*b}, v8\nv_lshrrev_b32 v11, 1, v10\nv_lshl_add_u32 v11, v11, 8, v9\nv_and_b32 v10, 1, v10\nv_lshl_add_u32 v{16+b}, v10, 3, v11")
    P("v_cmp_gt_u32 vcc, 32, v1\nv_mov_b32 v10, 0x7ffffff0\nv_cndmask_b32 v18, v10, v18, vcc")
    P(f"s_mul_i32 s41, s31, 40960\ns_add_u32 s41, s41, {L.O_OFF}")
    P("s_waitcnt vmcnt(0)")
    if FOCUS == 9: sa()
    poll_check(FXV, MODEV, "s33", 1)
    if FOCUS == 9: sa()
    P(f"v_readfirstlane_b32 s43, v{MODEV}\nv_rcp_f32 v28, v{OA+12}\nv_cmp_ne_u32 vcc, s43, v{MODEV}\nv_mov_b32 v29, v28\ns_cmp_lg_u32 vcc_lo, 0\ns_cselect_b32 s24, 1, 0")
    if opt.get("SAFE"): P("s_mov_b32 s24, 1")
    for p in range(6): P(f"v_pk_mul_f32 v[{OA+2*p}:{OA+2*p+1}], v[{OA+2*p}:{OA+2*p+1}], v[28:29]")
    for p in range(6): P(f"v_cvt_pk_bf16_f32 v{32+p}, v{OA+2*p}, v{OA+2*p+1}")
    store2(vm, [f"buffer_store_dwordx2 v[{32+2*b}:{33+2*b}], v{16+b}, s[20:23], s41 offen" for b in range(3)])
    P(f"s_lshl_b32 s43, s31, 5\ns_add_u32 s43, s43, s26\ns_lshl_b32 s43, s43, 2\ns_add_u32 s43, s43, {L.FO_OFF}\nv_mov_b32 v2, 0\nv_mov_b32 v7, 1")
    P("s_waitcnt vmcnt(0)\ns_mov_b64 exec, 1")
    store2(vm, ["buffer_store_dword v7, v2, s[20:23], s43 offen"])
    P("s_mov_b64 exec, -1")
    sa()
    P(f"v_and_b32 v254, 3, v1\nv_lshlrev_b32 v254, 2, v254\nv_add_u32 v254, {SY_LDS}, v254")
    P(f"s_and_b32 s43, s30, 3\ns_lshl_b32 s43, s43, 2\ns_add_u32 s43, s43, {SY_LDS}\nv_mov_b32 v255, s43")
    P("s_cmp_ge_u32 s30, 4\ns_cbranch_scc1 L_loader")

    st0 = Stamper(48, 16)
    def st():
        if FOCUS == 0: st0()
    def sf(ph):
        if FOCUS == ph: st0()
    ACC, BF, ST, ST1, ST3, HP, ACC4, CS, PK, AF, A4 = 16, 40, 68, 72, 76, 80, 92, 112, 132, 144, 224
    NA4 = 6
    SYA, SYW, SYD, SYV = 254, 255, 90, 91
    D = 6
    P(f"s_lshr_b32 s43, s29, 1\ns_lshl_b32 s43, s43, 7\ns_add_u32 s45, s43, {L.FO_OFF}\nbuffer_load_dword v15, v{L4V}, s[20:23], s45 offen sc1")
    P("s_mul_i32 s40, s29, 20480\ns_lshl_b32 s41, s35, 10\ns_add_u32 s41, s41, s40\ns_lshl_b32 s42, s36, 10\ns_add_u32 s42, s42, s40\ns_lshl_b32 s43, s37, 3\ns_add_u32 s42, s42, s43")
    P("v_add_u32 v8, 0x10000, v3\nv_add_u32 v9, 0x20000, v3")
    P(f"s_mul_i32 s46, s30, 3072\ns_add_u32 s46, s46, {XR_LDS}")
    P("v_and_b32 v5, 15, v1\nv_lshlrev_b32 v5, 6, v5\nv_lshrrev_b32 v6, 4, v1\nv_lshl_add_u32 v5, v6, 4, v5\nv_add_u32 v5, s46, v5\ns_lshl_b32 s43, s37, 3\nv_add_u32 v6, s43, v5")
    P(f"v_and_b32 v7, 0x30, v1\nv_add_u32 v7, {CS1_LDS}, v7")
    P(f"s_lshl_b32 s33, s29, 7\ns_add_u32 s33, s33, {L.FR_OFF}\ns_lshl_b32 s43, s28, 2\ns_add_u32 s34, s33, s43")
    P("v_and_b32 v14, 7, v1\nv_lshlrev_b32 v14, 2, v14")
    P(f"s_lshl_b32 s46, s29, 14\ns_add_u32 s46, s46, {L.GX_OFF}")
    def lds_off(stage, chunk):
        off = (stage % RING) * 20480 + chunk * 1024
        return (3 if off < 65536 else (8 if off < 131072 else 9)), off % 65536
    def unpack(dst, src, n):
        for i in range(n): P(f"v_lshlrev_b32 v{dst+2*i}, 16, v{src+i}\nv_and_b32 v{dst+2*i+1}, 0xffff0000, v{src+i}")
    def set_flag(vm, val):
        P(f"v_mov_b32 v4, {val}\ns_mov_b64 exec, 1")
        store2(vm, ["buffer_store_dword v4, v2, s[20:23], s34 offen"])
        P("s_mov_b64 exec, -1")
    cnt = [0]
    def rdw(lg, stage, chunk):
        ar, off = lds_off(stage, chunk)
        r = BF + (cnt[0] % (D + 1)) * 4; cnt[0] += 1
        return r, lg.op(f"ds_read_b128 {v(r,4)}, v{ar} offset:{off}")
    def free_sig(lg): lg.op(f"ds_write_b32 v{SYW}, v{SYV} offset:16")
    def rdy_read(lg): return lg.op(f"ds_read_b32 v{SYD}, v{SYA}")
    def stats_fin(R):
        P(f"v_add_f32 v{R}, v{R}, v{R+2}\nv_add_f32 v{R+1}, v{R+1}, v{R+3}")
        xg_reduce(P, [R, R+1], [R+2, R+3])
        P(f"v_mul_f32 v{R}, {f2u(1/640)}, v{R}\nv_mul_f32 v{R+1}, {f2u(1/640)}, v{R+1}\nv_fma_f32 v{R+1}, -v{R}, v{R}, v{R+1}\nv_max_f32 v{R+1}, 0, v{R+1}")
        P(f"v_add_f32 v{R+2}, {f2u(EPS)}, v{R+1}\nv_rsq_f32 v{R+2}, v{R+2}")
    def kloop(stage_chunk, tiles, aoff, vaddr_of_ks, accinit, frees, stat=None, ph=0, post=None):
        vm = VM(P); lg = LG(P)
        ids = {}
        def aload(ks):
            if ks % 4 == 0: P(f"s_add_u32 s43, s40, {aoff + ks*1024}")
            ids[ks] = vm.op(f"buffer_load_dwordx4 {v(AF+4*ks,4)}, v{vaddr_of_ks(ks)}, s[20:23], s43 offen offset:{(ks%4)*1024} sc1")
        sf(ph)
        for ks in range(PRE): aload(ks)
        sf(ph)
        nt = len(tiles)
        items = [(ks, t) for ks in range(20) for t in tiles]
        N = len(items)
        rr = []
        def rd(n):
            ks, t = items[n]
            if t == tiles[0] and ks in frees: free_sig(lg)
            rr.append(rdw(lg, *stage_chunk(ks, t)))
            if n == N - 1 and 20 in frees: free_sig(lg)
        for n in range(D): rd(n)
        for n, (ks, t) in enumerate(items):
            if n + D < N: rd(n + D)
            if t == tiles[0]:
                if ks + PRE < 20: aload(ks + PRE)
                if stat and ks == 3: sp = vm.op("buffer_load_dword v15, v14, s[20:23], s33 offen sc1")
                if stat and ks == 9:
                    vm.wait(sp); poll_check(14, 15, "s33", stat[0])
                    sl = vm.op(f"s_add_u32 s44, s46, {stat[2]}\nbuffer_load_dwordx4 {v(stat[1],4)}, v3, s[20:23], s44 offen sc1")
                P(f"s_waitcnt vmcnt({vm.cnt(ids[ks])}) lgkmcnt({lg.cnt(rr[n][1])})")
                if ks in (0, 1, 2, 4, 8, 12, 16): sf(ph)
                for fk, fv in frees.items():
                    if ks == fk - 3: P(f"v_mov_b32 v{SYV}, {fv}")
            else:
                lg.wait(rr[n][1])
            a = ACC + 4 * tiles.index(t)
            P(f"v_mfma_f32_16x16x32_bf16 {v(a,4)}, {v(rr[n][0],4)}, {v(AF+4*ks,4)}, {v(a,4) if (accinit or ks > 0) else '0'}")
        sf(ph)
        return vm, lg
    def pack(dst, src, n):
        for i in range(n): P(f"v_cvt_pk_bf16_f32 v{dst+i}, v{src+2*i}, v{src+2*i+1}")
    def tile_then_stats(pk, off, stoff, f1):
        vm = VM(P)
        P(f"s_add_u32 s43, s41, {off}\ns_add_u32 s44, s42, {off}")
        store2(vm, [f"buffer_store_dwordx4 {v(pk,4)}, v3, s[20:23], s43 offen", f"buffer_store_dwordx4 {v(pk+4,4)}, v3, s[20:23], s43 offen offset:1024", f"buffer_store_dwordx2 {v(pk+8,2)}, v3, s[20:23], s44 offen"])
        P(f"v_mov_b32 v10, 0\nv_mov_b32 v11, 0\nv_mov_b32 v12, {ONES}")
        for i in range(10): P(f"v_dot2c_f32_bf16 v10, v{pk+i}, v12\nv_dot2c_f32_bf16 v11, v{pk+i}, v{pk+i}")
        xg_reduce(P, [10, 11], [12, 13])
        P(f"s_lshr_b32 s44, s28, 1\ns_lshl_b32 s44, s44, 8\ns_add_u32 s43, s46, s44\ns_lshl_b32 s44, s37, 3\ns_add_u32 s43, s43, s44\ns_add_u32 s43, s43, {stoff}")
        sf(8)
        P("s_waitcnt vmcnt(0)")
        sf(8)
        set_flag(vm, f1)
        P("s_mov_b64 exec, 0xffff")
        store2(vm, ["buffer_store_dwordx2 v[10:11], v3, s[20:23], s43 offen"])
        P("s_mov_b64 exec, -1")
    kk = 2 * 0.7978845608028654 * LOG2E
    def gelu_items(a0, c0, n, STR, pk):
        Lx = []
        pr = range(0, n, 2)
        for i in pr: Lx.append(f"v_pk_mul_f32 {v(c0+i,2)}, {v(c0+i,2)}, {v(STR,2)}")
        for i in pr: Lx.append(f"v_pk_fma_f32 {v(a0+i,2)}, {v(a0+i,2)}, {v(STR+2,2)}, {v(c0+i,2)} neg_lo:[0,0,1] neg_hi:[0,0,1]")
        for i in pr: Lx.append(f"v_pk_mul_f32 {v(c0+i,2)}, {v(a0+i,2)}, {v(a0+i,2)}")
        for i in pr: Lx.append(f"v_pk_fma_f32 {v(c0+i,2)}, {v(c0+i,2)}, v[10:11], v[12:13]")
        for i in pr: Lx.append(f"v_pk_mul_f32 {v(c0+i,2)}, {v(c0+i,2)}, {v(a0+i,2)}")
        for i in range(n): Lx.append(f"v_exp_f32 v{c0+i}, v{c0+i}")
        for i in pr: Lx.append(f"v_pk_add_f32 {v(c0+i,2)}, {v(c0+i,2)}, 1.0 op_sel_hi:[1,0]")
        for i in range(n): Lx.append(f"v_rcp_f32 v{c0+i}, v{c0+i}")
        for i in pr: Lx.append(f"v_pk_mul_f32 {v(a0+i,2)}, {v(a0+i,2)}, {v(c0+i,2)}")
        for i in pr: Lx.append(f"v_cvt_pk_bf16_f32 v{pk+i//2}, v{a0+i}, v{a0+i+1}")
        return Lx
    def gelu_consts():
        P(f"v_mov_b32 v10, {f2u(-kk*0.044715)}\nv_mov_b32 v11, v10\nv_mov_b32 v12, {f2u(-kk)}\nv_mov_b32 v13, v12")
    small = lambda b: (lambda ks, t: (b + ks // 4, (ks % 4) * 5 + t))
    T5 = [0, 1, 2, 3, 4]

    P(f"ds_read_b128 {v(HP,4)}, v5\nds_read_b128 {v(HP+4,4)}, v5 offset:1024\nds_read_b64 {v(HP+8,2)}, v6 offset:2048\ns_waitcnt lgkmcnt(0)")
    unpack(ACC, HP, 10)
    P("s_barrier")
    P("s_waitcnt vmcnt(0)")
    poll_check(L4V, 15, "s45", 1)
    st()
    kloop(small(0), T5, L.O_OFF, lambda ks: 3, True, {12: 3, 20: 5}, ph=1)
    st()
    sf(8)
    pack(HP, ACC, 10)
    tile_then_stats(HP, L.H_OFF, 14336, 1)
    st(); sf(8)
    P("buffer_load_dword v15, v14, s[20:23], s33 offen sc1")
    P(f"ds_read_b32 v{SYD}, v{SYA}\ns_waitcnt vmcnt(1)")
    sf(8)
    vm = VM(P); set_flag(vm, 2)
    P("s_waitcnt lgkmcnt(0)")
    lds_check(SYA, SYD, 0, 10)
    sf(8)
    for t in range(5): P(f"ds_read_b128 {v(CS+4*t,4)}, v7 offset:{t*64}")
    P("s_waitcnt vmcnt(1) lgkmcnt(0)")
    sf(8)
    poll_check(14, 15, "s33", 1)
    st(); sf(8)
    kloop(small(5), T5, L.H_OFF, lambda ks: 3, False, {12: 8, 20: 10}, stat=(2, ST1, 14336), ph=2)
    st()
    stats_fin(ST1)
    P(f"v_mul_f32 v{ST}, v{ST1+1}, v{ST1+2}\nv_mov_b32 v{ST+1}, {f2u(EPS)}\nv_fma_f32 v{ST}, v{ST}, v{ST1+2}, v{ST+1}\nv_rsq_f32 v{ST}, v{ST}")
    gelu_consts()
    P(f"v_mul_f32 v{ST+2}, v{ST}, v{ST1+2}\nv_mul_f32 v{ST}, v{ST1}, v{ST+2}\nv_mov_b32 v{ST+3}, v{ST+2}\nv_mov_b32 v{ST+1}, v{ST}")
    for l in gelu_items(ACC, CS, 20, ST, PK): P(l)
    P("s_lshr_b32 s43, s28, 2\ns_add_u32 s43, s43, 1\ns_sub_u32 s44, 0, s43\ns_bitcmp1_b32 s28, 1\ns_cselect_b32 s43, s44, s43")
    P("s_lshl_b32 s44, s29, 4\ns_add_u32 s44, s44, s43\nv_and_b32 v10, 15, v1\nv_add_u32 v10, s44, v10")
    P("v_ashrrev_i32 v12, 8, v10\nv_cmp_eq_u32 vcc, s25, v12\nv_cmp_gt_u32 s[26:27], 8, v12")
    P("v_lshrrev_b32 v11, 4, v10\nv_mul_u32_u24 v11, 20480, v11\nv_and_b32 v10, 15, v10\nv_lshl_add_u32 v11, v10, 4, v11\nv_and_b32 v10, 0x30, v1\nv_lshl_add_u32 v11, v10, 4, v11")
    P(f"s_sub_u32 s43, s41, s40\ns_sub_u32 s44, s42, s40\ns_add_u32 s43, s43, {L.T_OFF}\ns_add_u32 s44, s44, {L.T_OFF}")
    P("s_andn2_b64 s[26:27], s[26:27], vcc\ns_mov_b64 exec, vcc")
    vm = VM(P)
    tl = [f"buffer_store_dwordx4 {v(PK,4)}, v11, s[20:23], s43 offen", f"buffer_store_dwordx4 {v(PK+4,4)}, v11, s[20:23], s43 offen offset:1024", f"buffer_store_dwordx2 {v(PK+8,2)}, v11, s[20:23], s44 offen"]
    store2(vm, tl)
    P("s_cmp_lg_u64 s[26:27], 0\ns_cbranch_scc1 L_halo\nL_haloe:\ns_mov_b64 exec, -1")
    tails.append(f"L_halo:\ns_mov_b64 exec, s[26:27]\ns_add_u32 s43, s43, {L.TH_OFF - L.T_OFF}\ns_add_u32 s44, s44, {L.TH_OFF - L.T_OFF}\n" + "\n".join(l + " sc1" for l in tl) + "\ns_nop 1\ns_branch L_haloe")
    P(f"v_mul_f32 v{ST1}, v{ST1}, v{ST1+2}\nv_mov_b32 v{ST1+3}, v{ST1+2}\nv_mov_b32 v{ST1+1}, v{ST1}")
    P(f"""s_and_b32 s43, s29, 15
s_cmp_eq_u32 s43, 0
s_cselect_b32 s44, {L.FHL_OFF - L.FR_OFF}, 0
s_sub_u32 s44, s44, 128
s_cmp_eq_u32 s29, 0
s_cselect_b32 s44, 0, s44
s_cmp_eq_u32 s43, 15
s_cselect_b32 s45, {L.FHL_OFF - L.FR_OFF}, 0
s_add_u32 s45, s45, 128
s_cmp_eq_u32 s29, 127
s_cselect_b32 s45, 0, s45
s_add_u32 s44, s44, s33
s_add_u32 s45, s45, s33
v_bfe_u32 v10, v1, 3, 2
v_mov_b32 v13, s33
v_mov_b32 v12, s44
v_cmp_eq_u32 vcc, 1, v10
v_cndmask_b32 v13, v13, v12, vcc
v_mov_b32 v12, s45
v_cmp_eq_u32 vcc, 2, v10
v_cndmask_b32 v13, v13, v12, vcc
v_add_u32 v228, v13, v14
s_waitcnt vmcnt(0)""")
    set_flag(vm, 3)
    P("s_add_u32 s44, s29, 1\ns_and_b32 s44, s44, 14\ns_cmp_eq_u32 s44, 0\ns_cbranch_scc1 L_hf\nL_hfe:")
    tails.append(f"L_hf:\ns_add_u32 s44, s34, {L.FHL_OFF - L.FR_OFF}\ns_mov_b64 exec, 1\nbuffer_store_dword v4, v2, s[20:23], s44 offen sc1\ns_mov_b64 exec, -1\ns_branch L_hfe")
    st()
    P(f"buffer_load_dword v15, v228, s[20:23], 0 offen sc1\nds_read_b32 v{SYD}, v{SYA}")
    P(f"""s_cmp_eq_u32 s43, 0
s_cselect_b32 s44, {L.TH_OFF - L.T_OFF}, 0
s_cmp_eq_u32 s29, 0
s_cselect_b32 s44, 0x40000000, s44
s_cmp_eq_u32 s43, 15
s_cselect_b32 s45, {L.TH_OFF - L.T_OFF}, 0
s_cmp_eq_u32 s29, 127
s_cselect_b32 s45, 0x40000000, s45
v_and_b32 v10, 15, v1
v_add_u32 v11, s44, v3
v_add_u32 v12, s45, v3
v_cmp_gt_u32 vcc, 1, v10
v_cndmask_b32 v224, v3, v11, vcc
v_cmp_lt_u32 vcc, 14, v10
v_cndmask_b32 v225, v3, v12, vcc
v_cmp_gt_u32 vcc, 2, v10
v_cndmask_b32 v226, v3, v11, vcc
v_cmp_lt_u32 vcc, 13, v10
v_cndmask_b32 v227, v3, v12, vcc""")
    unpack(ACC4, HP, 10)
    for i in range(0, 20, 2):
        P(f"v_pk_fma_f32 {v(ACC+i,2)}, {v(ACC4+i,2)}, {v(ST1+2,2)}, {v(ST1,2)} neg_lo:[0,0,1] neg_hi:[0,0,1]")
    P("s_waitcnt lgkmcnt(0)")
    lds_check(SYA, SYD, 0, 15)
    P("s_waitcnt vmcnt(0)")
    poll_check(228, 15, "0", 3)
    st()
    kloop(small(10), T5, L.T_OFF, lambda ks: 224 + ks // 5, True, {12: 13, 20: 15}, ph=3)
    st()
    pack(PK, ACC, 10)
    tile_then_stats(PK, L.X1_OFF, 15360, 4)
    st()
    P("buffer_load_dword v15, v14, s[20:23], s33 offen sc1")
    P(f"ds_read_b32 v{SYD}, v{SYA}")
    unpack(CS, PK, 10)
    for i in range(0, 20, 2): P(f"v_pk_add_f32 {v(ACC4+i,2)}, {v(ACC4+i,2)}, {v(CS+i,2)}")
    P("s_waitcnt vmcnt(1)")
    vm = VM(P); set_flag(vm, 5)
    gelu_consts()
    P(f"v_add_u32 v7, {CS3_LDS - CS1_LDS}, v7\ns_lshl_b32 s45, s28, 10\ns_waitcnt lgkmcnt(0)")
    sf(8)
    lds_check(SYA, SYD, 0, 19)
    sf(8)
    for i in range(4): P(f"ds_read_b128 {v(CS+4*i,4)}, v7 offset:{i*64}")
    P("s_waitcnt vmcnt(1) lgkmcnt(0)")
    sf(8)
    poll_check(14, 15, "s33", 4)
    st(); sf(8)
    vm, lg = kloop(lambda ks, t: (15 + t, ks), [0, 1, 2, 3], L.X1_OFF, lambda ks: 3, False, {20: 19}, stat=(5, ST3, 15360), ph=4)
    def a4reg(p):
        i = p % (NA4 + 20)
        return A4 + 4*i if i < NA4 else AF + 4*(i - NA4)
    ids4 = {}
    def a4load(p):
        if p % 4 == 0:
            if p < 20: P(f"s_add_u32 s44, s40, {L.K_OFF + p*1024}")
            elif p < 40: P(f"s_add_u32 s44, s40, {L.V_OFF + (p-20)*1024}")
            else: P(f"s_add_u32 s44, s46, {(p-40)*1024}")
        ids4[p] = vm.op(f"buffer_load_dwordx4 {v(a4reg(p),4)}, v3, s[20:23], s44 offen offset:{(p%4)*1024} sc1")
    gst = {}
    def gstore(q):
        if q < 2: P(f"s_add_u32 s43, s45, s40\ns_add_u32 s43, s43, {L.K_OFF + q*8192}")
        elif q == 2: P(f"s_cmp_ge_u32 s28, 4\ns_mov_b32 s43, {L.K_OFF + 16384}\ns_cmov_b32 s43, {L.V_OFF - 4096}\ns_add_u32 s43, s43, s45\ns_add_u32 s43, s43, s40")
        elif q < 5: P(f"s_add_u32 s43, s45, s40\ns_add_u32 s43, s43, {L.V_OFF + q*8192 - 20480}")
        elif q == 5: P("s_add_u32 s43, s45, s46")
        else: P(f"s_add_u32 s43, s45, s46\ns_add_u32 s43, s43, 8192\ns_cmp_ge_u32 s28, 6\ns_cmov_b32 s43, {L.DUMMY_OFF}")
        gst[q] = store2(vm, [f"buffer_store_dwordx4 {v(PK+4*(q%2),4)}, v3, s[20:23], s43 offen"])
    items4 = [(p, t) for p in range(54) for t in range(5)]
    N4 = len(items4)
    groups = [[0, 1, 2, 3]] + [[t, t + 1] for t in range(4, 14, 2)]
    ry = rdy_read(lg)
    stats_fin(ST3)
    P(f"v_mul_f32 v{ST3}, v{ST3}, v{ST3+2}\nv_mov_b32 v{ST3+3}, v{ST3+2}\nv_mov_b32 v{ST3+1}, v{ST3}")
    rr4 = []
    r4y = {}
    def rd4(n):
        p, t = items4[n]
        sg = 29 + p // 4
        if p % 8 == 0 and t == 0 and p > 0:
            free_sig(lg)
            lg.wait(r4y[sg]); lds_check(SYA, SYD, 0, min(sg + 2, NSTG))
        if p % 8 == 6 and t == 0 and p + 2 < 54: r4y[sg + 1] = rdy_read(lg)
        rr4.append(rdw(lg, sg, (p % 4) * 5 + t))
    for gi, g in enumerate(groups):
        if gi in (2, 3): sf(5)
        lg.wait(ry)
        if gi + 1 < len(groups):
            gn = groups[gi + 1]
            lds_check(SYA, SYD, 0, 15 + gn[-1] + 1)
            its = [(ks, t) for ks in range(20) for t in gn]
            rr = [rdw(lg, 15 + t, ks) for ks, t in its[:D]]
        else:
            st()
            lds_check(SYA, SYD, 0, 31)
            for n in range(D): rd4(n)
            vm.wait(poll1); poll_check(14, 15, "s33", 6)
            for p in range(PRE4): a4load(p)
        if gi in (2, 3): sf(5)
        for l in gelu_items(ACC, CS, 4*len(g), ST3, PK + 4*((g[0]//2) % 2)): P(l)
        if gi in (2, 3): sf(5)
        for t in g[1::2]: gstore(t // 2)
        if gi + 1 == len(groups): break
        P(f"v_mov_b32 v{SYV}, {15 + gn[-1] + 1}")
        if gi in (2, 3): sf(5)
        for n, (ks, t) in enumerate(its):
            if n + D < 40:
                rr.append(rdw(lg, 15 + its[n + D][1], its[n + D][0]))
                if n + D == 39: free_sig(lg); ry = rdy_read(lg)
            if n == 8:
                for i, tt in enumerate(gn): lg.op(f"ds_read_b128 {v(CS+4*i,4)}, v7 offset:{tt*64}")
            lg.wait(rr[n][1])
            acc = ACC + 4 * gn.index(t)
            P(f"v_mfma_f32_16x16x32_bf16 {v(acc,4)}, {v(rr[n][0],4)}, {v(AF+4*ks,4)}, {'0' if ks == 0 else v(acc,4)}")
            if gi == 4 and n == 0:
                vm.wait(gst[4]); set_flag(vm, 6)
            if gi == 4 and n == 22: poll1 = vm.op("buffer_load_dword v15, v14, s[20:23], s33 offen sc1")
    st()
    for n, (p, t) in enumerate(items4):
        if n + D < N4: rd4(n + D)
        if t == 0:
            if p == 3:
                vm.wait(gst[6]); set_flag(vm, 7)
            if p == 20: poll2 = vm.op("buffer_load_dword v15, v14, s[20:23], s33 offen sc1")
            if p + PRE4 == 40:
                vm.wait(poll2); poll_check(14, 15, "s33", 7)
            if p + PRE4 < 54: a4load(p + PRE4)
            P(f"s_waitcnt vmcnt({vm.cnt(ids4[p])}) lgkmcnt({lg.cnt(rr4[n][1])})")
            if p % 8 == 4: P(f"v_mov_b32 v{SYV}, {29 + p // 4 + 1}")
        else: lg.wait(rr4[n][1])
        P(f"v_mfma_f32_16x16x32_bf16 {v(ACC4+4*t,4)}, {v(rr4[n][0],4)}, {v(a4reg(p),4)}, {v(ACC4+4*t,4)}")
    st()
    P(f"s_mul_i32 s46, s30, 3072\ns_add_u32 s46, s46, {XR_LDS}\nv_add_u32 v10, s46, v3")
    P("s_lshl_b32 s43, s35, 6\ns_add_u32 s43, s43, s40\ns_lshl_b32 s44, s36, 6\ns_add_u32 s44, s44, s40\ns_lshl_b32 s45, s37, 3\ns_add_u32 s44, s44, s45")
    pack(PK, ACC4, 10)
    P(f"ds_write_b128 v5, {v(PK,4)}\nds_write_b128 v5, {v(PK+4,4)} offset:1024\nds_write_b64 v5, {v(PK+8,2)} offset:2048")
    P(f"ds_read_b128 {v(CS,4)}, v10\nds_read_b128 {v(CS+4,4)}, v10 offset:1024\nds_read_b64 {v(CS+8,2)}, v10 offset:2048")
    P(f"s_waitcnt lgkmcnt(2)\nbuffer_store_dwordx4 {v(CS,4)}, v{RMV}, s[16:19], s43 offen{OSF}\ns_waitcnt lgkmcnt(1)\nbuffer_store_dwordx4 {v(CS+4,4)}, v{RMV}, s[16:19], s43 offen offset:64{OSF}\ns_waitcnt lgkmcnt(0)\nbuffer_store_dwordx2 {v(CS+8,2)}, v{RMV}, s[16:19], s44 offen{OSF}")
    if DBG:
        P("s_waitcnt vmcnt(0)"); st0()
        P(f"s_cmp_lg_u32 s2, {DBG}\ns_cbranch_scc1 L_end\ns_cmp_lg_u32 s30, 0\ns_cbranch_scc1 L_end\ns_load_dwordx2 s[4:5], s[0:1], 72\ns_waitcnt lgkmcnt(0)")
        P(f"s_mov_b32 s12, s4\ns_and_b32 s13, s5, 0xffff\ns_mov_b32 s14, 256\ns_mov_b32 s15, 0x20000\nv_mov_b32 v39, {L.DUMMY_OFF + 2048}\nbuffer_load_dwordx4 v[52:55], v39, s[20:23], 0 offen\nbuffer_load_dwordx2 v[56:57], v39, s[20:23], 0 offen offset:16\ns_waitcnt vmcnt(0)\nv_mov_b32 v39, 0")
        regs = [80, 82, 84, 90, 48, 54, 60, 66, 70, 48 + 2*(st0.i-1)]
        for i, r in enumerate(regs): P(f"v_mov_b32 v{40+i}, s{r}")
        if "XA" in opt:
            vr = lambda k: 52 + k if k < 6 else 40 + k - 6
            P(f"v_readfirstlane_b32 s60, v{vr(opt['XA'])}\nv_readfirstlane_b32 s61, v{vr(opt['XB'])}\nv_readfirstlane_b32 s62, v49\ns_sub_u32 s60, s61, s60\ns_lshl_b32 s60, s60, 2\ns_min_u32 s60, s60, 100000")
            P("L_xspin:\ns_memrealtime s[64:65]\ns_waitcnt lgkmcnt(0)\ns_sub_u32 s64, s64, s62\ns_cmp_lt_u32 s64, s60\ns_cbranch_scc1 L_xspin")
        P("s_mov_b64 exec, 1\nbuffer_store_dwordx4 v[52:55], v39, s[12:15], 0 offen\nbuffer_store_dwordx2 v[56:57], v39, s[12:15], 0 offen offset:16\nbuffer_store_dwordx2 v[40:41], v39, s[12:15], 0 offen offset:24\nbuffer_store_dwordx4 v[42:45], v39, s[12:15], 0 offen offset:32\nbuffer_store_dwordx4 v[46:49], v39, s[12:15], 0 offen offset:48")
    if STAMP:
        P("s_waitcnt vmcnt(0)"); st0()
        stamp_dump([80 + 2*i for i in range(sa.i)] + [48 + 2*i for i in range(st0.i)])
    P("s_endpgm")

    P("L_loader:")
    P("s_sub_u32 s43, s30, 4\ns_mul_i32 s39, s43, 5120\ns_add_u32 s38, s32, s39")
    P(f"""s_cmp_ge_u32 s30, 6
s_cbranch_scc1 L_nocs
s_mul_i32 s44, s28, 320
s_add_u32 s44, s44, {L.CS1_OFF}
s_mov_b32 s45, 2560
s_mov_b32 s46, {CS1_LDS}
s_cmp_eq_u32 s30, 4
s_cbranch_scc1 L_cs1
s_mul_i32 s44, s28, 7
s_cmp_eq_u32 s28, 7
s_subb_u32 s44, s44, 0
s_lshl_b32 s44, s44, 7
s_add_u32 s44, s44, {L.CS3_OFF}
s_mov_b32 s45, 8192
s_mov_b32 s46, {CS3_LDS}
L_cs1:""")
    for i in range(4): P(f"buffer_load_dwordx4 {v(16+4*i,4)}, v3, s[20:23], s44 offen\ns_add_u32 s44, s44, s45")
    P("L_nocs:\ns_barrier")
    P("s_cmp_ge_u32 s30, 6\ns_cbranch_scc1 L_nocs2\nv_add_u32 v8, s46, v3\ns_waitcnt vmcnt(0)")
    for r in range(4): P(f"v_add_f32 v{16+r}, v{16+r}, v{20+r}\nv_add_f32 v{24+r}, v{24+r}, v{28+r}")
    for r in range(4): P(f"v_add_f32 v{16+r}, v{16+r}, v{24+r}")
    P("ds_write_b128 v8, v[16:19]\nL_nocs2:")
    sl = Stamper(48, 16)
    vm = VM(P); last = {}
    pub = [5]
    def issue(sg, thin=False):
        slot = (sg % RING) * 20480
        for i in range(5):
            if i % 4 == 0: P(f"s_add_u32 m0, s39, {slot + i*1024}\ns_add_u32 s43, s38, {sg*20480 + i*1024}")
            if thin: P(f"s_waitcnt vmcnt({THIN})")
            last[sg] = vm.op(f"buffer_load_dwordx4 v3, s[20:23], s43 offen offset:{(i%4)*1024} lds")
    def publish(upto):
        P(f"v_mov_b32 v10, {upto}"); vm.wait(last[upto - 1]); P("ds_write_b32 v255, v10")
    def wait_free(n):
        P("ds_read_b32 v11, v254 offset:16\ns_waitcnt lgkmcnt(0)"); lds_check(254, 11, 16, n, 's_sleep 1\n')
    issue(5, True); issue(6, True)
    for ph in range(3):
        b = 5 * ph
        wait_free(b + 3)
        for sg in range(b + 7, b + 10): issue(sg)
        publish(b + 10)
        wait_free(b + 5)
        issue(b + 10, True); issue(b + 11, True)
    publish(22)
    nxt = 22
    fr = [19, 21, 23, 25, 27, 29, 31, 33, 35, 37]
    for f in fr:
        if nxt >= NSTG: break
        sl(); wait_free(f)
        if opt.get("WBL", 0) == f:
            P("s_cmp_lg_u32 s30, 4\ns_cbranch_scc1 L_nowb\ns_cmp_lg_u32 s26, 0\ns_cbranch_scc1 L_nowb\nbuffer_wbl2 sc1\nL_nowb:")
        first = nxt
        while nxt < NSTG and nxt - RING < f:
            issue(nxt); nxt += 1
            if nxt - first == 2 and nxt < NSTG and nxt - RING < f: publish(nxt - 1)
        publish(nxt - 1)
    publish(NSTG)
    if opt.get("WBL", 0) == 1:
        P("s_cmp_lg_u32 s30, 4\ns_cbranch_scc1 L_nowb\ns_cmp_lg_u32 s26, 0\ns_cbranch_scc1 L_nowb\nbuffer_wbl2 sc1\ns_waitcnt vmcnt(0)\nL_nowb:")
    if STAMP:
        sl()
        stamp_dump(([80 + 2*i for i in range(sa.i)] if FOCUS == 9 else [80, 80]) + [48 + 2*i for i in range(sl.i)])
    P("L_end:\ns_endpgm")
    for t in tails: P(t)
    P("L_code_end:")
    return (name, 256, 512, LDS_TOTAL, 256)
```

```python
from asmlib import *
from gen1 import f2u, LOG2E, ONES, EPS, ARG, SZ, srd, header, xg_reduce, NAME

RING = 7
KV_LDS = 5 * 20480
XR_LDS = RING * 20480
CS1_LDS = XR_LDS + 12288
CS3_LDS = CS1_LDS + 1024
SY_LDS = CS3_LDS + 1024
LDS_TOTAL = SY_LDS + 64
SPIN_MAX = 400000
STAMP_OFF = 0x4000000

class VM:
    def __init__(s, P): s.P = P; s.n = 0
    def op(s, text, k=1): s.P(text); s.n += k; return s.n - 1
    def cnt(s, idx):
        c = s.n - 1 - idx
        assert 0 <= c <= 63, c
        return c
    def wait(s, idx, extra=""): s.P(f"s_waitcnt vmcnt({s.cnt(idx)}){extra}")
class LG(VM):
    def cnt(s, idx): return min(15, s.n - 1 - idx)
    def wait(s, idx): s.P(f"s_waitcnt lgkmcnt({s.cnt(idx)})")

_lab = [0]
def lab(p):
    _lab[0] += 1
    return f"L_{p}{_lab[0]}"

def gen(P, L, opt):
    STAMP = opt.get("STAMP", False); FOCUS = opt.get("FOCUS", 0)
    NTOUCH = opt.get("NTOUCH", 1); THIN = opt.get("THIN", 1); PRE = opt.get("PRE", 8); PRE4 = opt.get("PRE4", 12)
    OSF = ["", " sc1", " nt"][opt.get("OSF", 0)]
    NSTG = L.NSTG; DBG = opt.get("DBG", 0)
    tails = []
    def store2(vm, lines):
        a, b = lab("sf"), lab("se")
        P(f"s_cbranch_scc1 {a}" if False else f"s_cmp_lg_u32 s24, 0\ns_cbranch_scc1 {a}")
        for l in lines: P(l)
        P(f"{b}:")
        tails.append(f"{a}:\ns_nop 4\n" + "\n".join(l + " sc1" for l in lines) + f"\ns_nop 1\ns_branch {b}")
        vm.n += len(lines)
        return vm.n - 1
    def poll_check(vaddr, vdata, soff, need, back=''):
        a, b, c = lab("pl"), lab("pd"), lab("pr")
        P(f"v_cmp_gt_u32 vcc, {need}, v{vdata}\ns_cbranch_vccnz {a}\n{b}:")
        tails.append(f"""{a}:
s_mov_b32 s47, 0
{c}:
{back}buffer_load_dword v{vdata}, v{vaddr}, s[20:23], {soff} offen sc1
s_add_u32 s47, s47, 1
s_cmp_ge_u32 s47, {SPIN_MAX}
s_waitcnt vmcnt(0)
s_cbranch_scc1 {b}
v_cmp_gt_u32 vcc, {need}, v{vdata}
s_cbranch_vccnz {c}
s_branch {b}""")
    def lds_check(vaddr, vdata, off, need, back=''):
        a, b, c = lab("ll"), lab("ld"), lab("lr")
        P(f"v_cmp_gt_u32 vcc, {need}, v{vdata}\ns_cbranch_vccnz {a}\n{b}:")
        tails.append(f"""{a}:
s_mov_b32 s47, 0
{c}:
{back}ds_read_b32 v{vdata}, v{vaddr} offset:{off}
s_add_u32 s47, s47, 1
s_cmp_ge_u32 s47, {SPIN_MAX*4}
s_waitcnt lgkmcnt(0)
s_cbranch_scc1 {b}
v_cmp_gt_u32 vcc, {need}, v{vdata}
s_cbranch_vccnz {c}
s_branch {b}""")
    class Stamper:
        def __init__(s, base, n): s.i = 0; s.base = base; s.n = n
        def __call__(s):
            if not (STAMP or DBG): return
            assert s.i < s.n
            if DBG:
                P(f"s_memrealtime s[{s.base+2*s.i}:{s.base+2*s.i+1}]"); s.i += 1; return
            P(f"s_memtime s[{s.base+2*s.i}:{s.base+2*s.i+1}]"); s.i += 1
    def stamp_dump(regs):
        regs = regs + [regs[-1]] * (26 - len(regs))
        P("s_waitcnt lgkmcnt(0)\nv_mov_b32 v40, s100\ns_memrealtime s[100:101]\ns_waitcnt lgkmcnt(0)\nv_mov_b32 v41, s100\nv_mov_b32 v2, 0")
        for i, r in enumerate(regs): P(f"v_mov_b32 v{42+i}, s{r}")
        P("s_mov_b32 s22, 0x8000000")
        P(f"s_lshl_b32 s43, s2, 3\ns_add_u32 s43, s43, s30\ns_lshl_b32 s43, s43, 7\ns_add_u32 s43, s43, {STAMP_OFF + 2*0x100000}\ns_mov_b64 exec, 1")
        for i in range(7): P(f"buffer_store_dwordx4 v[{40+4*i}:{43+4*i}], v2, s[20:23], s43 offen offset:{16*i}")

    KN = NAME + "_kernel"
    PI = opt.get("PI", 3); PP = opt.get("PP", 7); PF = opt.get("PF", 9); ZI = opt.get("ZI", 3)
    NTF = " nt" if opt.get("PREP_NT", 1) else ""
    PSF = " sc1"; QSF = " sc1"
    N1 = opt.get("N1", 25); TD = opt.get("TD", 4)
    PB = 131072; STAT = PB + 28672
    SLP = opt.get("SLP", 6)
    RL = STAT + 2048 + 64
    def poll4(vaddr, vd, soff, need):
        a, b, c = lab("ql"), lab("qd"), lab("qr")
        chk = f"v_min_u32 v{vd}, v{vd}, v{vd+1}\nv_min3_u32 v{vd}, v{vd}, v{vd+2}, v{vd+3}\nv_cmp_gt_u32 vcc, {need}, v{vd}"
        P(f"{chk}\ns_cbranch_vccnz {a}\n{b}:")
        tails.append(f"""{a}:
s_mov_b32 s47, 0
{c}:
s_sleep {SLP}
buffer_load_dwordx4 v[{vd}:{vd+3}], v{vaddr}, s[20:23], {soff} offen sc1
s_add_u32 s47, s47, 1
s_cmp_ge_u32 s47, {SPIN_MAX}
s_waitcnt vmcnt(0)
s_cbranch_scc1 {b}
{chk}
s_cbranch_vccnz {c}
s_branch {b}""")
    def zcheck(vd, vz):
        a, b, c = lab("zl"), lab("zd"), lab("zr")
        P(f"v_cmp_gt_u32 vcc, 64, v{vd}\ns_cbranch_vccnz {a}\n{b}:")
        tails.append(f"""{a}:
s_mov_b32 s47, 0
{c}:
s_sleep {SLP}
buffer_load_dword v{vd}, v{vz}, s[76:79], 0 offen sc1
s_add_u32 s47, s47, 1
s_cmp_ge_u32 s47, {SPIN_MAX}
s_waitcnt vmcnt(0)
s_cbranch_scc1 {b}
v_cmp_gt_u32 vcc, 64, v{vd}
s_cbranch_vccnz {c}
s_branch {b}""")
    header(P, KN)
    sa = Stamper(80, 10)
    P(f"s_load_dwordx4 s[4:7], s[0:1], 0\ns_load_dwordx4 s[72:75], s[0:1], {ARG['dbg']}")
    P("s_cmp_ge_u32 s2, 256\ns_cbranch_scc1 L_end")
    if STAMP: P("s_memrealtime s[100:101]")
    sa()
    P("v_lshrrev_b32 v2, 6, v0\nv_and_b32 v1, 63, v0\nv_readfirstlane_b32 s30, v2")
    P("""s_and_b32 s25, s2, 7
s_lshr_b32 s26, s2, 3
s_and_b32 s27, s26, 3
s_lshr_b32 s28, s26, 2
s_lshr_b32 s31, s25, 1
s_lshl_b32 s31, s31, 2
s_add_u32 s31, s31, s27
s_and_b32 s32, s25, 1
s_lshl_b32 s32, s32, 3
s_add_u32 s32, s32, s28""")
    P("s_cmp_lt_u32 s30, 4\ns_cbranch_scc1 L_k1_comp")
    P("s_setprio 2\ns_sub_u32 s33, s30, 4")
    P("v_lshrrev_b32 v8, 3, v1\nv_and_b32 v9, 7, v1\nv_lshrrev_b32 v10, 4, v1")
    P("s_cmp_eq_u32 s32, 15\ns_cbranch_scc1 L_k1_spare_h")
    P("v_mul_u32_u24 v11, 1280, v8\nv_xor_b32 v12, v10, v9\nv_lshl_add_u32 v4, v12, 4, v11\nv_xor_b32 v5, 64, v4")
    P("v_mul_u32_u24 v11, 3840, v10\nv_bfe_u32 v12, v1, 2, 2\nv_xor_b32 v12, v12, v10\nv_lshl_add_u32 v11, v12, 6, v11\nv_and_b32 v12, 3, v1\nv_lshl_add_u32 v3, v12, 4, v11")
    P("s_lshl_b32 s36, s31, 2\ns_add_u32 s36, s36, s33\ns_mul_i32 s36, s36, 40960")
    P("s_mul_i32 s37, s33, 61440\ns_lshl_b32 s38, s32, 8\ns_add_u32 s37, s37, s38\ns_lshl_b32 s39, s33, 12")
    P("s_mul_i32 s34, s27, 3\ns_add_u32 s34, s34, s28\ns_add_u32 s34, s34, s25\ns_cmp_ge_u32 s34, 20\ns_cselect_b32 s35, 20, 0\ns_sub_u32 s34, s34, s35\ns_cmp_ge_u32 s34, 10\ns_cselect_b32 s35, 10, 0\ns_sub_u32 s34, s34, s35")
    P(f"s_mov_b32 s14, {SZ}\ns_mov_b32 s15, 0x20000\ns_mov_b32 s18, {640*3840}\ns_mov_b32 s19, 0x20000\ns_waitcnt lgkmcnt(0)")
    P("s_mov_b32 s12, s4\ns_and_b32 s13, s5, 0xffff\ns_mov_b32 s16, s6\ns_and_b32 s17, s7, 0xffff")
    nvm = [0]; last = {}
    def dma_list(i):
        slot = (i % 4) * 32768
        Lx = []
        for j in range(4):
            pre = "s_lshl_b32 s40, s34, 7\ns_add_u32 s40, s40, s36\ns_mul_i32 s41, s34, 245760\ns_add_u32 s41, s41, s37\n" if j == 0 else ""
            Lx.append(pre + f"s_add_u32 m0, s39, {slot + j*1024}\ns_nop 0\nbuffer_load_dwordx4 v{4+(j&1)}, s[12:15], s40 offen lds")
            post = f"\ns_add_u32 s41, s41, {4*3840}" if j < 3 else "\ns_add_u32 s34, s34, 1\ns_cmp_eq_u32 s34, 10\ns_cselect_b32 s34, 0, s34"
            Lx.append(f"s_add_u32 m0, s39, {slot + 16384 + j*1024}\ns_add_u32 s40, s40, 10240\nbuffer_load_dwordx4 v3, s[16:19], s41 offen lds" + post)
        nvm[0] += 8; last[i] = nvm[0] - 1
        return Lx
    for l in dma_list(0): P(l)
    def hsetup():
        P(f"s_setprio 0\ns_load_dwordx2 s[10:11], s[0:1], {ARG['wo']}\ns_load_dwordx8 s[56:63], s[0:1], {ARG['w1']}\nv_lshlrev_b32 v14, 4, v1\nv_mov_b32 v2, 0\ns_waitcnt lgkmcnt(0)")
        srd(P, 20, 74, L.WS_USED); srd(P, 76, 72, 256)
        P(f"v_mov_b32 v13, {RL}\nds_write_b32 v13, v2\nds_write_b32 v13, v2 offset:4")
        P(f"""s_lshr_b32 s42, s2, 5
s_mul_i32 s43, s42, 5
s_mul_i32 s44, s42, 7
s_cmp_eq_u32 s42, 7
s_subb_u32 s44, s44, 0
s_lshr_b32 s44, s44, 1
v_and_b32 v48, 4, v1
v_add_u32 v48, s43, v48
v_and_b32 v48, 0xfc, v48
v_and_b32 v49, 3, v1
v_add_u32 v48, v48, v49
v_mul_u32_u24 v50, 40, v8
v_add_u32 v250, v48, v50
s_mul_i32 s44, s44, 3
s_add_u32 s44, s44, {120 - 24}
v_add_u32 v50, s44, v1
v_min_u32 v50, 200, v50
v_cmp_lt_u32 vcc, 23, v1
v_cndmask_b32 v250, v250, v50, vcc
s_lshr_b32 s43, s43, 2
s_lshl_b32 s43, s43, 3
s_add_u32 s43, s43, {201 - 40}
v_min_u32 v50, 55, v1
v_add_u32 v50, s43, v50
v_cmp_lt_u32 vcc, 39, v1
v_cndmask_b32 v250, v250, v50, vcc
v_lshlrev_b32 v250, 7, v250
s_waitcnt lgkmcnt(0)""")
    hsetup()
    def decode(tag):
        P(f"""s_mov_b32 s64, s10
s_mov_b32 s65, s11
s_mov_b32 s50, 1280
s_mov_b32 s51, 5
s_mov_b32 s52, 0
s_mov_b32 s53, 0
s_mov_b32 s55, 0
s_mov_b32 s66, 819200
s_mov_b32 s70, 20
s_mov_b32 s67, s48
s_cmp_lt_u32 s48, 40
s_cbranch_scc1 L_dec4{tag}
s_mov_b32 s64, s56
s_mov_b32 s65, s57
s_mov_b32 s52, 5
s_mov_b32 s55, {L.CS1_OFF}
s_sub_u32 s67, s48, 40
s_cmp_lt_u32 s48, 80
s_cbranch_scc1 L_dec4{tag}
s_mov_b32 s64, s58
s_mov_b32 s65, s59
s_mov_b32 s52, 10
s_mov_b32 s55, 0
s_sub_u32 s67, s48, 80
s_cmp_lt_u32 s48, 120
s_cbranch_scc1 L_dec4{tag}
s_mov_b32 s64, s60
s_mov_b32 s65, s61
s_mov_b32 s50, 3456
s_mov_b32 s52, 15
s_mov_b32 s53, 1
s_mov_b32 s55, {L.CS3_OFF}
s_mov_b32 s66, 2211840
s_mov_b32 s51, 7
s_sub_u32 s67, s48, 120
s_mul_i32 s68, s67, 21846
s_lshr_b32 s68, s68, 16
s_mul_i32 s69, s68, 3
s_sub_u32 s69, s67, s69
s_cmp_lt_u32 s48, 201
s_cbranch_scc1 L_decj{tag}
s_mov_b32 s64, s62
s_mov_b32 s65, s63
s_mov_b32 s50, 1280
s_mov_b32 s52, 29
s_mov_b32 s53, 2
s_mov_b32 s55, 0
s_mov_b32 s70, 54
s_sub_u32 s67, s48, 201
s_lshr_b32 s68, s67, 3
s_and_b32 s69, s67, 7
s_branch L_decj{tag}
L_dec4{tag}:
s_lshr_b32 s68, s67, 2
s_and_b32 s69, s67, 3
L_decj{tag}:
s_mov_b32 s24, s64
s_and_b32 s25, s65, 0xffff
s_mov_b32 s26, s66
s_mov_b32 s27, 0x20000
s_mul_i32 s54, s69, s51
s_sub_u32 s70, s70, s54
s_min_u32 s51, s51, s70
s_lshl_b32 s49, s54, 2
s_add_u32 s49, s49, s33
s_lshl_b32 s49, s49, 3
s_mul_i32 s49, s49, s50
s_lshl_b32 s42, s68, 7
s_add_u32 s49, s49, s42
v_mul_lo_u32 v13, v8, s50
v_lshl_add_u32 v13, v9, 4, v13""")
        P(f"""s_lshl_b32 s42, s68, 2
s_add_u32 s42, s42, s33
s_mul_i32 s52, s52, 20480
s_add_u32 s52, s52, {L.WS_OFF}
s_cmp_eq_u32 s53, 1
s_cbranch_scc1 L_dw3{tag}
s_mul_i32 s43, s42, 52429
s_lshr_b32 s43, s43, 18
s_mul_i32 s44, s43, 5
s_sub_u32 s44, s42, s44
s_cmp_eq_u32 s44, 0
s_cselect_b32 s45, 4, -1
s_bitcmp1_b32 s43, 0
s_cselect_b32 s45, s45, 0
s_add_u32 s44, s44, s45
s_add_u32 s42, s42, s45
s_lshl_b32 s44, s44, 10
s_mul_i32 s46, s69, 2560
s_branch L_dj2{tag}
L_dw3{tag}:
s_lshr_b32 s45, s42, 1
s_mul_i32 s43, s45, 9363
s_lshr_b32 s43, s43, 16
s_cmp_eq_u32 s45, 48
s_cselect_b32 s43, 7, s43
s_mul_i32 s44, s43, 7
s_sub_u32 s44, s45, s44
s_cmp_eq_u32 s43, 7
s_addc_u32 s44, s44, 0
s_lshl_b32 s44, s44, 1
s_and_b32 s45, s42, 1
s_add_u32 s44, s44, s45
s_mul_i32 s44, s44, 20480
s_mul_i32 s46, s69, 8192
L_dj2{tag}:
s_mul_i32 s43, s43, {L.SLICE_B}
s_add_u32 s52, s52, s43
s_add_u32 s52, s52, s44
s_lshl_b32 s42, s42, 6
s_add_u32 s42, s42, s46
s_cmp_eq_u32 s55, 0
s_cselect_b32 s42, 0, s42
s_add_u32 s55, s55, s42""")
    def prep_dma(ldsbase_sreg):
        P(f"s_lshl_b32 s42, s33, 10\ns_add_u32 s42, s42, {ldsbase_sreg}\ns_lshl_b32 s43, s50, 5\ns_mov_b32 s44, s49")
        for k in range(7):
            P(f"s_add_u32 m0, s42, {k*4096}\ns_nop 0\nbuffer_load_dwordx4 v13, s[24:27], s44 offen{NTF} lds")
            if k in (4, 5): P(f"s_cmp_eq_u32 s51, {k+1}\ns_cselect_b32 s43, 0, s43")
            if k < 6: P("s_add_u32 s44, s44, s43")
        nvm[0] += 7
    def prep_addr(tag, ldsbase_sreg):
        P(f"""v_bfe_u32 v11, v1, 2, 2
v_lshl_add_u32 v11, v10, 3, v11
v_lshlrev_b32 v11, 7, v11
v_and_b32 v12, 3, v1
v_lshl_add_u32 v11, v12, 4, v11
s_lshr_b32 s42, s33, 1
s_lshl_b32 s42, s42, 6
s_and_b32 s43, s33, 1
s_lshl_b32 s43, s43, 3
s_add_u32 s42, s42, s43
s_add_u32 s42, s42, {ldsbase_sreg}
v_add_u32 v11, s42, v11
v_lshrrev_b32 v6, 1, v10
v_lshlrev_b32 v6, 9, v6
v_and_b32 v7, 1, v10
v_lshlrev_b32 v7, 9, v7
v_sub_u32 v6, v6, v7
v_add_u32 v6, v6, v11
v_lshlrev_b32 v7, 12, v10
v_add_u32 v7, v7, v11
v_add_u32 v7, 2048, v7
s_cmp_eq_u32 s53, 1
s_mov_b32 s46, 5120
s_cmov_b32 s46, 1024""")
        for k in range(7):
            P(f"""s_add_u32 s42, s54, {k}
s_mul_i32 s43, s42, 9363
s_lshr_b32 s43, s43, 16
s_cmp_eq_u32 s42, 48
s_cselect_b32 s43, 7, s43
s_mul_i32 s44, s43, 7
s_sub_u32 s44, s42, s44
s_cmp_eq_u32 s43, 7
s_addc_u32 s44, s44, 0
s_lshl_b32 s44, s44, 3
s_add_u32 s44, s44, s43
s_cmp_eq_u32 s53, 2
s_cselect_b32 s42, s44, s42
s_mul_i32 s42, s42, s46
s_add_u32 s{92+k}, s42, s52""")
    def prep_reads(tag):
        P(f"s_cmp_lt_u32 s48, 40\ns_cbranch_scc1 L_prw{tag}")
        for k in range(7):
            P(f"ds_read_b64_tr_b16 v[{64+4*k}:{65+4*k}], v11 offset:{k*4096}\nds_read_b64_tr_b16 v[{66+4*k}:{67+4*k}], v11 offset:{k*4096+512}")
        P(f"L_pre{tag}:")
        t = f"L_prw{tag}:\n"
        for k in range(4): t += f"ds_read_b64_tr_b16 v[{64+4*k}:{65+4*k}], v6 offset:{k*5120}\nds_read_b64_tr_b16 v[{66+4*k}:{67+4*k}], v6 offset:{k*5120+1024}\n"
        for k in (4, 5, 6): t += f"ds_read_b64_tr_b16 v[{64+4*k}:{65+4*k}], v7 offset:0\nds_read_b64_tr_b16 v[{66+4*k}:{67+4*k}], v7 offset:2560\n"
        tails.append(t + f"s_branch L_pre{tag}")
    def prep_stores(tag):
        P("s_waitcnt lgkmcnt(0)")
        for k in range(7):
            if k >= 5: P(f"s_cmp_eq_u32 s51, {k}\ns_cbranch_scc1 L_pp5{tag}")
            P(f"buffer_store_dwordx4 v[{64+4*k}:{67+4*k}], v14, s[20:23], s{92+k} offen{PSF}")
        P(f"L_pp5{tag}:")
    def prep_cs(tag):
        P(f"s_cmp_eq_u32 s55, 0\ns_cbranch_scc1 L_ppe{tag}")
        for r in range(4): P(f"v_mov_b32 v{56+r}, {ONES}")
        for k in range(7):
            if k >= 5: P(f"s_cmp_eq_u32 s51, {k}\ns_cbranch_scc1 L_pc5{tag}")
            P(f"v_mfma_f32_16x16x32_bf16 v[92:95], v[56:59], v[{64+4*k}:{67+4*k}], {'0' if k == 0 else 'v[92:95]'}")
        P(f"L_pc5{tag}:")
        P("v_lshlrev_b32 v62, 2, v1\ns_mov_b64 exec, 0xffff\nbuffer_store_dword v92, v62, s[20:23], s55 offen sc1\ns_mov_b64 exec, -1")
        P(f"L_ppe{tag}:")
    P("s_mul_i32 s48, s31, 15\ns_add_u32 s48, s48, s32")
    decode("m")
    prep_addr("m", PB)
    for r in range(8): P(f"v_mov_b32 v{16+r}, 0")
    P("v_add_u32 v15, s39, v14\nv_add_u32 v63, 0x10000, v15")
    XS = 96
    pid = None; sid = None
    def fp_write(idx_sreg, n=1):
        e = lab("fp")
        P(f"s_cmp_lg_u32 s30, 4\ns_cbranch_scc1 {e}\ns_lshl_b32 s42, {idx_sreg}, 7\ns_add_u32 s42, s42, {L.FP_OFF}\nv_mov_b32 v60, 1\nv_lshlrev_b32 v62, 11, v1\ns_mov_b64 exec, {(1 << n) - 1}\nbuffer_store_dword v60, v62, s[20:23], s42 offen sc1\ns_mov_b64 exec, -1\n{e}:")
    def fx_write():
        e = lab("fx")
        P(f"""s_cmp_lg_u32 s30, 5
s_cbranch_scc1 {e}
s_getreg_b32 s42, hwreg(HW_REG_XCC_ID)
s_and_b32 s42, s42, 15
s_add_u32 s42, s42, 1
v_mov_b32 v60, s42
s_and_b32 s42, s2, 7
s_lshl_b32 s42, s42, 5
s_lshr_b32 s43, s2, 3
s_add_u32 s42, s42, s43
s_lshl_b32 s42, s42, 2
s_add_u32 s42, s42, {L.FX_OFF}
s_mov_b64 exec, 1
buffer_store_dword v60, v2, s[20:23], s42 offen sc1
s_mov_b64 exec, -1
{e}:""")
    for i in range(10):
        w = nvm[0] - 1 - last[i]
        if i == PP: w = min(w, nvm[0] - 1 - pid)
        if i == PF: w = min(w, nvm[0] - 1 - sid)
        P(f"s_waitcnt vmcnt({w})")
        if i == ZI + 2: zcheck(61, 2)
        P("s_barrier")
        if i == PF: fp_write("s48")
        if i == 8: fx_write()
        slot = (i % 4) * 32768
        for j in range(4):
            P(f"ds_read_b128 v[{XS+4*j}:{XS+4*j+3}], v{63 if slot >= 65536 else 15} offset:{slot % 65536 + j*1024}")
        if i == PP: prep_reads("m")
        if i == ZI: P("buffer_load_dword v61, v2, s[76:79], 0 offen sc1"); nvm[0] += 1
        dl = (dma_list(1) + dma_list(2)) if i == 0 else (dma_list(i + 2) if i + 2 < 10 else [])
        for l in dl[:2]: P(l)
        dl = dl[2:]
        for j in range(4):
            P(f"s_waitcnt lgkmcnt({min(15, 3 - j + (14 if i == PP else 0))})")
            for r in range(4):
                s_ = XS + 4*j + r
                P(f"v_lshlrev_b32 v{48+2*r}, 16, v{s_}\nv_and_b32 v{49+2*r}, 0xffff0000, v{s_}")
            if dl: P(dl.pop(0))
            for r in range(4):
                P(f"v_fmac_f32 v{16+j}, v{48+2*r}, v{48+2*r}\nv_fmac_f32 v{20+j}, v{49+2*r}, v{49+2*r}")
            if dl: P(dl.pop(0))
        for l in dl: P(l)
        if i == PI: prep_dma(PB); pid = nvm[0] - 1
        if i == PP: prep_stores("m"); prep_cs("m"); nvm[0] += 5; sid = nvm[0] - 1
    assert ZI + 2 <= PF and PF >= PP + 1
    for r in range(4): P(f"v_add_f32 v{16+r}, v{16+r}, v{20+r}")
    for ctl in ("quad_perm:[1,0,3,2]", "quad_perm:[2,3,0,1]", "row_half_mirror"):
        for r in range(4): P(f"v_add_f32_dpp v{16+r}, v{16+r}, v{16+r} {ctl} row_mask:0xf bank_mask:0xf")
    for j in range(4): P(f"v_mul_f32 v{16+j}, {f2u(1/640)}, v{16+j}")
    P(f"s_lshl_b32 s42, s33, 7\ns_add_u32 s42, s42, {STAT+1536}\nv_lshl_add_u32 v12, v8, 2, s42")
    for j in range(4): P(f"ds_write_b32 v12, v{16+j} offset:{32*j}")
    P("s_waitcnt lgkmcnt(0)\ns_barrier")
    if PF >= 10: P("s_waitcnt vmcnt(0)")
    P("s_barrier")
    if PF >= 10: fp_write("s48")
    P("L_k1_wo:")
    sa.i = 1; sa(); sa(); sa()
    P("s_mov_b32 s24, 0\ns_branch L_k2")
    P("L_k1_spare_h:")
    hsetup()
    P("s_add_u32 s48, s31, 240\ns_mov_b32 s71, 0\nL_sp1:")
    decode("a"); prep_dma("s71")
    P("s_add_u32 s48, s48, 16\ns_add_u32 s71, s71, 28672\ns_cmp_lt_u32 s48, 281\ns_cbranch_scc1 L_sp1")
    P("s_waitcnt vmcnt(0)\ns_barrier\ns_add_u32 s48, s31, 240\ns_mov_b32 s71, 0\nL_sp2:")
    decode("b")
    prep_addr("b", "s71"); prep_reads("b"); prep_stores("b")
    P("s_nop 4\ns_add_u32 s48, s48, 16\ns_add_u32 s71, s71, 28672\ns_cmp_lt_u32 s48, 281\ns_cbranch_scc1 L_sp2")
    P("buffer_load_dword v61, v2, s[76:79], 0 offen sc1\ns_waitcnt vmcnt(0)")
    zcheck(61, 2)
    P("s_barrier\ns_add_u32 s48, s31, 240")
    fp_write("s48", 3); fx_write()
    P("s_branch L_k1_wo")
    P("L_k1_comp:\nv_mov_b32 v250, 0")
    sa.i = 1
    if opt.get("CPF", 1):
        NSEG = opt.get("NSEG", 8)
        P(f"""s_getpc_b64 s[48:49]
L_pc0:
s_sub_u32 s48, s48, L_pc0-{KN}
s_subb_u32 s49, s49, 0
s_lshl_b32 s50, s26, 2
s_add_u32 s50, s50, s30
s_cmp_ge_u32 s50, {NSEG}
s_cbranch_scc1 L_nocpf
s_lshl_b32 s50, s50, 13
v_lshl_add_u32 v60, v1, 7, s50
v_min_u32 v60, L_code_end-{KN}-4, v60
v_mov_b32 v61, s49
v_add_co_u32 v60, vcc, s48, v60
v_addc_co_u32 v61, vcc, 0, v61, vcc
global_load_dword v62, v[60:61], off
L_nocpf:""")
    P("s_cmp_eq_u32 s32, 15\ns_cbranch_scc1 L_k1_spare_c")
    P("s_lshr_b32 s34, s30, 1\ns_and_b32 s35, s30, 1")
    P("""v_and_b32 v36, 31, v1
v_lshrrev_b32 v39, 5, v1
s_lshl_b32 s41, s34, 6
v_add_u32 v10, s41, v36
v_bfe_u32 v11, v10, 1, 3
v_xor_b32 v11, v11, v39
v_lshlrev_b32 v11, 4, v11
v_lshl_add_u32 v20, v10, 7, v11
s_lshl_b32 s41, s35, 12
v_add_u32 v20, s41, v20""")
    for kk in range(1, 4): P(f"v_xor_b32 v{20+kk}, {kk*32}, v20")
    for kk in range(4): P(f"v_add_u32 v{24+kk}, 0x10000, v{20+kk}")
    for kk in range(8): P(f"v_xor_b32 v{40+kk}, 0x1000, v{20+kk}")
    P("""v_bfe_u32 v10, v1, 2, 2
v_lshl_add_u32 v11, v39, 3, v10
v_lshlrev_b32 v11, 8, v11
v_bfe_u32 v12, v1, 4, 1
v_lshl_add_u32 v11, v12, 5, v11
v_and_b32 v12, 3, v1
v_lshl_add_u32 v11, v12, 3, v11
s_lshl_b32 s41, s35, 1
s_add_u32 s41, s41, s34
v_xor_b32 v12, s41, v10
v_lshl_add_u32 v28, v12, 6, v11
v_xor_b32 v29, 64, v28
v_add_u32 v30, 0x10000, v28
v_add_u32 v31, 0x10000, v29""")
    ACC, FX, FW, SEL, CSA, AD, RSA = 64, 128, 144, 4, 32, 224, 16
    P(f"v_and_b32 v10, 15, v1\nv_bfe_u32 v11, v1, 4, 1\nv_cmp_eq_u32 vcc, v10, v11\nv_mov_b32 v10, {ONES}")
    for i in range(4): P(f"v_cndmask_b32 v{SEL+i}, 0, v10, vcc")
    P("""s_lshl_b32 s43, s31, 2
s_lshl_b32 s44, s34, 1
s_add_u32 s43, s43, s44
s_add_u32 s43, s43, s35
s_lshr_b32 s44, s43, 3
s_mul_i32 s44, s44, 327680
s_and_b32 s45, s43, 7
s_xor_b32 s46, s45, 1
s_mul_i32 s45, s45, 1280
s_mul_i32 s46, s46, 1280
s_add_u32 s45, s45, s44
s_add_u32 s46, s46, s44""")
    P("s_waitcnt lgkmcnt(0)")
    srd(P, 20, 74, L.WS_USED)
    if opt.get("TLBW", 0):
        st_ = opt.get("TLBS", 16)
        P(f"""s_sub_u32 s50, s26, 2
s_lshl_b32 s50, s50, 2
s_add_u32 s50, s50, s30
s_cmp_ge_u32 s50, {(L.WS_USED >> (st_ + 6)) + 2}
s_cbranch_scc1 L_notlb
v_lshlrev_b32 v60, {st_}, v1
s_cmp_eq_u32 s50, 0
s_cbranch_scc1 L_tlbo
s_sub_u32 s50, s50, 1
s_lshl_b32 s50, s50, {st_ + 6}
v_add_u32 v60, s50, v60
buffer_load_dword v63, v60, s[20:23], 0 offen
s_branch L_notlb
L_tlbo:
s_load_dwordx2 s[52:53], s[0:1], {ARG['out']}
s_waitcnt lgkmcnt(0)
s_and_b32 s53, s53, 0xffff
s_mov_b32 s54, {SZ}
s_mov_b32 s55, 0x20000
v_lshlrev_b32 v60, 16, v1
buffer_load_dword v63, v60, s[52:55], 0 offen
L_notlb:""")
    P("s_cmp_ge_u32 s32, 10\ns_cbranch_scc1 L_k1_v")
    for variant in ("qk", "v"):
        if variant == "v":
            P("L_k1_v:")
            sa.i = 1
            P(f"s_sub_u32 s41, s32, 10\ns_lshl_b32 s41, s41, 7\ns_lshl_b32 s42, s35, 6\ns_add_u32 s41, s41, s42\ns_lshl_b32 s42, s34, 5\ns_add_u32 s41, s41, s42\ns_add_u32 s45, s45, {L.V_OFF}\ns_add_u32 s46, s46, {L.V_OFF}")
            for ct in range(2):
                P(f"v_add_u32 v10, s41, v36\nv_xor_b32 v10, {32*ct}, v10\nv_mul_u32_u24 v11, 52429, v10\nv_lshrrev_b32 v11, 20, v11\nv_mul_u32_u24 v11, {10240-320}, v11\nv_lshl_add_u32 v11, v10, 4, v11\nv_mul_u32_u24 v12, 320, v39\nv_add_u32 v{AD+ct}, v11, v12")
        else:
            P(f"s_cmp_ge_u32 s32, 5\ns_cselect_b32 s42, 5, 0\ns_cselect_b32 s47, {L.K_OFF}, {L.Q_OFF}\ns_sub_u32 s41, s32, s42\ns_lshl_b32 s41, s41, 5\ns_lshl_b32 s42, s35, 4\ns_add_u32 s41, s41, s42\ns_lshl_b32 s42, s34, 3\ns_add_u32 s41, s41, s42\ns_add_u32 s45, s45, s47\ns_add_u32 s46, s46, s47")
            for ct in range(2):
                for b in range(4):
                    P(f"v_add_u32 v10, s41, v39\nv_xor_b32 v10, {8*ct}, v10\nv_add_u32 v10, {2*b}, v10\nv_mul_u32_u24 v11, 52429, v10\nv_lshrrev_b32 v11, 18, v11\nv_mul_u32_u24 v11, {10240-1280}, v11\nv_lshl_add_u32 v11, v10, 8, v11\nv_lshl_add_u32 v{AD+ct*4+b}, v36, 3, v11")
        def rlist(n):
            st, kk = divmod(n, 4)
            b = n & 1
            slot = (st % 4) * 32768
            hi = slot >= 65536
            off = slot - (65536 if hi else 0)
            def xr(rt): return f"ds_read_b128 v[{FX+b*8+rt*4}:{FX+b*8+rt*4+3}], v{(40 if rt else 20)+(4 if hi else 0)+kk} offset:{off}"
            def wr(ct, h):
                ar = 28 + ct + (2 if hi else 0)
                return f"ds_read_b64_tr_b16 v[{FW+b*8+ct*4+2*h}:{FW+b*8+ct*4+2*h+1}], v{ar} offset:{off+16384+kk*4096+1024*h}"
            return [xr(0), wr(0, 0), wr(0, 1), wr(1, 0), wr(1, 1), xr(1)]
        P("s_barrier"); sa()
        for l in rlist(0): P(l)
        for n in range(40):
            b = n & 1
            nx = rlist(n + 1) if n + 1 < 40 else []
            def mf(t):
                rt, ct = t >> 1, t & 1
                x = v(FX + b*8 + rt*4, 4); w = v(FW + b*8 + ct*4, 4); d = v(ACC + t*16, 16)
                c = "0" if n == 0 else d
                if variant == "qk": P(f"v_mfma_f32_32x32x16_bf16 {d}, {w}, {x}, {c}")
                else: P(f"v_mfma_f32_32x32x16_bf16 {d}, {x}, {w}, {c}")
            P("s_waitcnt lgkmcnt(3)")
            mf(0)
            if nx and (n + 1) % 4 == 0:
                P("s_barrier")
            k = 0
            for l in nx[:2]: P(l); k += 1
            P(f"s_waitcnt lgkmcnt({1 + k})")
            mf(1)
            for l in nx[2:4]: P(l); k += 1
            P(f"s_waitcnt lgkmcnt({k})")
            mf(2)
            for l in nx[4:6]: P(l)
            P(f"v_mfma_f32_16x16x32_bf16 {v(RSA,4)}, {v(SEL,4)}, {v(FX+b*8,4)}, {'0' if n == 0 else v(RSA,4)}")
            mf(3)
            P(f"v_mfma_f32_16x16x32_bf16 {v(CSA,4)}, {v(SEL,4)}, {v(FW+b*8,4)}, {'0' if n == 0 else v(CSA,4)}")
        sa()
        P(f"""s_lshl_b32 s41, s35, 1
s_add_u32 s41, s41, s34
s_lshl_b32 s41, s41, 7
s_add_u32 s41, s41, {STAT+1024}
v_lshl_add_u32 v37, v36, 2, s41
s_mov_b64 exec, 0xffff
ds_write_b32 v37, v{CSA}
ds_write_b32 v37, v{CSA+1} offset:64
s_mov_b64 exec, -1
s_lshl_b32 s42, s34, 1
s_add_u32 s42, s42, s35
s_lshl_b32 s42, s42, 7
s_add_u32 s42, s42, {STAT}
v_lshl_add_u32 v38, v36, 2, s42
s_barrier
ds_read_b32 v50, v38 offset:1536
ds_read_b32 v51, v38 offset:1600
v_mul_f32 v{RSA}, {f2u(1/640)}, v{RSA}
v_mul_f32 v{RSA+1}, {f2u(1/640)}, v{RSA+1}
s_waitcnt lgkmcnt(0)
v_fma_f32 v50, -v{RSA}, v{RSA}, v50
v_fma_f32 v51, -v{RSA+1}, v{RSA+1}, v51
v_max_f32 v50, 0, v50
v_max_f32 v51, 0, v51
v_add_f32 v50, {f2u(EPS)}, v50
v_add_f32 v51, {f2u(EPS)}, v51
v_rsq_f32 v50, v50
v_rsq_f32 v51, v51
v_mul_f32 v52, v50, v{RSA}
v_mul_f32 v53, v51, v{RSA+1}
s_mov_b64 exec, 0xffff
ds_write_b32 v38, v50
ds_write_b32 v38, v51 offset:64
ds_write_b32 v38, v52 offset:512
ds_write_b32 v38, v53 offset:576
s_mov_b64 exec, -1
s_waitcnt lgkmcnt(0)
s_barrier""")
        if variant == "qk":
            P(f"""v_lshl_add_u32 v37, v36, 2, s42
v_xor_b32 v38, 128, v37
ds_read_b32 v40, v37
ds_read_b32 v42, v37 offset:512
ds_read_b32 v44, v38
ds_read_b32 v46, v38 offset:512
v_lshl_add_u32 v37, v39, 4, s41
v_xor_b32 v38, 128, v37""")
            for ct in range(2):
                for b in range(4):
                    P(f"ds_read_b128 v[{128+ct*16+b*4}:{128+ct*16+b*4+3}], v{37+ct} offset:{b*32}")
            P(f"s_cmp_lt_u32 s32, 5\ns_cselect_b32 s41, {f2u(20**-0.5*LOG2E)}, 1.0\ns_waitcnt lgkmcnt(8)")
            for r in (40, 42, 44, 46): P(f"v_mul_f32 v{r}, s41, v{r}")
            for r in (40, 42, 44, 46): P(f"v_mov_b32 v{r+1}, v{r}")
            P("s_waitcnt lgkmcnt(0)")
            for t in range(4):
                rt, ct = t >> 1, t & 1
                A = v(40 + rt*4, 2); B = v(42 + rt*4, 2)
                for p in range(8):
                    r = ACC + t*16 + 2*p
                    P(f"v_pk_mul_f32 v[{48+2*(p&3)}:{49+2*(p&3)}], v[{128+ct*16+2*p}:{128+ct*16+2*p+1}], {B}")
                    P(f"v_pk_fma_f32 v[{r}:{r+1}], v[{r}:{r+1}], {A}, v[{48+2*(p&3)}:{49+2*(p&3)}] neg_lo:[0,0,1] neg_hi:[0,0,1]")
                for p in range(8):
                    r = ACC + t*16 + 2*p
                    P(f"v_cvt_pk_bf16_f32 v{160+t*8+p}, v{r}, v{r+1}")
                for b in range(4):
                    P(f"buffer_store_dwordx2 v[{160+t*8+2*b}:{160+t*8+2*b+1}], v{AD+ct*4+b}, s[20:23], s{45+rt} offen{QSF}")
        else:
            P(f"""v_lshl_add_u32 v37, v36, 2, s41
v_xor_b32 v38, 128, v37
ds_read_b32 v40, v37
ds_read_b32 v42, v38
v_lshl_add_u32 v37, v39, 4, s42
v_xor_b32 v38, 128, v37""")
            for rt in range(2):
                for b in range(4):
                    P(f"ds_read_b128 v[{128+rt*32+b*4}:{128+rt*32+b*4+3}], v{37+rt} offset:{b*32}")
                    P(f"ds_read_b128 v[{144+rt*32+b*4}:{144+rt*32+b*4+3}], v{37+rt} offset:{512+b*32}")
            P("s_waitcnt lgkmcnt(0)\nv_mov_b32 v41, v40\nv_mov_b32 v43, v42")
            for t in range(4):
                rt, ct = t >> 1, t & 1
                C = v(40 + ct*2, 2)
                for p in range(8):
                    r = ACC + t*16 + 2*p
                    P(f"v_pk_mul_f32 v[{48+2*(p&3)}:{49+2*(p&3)}], v[{144+rt*32+2*p}:{144+rt*32+2*p+1}], {C}")
                    P(f"v_pk_fma_f32 v[{r}:{r+1}], v[{r}:{r+1}], v[{128+rt*32+2*p}:{128+rt*32+2*p+1}], v[{48+2*(p&3)}:{49+2*(p&3)}] neg_lo:[0,0,1] neg_hi:[0,0,1]")
                for p in range(8):
                    r = ACC + t*16 + 2*p
                    P(f"v_cvt_pk_bf16_f32 v{192+t*8+p}, v{r}, v{r+1}")
                for u in range(2):
                    P(f"buffer_store_dwordx4 v[{192+t*8+4*u}:{192+t*8+4*u+3}], v{AD+ct}, s[20:23], s{45+rt} offen offset:{640*u}{QSF}")
        sa()
        P("s_mov_b32 s24, 1\ns_branch L_k2")
    P("L_k1_spare_c:\ns_waitcnt lgkmcnt(0)")
    srd(P, 20, 74, L.WS_USED); srd(P, 76, 72, 256)
    P(f"v_lshlrev_b32 v3, 4, v1\nv_mov_b32 v4, 0\nv_mov_b32 v5, 0\nv_mov_b32 v6, 0\nv_mov_b32 v7, 0\ns_lshl_b32 s43, s31, 2\ns_add_u32 s43, s43, s30\ns_lshl_b32 s43, s43, 11\ns_add_u32 s43, s43, {L.FLAG_OFF}")
    P("buffer_store_dwordx4 v[4:7], v3, s[20:23], s43 offen sc1\nbuffer_store_dwordx4 v[4:7], v3, s[20:23], s43 offen offset:1024 sc1\nv_mov_b32 v8, 1\ns_waitcnt vmcnt(0)\ns_mov_b64 exec, 1\nbuffer_atomic_add v8, v4, s[76:79], 0 offen sc1\ns_mov_b64 exec, -1")
    sa.i = 1; sa(); sa(); sa()
    P("s_barrier\ns_barrier\ns_mov_b32 s24, 0")
    P("L_k2:")
    P(f"s_load_dwordx2 s[6:7], s[0:1], {ARG['out']}")
    P(f"s_lshl_b32 s42, s31, 4\ns_add_u32 s42, s42, s32\ns_lshl_b32 s42, s42, 7\ns_add_u32 s42, s42, {L.FQ_OFF}")
    P("v_lshlrev_b32 v3, 4, v1\ns_and_b32 s25, s2, 7\ns_lshr_b32 s26, s2, 3")
    P(f"""s_cmp_ge_u32 s30, 4
s_mov_b32 s10, {L.K_OFF}
s_cmov_b32 s10, {L.V_OFF}
s_mul_i32 s35, s26, 10240
s_add_u32 s10, s10, s35
s_bfe_u32 s36, s30, 0x10001
s_add_u32 s36, s36, s25
s_max_u32 s36, s36, 1
s_sub_u32 s36, s36, 1
s_mul_i32 s36, s36, 327680
s_add_u32 s10, s10, s36
s_and_b32 s36, s30, 1
s_mul_i32 s36, s36, 5120
s_add_u32 s10, s10, s36
s_mul_i32 s11, s30, 5120
s_add_u32 s11, s11, {KV_LDS}
s_mul_i32 s40, s25, 327680
s_add_u32 s40, s40, s35
s_mul_i32 s41, s30, 1280
s_add_u32 s40, s40, s41
v_and_b32 v13, 31, v1
v_lshrrev_b32 v14, 5, v1
v_lshlrev_b32 v27, 3, v13
v_lshl_add_u32 v15, v14, 9, v27""")
    def kvdma():
        P("s_mov_b32 m0, s11")
        for i in range(4): P(f"buffer_load_dwordx4 v3, s[20:23], s10 offen offset:{i*1024} sc1 lds")
        P("s_add_u32 m0, s11, 4096\ns_add_u32 s10, s10, 4096\nbuffer_load_dwordx4 v3, s[20:23], s10 offen sc1 lds")
    P("s_and_b32 s27, s26, 3\ns_lshl_b32 s28, s25, 2\ns_add_u32 s27, s27, s28\ns_lshr_b32 s28, s2, 5\ns_lshl_b32 s31, s25, 3\ns_add_u32 s31, s31, s30")
    P(f"""v_mov_b32 v22, 0
v_mov_b32 v23, 0
s_add_u32 s41, s41, {KV_LDS}
v_add_u32 v24, s41, v15
v_add_u32 v25, s41, v27
v_mul_u32_u24 v26, 320, v14
v_lshl_add_u32 v26, v13, 4, v26
v_add_u32 v26, s41, v26
s_waitcnt lgkmcnt(0)""")
    srd(P, 12, 4, SZ); srd(P, 16, 6, SZ)
    S, KF, VF, OA, PM, CA = 32, 176, 200, 224, 240, 8
    RMV, L4V, FXV, L7V, MODEV = 248, 249, 250, 251, 252
    for r in range(16):
        m = 0
        for l in range(64):
            if 8*(r >> 2) + 4*(l >> 5) + (r & 3) <= (l & 31): m |= 1 << l
        P(f"s_mov_b32 s{48+2*r}, {m & 0xffffffff:#x}\ns_mov_b32 s{49+2*r}, {m >> 32:#x}")
    for b in range(3): P(f"v_mov_b32 v{KF+b*8+6}, 0\nv_mov_b32 v{KF+b*8+7}, 0")
    for r in range(24): P(f"v_mov_b32 v{VF+r}, {ONES}")
    for r in range(16): P(f"v_mov_b32 v{OA+r}, 0")
    P("v_mov_b32 v4, 0xffff\nv_mov_b32 v7, 0xffff0000")
    for p in range(8):
        P(f"v_cndmask_b32 v{PM+p}, 0, v4, s[{48+4*p}:{49+4*p}]\nv_cndmask_b32 v12, 0, v7, s[{50+4*p}:{51+4*p}]\nv_or_b32 v{PM+p}, v{PM+p}, v12")
    P(f"v_cmp_gt_u32 vcc, 32, v1\nv_mov_b32 v4, 0xbf80bf80\nv_mov_b32 v7, 0x0000bf80\nv_cndmask_b32 v{CA}, 0, v4, vcc\nv_cndmask_b32 v{CA+1}, 0, v7, vcc\nv_mov_b32 v{CA+2}, 0\nv_mov_b32 v{CA+3}, 0")
    P("s_mov_b32 s44, 0x000fffff\ns_mov_b32 s45, 0x000fffff")
    P("s_and_b32 s29, s30, 3\ns_lshl_b32 s43, s27, 2\ns_add_u32 s29, s29, s43")
    P("s_mul_i32 s34, s28, 5\ns_and_b32 s37, s28, 1\ns_lshr_b32 s35, s34, 1\ns_add_u32 s36, s35, 2\ns_lshl_b32 s43, s37, 1\ns_sub_u32 s36, s36, s43\ns_add_u32 s35, s35, s37")
    P(f"s_mul_i32 s32, s28, {L.SLICE_B}\ns_add_u32 s32, s32, {L.WS_OFF}")
    NR = (100 - 4*N1 + 7) // 8
    P(f"s_mul_i32 s39, s30, {NR}\ns_add_u32 s39, s39, {4*N1}\ns_min_u32 s39, s39, {100-NR}\ns_lshl_b32 s39, s39, 10\ns_add_u32 s38, s32, s39")
    P(f"v_lshrrev_b32 v{RMV}, 2, v1\nv_mul_u32_u24 v{RMV}, 1280, v{RMV}\nv_and_b32 v4, 3, v1\nv_lshl_add_u32 v{RMV}, v4, 4, v{RMV}")
    P(f"v_lshlrev_b32 v{L4V}, 2, v13\nv_lshlrev_b32 v{L7V}, 7, v1")
    P(f"v_cmp_gt_u32 vcc, 4, v1\nv_cndmask_b32 v4, 0, 5, vcc\nv_and_b32 v7, 7, v1\nv_lshlrev_b32 v7, 2, v7\nv_add_u32 v7, {SY_LDS}, v7\ns_mov_b64 exec, 0xff\nds_write_b32 v7, v4\ns_mov_b64 exec, -1")
    vm = VM(P)
    side = [(4, f"""s_lshl_b32 s46, s25, 5
s_add_u32 s46, s46, s26
s_mul_i32 s46, s46, 12
s_and_b32 s47, s30, 3
s_add_u32 s47, s47, s46
s_add_u32 s46, s46, s30
s_lshl_b32 s46, s46, 10
s_add_u32 s46, s46, {L.GX_OFF}
buffer_load_dwordx4 v[4:7], v3, s[20:23], s46 offen sc1
s_lshl_b32 s47, s47, 10
s_add_u32 s47, s47, {L.GX_OFF + 8192}
buffer_load_dwordx4 v[4:7], v3, s[20:23], s47 offen sc1
s_lshl_b32 s46, s29, 7
s_add_u32 s46, s46, {L.FR_OFF}
buffer_load_dword v253, v{L4V}, s[20:23], s46 offen sc1
s_lshl_b32 s46, s31, 7
s_add_u32 s46, s46, {L.FO_OFF}
buffer_load_dword v253, v{L4V}, s[20:23], s46 offen sc1""")]
    for i in range(NR):
        pre = f"s_add_u32 m0, s39, {i*1024}\ns_add_u32 s43, s38, {i*1024}\n" if i % 4 == 0 else ""
        side.append((1, pre + f"buffer_load_dwordx4 v3, s[20:23], s43 offen offset:{(i%4)*1024} sc1 lds"))
    side.append((3, f"""s_cmp_ge_u32 s30, 4
s_cbranch_scc1 L_side_l
s_mul_i32 s46, s29, 20480
s_lshl_b32 s43, s35, 6
s_add_u32 s43, s43, s46
s_mul_i32 s47, s30, 3072
s_add_u32 m0, s47, {XR_LDS}
s_nop 0
buffer_load_dwordx4 v{RMV}, s[12:15], s43 offen lds
s_add_u32 m0, s47, {XR_LDS+1024}
s_add_u32 s43, s43, 64
buffer_load_dwordx4 v{RMV}, s[12:15], s43 offen lds
s_lshl_b32 s43, s36, 6
s_add_u32 s43, s43, s46
s_add_u32 m0, s47, {XR_LDS+2048}
s_nop 0
buffer_load_dwordx4 v{RMV}, s[12:15], s43 offen lds
s_branch L_side_e
L_side_l:
s_mov_b32 s43, {L.FP_OFF}
buffer_load_dword v253, v250, s[20:23], s43 offen sc1
s_and_b32 s46, s30, 3
s_mul_i32 s43, s46, 2560
s_mul_i32 s47, s28, 320
s_add_u32 s43, s43, s47
s_add_u32 s43, s43, {L.CS1_OFF}
buffer_load_dword v253, v3, s[20:23], s43 offen sc1
s_lshl_b32 s43, s46, 13
s_mul_i32 s47, s28, 896
s_add_u32 s43, s43, s47
s_add_u32 s43, s43, {L.CS3_OFF - 128}
buffer_load_dword v253, v3, s[20:23], s43 offen sc1
L_side_e:"""))
    for k in range(NTOUCH):
        side.append((1, f"""s_and_b32 s46, s27, 3
s_lshl_b32 s46, s46, 3
s_add_u32 s46, s46, s30
s_lshl_b32 s46, s46, 13
s_add_u32 s46, s46, s32
s_add_u32 s46, s46, {5*20480 + k*262144}
buffer_load_dword v253, v{L7V}, s[20:23], s46 offen sc1"""))
    def do_side(k=1):
        for _ in range(k):
            if side:
                n, t = side.pop(0); vm.op(t, n)
    P(f"""v_lshrrev_b32 v4, 3, v1
v_min_u32 v4, 2, v4
v_bfe_u32 v5, v1, 1, 2
v_and_b32 v6, 2, v4
v_or_b32 v5, v5, v6
s_lshl_b32 s43, s25, 1
s_sub_u32 s43, s43, 2
v_add_u32 v5, s43, v5
v_max_i32 v5, 0, v5
v_mul_u32_u24 v6, 5, v4
v_add_u32 v6, 5, v6
v_cmp_eq_u32 vcc, 2, v4
v_cndmask_b32 v6, v6, 0, vcc
v_and_b32 v7, 1, v1
v_mul_u32_u24 v7, 19, v7
s_mul_i32 s43, s26, 20
v_add_u32 v7, s43, v7
v_lshrrev_b32 v7, 7, v7
v_add_u32 v6, v6, v7
v_lshl_add_u32 v4, v5, 4, v6
v_lshlrev_b32 v12, 7, v4
v_mov_b32 v2, 0
v_mov_b32 v5, 1
v_mov_b32 v6, {RL + 4}
s_mov_b32 s43, {L.FQ_OFF}
s_cmp_eq_u32 s24, 0
s_cbranch_scc1 L_nofq
s_mov_b64 exec, 1
s_waitcnt vmcnt(0)
ds_add_rtn_u32 v7, v6, v5
s_waitcnt lgkmcnt(0)
v_readfirstlane_b32 s46, v7
s_cmp_lg_u32 s46, 3
s_cbranch_scc1 L_nofq
buffer_store_dword v5, v2, s[20:23], s42 offen sc1
L_nofq:
s_mov_b64 exec, -1""")
    P(f"s_cmp_lt_u32 s30, 4\ns_cbranch_scc1 L_nowo\nv_mov_b32 v6, {RL}\ns_cmp_lg_u32 s30, 4\ns_cbranch_scc1 L_fprl")
    P(f"s_mov_b32 s46, {L.FP_OFF}\ns_mov_b64 exec, 0xff\nbuffer_load_dword v16, v250, s[20:23], s46 offen sc1\ns_waitcnt vmcnt(0)")
    poll_check(250, 16, "s46", 1, f"s_sleep {SLP}\n")
    P("s_mov_b64 exec, -1\nds_write_b32 v6, v5\nL_fprl:\nds_read_b32 v16, v6")
    P(f"s_sub_u32 s42, s30, 4\ns_mul_i32 s42, s42, {N1*1024}\ns_add_u32 s33, s32, s42\ns_waitcnt lgkmcnt(0)")
    lds_check(6, 16, 0, 1, "s_sleep 2\n")
    for i in range(N1):
        if i % 4 == 0: P(f"s_add_u32 m0, s42, {i*1024}\ns_add_u32 s46, s33, {i*1024}")
        if i >= TD: P(f"s_waitcnt vmcnt({TD-1})")
        P(f"buffer_load_dwordx4 v3, s[20:23], s46 offen offset:{(i%4)*1024} sc1 lds")
    P("L_nowo:")
    sa()
    P("s_cmp_lg_u32 s30, 0\ns_cbranch_scc1 L_fqw\ns_mov_b64 exec, 0xffffff\nbuffer_load_dword v16, v12, s[20:23], s43 offen sc1\ns_waitcnt vmcnt(0)")
    poll_check(12, 16, "s43", 1, f"s_sleep {SLP}\n")
    P("s_mov_b64 exec, -1")
    P("L_fqw:\ns_barrier")
    sa()
    P("""buffer_load_dwordx2 v[16:17], v15, s[20:23], s40 offen sc1
buffer_load_dwordx2 v[18:19], v15, s[20:23], s40 offen offset:256 sc1
buffer_load_dwordx2 v[20:21], v27, s[20:23], s40 offen offset:1024 sc1""")
    VLATE = opt.get("VLATE", 1)
    if VLATE:
        P("s_cmp_ge_u32 s30, 4\ns_cbranch_scc1 L_b0")
        kvdma()
        P("L_b0:\ns_waitcnt vmcnt(0)\ns_cmp_lt_u32 s30, 4\ns_cbranch_scc1 L_b1")
        kvdma()
        P("L_b1:")
    else:
        kvdma()
        P("s_waitcnt vmcnt(5)\ns_cmp_ge_u32 s30, 4\ns_cbranch_scc1 L_b0\ns_waitcnt vmcnt(0)\nL_b0:")
    P("v_cmp_gt_u32 vcc, 32, v1\nv_cndmask_b32 v20, 0, v20, vcc\nv_cndmask_b32 v21, 0, v21, vcc\ns_waitcnt lgkmcnt(0)")
    P("s_barrier")
    sa()
    if STAMP or DBG: P("s_waitcnt lgkmcnt(0)")
    lg = LG(P)
    kid = {}
    def kread(t):
        b = t % 3
        kid[t] = lg.op(f"ds_read_b64 v[{KF+b*8}:{KF+b*8+1}], v24 offset:{t*1280}\nds_read_b64 v[{KF+b*8+2}:{KF+b*8+3}], v24 offset:{t*1280+256}\nds_read_b64 v[{KF+b*8+4}:{KF+b*8+5}], v25 offset:{t*1280+1024}", 3)
    M = 28
    mstate = {"n": 0}
    def maxops(t):
        ops = []
        for r in range(0, 16, 2):
            k = mstate["n"] & 1
            a, b = S + 16*t + r, S + 16*t + r + 1
            if mstate["n"] < 2: ops.append(f"v_max_f32 v{M+k}, v{a}, v{b}")
            else: ops.append(f"v_max3_f32 v{M+k}, v{M+k}, v{a}, v{b}")
            mstate["n"] += 1
        return ops
    kread(8); kread(7)
    for t in range(8, -1, -1):
        b = t % 3
        d = v(S + 16*t, 16)
        if t < 8:
            a, e = lab("ab"), lab("ae")
            P(f"s_cmp_eq_u32 s31, {7-t}\ns_cbranch_scc1 {a}\n{e}:")
            tails.append(f"{a}:\ns_nop 7\n" + "\n".join(f"v_mov_b32 v{OA+r}, 0xff800000" for r in range(16)) + f"\ns_nop 1\ns_branch {e}")
        mo = maxops(t + 1) if 1 <= t + 1 <= 7 else []
        lg.wait(kid[t])
        P(f"v_mfma_f32_32x32x16_bf16 {d}, {v(KF+b*8,4)}, v[16:19], {v(OA,16)}")
        if t - 2 >= 0: kread(t - 2)
        P(f"v_mfma_f32_32x32x16_bf16 {d}, {v(KF+b*8+4,4)}, v[20:23], {d}")
        if t % 2 == 0: do_side()
        for o in mo: P(o)
    for r in range(16): P(f"v_cndmask_b32 v{S+r}, v{S+r}, v{S+128+r}, s[{48+2*r}:{49+2*r}]")
    for o in maxops(0): P(o)
    P(f"v_max_f32 v{M}, v{M}, v{M+1}\nv_mov_b32 v{M+1}, v{M}")
    P(f"s_waitcnt vmcnt({vm.n})")
    P(f"v_permlane32_swap_b32 v{M}, v{M+1}\nv_max_f32 v{M}, v{M}, v{M+1}")
    P("s_barrier")
    vid = {}
    def vread(t, slot):
        P("s_mov_b64 exec, s[44:45]")
        vid[t] = lg.op(f"ds_read_b128 {v(VF+slot*8,4)}, v26 offset:{20480+t*1280}\nds_read_b128 {v(VF+slot*8+4,4)}, v26 offset:{20480+t*1280+640}", 2)
        P("s_mov_b64 exec, -1")
    P(f"""v_and_b32 v29, 0xffff0000, v{M}
v_sub_f32 v30, v{M}, v29
v_and_b32 v31, 0xffff0000, v30
v_sub_f32 v30, v30, v31
v_lshrrev_b32 v29, 16, v29
v_or_b32 v20, v29, v31
v_lshrrev_b32 v21, 16, v30""")
    order = [0, 1, 2, 3, 4, 5, 6, 7]
    slot_of = {8: 0, 0: 1}
    for i, t in enumerate(order[1:]): slot_of[t] = (2 + i) % 3
    def subm(t): P(f"v_mfma_f32_32x32x16_bf16 {v(S+16*t,16)}, {v(CA,4)}, v[20:23], {v(S+16*t,16)}")
    subm(0)
    vread(8, 0); vread(0, 1)
    pend = []
    firstpv = [True]
    def pv(vt, half, preg):
        def f():
            if half == 0: lg.wait(vid[vt])
            c = "0" if firstpv[0] else v(OA, 16); firstpv[0] = False
            P(f"v_mfma_f32_32x32x16_bf16 {v(OA,16)}, {v(VF+slot_of[vt]*8+4*half,4)}, {v(preg+4*half,4)}, {c}")
        return f
    D8 = S + 128
    for i, t in enumerate(order):
        base = S + 16*t
        ms = []
        if i + 1 < 8: ms.append(lambda tt=order[i+1]: (subm(tt), do_side()))
        ms += pend; pend = []
        nm = len(ms)
        pos = [int(k * 16 / nm) for k in range(nm)]
        for r in range(16):
            while pos and pos[0] == r:
                pos.pop(0); ms.pop(0)()
                if not pos and i + 1 < 8: vread(order[i+1], slot_of[order[i+1]]); do_side()
            P(f"v_exp_f32 v{base+r}, v{base+r}")
        if i == 5: fxp = vm.op(f"s_lshl_b32 s33, s25, 7\ns_add_u32 s33, s33, {L.FX_OFF}\nbuffer_load_dword v{MODEV}, v{L4V}, s[20:23], s33 offen sc1")
        for p in range(8): P(f"v_cvt_pk_bf16_f32 v{base+p}, v{base+2*p}, v{base+2*p+1}")
        if t == 0:
            for p in range(8): P(f"v_and_b32 v{D8+p}, v{PM+p}, v{base+p}\nv_bfi_b32 v{base+p}, v{PM+p}, 0, v{base+p}")
            pend = [pv(8, 0, D8), pv(8, 1, D8), pv(0, 0, base), pv(0, 1, base)]
        else:
            pend = [pv(t, 0, base), pv(t, 1, base)]
    assert not side, len(side)
    for f in pend: f()
    sa()
    P("v_cmp_gt_u32 vcc, 32, v1\nv_mov_b32 v10, 0x7ffffff0\nv_cndmask_b32 v18, v10, v27, vcc")
    P("s_waitcnt vmcnt(0)")
    if FOCUS == 9: sa()
    poll_check(L4V, MODEV, "s33", 1, f"s_sleep {SLP}\n")
    if FOCUS == 9: sa()
    P(f"v_readfirstlane_b32 s43, v{MODEV}\nv_rcp_f32 v28, v{OA+12}\nv_cmp_ne_u32 vcc, s43, v{MODEV}\nv_mov_b32 v29, v28\ns_cmp_lg_u32 vcc_lo, 0\ns_cselect_b32 s24, 1, 0")
    if opt.get("SAFE"): P("s_mov_b32 s24, 1")
    for p in range(6): P(f"v_pk_mul_f32 v[{OA+2*p}:{OA+2*p+1}], v[{OA+2*p}:{OA+2*p+1}], v[28:29]")
    for p in range(6): P(f"v_cvt_pk_bf16_f32 v{32+p}, v{OA+2*p}, v{OA+2*p+1}")
    store2(vm, ["buffer_store_dwordx4 v[32:35], v3, s[20:23], s40 offen", "buffer_store_dwordx2 v[36:37], v18, s[20:23], s40 offen offset:1024"])
    P(f"s_lshl_b32 s43, s31, 5\ns_add_u32 s43, s43, s26\ns_lshl_b32 s43, s43, 2\ns_add_u32 s43, s43, {L.FO_OFF}\nv_mov_b32 v2, 0\nv_mov_b32 v7, 1")
    P("s_waitcnt vmcnt(0)\ns_mov_b64 exec, 1")
    store2(vm, ["buffer_store_dword v7, v2, s[20:23], s43 offen"])
    P("s_mov_b64 exec, -1")
    sa()
    P(f"v_and_b32 v254, 3, v1\nv_lshlrev_b32 v254, 2, v254\nv_add_u32 v254, {SY_LDS}, v254")
    P(f"s_and_b32 s43, s30, 3\ns_lshl_b32 s43, s43, 2\ns_add_u32 s43, s43, {SY_LDS}\nv_mov_b32 v255, s43")
    P("s_cmp_ge_u32 s30, 4\ns_cbranch_scc1 L_loader")

    st0 = Stamper(48, 16)
    def st():
        if FOCUS == 0: st0()
    def sf(ph):
        if FOCUS == ph: st0()
    ACC, BF, ST, ST1, ST3, HP, ACC4, CS, PK, AF, A4 = 16, 40, 68, 72, 76, 80, 92, 112, 132, 144, 224
    NA4 = 6
    SYA, SYW, SYD, SYV = 254, 255, 90, 91
    D = 6
    P(f"s_lshr_b32 s43, s29, 1\ns_lshl_b32 s43, s43, 7\ns_add_u32 s45, s43, {L.FO_OFF}\nbuffer_load_dword v15, v{L4V}, s[20:23], s45 offen sc1")
    P("s_mul_i32 s40, s29, 20480\ns_lshl_b32 s41, s35, 10\ns_add_u32 s41, s41, s40\ns_lshl_b32 s42, s36, 10\ns_add_u32 s42, s42, s40\ns_lshl_b32 s43, s37, 3\ns_add_u32 s42, s42, s43")
    P("v_add_u32 v8, 0x10000, v3\nv_add_u32 v9, 0x20000, v3")
    P(f"s_mul_i32 s46, s30, 3072\ns_add_u32 s46, s46, {XR_LDS}")
    P("v_and_b32 v5, 15, v1\nv_lshlrev_b32 v5, 6, v5\nv_lshrrev_b32 v6, 4, v1\nv_lshl_add_u32 v5, v6, 4, v5\nv_add_u32 v5, s46, v5\ns_lshl_b32 s43, s37, 3\nv_add_u32 v6, s43, v5")
    P(f"v_and_b32 v7, 0x30, v1\nv_add_u32 v7, {CS1_LDS}, v7")
    P(f"s_lshl_b32 s33, s29, 7\ns_add_u32 s33, s33, {L.FR_OFF}\ns_lshl_b32 s43, s28, 2\ns_add_u32 s34, s33, s43")
    P("v_and_b32 v14, 7, v1\nv_lshlrev_b32 v14, 2, v14")
    P(f"s_mul_i32 s46, s29, 24576\ns_add_u32 s46, s46, {L.GX_OFF}")
    P(f"""s_mul_i32 s10, s25, 327680
s_bfe_u32 s43, s29, 0x30001
s_mul_i32 s43, s43, 1280
s_add_u32 s10, s10, s43
s_and_b32 s43, s29, 1
s_lshl_b32 s43, s43, 7
s_add_u32 s11, s10, s43
s_add_u32 s11, s11, {L.Q_OFF + 1024}
s_lshl_b32 s43, s43, 1
s_add_u32 s10, s10, s43
s_add_u32 s10, s10, {L.Q_OFF}
v_lshrrev_b32 v10, 5, v1
v_mul_u32_u24 v250, 10240, v10
v_bfe_u32 v10, v1, 4, 1
v_lshl_add_u32 v250, v10, 9, v250
v_and_b32 v10, 15, v1
v_lshl_add_u32 v250, v10, 4, v250
v_lshrrev_b32 v11, 4, v1
v_mul_u32_u24 v251, 20480, v11
v_lshl_add_u32 v251, v10, 3, v251
s_add_u32 s43, s25, 1
s_min_u32 s43, s43, 7
s_lshl_b32 s43, s43, 7
s_add_u32 s39, s43, {L.GL_OFF}""")
    def lds_off(stage, chunk):
        off = (stage % RING) * 20480 + chunk * 1024
        return (3 if off < 65536 else (8 if off < 131072 else 9)), off % 65536
    def unpack(dst, src, n):
        for i in range(n): P(f"v_lshlrev_b32 v{dst+2*i}, 16, v{src+i}\nv_and_b32 v{dst+2*i+1}, 0xffff0000, v{src+i}")
    def set_flag(vm, val):
        P(f"v_mov_b32 v4, {val}\ns_mov_b64 exec, 1")
        store2(vm, ["buffer_store_dword v4, v2, s[20:23], s34 offen"])
        P("s_mov_b64 exec, -1")
    cnt = [0]
    def rdw(lg, stage, chunk):
        ar, off = lds_off(stage, chunk)
        r = BF + (cnt[0] % (D + 1)) * 4; cnt[0] += 1
        return r, lg.op(f"ds_read_b128 {v(r,4)}, v{ar} offset:{off}")
    def free_sig(lg): lg.op(f"ds_write_b32 v{SYW}, v{SYV} offset:16")
    def rdy_read(lg): return lg.op(f"ds_read_b32 v{SYD}, v{SYA}")
    def stats_fin(R):
        P(f"v_add_f32 v{R}, v{R}, v{R+2}\nv_add_f32 v{R+1}, v{R+1}, v{R+3}")
        xg_reduce(P, [R, R+1], [R+2, R+3])
        P(f"v_mul_f32 v{R}, {f2u(1/640)}, v{R}\nv_mul_f32 v{R+1}, {f2u(1/640)}, v{R+1}\nv_fma_f32 v{R+1}, -v{R}, v{R}, v{R+1}\nv_max_f32 v{R+1}, 0, v{R+1}")
        P(f"v_add_f32 v{R+2}, {f2u(EPS)}, v{R+1}\nv_rsq_f32 v{R+2}, v{R+2}")
    def kloop(stage_chunk, tiles, aoff, vaddr_of_ks, accinit, frees, stat=None, ph=0, post=None):
        vm = VM(P); lg = LG(P)
        ids = {}
        def aload(ks):
            if aoff is None:
                kq, a = divmod(ks, 5)
                if a < 4: ids[ks] = vm.op(f"s_add_u32 s43, s10, {(4*kq+a)*20480}\nbuffer_load_dwordx4 {v(AF+4*ks,4)}, v250, s[20:23], s43 offen sc1")
                else: ids[ks] = vm.op(f"s_add_u32 s43, s11, {kq*81920}\nbuffer_load_dwordx2 {v(AF+4*ks,2)}, v251, s[20:23], s43 offen sc1\ns_add_u32 s43, s43, 10240\nbuffer_load_dwordx2 {v(AF+4*ks+2,2)}, v251, s[20:23], s43 offen sc1", 2)
                return
            if ks % 4 == 0: P(f"s_add_u32 s43, s40, {aoff + ks*1024}")
            ids[ks] = vm.op(f"buffer_load_dwordx4 {v(AF+4*ks,4)}, v{vaddr_of_ks(ks)}, s[20:23], s43 offen offset:{(ks%4)*1024} sc1")
        sf(ph)
        for ks in range(PRE): aload(ks)
        sf(ph)
        nt = len(tiles)
        items = [(ks, t) for ks in range(20) for t in tiles]
        N = len(items)
        rr = []
        def rd(n):
            ks, t = items[n]
            if t == tiles[0] and ks in frees: free_sig(lg)
            rr.append(rdw(lg, *stage_chunk(ks, t)))
            if n == N - 1 and 20 in frees: free_sig(lg)
        for n in range(D): rd(n)
        for n, (ks, t) in enumerate(items):
            if n + D < N: rd(n + D)
            if t == tiles[0]:
                if ks + PRE < 20: aload(ks + PRE)
                if aoff is None and ks == 12: vm.op("buffer_load_dword v15, v2, s[20:23], s39 offen sc1")
                if stat and ks == 3: sp = vm.op("buffer_load_dword v15, v14, s[20:23], s33 offen sc1")
                if stat and ks == 9:
                    vm.wait(sp); poll_check(14, 15, "s33", stat[0])
                    sl = vm.op(f"s_add_u32 s44, s46, {stat[2]}\nbuffer_load_dwordx4 {v(stat[1],4)}, v3, s[20:23], s44 offen sc1")
                P(f"s_waitcnt vmcnt({vm.cnt(ids[ks])}) lgkmcnt({lg.cnt(rr[n][1])})")
                if ks in (0, 1, 2, 4, 8, 12, 16): sf(ph)
                for fk, fv in frees.items():
                    if ks == fk - 3: P(f"v_mov_b32 v{SYV}, {fv}")
            else:
                lg.wait(rr[n][1])
            a = ACC + 4 * tiles.index(t)
            P(f"v_mfma_f32_16x16x32_bf16 {v(a,4)}, {v(rr[n][0],4)}, {v(AF+4*ks,4)}, {v(a,4) if (accinit or ks > 0) else '0'}")
        sf(ph)
        return vm, lg
    def pack(dst, src, n):
        for i in range(n): P(f"v_cvt_pk_bf16_f32 v{dst+i}, v{src+2*i}, v{src+2*i+1}")
    def tile_then_stats(pk, off, stoff, f1):
        vm = VM(P)
        P(f"s_add_u32 s43, s41, {off}\ns_add_u32 s44, s42, {off}")
        store2(vm, [f"buffer_store_dwordx4 {v(pk,4)}, v3, s[20:23], s43 offen", f"buffer_store_dwordx4 {v(pk+4,4)}, v3, s[20:23], s43 offen offset:1024", f"buffer_store_dwordx2 {v(pk+8,2)}, v3, s[20:23], s44 offen"])
        P(f"v_mov_b32 v10, 0\nv_mov_b32 v11, 0\nv_mov_b32 v12, {ONES}")
        for i in range(10): P(f"v_dot2c_f32_bf16 v10, v{pk+i}, v12\nv_dot2c_f32_bf16 v11, v{pk+i}, v{pk+i}")
        xg_reduce(P, [10, 11], [12, 13])
        P(f"s_lshr_b32 s44, s28, 1\ns_lshl_b32 s44, s44, 8\ns_add_u32 s43, s46, s44\ns_lshl_b32 s44, s37, 3\ns_add_u32 s43, s43, s44\ns_add_u32 s43, s43, {stoff}")
        sf(8)
        P("s_waitcnt vmcnt(0)")
        sf(8)
        set_flag(vm, f1)
        P("s_mov_b64 exec, 0xffff")
        store2(vm, ["buffer_store_dwordx2 v[10:11], v3, s[20:23], s43 offen"])
        P("s_mov_b64 exec, -1")
    kk = 2 * 0.7978845608028654 * LOG2E
    def gelu_items(a0, c0, n, STR, pk):
        Lx = []
        pr = range(0, n, 2)
        for i in pr: Lx.append(f"v_pk_mul_f32 {v(c0+i,2)}, {v(c0+i,2)}, {v(STR,2)}")
        for i in pr: Lx.append(f"v_pk_fma_f32 {v(a0+i,2)}, {v(a0+i,2)}, {v(STR+2,2)}, {v(c0+i,2)} neg_lo:[0,0,1] neg_hi:[0,0,1]")
        for i in pr: Lx.append(f"v_pk_mul_f32 {v(c0+i,2)}, {v(a0+i,2)}, {v(a0+i,2)}")
        for i in pr: Lx.append(f"v_pk_fma_f32 {v(c0+i,2)}, {v(c0+i,2)}, v[10:11], v[12:13]")
        for i in pr: Lx.append(f"v_pk_mul_f32 {v(c0+i,2)}, {v(c0+i,2)}, {v(a0+i,2)}")
        for i in range(n): Lx.append(f"v_exp_f32 v{c0+i}, v{c0+i}")
        for i in pr: Lx.append(f"v_pk_add_f32 {v(c0+i,2)}, {v(c0+i,2)}, 1.0 op_sel_hi:[1,0]")
        for i in range(n): Lx.append(f"v_rcp_f32 v{c0+i}, v{c0+i}")
        for i in pr: Lx.append(f"v_pk_mul_f32 {v(a0+i,2)}, {v(a0+i,2)}, {v(c0+i,2)}")
        for i in pr: Lx.append(f"v_cvt_pk_bf16_f32 v{pk+i//2}, v{a0+i}, v{a0+i+1}")
        return Lx
    def gelu_consts():
        P(f"v_mov_b32 v10, {f2u(-kk*0.044715)}\nv_mov_b32 v11, v10\nv_mov_b32 v12, {f2u(-kk)}\nv_mov_b32 v13, v12")
    small = lambda b: (lambda ks, t: (b + ks // 4, (ks % 4) * 5 + t))
    T5 = [0, 1, 2, 3, 4]

    P(f"ds_read_b128 {v(HP,4)}, v5\nds_read_b128 {v(HP+4,4)}, v5 offset:1024\nds_read_b64 {v(HP+8,2)}, v6 offset:2048\ns_waitcnt lgkmcnt(0)")
    unpack(ACC, HP, 10)
    P("s_barrier")
    P("s_waitcnt vmcnt(0)")
    poll_check(L4V, 15, "s45", 1)
    P("s_or_b32 s43, s26, s30\ns_cmp_eq_u32 s43, 0\ns_cbranch_scc1 L_gl\nL_gle:")
    tails.append(f"L_gl:\ns_lshl_b32 s43, s25, 7\ns_add_u32 s43, s43, {L.GL_OFF}\nv_mov_b32 v4, 1\ns_mov_b64 exec, 1\nbuffer_store_dword v4, v2, s[20:23], s43 offen sc1\ns_mov_b64 exec, -1\ns_branch L_gle")
    st()
    kloop(small(0), T5, None, None, True, {12: 3, 20: 5}, ph=1)
    st()
    P("s_waitcnt vmcnt(0)")
    poll_check(2, 15, "s39", 1, f"s_sleep {SLP}\n")
    sf(8)
    pack(HP, ACC, 10)
    tile_then_stats(HP, L.H_OFF, 22528, 1)
    st(); sf(8)
    P("buffer_load_dword v15, v14, s[20:23], s33 offen sc1")
    P(f"ds_read_b32 v{SYD}, v{SYA}\ns_waitcnt vmcnt(1)")
    sf(8)
    vm = VM(P); set_flag(vm, 2)
    P("s_waitcnt lgkmcnt(0)")
    lds_check(SYA, SYD, 0, 10)
    sf(8)
    for t in range(5): P(f"ds_read_b128 {v(CS+4*t,4)}, v7 offset:{t*64}")
    P("s_waitcnt vmcnt(1) lgkmcnt(0)")
    sf(8)
    poll_check(14, 15, "s33", 1)
    st(); sf(8)
    kloop(small(5), T5, L.H_OFF, lambda ks: 3, False, {12: 8, 20: 10}, stat=(2, ST1, 22528), ph=2)
    st()
    stats_fin(ST1)
    P(f"v_mul_f32 v{ST}, v{ST1+1}, v{ST1+2}\nv_mov_b32 v{ST+1}, {f2u(EPS)}\nv_fma_f32 v{ST}, v{ST}, v{ST1+2}, v{ST+1}\nv_rsq_f32 v{ST}, v{ST}")
    gelu_consts()
    P(f"v_mul_f32 v{ST+2}, v{ST}, v{ST1+2}\nv_mul_f32 v{ST}, v{ST1}, v{ST+2}\nv_mov_b32 v{ST+3}, v{ST+2}\nv_mov_b32 v{ST+1}, v{ST}")
    for l in gelu_items(ACC, CS, 20, ST, PK): P(l)
    P("s_lshr_b32 s43, s28, 2\ns_add_u32 s43, s43, 1\ns_sub_u32 s44, 0, s43\ns_bitcmp1_b32 s28, 1\ns_cselect_b32 s43, s44, s43")
    P("s_lshl_b32 s44, s29, 4\ns_add_u32 s44, s44, s43\nv_and_b32 v10, 15, v1\nv_add_u32 v10, s44, v10")
    P("v_ashrrev_i32 v12, 8, v10\nv_cmp_eq_u32 vcc, s25, v12\nv_cmp_gt_u32 s[26:27], 8, v12")
    P("v_lshrrev_b32 v11, 4, v10\nv_mul_u32_u24 v11, 20480, v11\nv_and_b32 v10, 15, v10\nv_lshl_add_u32 v11, v10, 4, v11\nv_and_b32 v10, 0x30, v1\nv_lshl_add_u32 v11, v10, 4, v11")
    P(f"s_sub_u32 s43, s41, s40\ns_sub_u32 s44, s42, s40\ns_add_u32 s43, s43, {L.T_OFF}\ns_add_u32 s44, s44, {L.T_OFF}")
    P("s_andn2_b64 s[26:27], s[26:27], vcc\ns_mov_b64 exec, vcc")
    vm = VM(P)
    tl = [f"buffer_store_dwordx4 {v(PK,4)}, v11, s[20:23], s43 offen", f"buffer_store_dwordx4 {v(PK+4,4)}, v11, s[20:23], s43 offen offset:1024", f"buffer_store_dwordx2 {v(PK+8,2)}, v11, s[20:23], s44 offen"]
    store2(vm, tl)
    P("s_cmp_lg_u64 s[26:27], 0\ns_cbranch_scc1 L_halo\nL_haloe:\ns_mov_b64 exec, -1")
    tails.append(f"L_halo:\ns_mov_b64 exec, s[26:27]\ns_add_u32 s43, s43, {L.TH_OFF - L.T_OFF}\ns_add_u32 s44, s44, {L.TH_OFF - L.T_OFF}\n" + "\n".join(l + " sc1" for l in tl) + "\ns_nop 1\ns_branch L_haloe")
    P(f"v_mul_f32 v{ST1}, v{ST1}, v{ST1+2}\nv_mov_b32 v{ST1+3}, v{ST1+2}\nv_mov_b32 v{ST1+1}, v{ST1}")
    P(f"""s_and_b32 s43, s29, 15
s_lshl_b32 s39, s25, 11
s_add_u32 s39, s39, {L.FHL_OFF}
s_sub_u32 s44, s33, 128
s_sub_u32 s45, s39, 1024
s_cmp_eq_u32 s43, 0
s_cselect_b32 s44, s45, s44
s_cselect_b32 s26, 5, 0
s_cmp_eq_u32 s29, 0
s_cselect_b32 s44, s33, s44
s_cselect_b32 s26, 0, s26
v_lshlrev_b32 v12, s26, v14
v_add_u32 v12, s44, v12
v_add_u32 v13, s33, v14
v_bfe_u32 v10, v1, 3, 2
v_cmp_eq_u32 vcc, 1, v10
s_add_u32 s44, s33, 128
s_add_u32 s45, s39, 2048
v_cndmask_b32 v13, v13, v12, vcc
s_cmp_eq_u32 s43, 15
s_cselect_b32 s44, s45, s44
s_cselect_b32 s26, 5, 0
s_cmp_eq_u32 s29, 127
s_cselect_b32 s44, s33, s44
s_cselect_b32 s26, 0, s26
v_lshlrev_b32 v12, s26, v14
v_add_u32 v12, s44, v12
v_cmp_eq_u32 vcc, 2, v10
s_and_b32 s44, s29, 1
s_lshl_b32 s44, s44, 3
s_add_u32 s44, s44, s28
s_lshl_b32 s44, s44, 7
s_add_u32 s39, s39, s44
v_cndmask_b32 v228, v13, v12, vcc
s_waitcnt vmcnt(0)""")
    set_flag(vm, 3)
    P("s_add_u32 s44, s29, 1\ns_and_b32 s44, s44, 14\ns_cmp_eq_u32 s44, 0\ns_cbranch_scc1 L_hf\nL_hfe:")
    tails.append(f"L_hf:\ns_mov_b64 exec, 1\nbuffer_store_dword v4, v2, s[20:23], s39 offen sc1\ns_mov_b64 exec, -1\ns_branch L_hfe")
    st()
    P(f"buffer_load_dword v15, v228, s[20:23], 0 offen sc1\nds_read_b32 v{SYD}, v{SYA}")
    P(f"""s_cmp_eq_u32 s43, 0
s_cselect_b32 s44, {L.TH_OFF - L.T_OFF}, 0
s_cmp_eq_u32 s29, 0
s_cselect_b32 s44, 0x40000000, s44
s_cmp_eq_u32 s43, 15
s_cselect_b32 s45, {L.TH_OFF - L.T_OFF}, 0
s_cmp_eq_u32 s29, 127
s_cselect_b32 s45, 0x40000000, s45
v_and_b32 v10, 15, v1
v_add_u32 v11, s44, v3
v_add_u32 v12, s45, v3
v_cmp_gt_u32 vcc, 1, v10
v_cndmask_b32 v224, v3, v11, vcc
v_cmp_lt_u32 vcc, 14, v10
v_cndmask_b32 v225, v3, v12, vcc
v_cmp_gt_u32 vcc, 2, v10
v_cndmask_b32 v226, v3, v11, vcc
v_cmp_lt_u32 vcc, 13, v10
v_cndmask_b32 v227, v3, v12, vcc""")
    unpack(ACC4, HP, 10)
    for i in range(0, 20, 2):
        P(f"v_pk_fma_f32 {v(ACC+i,2)}, {v(ACC4+i,2)}, {v(ST1+2,2)}, {v(ST1,2)} neg_lo:[0,0,1] neg_hi:[0,0,1]")
    P("s_waitcnt lgkmcnt(0)")
    lds_check(SYA, SYD, 0, 15)
    P("s_waitcnt vmcnt(0)")
    poll_check(228, 15, "0", 3)
    st()
    kloop(small(10), T5, L.T_OFF, lambda ks: 224 + ks // 5, True, {12: 13, 20: 15}, ph=3)
    st()
    pack(PK, ACC, 10)
    tile_then_stats(PK, L.X1_OFF, 23552, 4)
    st()
    P("buffer_load_dword v15, v14, s[20:23], s33 offen sc1")
    P(f"ds_read_b32 v{SYD}, v{SYA}")
    unpack(CS, PK, 10)
    for i in range(0, 20, 2): P(f"v_pk_add_f32 {v(ACC4+i,2)}, {v(ACC4+i,2)}, {v(CS+i,2)}")
    P("s_waitcnt vmcnt(1)")
    vm = VM(P); set_flag(vm, 5)
    gelu_consts()
    P(f"v_add_u32 v7, {CS3_LDS - CS1_LDS}, v7\ns_lshl_b32 s45, s28, 10\ns_waitcnt lgkmcnt(0)")
    sf(8)
    lds_check(SYA, SYD, 0, 19)
    sf(8)
    for i in range(4): P(f"ds_read_b128 {v(CS+4*i,4)}, v7 offset:{i*64}")
    P("s_waitcnt vmcnt(1) lgkmcnt(0)")
    sf(8)
    poll_check(14, 15, "s33", 4)
    st(); sf(8)
    vm, lg = kloop(lambda ks, t: (15 + t, ks), [0, 1, 2, 3], L.X1_OFF, lambda ks: 3, False, {20: 19}, stat=(5, ST3, 23552), ph=4)
    def a4reg(p):
        i = p % (NA4 + 20)
        return A4 + 4*i if i < NA4 else AF + 4*(i - NA4)
    ids4 = {}
    def a4load(p):
        if 16 <= p < 32:
            ids4[p] = vm.op(f"s_add_u32 s44, s10, {(p-16)*20480}\nbuffer_load_dwordx4 {v(a4reg(p),4)}, v250, s[20:23], s44 offen sc1"); return
        if p % 4 == 0:
            if p < 16: P(f"s_add_u32 s44, s40, {L.V_OFF + p*1024}")
            else: P(f"s_add_u32 s44, s46, {(p-32)*1024}")
        ids4[p] = vm.op(f"buffer_load_dwordx4 {v(a4reg(p),4)}, v3, s[20:23], s44 offen offset:{(p%4)*1024} sc1")
    gst = {}
    def gstore(q):
        va = 3
        if q < 2: P(f"s_add_u32 s43, s45, s40\ns_add_u32 s43, s43, {L.V_OFF + q*8192}")
        elif q < 4: P(f"s_mul_i32 s43, s45, 20\ns_add_u32 s43, s43, s10\ns_add_u32 s43, s43, {(q-2)*8*20480}"); va = 250
        elif q < 6: P(f"s_add_u32 s43, s45, s46\ns_add_u32 s43, s43, {(q-4)*8192}")
        else: P(f"s_add_u32 s43, s45, s46\ns_add_u32 s43, s43, 16384\ns_cmp_ge_u32 s28, 6\ns_cmov_b32 s43, {L.DUMMY_OFF}")
        gst[q] = store2(vm, [f"buffer_store_dwordx4 {v(PK+4*(q%2),4)}, v{va}, s[20:23], s43 offen"])
    items4 = [(p, t) for p in range(54) for t in range(5)]
    N4 = len(items4)
    groups = [[0, 1, 2, 3]] + [[t, t + 1] for t in range(4, 14, 2)]
    ry = rdy_read(lg)
    stats_fin(ST3)
    P(f"v_mul_f32 v{ST3}, v{ST3}, v{ST3+2}\nv_mov_b32 v{ST3+3}, v{ST3+2}\nv_mov_b32 v{ST3+1}, v{ST3}")
    rr4 = []
    r4y = {}
    def rd4(n):
        p, t = items4[n]
        sg = 29 + p // 4
        if p % 8 == 0 and t == 0 and p > 0:
            free_sig(lg)
            lg.wait(r4y[sg]); lds_check(SYA, SYD, 0, min(sg + 2, NSTG))
        if p % 8 == 6 and t == 0 and p + 2 < 54: r4y[sg + 1] = rdy_read(lg)
        rr4.append(rdw(lg, sg, (p % 4) * 5 + t))
    for gi, g in enumerate(groups):
        if gi in (2, 3): sf(5)
        lg.wait(ry)
        if gi + 1 < len(groups):
            gn = groups[gi + 1]
            lds_check(SYA, SYD, 0, 15 + gn[-1] + 1)
            its = [(ks, t) for ks in range(20) for t in gn]
            rr = [rdw(lg, 15 + t, ks) for ks, t in its[:D]]
        else:
            st()
            lds_check(SYA, SYD, 0, 31)
            for n in range(D): rd4(n)
            vm.wait(poll1); poll_check(14, 15, "s33", 6)
            for p in range(PRE4): a4load(p)
        if gi in (2, 3): sf(5)
        for l in gelu_items(ACC, CS, 4*len(g), ST3, PK + 4*((g[0]//2) % 2)): P(l)
        if gi in (2, 3): sf(5)
        for t in g[1::2]: gstore(t // 2)
        if gi + 1 == len(groups): break
        P(f"v_mov_b32 v{SYV}, {15 + gn[-1] + 1}")
        if gi in (2, 3): sf(5)
        for n, (ks, t) in enumerate(its):
            if n + D < 40:
                rr.append(rdw(lg, 15 + its[n + D][1], its[n + D][0]))
                if n + D == 39: free_sig(lg); ry = rdy_read(lg)
            if n == 8:
                for i, tt in enumerate(gn): lg.op(f"ds_read_b128 {v(CS+4*i,4)}, v7 offset:{tt*64}")
            lg.wait(rr[n][1])
            acc = ACC + 4 * gn.index(t)
            P(f"v_mfma_f32_16x16x32_bf16 {v(acc,4)}, {v(rr[n][0],4)}, {v(AF+4*ks,4)}, {'0' if ks == 0 else v(acc,4)}")
            if gi == 4 and n == 0:
                vm.wait(gst[4]); set_flag(vm, 6)
            if gi == 4 and n == 22: poll1 = vm.op("buffer_load_dword v15, v14, s[20:23], s33 offen sc1")
    st()
    for n, (p, t) in enumerate(items4):
        if n + D < N4: rd4(n + D)
        if t == 0:
            if p == 3:
                vm.wait(gst[6]); set_flag(vm, 7)
            if p == 20: poll2 = vm.op("buffer_load_dword v15, v14, s[20:23], s33 offen sc1")
            if p + PRE4 == 40:
                vm.wait(poll2); poll_check(14, 15, "s33", 7)
            if p + PRE4 < 54: a4load(p + PRE4)
            P(f"s_waitcnt vmcnt({vm.cnt(ids4[p])}) lgkmcnt({lg.cnt(rr4[n][1])})")
            if p % 8 == 4: P(f"v_mov_b32 v{SYV}, {29 + p // 4 + 1}")
        else: lg.wait(rr4[n][1])
        P(f"v_mfma_f32_16x16x32_bf16 {v(ACC4+4*t,4)}, {v(rr4[n][0],4)}, {v(a4reg(p),4)}, {v(ACC4+4*t,4)}")
    st()
    P(f"s_mul_i32 s46, s30, 3072\ns_add_u32 s46, s46, {XR_LDS}\nv_add_u32 v10, s46, v3")
    P("s_lshl_b32 s43, s35, 6\ns_add_u32 s43, s43, s40\ns_lshl_b32 s44, s36, 6\ns_add_u32 s44, s44, s40\ns_lshl_b32 s45, s37, 3\ns_add_u32 s44, s44, s45")
    pack(PK, ACC4, 10)
    P(f"ds_write_b128 v5, {v(PK,4)}\nds_write_b128 v5, {v(PK+4,4)} offset:1024\nds_write_b64 v5, {v(PK+8,2)} offset:2048")
    P(f"ds_read_b128 {v(CS,4)}, v10\nds_read_b128 {v(CS+4,4)}, v10 offset:1024\nds_read_b64 {v(CS+8,2)}, v10 offset:2048")
    P(f"s_waitcnt lgkmcnt(2)\nbuffer_store_dwordx4 {v(CS,4)}, v{RMV}, s[16:19], s43 offen{OSF}\ns_waitcnt lgkmcnt(1)\nbuffer_store_dwordx4 {v(CS+4,4)}, v{RMV}, s[16:19], s43 offen offset:64{OSF}\ns_waitcnt lgkmcnt(0)\nbuffer_store_dwordx2 {v(CS+8,2)}, v{RMV}, s[16:19], s44 offen{OSF}")
    if DBG:
        P("s_waitcnt vmcnt(0)"); st0()
        P(f"s_cmp_lg_u32 s2, {DBG}\ns_cbranch_scc1 L_end\ns_cmp_lg_u32 s30, 0\ns_cbranch_scc1 L_end\ns_load_dwordx2 s[4:5], s[0:1], 72\ns_waitcnt lgkmcnt(0)")
        P(f"s_mov_b32 s12, s4\ns_and_b32 s13, s5, 0xffff\ns_mov_b32 s14, 256\ns_mov_b32 s15, 0x20000\nv_mov_b32 v39, {L.DUMMY_OFF + 2048}\nbuffer_load_dwordx4 v[52:55], v39, s[20:23], 0 offen\nbuffer_load_dwordx2 v[56:57], v39, s[20:23], 0 offen offset:16\ns_waitcnt vmcnt(0)\nv_mov_b32 v39, 0")
        regs = [80, 82, 84, 90, 48, 54, 60, 66, 70, 48 + 2*(st0.i-1)]
        for i, r in enumerate(regs): P(f"v_mov_b32 v{40+i}, s{r}")
        if "XA" in opt:
            vr = lambda k: 52 + k if k < 6 else 40 + k - 6
            P(f"v_readfirstlane_b32 s60, v{vr(opt['XA'])}\nv_readfirstlane_b32 s61, v{vr(opt['XB'])}\nv_readfirstlane_b32 s62, v49\ns_sub_u32 s60, s61, s60\ns_lshl_b32 s60, s60, 2\ns_min_u32 s60, s60, 100000")
            P("L_xspin:\ns_memrealtime s[64:65]\ns_waitcnt lgkmcnt(0)\ns_sub_u32 s64, s64, s62\ns_cmp_lt_u32 s64, s60\ns_cbranch_scc1 L_xspin")
        P("s_mov_b64 exec, 1\nbuffer_store_dwordx4 v[52:55], v39, s[12:15], 0 offen\nbuffer_store_dwordx2 v[56:57], v39, s[12:15], 0 offen offset:16\nbuffer_store_dwordx2 v[40:41], v39, s[12:15], 0 offen offset:24\nbuffer_store_dwordx4 v[42:45], v39, s[12:15], 0 offen offset:32\nbuffer_store_dwordx4 v[46:49], v39, s[12:15], 0 offen offset:48")
    if STAMP:
        P("s_waitcnt vmcnt(0)"); st0()
        stamp_dump([80 + 2*i for i in range(sa.i)] + [48 + 2*i for i in range(st0.i)])
    P("s_endpgm")

    P("L_loader:")
    P("s_sub_u32 s43, s30, 4\ns_mul_i32 s39, s43, 5120\ns_add_u32 s38, s32, s39")
    P(f"s_mov_b32 s44, {L.FP_OFF}\nbuffer_load_dword v16, v250, s[20:23], s44 offen sc1\ns_waitcnt vmcnt(0)")
    poll_check(250, 16, "s44", 1, f"s_sleep {SLP}\n")
    P(f"""s_cmp_ge_u32 s30, 6
s_cbranch_scc1 L_nocs
s_mul_i32 s44, s28, 320
s_add_u32 s44, s44, {L.CS1_OFF}
s_mov_b32 s45, 2560
s_mov_b32 s46, {CS1_LDS}
s_cmp_eq_u32 s30, 4
s_cbranch_scc1 L_cs1
s_mul_i32 s44, s28, 7
s_cmp_eq_u32 s28, 7
s_subb_u32 s44, s44, 0
s_lshl_b32 s44, s44, 7
s_add_u32 s44, s44, {L.CS3_OFF}
s_mov_b32 s45, 8192
s_mov_b32 s46, {CS3_LDS}
L_cs1:""")
    P("s_sub_u32 s43, s30, 4\ns_lshl_b32 s43, s43, 30\nv_add_u32 v9, s43, v3")
    for i in range(4): P(f"buffer_load_dwordx4 {v(16+4*i,4)}, v{9 if i == 3 else 3}, s[20:23], s44 offen sc1\ns_add_u32 s44, s44, s45")
    P("L_nocs:\ns_barrier")
    P("s_cmp_ge_u32 s30, 6\ns_cbranch_scc1 L_nocs2\nv_add_u32 v8, s46, v3\ns_waitcnt vmcnt(0)")
    for r in range(4): P(f"v_add_f32 v{16+r}, v{16+r}, v{20+r}\nv_add_f32 v{24+r}, v{24+r}, v{28+r}")
    for r in range(4): P(f"v_add_f32 v{16+r}, v{16+r}, v{24+r}")
    P("ds_write_b128 v8, v[16:19]\nL_nocs2:")
    sl = Stamper(48, 16)
    vm = VM(P); last = {}
    pub = [5]
    def issue(sg, thin=False):
        slot = (sg % RING) * 20480
        for i in range(5):
            if i % 4 == 0: P(f"s_add_u32 m0, s39, {slot + i*1024}\ns_add_u32 s43, s38, {sg*20480 + i*1024}")
            if thin: P(f"s_waitcnt vmcnt({THIN})")
            last[sg] = vm.op(f"buffer_load_dwordx4 v3, s[20:23], s43 offen offset:{(i%4)*1024} sc1 lds")
    def publish(upto):
        P(f"v_mov_b32 v10, {upto}"); vm.wait(last[upto - 1]); P("ds_write_b32 v255, v10")
    def wait_free(n):
        P("ds_read_b32 v11, v254 offset:16\ns_waitcnt lgkmcnt(0)"); lds_check(254, 11, 16, n, 's_sleep 1\n')
    issue(5, True); issue(6, True)
    for ph in range(3):
        b = 5 * ph
        wait_free(b + 3)
        for sg in range(b + 7, b + 10): issue(sg)
        publish(b + 10)
        wait_free(b + 5)
        issue(b + 10, True); issue(b + 11, True)
    publish(22)
    nxt = 22
    fr = [19, 21, 23, 25, 27, 29, 31, 33, 35, 37]
    for f in fr:
        if nxt >= NSTG: break
        sl(); wait_free(f)
        if opt.get("WBL", 0) == f:
            P("s_cmp_lg_u32 s30, 4\ns_cbranch_scc1 L_nowb\ns_cmp_lg_u32 s26, 0\ns_cbranch_scc1 L_nowb\nbuffer_wbl2 sc1\nL_nowb:")
        first = nxt
        while nxt < NSTG and nxt - RING < f:
            issue(nxt); nxt += 1
            if nxt - first == 2 and nxt < NSTG and nxt - RING < f: publish(nxt - 1)
        publish(nxt - 1)
    publish(NSTG)
    if opt.get("WBL", 0) == 1:
        P("s_cmp_lg_u32 s30, 4\ns_cbranch_scc1 L_nowb\ns_cmp_lg_u32 s26, 0\ns_cbranch_scc1 L_nowb\nbuffer_wbl2 sc1\ns_waitcnt vmcnt(0)\nL_nowb:")
    if STAMP:
        sl()
        stamp_dump([80 + 2*i for i in range(sa.i)] + [48 + 2*i for i in range(sl.i)])
    P("L_end:\ns_endpgm")
    for t in tails: P(t)
    P("L_code_end:")
    return (KN, 256, 512, max(LDS_TOTAL, STAT + 2048 + 128), 256)
```

```python
from asmlib import *
from gen1 import f2u, LOG2E, ONES, EPS, ARG, SZ, srd, header, xg_reduce, NAME

RING = 7
KV_LDS = 5 * 20480
XR_LDS = RING * 20480
CS1_LDS = XR_LDS + 12288
CS3_LDS = CS1_LDS + 1024
SY_LDS = 131072 + 28672 + 2144
LDS_TOTAL = SY_LDS + 32
SPIN_MAX = 400000
STAMP_OFF = 0x4000000

class VM:
    def __init__(s, P): s.P = P; s.n = 0
    def op(s, text, k=1): s.P(text); s.n += k; return s.n - 1
    def cnt(s, idx):
        c = s.n - 1 - idx
        assert 0 <= c <= 63, c
        return c
    def wait(s, idx, extra=""): s.P(f"s_waitcnt vmcnt({s.cnt(idx)}){extra}")
class LG(VM):
    def cnt(s, idx): return min(15, s.n - 1 - idx)
    def wait(s, idx): s.P(f"s_waitcnt lgkmcnt({s.cnt(idx)})")

_lab = [0]
def lab(p):
    _lab[0] += 1
    return f"L_{p}{_lab[0]}"

def gen(P, L, opt):
    STAMP = opt.get("STAMP", False); FOCUS = opt.get("FOCUS", 0)
    NTOUCH = opt.get("NTOUCH", 1); THIN = opt.get("THIN", 1); PRE = opt.get("PRE", 8); PRE4 = opt.get("PRE4", 12)
    OSF = ["", " sc1", " nt"][opt.get("OSF", 0)]
    NSTG = L.NSTG; DBG = opt.get("DBG", 0)
    tails = []
    def store2(vm, lines):
        a, b = lab("sf"), lab("se")
        P(f"s_cbranch_scc1 {a}" if False else f"s_cmp_lg_u32 s24, 0\ns_cbranch_scc1 {a}")
        for l in lines: P(l)
        P(f"{b}:")
        tails.append(f"{a}:\ns_nop 4\n" + "\n".join(l + " sc1" for l in lines) + f"\ns_nop 1\ns_branch {b}")
        vm.n += len(lines)
        return vm.n - 1
    def poll_check(vaddr, vdata, soff, need, back=''):
        a, b, c = lab("pl"), lab("pd"), lab("pr")
        P(f"v_cmp_gt_u32 vcc, {need}, v{vdata}\ns_cbranch_vccnz {a}\n{b}:")
        tails.append(f"""{a}:
s_mov_b32 s47, 0
{c}:
{back}buffer_load_dword v{vdata}, v{vaddr}, s[20:23], {soff} offen sc1
s_add_u32 s47, s47, 1
s_cmp_ge_u32 s47, {SPIN_MAX}
s_waitcnt vmcnt(0)
s_cbranch_scc1 {b}
v_cmp_gt_u32 vcc, {need}, v{vdata}
s_cbranch_vccnz {c}
s_branch {b}""")
    def lds_check(vaddr, vdata, off, need, back=''):
        a, b, c = lab("ll"), lab("ld"), lab("lr")
        P(f"v_cmp_gt_u32 vcc, {need}, v{vdata}\ns_cbranch_vccnz {a}\n{b}:")
        tails.append(f"""{a}:
s_mov_b32 s47, 0
{c}:
{back}ds_read_b32 v{vdata}, v{vaddr} offset:{off}
s_add_u32 s47, s47, 1
s_cmp_ge_u32 s47, {SPIN_MAX*4}
s_waitcnt lgkmcnt(0)
s_cbranch_scc1 {b}
v_cmp_gt_u32 vcc, {need}, v{vdata}
s_cbranch_vccnz {c}
s_branch {b}""")
    class Stamper:
        def __init__(s, base, n): s.i = 0; s.base = base; s.n = n
        def __call__(s):
            if not (STAMP or DBG): return
            assert s.i < s.n
            if DBG:
                P(f"s_memrealtime s[{s.base+2*s.i}:{s.base+2*s.i+1}]"); s.i += 1; return
            P(f"s_memtime s[{s.base+2*s.i}:{s.base+2*s.i+1}]"); s.i += 1
    def stamp_dump(regs):
        regs = regs + [regs[-1]] * (26 - len(regs))
        P("s_waitcnt lgkmcnt(0)\nv_mov_b32 v40, s100\ns_memrealtime s[100:101]\ns_waitcnt lgkmcnt(0)\nv_mov_b32 v41, s100\nv_mov_b32 v2, 0")
        for i, r in enumerate(regs): P(f"v_mov_b32 v{42+i}, s{r}")
        P("s_mov_b32 s22, 0x8000000")
        P(f"s_lshl_b32 s43, s2, 3\ns_add_u32 s43, s43, s30\ns_lshl_b32 s43, s43, 7\ns_add_u32 s43, s43, {STAMP_OFF + 2*0x100000}\ns_mov_b64 exec, 1")
        for i in range(7): P(f"buffer_store_dwordx4 v[{40+4*i}:{43+4*i}], v2, s[20:23], s43 offen offset:{16*i}")

    KN = NAME + "_kernel"
    PI = opt.get("PI", 3); PP = opt.get("PP", 6); PSP = opt.get("PSP", 2); ZI = opt.get("ZI", 2); SI = opt.get("SI", 7)
    NTF = " nt" if opt.get("PREP_NT", 1) else ""
    PSF = " sc1"; QSF = " sc1"
    N1 = opt.get("N1", 4); TD = opt.get("TD", 4)
    CST = opt.get("CST", 1); WB = opt.get("WB", 0)
    PB = 131072; STAT = PB + 28672
    SLP = opt.get("SLP", 6)
    RL = STAT + 2048 + 64
    def spoll(base, imm, stride, n, need, t0, srd_="s[20:23]", slp=None, va=58, scalar=True, part=3):
        b, c, d = lab("zq"), lab("zr"), lab("zs")
        if scalar:
            for k in range(n if part & 1 else 0):
                if isinstance(stride, str): P(f"s_buffer_load_dword s{t0+k}, {srd_}, s{int(base[1:])+k}")
                elif base == "0": P(f"s_buffer_load_dword s{t0+k}, {srd_}, {imm + k*stride}")
                else: P(f"s_buffer_load_dword s{t0+k}, {srd_}, {base} offset:{imm + k*stride}")
            if not part & 2: return
            P("s_waitcnt lgkmcnt(0)")
            for k in range(1, n): P(f"s_min_u32 s{t0}, s{t0}, s{t0+k}")
            P(f"s_cmp_lt_u32 s{t0}, {need}\ns_cbranch_scc1 {c}\n{b}:")
        body = f"""{c}:
s_mov_b32 s47, 0
v_mul_u32_u24 v{va}, {stride}, v1
v_add_u32 v{va}, {imm}, v{va}
s_mov_b64 exec, {(1 << n) - 1}
{d}:
buffer_load_dword v{va+1}, v{va}, {srd_}, {base} offen sc1
s_add_u32 s47, s47, 1
s_waitcnt vmcnt(0)
v_cmp_gt_u32 vcc, {need}, v{va+1}
s_cbranch_vccz {d}x
s_sleep {SLP if slp is None else slp}
s_cmp_lt_u32 s47, {SPIN_MAX}
s_cbranch_scc1 {d}
{d}x:
s_mov_b64 exec, -1"""
        if scalar: tails.append(body + f"\ns_branch {b}")
        else: P(body)
    header(P, KN)
    sa = Stamper(80, 10)
    P(f"s_load_dwordx4 s[4:7], s[0:1], 0\ns_load_dwordx4 s[72:75], s[0:1], {ARG['dbg']}")
    P("s_cmp_ge_u32 s2, 256\ns_cbranch_scc1 L_end")
    if STAMP: P("s_memrealtime s[100:101]")
    sa()
    P("v_lshrrev_b32 v2, 6, v0\nv_and_b32 v1, 63, v0\nv_readfirstlane_b32 s30, v2")
    P("""s_and_b32 s25, s2, 7
s_lshr_b32 s26, s2, 3
s_and_b32 s27, s26, 3
s_lshr_b32 s28, s26, 2
s_lshr_b32 s31, s25, 1
s_lshl_b32 s31, s31, 2
s_add_u32 s31, s31, s27
s_and_b32 s32, s25, 1
s_lshl_b32 s32, s32, 3
s_add_u32 s32, s32, s28
s_mul_i32 s29, s27, 3
s_and_b32 s35, s25, 6
s_add_u32 s29, s29, s35
s_add_u32 s29, s29, s32
s_mul_i32 s35, s29, 6554
s_lshr_b32 s35, s35, 16
s_mul_i32 s35, s35, 10
s_sub_u32 s29, s29, s35""")
    P("s_cmp_lt_u32 s30, 4\ns_cbranch_scc1 L_k1_comp")
    P("s_setprio 2\ns_sub_u32 s33, s30, 4")
    P("v_lshrrev_b32 v8, 3, v1\nv_and_b32 v9, 7, v1\nv_lshrrev_b32 v10, 4, v1")
    P("s_cmp_eq_u32 s32, 15\ns_cbranch_scc1 L_k1_spare_h")
    P("v_mul_u32_u24 v11, 1280, v8\nv_xor_b32 v12, v10, v9\nv_lshl_add_u32 v4, v12, 4, v11\nv_xor_b32 v5, 64, v4")
    P("v_mul_u32_u24 v11, 3840, v10\nv_bfe_u32 v12, v1, 2, 2\nv_xor_b32 v12, v12, v10\nv_lshl_add_u32 v11, v12, 6, v11\nv_and_b32 v12, 3, v1\nv_lshl_add_u32 v3, v12, 4, v11")
    P("s_lshl_b32 s36, s31, 2\ns_add_u32 s36, s36, s33\ns_mul_i32 s36, s36, 40960")
    P("s_mul_i32 s37, s33, 61440\ns_lshl_b32 s38, s32, 8\ns_add_u32 s37, s37, s38\ns_lshl_b32 s39, s33, 12")
    P("s_mov_b32 s34, s29")
    P(f"s_mov_b32 s14, {SZ}\ns_mov_b32 s15, 0x20000\ns_mov_b32 s18, {640*3840}\ns_mov_b32 s19, 0x20000\ns_waitcnt lgkmcnt(0)")
    P("s_mov_b32 s12, s4\ns_and_b32 s13, s5, 0xffff\ns_mov_b32 s16, s6\ns_and_b32 s17, s7, 0xffff")
    nvm = [0]; last = {}
    def dma_list(i):
        slot = (i % 4) * 32768
        Lx = []
        for j in range(4):
            pre = "s_lshl_b32 s40, s34, 7\ns_add_u32 s40, s40, s36\ns_mul_i32 s41, s34, 245760\ns_add_u32 s41, s41, s37\n" if j == 0 else ""
            Lx.append(pre + f"s_add_u32 m0, s39, {slot + j*1024}\ns_nop 0\nbuffer_load_dwordx4 v{4+(j&1)}, s[12:15], s40 offen lds")
            post = f"\ns_add_u32 s41, s41, {4*3840}" if j < 3 else "\ns_add_u32 s34, s34, 1\ns_cmp_eq_u32 s34, 10\ns_cselect_b32 s34, 0, s34"
            Lx.append(f"s_add_u32 m0, s39, {slot + 16384 + j*1024}\ns_add_u32 s40, s40, 10240\nbuffer_load_dwordx4 v3, s[16:19], s41 offen lds" + post)
        nvm[0] += 8; last[i] = nvm[0] - 1
        return Lx
    for l in dma_list(0): P(l)
    def hsetup():
        P(f"s_setprio 0\ns_load_dwordx2 s[10:11], s[0:1], {ARG['wo']}\ns_load_dwordx8 s[56:63], s[0:1], {ARG['w1']}\nv_lshlrev_b32 v14, 4, v1\nv_mov_b32 v2, 0\ns_waitcnt lgkmcnt(0)")
        srd(P, 20, 74, L.WS_USED); srd(P, 76, 72, 256)
        P(f"v_mov_b32 v13, {RL}\nds_write_b32 v13, v2\nds_write_b32 v13, v2 offset:4\nds_write_b32 v13, v2 offset:8\nds_write_b32 v13, v2 offset:12")
        P("s_waitcnt lgkmcnt(0)")
    hsetup()
    def decode(tag):
        P(f"""s_mov_b32 s64, s10
s_mov_b32 s65, s11
s_mov_b32 s50, 1280
s_mov_b32 s51, 5
s_mov_b32 s52, 0
s_mov_b32 s53, 0
s_mov_b32 s55, 0
s_mov_b32 s66, 819200
s_mov_b32 s70, 20
s_mov_b32 s67, s48
s_cmp_lt_u32 s48, 40
s_cbranch_scc1 L_dec4{tag}
s_mov_b32 s64, s56
s_mov_b32 s65, s57
s_mov_b32 s52, 5
s_mov_b32 s55, {L.CS1_OFF}
s_sub_u32 s67, s48, 40
s_cmp_lt_u32 s48, 80
s_cbranch_scc1 L_dec4{tag}
s_mov_b32 s64, s58
s_mov_b32 s65, s59
s_mov_b32 s52, 10
s_mov_b32 s55, 0
s_sub_u32 s67, s48, 80
s_cmp_lt_u32 s48, 120
s_cbranch_scc1 L_dec4{tag}
s_mov_b32 s64, s60
s_mov_b32 s65, s61
s_mov_b32 s50, 3456
s_mov_b32 s52, 15
s_mov_b32 s53, 1
s_mov_b32 s55, {L.CS3_OFF}
s_mov_b32 s66, 2211840
s_mov_b32 s51, 7
s_sub_u32 s67, s48, 120
s_mul_i32 s68, s67, 21846
s_lshr_b32 s68, s68, 16
s_mul_i32 s69, s68, 3
s_sub_u32 s69, s67, s69
s_cmp_lt_u32 s48, 201
s_cbranch_scc1 L_decj{tag}
s_mov_b32 s64, s62
s_mov_b32 s65, s63
s_mov_b32 s50, 1280
s_mov_b32 s52, 29
s_mov_b32 s53, 2
s_mov_b32 s55, 0
s_mov_b32 s70, 54
s_sub_u32 s67, s48, 201
s_lshr_b32 s68, s67, 3
s_and_b32 s69, s67, 7
s_branch L_decj{tag}
L_dec4{tag}:
s_lshr_b32 s68, s67, 2
s_and_b32 s69, s67, 3
L_decj{tag}:
s_mov_b32 s24, s64
s_and_b32 s25, s65, 0xffff
s_mov_b32 s26, s66
s_mov_b32 s27, 0x20000
s_mul_i32 s54, s69, s51
s_sub_u32 s70, s70, s54
s_min_u32 s51, s51, s70
s_lshl_b32 s49, s54, 2
s_add_u32 s49, s49, s33
s_lshl_b32 s49, s49, 3
s_mul_i32 s49, s49, s50
s_lshl_b32 s42, s68, 7
s_add_u32 s49, s49, s42
v_mul_lo_u32 v13, v8, s50
v_lshl_add_u32 v13, v9, 4, v13""")
        P(f"""s_lshl_b32 s42, s68, 2
s_add_u32 s42, s42, s33
s_mul_i32 s52, s52, 20480
s_add_u32 s52, s52, {L.WS_OFF}
s_cmp_eq_u32 s53, 1
s_cbranch_scc1 L_dw3{tag}
s_mul_i32 s43, s42, 52429
s_lshr_b32 s43, s43, 18
s_mul_i32 s44, s43, 5
s_sub_u32 s44, s42, s44
s_cmp_eq_u32 s44, 0
s_cselect_b32 s45, 4, -1
s_bitcmp1_b32 s43, 0
s_cselect_b32 s45, s45, 0
s_add_u32 s44, s44, s45
s_add_u32 s42, s42, s45
s_lshl_b32 s44, s44, 10
s_mul_i32 s46, s69, 2560
s_branch L_dj2{tag}
L_dw3{tag}:
s_lshr_b32 s45, s42, 1
s_mul_i32 s43, s45, 9363
s_lshr_b32 s43, s43, 16
s_cmp_eq_u32 s45, 48
s_cselect_b32 s43, 7, s43
s_mul_i32 s44, s43, 7
s_sub_u32 s44, s45, s44
s_cmp_eq_u32 s43, 7
s_addc_u32 s44, s44, 0
s_lshl_b32 s44, s44, 1
s_and_b32 s45, s42, 1
s_add_u32 s44, s44, s45
s_mul_i32 s44, s44, 20480
s_mul_i32 s46, s69, 8192
L_dj2{tag}:
s_mul_i32 s43, s43, {L.SLICE_B}
s_add_u32 s52, s52, s43
s_add_u32 s52, s52, s44
s_lshl_b32 s42, s42, 6
s_add_u32 s42, s42, s46
s_cmp_eq_u32 s55, 0
s_cselect_b32 s42, 0, s42
s_add_u32 s55, s55, s42""")
    def prep_dma(ldsbase_sreg, NTF=NTF):
        P(f"s_lshl_b32 s42, s33, 10\ns_add_u32 s42, s42, {ldsbase_sreg}\ns_lshl_b32 s43, s50, 5\ns_mov_b32 s44, s49")
        for k in range(7):
            P(f"s_add_u32 m0, s42, {k*4096}\ns_nop 0\nbuffer_load_dwordx4 v13, s[24:27], s44 offen{NTF} lds")
            if k in (4, 5): P(f"s_cmp_eq_u32 s51, {k+1}\ns_cselect_b32 s43, 0, s43")
            if k < 6: P("s_add_u32 s44, s44, s43")
        nvm[0] += 7
    def prep_addr(tag, ldsbase_sreg):
        P(f"""v_bfe_u32 v11, v1, 2, 2
v_lshl_add_u32 v11, v10, 3, v11
v_lshlrev_b32 v11, 7, v11
v_and_b32 v12, 3, v1
v_lshl_add_u32 v11, v12, 4, v11
s_lshr_b32 s42, s33, 1
s_lshl_b32 s42, s42, 6
s_and_b32 s43, s33, 1
s_lshl_b32 s43, s43, 3
s_add_u32 s42, s42, s43
s_add_u32 s42, s42, {ldsbase_sreg}
v_add_u32 v11, s42, v11
v_lshrrev_b32 v6, 1, v10
v_lshlrev_b32 v6, 9, v6
v_and_b32 v7, 1, v10
v_lshlrev_b32 v7, 9, v7
v_sub_u32 v6, v6, v7
v_add_u32 v6, v6, v11
v_lshlrev_b32 v7, 12, v10
v_add_u32 v7, v7, v11
v_add_u32 v7, 2048, v7
s_cmp_eq_u32 s53, 1
s_mov_b32 s46, 5120
s_cmov_b32 s46, 1024""")
        for k in range(7):
            P(f"""s_add_u32 s42, s54, {k}
s_mul_i32 s43, s42, 9363
s_lshr_b32 s43, s43, 16
s_cmp_eq_u32 s42, 48
s_cselect_b32 s43, 7, s43
s_mul_i32 s44, s43, 7
s_sub_u32 s44, s42, s44
s_cmp_eq_u32 s43, 7
s_addc_u32 s44, s44, 0
s_lshl_b32 s44, s44, 3
s_add_u32 s44, s44, s43
s_cmp_eq_u32 s53, 2
s_cselect_b32 s42, s44, s42
s_mul_i32 s42, s42, s46
s_add_u32 s{92+k}, s42, s52""")
    def prep_reads(tag):
        P(f"s_cmp_lt_u32 s48, 40\ns_cbranch_scc1 L_prw{tag}")
        for k in range(7):
            P(f"ds_read_b64_tr_b16 v[{64+4*k}:{65+4*k}], v11 offset:{k*4096}\nds_read_b64_tr_b16 v[{66+4*k}:{67+4*k}], v11 offset:{k*4096+512}")
        P(f"L_pre{tag}:")
        t = f"L_prw{tag}:\n"
        for k in range(4): t += f"ds_read_b64_tr_b16 v[{64+4*k}:{65+4*k}], v6 offset:{k*5120}\nds_read_b64_tr_b16 v[{66+4*k}:{67+4*k}], v6 offset:{k*5120+1024}\n"
        for k in (4, 5, 6): t += f"ds_read_b64_tr_b16 v[{64+4*k}:{65+4*k}], v7 offset:0\nds_read_b64_tr_b16 v[{66+4*k}:{67+4*k}], v7 offset:2560\n"
        tails.append(t + f"s_branch L_pre{tag}")
    def prep_stores(tag):
        P("s_waitcnt lgkmcnt(0)")
        for k in range(7):
            if k >= 5: P(f"s_cmp_eq_u32 s51, {k}\ns_cbranch_scc1 L_pp5{tag}")
            P(f"buffer_store_dwordx4 v[{64+4*k}:{67+4*k}], v14, s[20:23], s{92+k} offen{PSF}")
        P(f"L_pp5{tag}:")
    def prep_cs(tag):
        P(f"s_cmp_eq_u32 s55, 0\ns_cbranch_scc1 L_ppe{tag}")
        for r in range(4): P(f"v_mov_b32 v{56+r}, {ONES}")
        for k in range(7):
            if k >= 5: P(f"s_cmp_eq_u32 s51, {k}\ns_cbranch_scc1 L_pc5{tag}")
            P(f"v_mfma_f32_16x16x32_bf16 v[92:95], v[56:59], v[{64+4*k}:{67+4*k}], {'0' if k == 0 else 'v[92:95]'}")
        P(f"L_pc5{tag}:")
        P("v_lshlrev_b32 v62, 2, v1\ns_mov_b64 exec, 0xffff\nbuffer_store_dword v92, v62, s[20:23], s55 offen sc1\ns_mov_b64 exec, -1")
        P(f"L_ppe{tag}:")
    P("s_mul_i32 s48, s31, 15\ns_add_u32 s48, s48, s32\ns_add_u32 s48, s48, 41")
    decode("m")
    if not CST: prep_addr("m", PB)
    P("v_add_u32 v15, s39, v14")
    XS = 96
    P(f"""v_and_b32 v48, 31, v1
v_lshrrev_b32 v49, 5, v1
v_mul_u32_u24 v50, 2560, v49
v_lshl_add_u32 v52, v48, 2, v50
v_lshlrev_b32 v51, 1, v52""")
    pid = None; sid = None
    def pretouch():
        P(f"""s_and_b32 s42, s2, 7
s_lshl_b32 s43, s42, 11
s_add_u32 s43, s43, {L.FR_OFF}
s_lshl_b32 s44, s42, 10
s_add_u32 s44, s44, {L.FO_OFF}
s_cmp_eq_u32 s33, 0
s_cselect_b32 s43, s43, s44
s_cselect_b32 s45, 5, 4
s_lshl_b32 s44, s42, 5
s_lshr_b32 s42, s2, 3
s_add_u32 s44, s44, s42
s_lshl_b32 s44, s44, 10
s_add_u32 s44, s44, {L.ST_OFF}
s_cmp_ge_u32 s33, 2
s_cselect_b32 s43, s44, s43
v_lshlrev_b32 v124, s45, v1
buffer_load_dword v120, v124, s[20:23], s43 offen sc1""")
        nvm[0] += 1
    def fp_write(idx_sreg, n=1):
        e = lab("fp")
        P(f"s_cmp_lg_u32 s30, 4\ns_cbranch_scc1 {e}\ns_lshl_b32 s42, {idx_sreg}, 7\ns_add_u32 s42, s42, {L.FP_OFF}\nv_mov_b32 v60, 1\nv_lshlrev_b32 v62, 11, v1\ns_mov_b64 exec, {n}\nbuffer_store_dword v60, v62, s[20:23], s42 offen sc1\ns_mov_b64 exec, -1\n{e}:")
    def fx_write():
        e = lab("fx")
        P(f"""s_cmp_lg_u32 s30, 5
s_cbranch_scc1 {e}
s_getreg_b32 s42, hwreg(HW_REG_XCC_ID)
s_and_b32 s42, s42, 15
s_add_u32 s42, s42, 1
v_mov_b32 v60, s42
s_and_b32 s42, s2, 7
s_lshl_b32 s42, s42, 5
s_lshr_b32 s43, s2, 3
s_add_u32 s42, s42, s43
s_lshl_b32 s42, s42, 2
s_add_u32 s42, s42, {L.FX_OFF}
s_mov_b64 exec, 1
buffer_store_dword v60, v2, s[20:23], s42 offen sc1
s_mov_b64 exec, -1
{e}:""")
    for i in range(10):
        P(f"s_waitcnt vmcnt({min(nvm[0] - 1 - last[i], nvm[0] - 1 - pid) if i == PP else nvm[0] - 1 - last[i]})")
        if i == ZI + 2: spoll("0", 0, 4, 1, 64, 64, "s[76:79]", part=2)
        if i == SI + 1: spoll("s56", 0, "s70", 5, 1, 64, part=2)
        P("s_barrier")
        if i == ZI + 2:
            fx_write()
            e = lab("fs")
            P(f"s_cmp_lg_u32 s30, 6\ns_cbranch_scc1 {e}\ns_lshl_b32 s42, s31, 4\ns_add_u32 s42, s42, s32\ns_lshl_b32 s42, s42, 7\ns_add_u32 s42, s42, {L.FQ_OFF}\nv_mov_b32 v60, 1\ns_mov_b64 exec, 1\nbuffer_store_dword v60, v2, s[20:23], s42 offen sc1\ns_mov_b64 exec, -1\n{e}:")
        if i == 0:
            for j in range(4): P(f"ds_read_b128 v[{XS+4*j}:{XS+4*j+3}], v15 offset:{j*1024}")
            for l in dma_list(1): P(l)
            for j in range(4):
                P(f"s_waitcnt lgkmcnt({3 - j})")
                for r in range(4):
                    P(f"v_lshlrev_b32 v{112+2*r}, 16, v{XS+4*j+r}\nv_and_b32 v{113+2*r}, 0xffff0000, v{XS+4*j+r}")
                P(f"v_add_f32 v{16+2*j}, v112, v113\nv_mul_f32 v{17+2*j}, v112, v112\nv_fmac_f32 v{17+2*j}, v113, v113")
                for r in range(2, 8): P(f"v_add_f32 v{16+2*j}, v{16+2*j}, v{112+r}\nv_fmac_f32 v{17+2*j}, v{112+r}, v{112+r}")
            for ctl in ("quad_perm:[1,0,3,2]", "quad_perm:[2,3,0,1]", "row_half_mirror"):
                for r in range(8): P(f"v_add_f32_dpp v{16+r}, v{16+r}, v{16+r} {ctl} row_mask:0xf bank_mask:0xf")
            for j in range(1, 4):
                P(f"v_cmp_eq_u32 vcc, {j}, v9\nv_cndmask_b32 v16, v16, v{16+2*j}, vcc\nv_cndmask_b32 v17, v17, v{17+2*j}, vcc")
            P(f"""v_lshl_add_u32 v18, v9, 3, v8
v_lshlrev_b32 v18, 3, v18
s_mul_i32 s42, s31, 10
s_add_u32 s42, s42, s29
s_lshl_b32 s42, s42, 2
s_add_u32 s42, s42, s33
s_lshl_b32 s42, s42, 8
s_add_u32 s42, s42, {L.SR_OFF}
s_cmp_lt_u32 s32, 10
s_cselect_b32 s43, 0, 0x40000000
v_add_u32 v18, s43, v18""")
        if i + 2 < 10:
            for l in dma_list(i + 2): P(l)
        if i == SI + 1:
            P(f"""s_mul_i32 s42, s31, 10240
s_lshl_b32 s43, s33, 8
s_add_u32 s42, s42, s43
s_add_u32 s42, s42, {L.SR_OFF}
s_add_u32 s44, s42, 4096
s_mul_i32 s43, s32, 5120
s_lshl_b32 s46, s33, 7
s_add_u32 s43, s43, s46
s_add_u32 s43, s43, {L.SC_OFF}""")
            for k in range(5): P(f"buffer_load_dwordx2 v[{16+2*k}:{17+2*k}], v51, s[20:23], s{42 if k < 4 else 44} offen offset:{(k%4)*1024} sc1")
            for k in range(5): P(f"buffer_load_dword v{26+k}, v52, s[20:23], s43 offen offset:{k*512} sc1")
            nvm[0] += 10; slid = nvm[0] - 1
        if i == 0:
            P("s_mov_b32 exec_lo, 0x0f0f0f0f\ns_mov_b32 exec_hi, 0x0f0f0f0f\nbuffer_store_dwordx2 v[16:17], v18, s[20:23], s42 offen sc1\ns_mov_b64 exec, -1"); nvm[0] += 1
        SPF = opt.get("SPF", 0)
        if SPF and 1 <= i <= 7:
            k = i - 1
            e = lab("pf")
            if k >= 5: P(f"s_cmp_le_u32 s51, {k}\ns_cbranch_scc1 {e}")
            P(f"s_mul_i32 s42, s50, {32*k}\ns_add_u32 s42, s42, s49")
            for r in range(8):
                P(f"s_buffer_load_dword s61, s[24:27], s42")
                if SPF == 2: P(f"s_buffer_load_dword s62, s[24:27], s42 offset:64")
                if r < 7: P("s_add_u32 s42, s42, s50")
            P(f"{e}:")
        if i == ZI + 1: spoll("0", 0, 4, 1, 64, 64, "s[76:79]", part=1)
        if i == SI:
            P(f"""s_and_b32 s56, s33, 1
s_mul_i32 s56, s56, 5
s_lshl_b32 s57, s31, 4
s_add_u32 s57, s57, s56
s_lshl_b32 s56, s56, 4
s_add_u32 s56, s56, s32
s_cmp_lt_u32 s33, 2
s_cselect_b32 s56, s57, s56
s_cselect_b32 s46, 128, 2048
s_lshl_b32 s56, s56, 7
s_add_u32 s56, s56, {L.FQ_OFF}
s_add_u32 s57, s56, s70
s_add_u32 s58, s57, s70
s_add_u32 s59, s58, s70
s_add_u32 s60, s59, s70""".replace("s_cselect_b32 s46, 128, 2048", "s_mov_b32 s70, 2048\ns_cmov_b32 s70, 128"))
            spoll("s56", 0, "s70", 5, 1, 64, part=1)
        if i == PI: prep_dma(PB, "" if opt.get("SPF", 0) else NTF); pid = nvm[0] - 1
        if i == PP and not CST: prep_reads("m"); P("s_waitcnt lgkmcnt(0)"); prep_cs("m")
        if PP <= i <= SI and not CST:
            nst = SI - PP + 1
            for k in range((i - PP) * 7 // nst, (i - PP + 1) * 7 // nst):
                kk_ = 6 - k
                e = lab("ps")
                if kk_ >= 5: P(f"s_cmp_le_u32 s51, {kk_}\ns_cbranch_scc1 {e}")
                P(f"buffer_store_dwordx4 v[{64+4*kk_}:{67+4*kk_}], v14, s[20:23], s{92+kk_} offen sc1\n{e}:")
                if kk_ < 5: nvm[0] += 1
        if i == SI + 2:
            P(f"s_waitcnt vmcnt({nvm[0] - 1 - slid})")
            for k in range(1, 5): P(f"v_add_f32 v16, v16, v{16+2*k}\nv_add_f32 v17, v17, v{17+2*k}\nv_add_f32 v26, v26, v{26+k}")
            P("v_mov_b32 v18, v16\nv_mov_b32 v19, v17\nv_mov_b32 v27, v26\nv_permlane32_swap_b32 v16, v18\nv_permlane32_swap_b32 v17, v19\nv_permlane32_swap_b32 v26, v27\nv_add_f32 v16, v16, v18\nv_add_f32 v17, v17, v19\nv_add_f32 v26, v26, v27")
            P(f"v_mul_f32 v16, {f2u(1/640)}, v16\nv_mul_f32 v17, {f2u(1/640)}, v17\nv_fma_f32 v17, -v16, v16, v17\nv_max_f32 v17, 0, v17\nv_add_f32 v17, {f2u(EPS)}, v17\nv_rsq_f32 v17, v17")
            P(f"s_cmp_lt_u32 s32, 5\ns_cselect_b32 s41, {f2u(20**-0.5*LOG2E)}, 1.0\ns_lshl_b32 s42, s33, 7\ns_add_u32 s42, s42, {STAT}\nv_and_b32 v18, 31, v1\nv_lshl_add_u32 v18, v18, 2, s42\nv_mul_f32 v17, s41, v17\nv_mul_f32 v16, v16, v17")
            P("ds_write_b32 v18, v17\nds_write_b32 v18, v16 offset:512\nds_write_b32 v18, v26 offset:1024\ns_waitcnt lgkmcnt(0)")
    P("s_barrier")
    def wo_block(tag):
        P(f"v_mov_b32 v12, {RL}\nv_mov_b32 v60, 1\ns_lshr_b32 s44, s2, 5\ns_mul_i32 s43, s44, 5\ns_and_b32 s43, s43, 0xfc\ns_lshl_b32 s43, s43, 7\ns_add_u32 s43, s43, {L.FP_OFF}")
        spoll("s43", 0, 128, 8, 1, 56)
        P(f"s_mul_i32 s44, s44, {L.SLICE_B}\ns_mul_i32 s42, s33, {N1*1024}\ns_add_u32 s44, s44, s42\ns_add_u32 s44, s44, {L.WS_OFF}")
        for i in range(N1):
            if i % 4 == 0: P(f"s_add_u32 m0, s42, {i*1024}\ns_add_u32 s46, s44, {i*1024}")
            if i >= TD: P(f"s_waitcnt vmcnt({TD-1})")
            P(f"buffer_load_dwordx4 v14, s[20:23], s46 offen offset:{(i%4)*1024} sc1 lds")
    if PP < 10:
        assert PP <= SI
        if not CST: fp_write("s48")
        pretouch()
    else:
        sa.i = 1; sa()
        pretouch()
        wo_block("m")
        P(f"s_waitcnt vmcnt({min(N1, TD)})\ns_mov_b64 exec, 1\nds_add_u32 v12, v60 offset:8\ns_mov_b64 exec, -1\nds_read_b32 v61, v12 offset:8\ns_waitcnt lgkmcnt(0)")
        lds_check(12, 61, 8, 4, "s_sleep 1\n")
        prep_reads("m")
        P("ds_read_b32 v61, v12 offset:4\ns_waitcnt lgkmcnt(0)")
        lds_check(12, 61, 4, 4, "s_sleep 2\n")
        sa()
        prep_stores("m"); prep_cs("m")
        P("s_mov_b32 s24, 2\ns_lshl_b32 s71, s48, 7")
        sa()
        P("s_branch L_k2")
    P("L_k1_wo:")
    sa.i = 1; sa()
    wo_block("s")
    sa(); sa()
    P("s_mov_b32 s24, 0\ns_branch L_k2")
    P("L_k1_spare_h:")
    hsetup()
    P("s_mov_b32 s48, s31\ns_mov_b32 s71, 0\nL_sp1:")
    decode("a"); prep_dma("s71")
    P("s_add_u32 s48, s48, 16\ns_add_u32 s71, s71, 28672\ns_cmp_lt_u32 s48, 41\ns_cbranch_scc1 L_sp1")
    P("s_waitcnt vmcnt(0)\ns_barrier\ns_mov_b32 s48, s31\ns_mov_b32 s71, 0\nL_sp2:")
    decode("b")
    prep_addr("b", "s71"); prep_reads("b"); prep_stores("b"); prep_cs("b")
    P("s_nop 4\ns_add_u32 s48, s48, 16\ns_add_u32 s71, s71, 28672\ns_cmp_lt_u32 s48, 41\ns_cbranch_scc1 L_sp2")
    spoll("0", 0, 4, 1, 64, 64, "s[76:79]")
    P("s_waitcnt vmcnt(0)")
    P("s_barrier\ns_mov_b32 s48, s31")
    P("s_cmp_lt_u32 s31, 9\ns_cselect_b32 s70, 7, 3\ns_mov_b32 s71, 0")
    fp_write("s48", "s[70:71]"); fx_write(); pretouch()
    P("s_branch L_k1_wo")
    P("L_k1_comp:\ns_mov_b32 s71, 0")
    sa.i = 1
    if opt.get("CPF", 1):
        NSEG = opt.get("NSEG", 8)
        P(f"""s_getpc_b64 s[48:49]
L_pc0:
s_sub_u32 s48, s48, L_pc0-{KN}
s_subb_u32 s49, s49, 0
s_lshl_b32 s50, s26, 2
s_add_u32 s50, s50, s30
s_cmp_ge_u32 s50, {NSEG}
s_cbranch_scc1 L_nocpf
s_lshl_b32 s50, s50, 13
v_lshl_add_u32 v60, v1, 7, s50
v_min_u32 v60, L_code_end-{KN}-4, v60
v_mov_b32 v61, s49
v_add_co_u32 v60, vcc, s48, v60
v_addc_co_u32 v61, vcc, 0, v61, vcc
global_load_dword v62, v[60:61], off
L_nocpf:""")
    P("s_cmp_eq_u32 s32, 15\ns_cbranch_scc1 L_k1_spare_c")
    P("s_waitcnt lgkmcnt(0)")
    srd(P, 20, 74, L.WS_USED)
    if opt.get("TLBW", 0):
        st_ = opt.get("TLBS", 16)
        P(f"""s_sub_u32 s50, s26, 2
s_lshl_b32 s50, s50, 2
s_add_u32 s50, s50, s30
s_cmp_ge_u32 s50, {(L.WS_USED >> (st_ + 6)) + 2}
s_cbranch_scc1 L_notlb
v_lshlrev_b32 v60, {st_}, v1
s_cmp_eq_u32 s50, 0
s_cbranch_scc1 L_tlbo
s_sub_u32 s50, s50, 1
s_lshl_b32 s50, s50, {st_ + 6}
v_add_u32 v60, s50, v60
buffer_load_dword v63, v60, s[20:23], 0 offen
s_branch L_notlb
L_tlbo:
s_load_dwordx2 s[52:53], s[0:1], {ARG['out']}
s_waitcnt lgkmcnt(0)
s_and_b32 s53, s53, 0xffff
s_mov_b32 s54, {SZ}
s_mov_b32 s55, 0x20000
v_lshlrev_b32 v60, 16, v1
buffer_load_dword v63, v60, s[52:55], 0 offen
L_notlb:""")
    if CST:
        P("s_mov_b32 s33, s30\nv_lshrrev_b32 v8, 3, v1\nv_and_b32 v9, 7, v1\nv_lshrrev_b32 v10, 4, v1\ns_mul_i32 s48, s31, 15\ns_add_u32 s48, s48, s32\ns_add_u32 s48, s48, 41")
        decode("c"); prep_addr("c", PB)
        P("v_mov_b32 v14, v11\nv_lshlrev_b32 v15, 4, v1\ns_mov_b32 s38, s51\ns_mov_b32 s39, s55\ns_lshl_b32 s71, s48, 7")
        for r in range(4): P(f"v_mov_b32 v{56+r}, {ONES}")
    P("s_lshr_b32 s34, s30, 1\ns_and_b32 s35, s30, 1")
    P("""v_and_b32 v36, 31, v1
v_lshrrev_b32 v39, 5, v1
s_lshl_b32 s41, s34, 6
v_add_u32 v10, s41, v36
v_bfe_u32 v11, v10, 1, 3
v_xor_b32 v11, v11, v39
v_lshlrev_b32 v11, 4, v11
v_lshl_add_u32 v20, v10, 7, v11
s_lshl_b32 s41, s35, 12
v_add_u32 v20, s41, v20""")
    for kk in range(1, 4): P(f"v_xor_b32 v{20+kk}, {kk*32}, v20")
    for kk in range(4): P(f"v_add_u32 v{24+kk}, 0x10000, v{20+kk}")
    for kk in range(8): P(f"v_xor_b32 v{40+kk}, 0x1000, v{20+kk}")
    P("""v_bfe_u32 v10, v1, 2, 2
v_lshl_add_u32 v11, v39, 3, v10
v_lshlrev_b32 v11, 8, v11
v_bfe_u32 v12, v1, 4, 1
v_lshl_add_u32 v11, v12, 5, v11
v_and_b32 v12, 3, v1
v_lshl_add_u32 v11, v12, 3, v11
s_lshl_b32 s41, s35, 1
s_add_u32 s41, s41, s34
v_xor_b32 v12, s41, v10
v_lshl_add_u32 v28, v12, 6, v11
v_xor_b32 v29, 64, v28
v_add_u32 v30, 0x10000, v28
v_add_u32 v31, 0x10000, v29""")
    ACC, FX, FW, SEL, CSA, AD, RSA = 64, 128, 144, 4, 32, 224, 16
    P(f"v_and_b32 v10, 15, v1\nv_bfe_u32 v11, v1, 4, 1\nv_cmp_eq_u32 vcc, v10, v11\nv_mov_b32 v10, {ONES}")
    for i in range(4): P(f"v_cndmask_b32 v{SEL+i}, 0, v10, vcc")
    P("""s_lshl_b32 s43, s31, 2
s_lshl_b32 s44, s34, 1
s_add_u32 s43, s43, s44
s_add_u32 s43, s43, s35
s_lshr_b32 s44, s43, 3
s_mul_i32 s44, s44, 327680
s_and_b32 s45, s43, 7
s_xor_b32 s46, s45, 1
s_mul_i32 s45, s45, 1280
s_mul_i32 s46, s46, 1280
s_add_u32 s45, s45, s44
s_add_u32 s46, s46, s44""")
    P("s_cmp_ge_u32 s32, 10\ns_cbranch_scc1 L_k1_v")
    for variant in ("qk", "v"):
        if variant == "v":
            P("L_k1_v:")
            sa.i = 1
            P(f"s_sub_u32 s41, s32, 10\ns_lshl_b32 s41, s41, 7\ns_lshl_b32 s42, s35, 6\ns_add_u32 s41, s41, s42\ns_lshl_b32 s42, s34, 5\ns_add_u32 s41, s41, s42\ns_add_u32 s45, s45, {L.V_OFF}\ns_add_u32 s46, s46, {L.V_OFF}")
            for ct in range(2):
                P(f"v_add_u32 v10, s41, v36\nv_xor_b32 v10, {32*ct}, v10\nv_mul_u32_u24 v11, 52429, v10\nv_lshrrev_b32 v11, 20, v11\nv_mul_u32_u24 v11, {10240-320}, v11\nv_lshl_add_u32 v11, v10, 4, v11\nv_mul_u32_u24 v12, 320, v39\nv_add_u32 v{AD+ct}, v11, v12")
        else:
            P(f"s_cmp_ge_u32 s32, 5\ns_cselect_b32 s42, 5, 0\ns_cselect_b32 s47, {L.K_OFF}, {L.Q_OFF}\ns_sub_u32 s41, s32, s42\ns_lshl_b32 s41, s41, 5\ns_lshl_b32 s42, s35, 4\ns_add_u32 s41, s41, s42\ns_lshl_b32 s42, s34, 3\ns_add_u32 s41, s41, s42\ns_add_u32 s45, s45, s47\ns_add_u32 s46, s46, s47")
            for ct in range(2):
                for b in range(4):
                    P(f"v_add_u32 v10, s41, v39\nv_xor_b32 v10, {8*ct}, v10\nv_add_u32 v10, {2*b}, v10\nv_mul_u32_u24 v11, 52429, v10\nv_lshrrev_b32 v11, 18, v11\nv_mul_u32_u24 v11, {10240-1280}, v11\nv_lshl_add_u32 v11, v10, 8, v11\nv_lshl_add_u32 v{AD+ct*4+b}, v36, 3, v11")
        P(f"""s_lshl_b32 s41, s35, 1
s_add_u32 s41, s41, s34
s_lshl_b32 s41, s41, 7
s_mul_i32 s40, s32, 10
s_add_u32 s40, s40, s29
s_lshl_b32 s40, s40, 9
s_add_u32 s40, s40, s41
s_add_u32 s40, s40, {L.SC_OFF}
s_cmp_lt_u32 s31, 10
s_cselect_b32 s43, 0, 0x40000000
s_add_u32 s41, s41, {STAT+1024}
v_lshl_add_u32 v37, v36, 2, s43
s_lshl_b32 s42, s34, 1
s_add_u32 s42, s42, s35
s_lshl_b32 s42, s42, 7
s_add_u32 s42, s42, {STAT}""")
        def rlist(n):
            st, kk = divmod(n, 4)
            b = n & 1
            slot = (st % 4) * 32768
            hi = slot >= 65536
            off = slot - (65536 if hi else 0)
            def xr(rt): return f"ds_read_b128 v[{FX+b*8+rt*4}:{FX+b*8+rt*4+3}], v{(40 if rt else 20)+(4 if hi else 0)+kk} offset:{off}"
            def wr(ct, h):
                ar = 28 + ct + (2 if hi else 0)
                return f"ds_read_b64_tr_b16 v[{FW+b*8+ct*4+2*h}:{FW+b*8+ct*4+2*h+1}], v{ar} offset:{off+16384+kk*4096+1024*h}"
            return [xr(0), wr(0, 0), wr(0, 1), wr(1, 0), wr(1, 1), xr(1)]
        P("s_barrier"); sa()
        for l in rlist(0): P(l)
        for n in range(40):
            b = n & 1
            nx = rlist(n + 1) if n + 1 < 40 else []
            def mf(t):
                rt, ct = t >> 1, t & 1
                x = v(FX + b*8 + rt*4, 4); w = v(FW + b*8 + ct*4, 4); d = v(ACC + t*16, 16)
                c = "0" if n == 0 else d
                if variant == "qk": P(f"v_mfma_f32_32x32x16_bf16 {d}, {w}, {x}, {c}")
                else: P(f"v_mfma_f32_32x32x16_bf16 {d}, {x}, {w}, {c}")
            P("s_waitcnt lgkmcnt(3)")
            mf(0)
            if nx and (n + 1) % 4 == 0:
                if (n + 1) // 4 in (ZI + 2, WB): P("s_waitcnt vmcnt(0)")
                P("s_barrier")
                if (n + 1) // 4 == WB:
                    assert 4*PP + 1 + 6*PSP + 1 < n
                    e = lab("wb"); P(f"s_cmp_lg_u32 s30, 0\ns_cbranch_scc1 {e}\nbuffer_wbl2 sc1\n{e}:")
                if FOCUS == 21 and STAMP: P(f"s_memtime s[{52+2*((n+1)//4-1)}:{53+2*((n+1)//4-1)}]")
            k = 0
            if CST:
                pk_, pr_ = divmod(n - (4*PP + 1), PSP)
                if 0 <= pk_ < 7 and pr_ == 0:
                    P(f"ds_read_b64_tr_b16 v[{160+4*pk_}:{161+4*pk_}], v14 offset:{pk_*4096}\nds_read_b64_tr_b16 v[{162+4*pk_}:{163+4*pk_}], v14 offset:{pk_*4096+512}"); k += 2
                if 0 <= pk_ < 7 and pr_ == 1:
                    e = lab("ps")
                    if pk_ >= 5: P(f"s_cmp_le_u32 s38, {pk_}\ns_cbranch_scc1 {e}")
                    P(f"buffer_store_dwordx4 v[{160+4*pk_}:{163+4*pk_}], v15, s[20:23], s{92+pk_} offen{'' if WB else ' sc1'}")
                    P(f"v_mfma_f32_16x16x32_bf16 v[16:19], v[56:59], v[{160+4*pk_}:{163+4*pk_}], {'0' if pk_ == 0 else 'v[16:19]'}\n{e}:")
            for l in nx[:2]: P(l); k += 1
            P(f"s_waitcnt lgkmcnt({1 + k})")
            mf(1)
            for l in nx[2:4]: P(l); k += 1
            P(f"s_waitcnt lgkmcnt({k})")
            mf(2)
            for l in nx[4:6]: P(l)
            mf(3)
            if n < 4: P(f"v_mfma_f32_16x16x32_bf16 {v(CSA,4)}, {v(SEL,4)}, {v(FW+b*8,4)}, {'0' if n == 0 else v(CSA,4)}")
            if n == 4:
                P(f"s_mov_b64 exec, 0xffff\nbuffer_store_dword v{CSA}, v37, s[20:23], s40 offen sc1\nbuffer_store_dword v{CSA+1}, v37, s[20:23], s40 offen offset:64 sc1\ns_mov_b64 exec, -1")
        sa()
        if CST:
            assert 4*PP + 1 + 6*PSP + 1 <= 39
            e = lab("pc")
            P(f"s_cmp_eq_u32 s39, 0\ns_cbranch_scc1 {e}\nv_lshlrev_b32 v62, 2, v1\ns_mov_b64 exec, 0xffff\nbuffer_store_dword v16, v62, s[20:23], s39 offen sc1\ns_mov_b64 exec, -1\n{e}:")
        P("s_barrier")
        if variant == "qk":
            P(f"""v_lshl_add_u32 v37, v36, 2, s42
v_xor_b32 v38, 128, v37
ds_read_b32 v40, v37
ds_read_b32 v42, v37 offset:512
ds_read_b32 v44, v38
ds_read_b32 v46, v38 offset:512
v_lshl_add_u32 v37, v39, 4, s41
v_xor_b32 v38, 128, v37""")
            for ct in range(2):
                for b in range(4):
                    P(f"ds_read_b128 v[{128+ct*16+b*4}:{128+ct*16+b*4+3}], v{37+ct} offset:{b*32}")
            P("s_waitcnt lgkmcnt(8)")
            for r in (40, 42, 44, 46): P(f"v_mov_b32 v{r+1}, v{r}")
            P("s_waitcnt lgkmcnt(0)")
            for t in range(4):
                rt, ct = t >> 1, t & 1
                A = v(40 + rt*4, 2); B = v(42 + rt*4, 2)
                for p in range(8):
                    r = ACC + t*16 + 2*p
                    P(f"v_pk_mul_f32 v[{48+2*(p&3)}:{49+2*(p&3)}], v[{128+ct*16+2*p}:{128+ct*16+2*p+1}], {B}")
                    P(f"v_pk_fma_f32 v[{r}:{r+1}], v[{r}:{r+1}], {A}, v[{48+2*(p&3)}:{49+2*(p&3)}] neg_lo:[0,0,1] neg_hi:[0,0,1]")
                for p in range(8):
                    r = ACC + t*16 + 2*p
                    P(f"v_cvt_pk_bf16_f32 v{160+t*8+p}, v{r}, v{r+1}")
                for b in range(4):
                    P(f"buffer_store_dwordx2 v[{160+t*8+2*b}:{160+t*8+2*b+1}], v{AD+ct*4+b}, s[20:23], s{45+rt} offen{QSF}")
        else:
            P(f"""v_lshl_add_u32 v37, v36, 2, s41
v_xor_b32 v38, 128, v37
ds_read_b32 v40, v37
ds_read_b32 v42, v38
v_lshl_add_u32 v37, v39, 4, s42
v_xor_b32 v38, 128, v37""")
            for rt in range(2):
                for b in range(4):
                    P(f"ds_read_b128 v[{128+rt*32+b*4}:{128+rt*32+b*4+3}], v{37+rt} offset:{b*32}")
                    P(f"ds_read_b128 v[{144+rt*32+b*4}:{144+rt*32+b*4+3}], v{37+rt} offset:{512+b*32}")
            P("s_waitcnt lgkmcnt(0)\nv_mov_b32 v41, v40\nv_mov_b32 v43, v42")
            for t in range(4):
                rt, ct = t >> 1, t & 1
                C = v(40 + ct*2, 2)
                for p in range(8):
                    r = ACC + t*16 + 2*p
                    P(f"v_pk_mul_f32 v[{48+2*(p&3)}:{49+2*(p&3)}], v[{144+rt*32+2*p}:{144+rt*32+2*p+1}], {C}")
                    P(f"v_pk_fma_f32 v[{r}:{r+1}], v[{r}:{r+1}], v[{128+rt*32+2*p}:{128+rt*32+2*p+1}], v[{48+2*(p&3)}:{49+2*(p&3)}] neg_lo:[0,0,1] neg_hi:[0,0,1]")
                for p in range(8):
                    r = ACC + t*16 + 2*p
                    P(f"v_cvt_pk_bf16_f32 v{192+t*8+p}, v{r}, v{r+1}")
                for u in range(2):
                    P(f"buffer_store_dwordx4 v[{192+t*8+4*u}:{192+t*8+4*u+3}], v{AD+ct}, s[20:23], s{45+rt} offen offset:{640*u}{QSF}")
        sa()
        if FOCUS == 21 and STAMP:
            stamp_dump([80, 82] + [52 + 2*i for i in range(9)] + [84, 86]); P(f"s_mov_b64 exec, -1\ns_mov_b32 s22, {L.WS_USED}")
        P(f"v_mov_b32 v10, {RL}\nv_mov_b32 v11, 1\ns_mov_b64 exec, 1\nds_add_u32 v10, v11 offset:12\ns_mov_b64 exec, -1")
        P("s_mov_b32 s24, 1\ns_branch L_k2")
    P("L_k1_spare_c:\ns_waitcnt lgkmcnt(0)")
    srd(P, 20, 74, L.WS_USED); srd(P, 76, 72, 256)
    P(f"v_lshlrev_b32 v3, 4, v1\nv_mov_b32 v4, 0\nv_mov_b32 v5, 0\nv_mov_b32 v6, 0\nv_mov_b32 v7, 0\ns_lshl_b32 s43, s31, 2\ns_add_u32 s43, s43, s30\ns_lshl_b32 s44, s43, 12\ns_lshl_b32 s43, s43, 11\ns_add_u32 s43, s43, {L.FLAG_OFF}\ns_add_u32 s44, s44, {L.ST_OFF}")
    P("buffer_store_dwordx4 v[4:7], v3, s[20:23], s43 offen sc1\nbuffer_store_dwordx4 v[4:7], v3, s[20:23], s43 offen offset:1024 sc1")
    for k in range(4): P(f"buffer_store_dwordx4 v[4:7], v3, s[20:23], s44 offen offset:{k*1024} sc1")
    P("v_mov_b32 v8, 1\ns_waitcnt vmcnt(0)\ns_mov_b64 exec, 1\nbuffer_atomic_add v8, v4, s[76:79], 0 offen sc1\ns_mov_b64 exec, -1")
    sa.i = 1; sa(); sa(); sa()
    P("s_barrier\ns_barrier\ns_mov_b32 s24, 0")
    P("L_k2:")
    P(f"s_load_dwordx2 s[6:7], s[0:1], {ARG['out']}")
    P(f"s_lshl_b32 s42, s31, 4\ns_add_u32 s42, s42, s32\ns_lshl_b32 s42, s42, 7\ns_add_u32 s42, s42, {L.FQ_OFF}\ns_add_u32 s9, s71, {L.FP_OFF}")
    P("v_lshlrev_b32 v3, 4, v1\ns_and_b32 s25, s2, 7\ns_lshr_b32 s26, s2, 3")
    P(f"""s_cmp_ge_u32 s30, 4
s_mov_b32 s10, {L.K_OFF}
s_cmov_b32 s10, {L.V_OFF}
s_mul_i32 s35, s26, 10240
s_add_u32 s10, s10, s35
s_bfe_u32 s36, s30, 0x10001
s_add_u32 s36, s36, s25
s_max_u32 s36, s36, 1
s_sub_u32 s36, s36, 1
s_mul_i32 s36, s36, 327680
s_add_u32 s10, s10, s36
s_and_b32 s36, s30, 1
s_mul_i32 s36, s36, 5120
s_add_u32 s10, s10, s36
s_mul_i32 s11, s30, 5120
s_add_u32 s11, s11, {KV_LDS}
s_mul_i32 s40, s25, 327680
s_add_u32 s40, s40, s35
s_mul_i32 s41, s30, 1280
s_add_u32 s40, s40, s41
v_and_b32 v13, 31, v1
v_lshrrev_b32 v14, 5, v1
v_lshlrev_b32 v27, 3, v13
v_lshl_add_u32 v15, v14, 9, v27""")
    def kvdma():
        P("s_mov_b32 m0, s11")
        for i in range(4): P(f"buffer_load_dwordx4 v3, s[20:23], s10 offen offset:{i*1024} sc1 lds")
        P("s_add_u32 m0, s11, 4096\ns_add_u32 s10, s10, 4096\nbuffer_load_dwordx4 v3, s[20:23], s10 offen sc1 lds")
    P(f"""s_and_b32 s43, s30, 3
s_lshl_b32 s44, s25, 1
s_add_u32 s43, s43, s44
s_max_u32 s43, s43, 2
s_sub_u32 s43, s43, 2
s_mul_i32 s45, s26, 20
s_lshr_b32 s44, s45, 7
s_add_u32 s45, s45, 19
s_lshr_b32 s45, s45, 7
s_sub_u32 s45, s45, s44
s_lshl_b32 s45, s45, 7
s_lshl_b32 s43, s43, 4
s_add_u32 s43, s43, s44
s_lshl_b32 s43, s43, 7
s_add_u32 s43, s43, {L.FQ_OFF}
v_lshrrev_b32 v58, 1, v1
v_mul_u32_u24 v58, 640, v58
v_and_b32 v59, 1, v1
v_mul_lo_u32 v59, v59, s45
v_add_u32 v58, v58, v59
s_lshl_b32 s33, s25, 7
s_add_u32 s33, s33, {L.FX_OFF}
v_lshlrev_b32 v249, 2, v13
v_mov_b32 v2, 0
v_mov_b32 v5, 1
v_mov_b32 v6, {RL + 4}
s_mov_b32 s8, s24
s_cmp_lg_u32 s24, 1
s_cbranch_scc1 L_nofq
s_mov_b64 exec, 1
s_waitcnt vmcnt(0)
ds_add_rtn_u32 v7, v6, v5
s_waitcnt lgkmcnt(0)
v_readfirstlane_b32 s46, v7
s_cmp_lg_u32 s46, 3
s_cbranch_scc1 L_nofq
v_mov_b32 v7, 2
buffer_store_dword v7, v2, s[20:23], s42 offen sc1
{"buffer_store_dword v7, v2, s[20:23], s9 offen sc1" if CST else ""}
L_nofq:
s_mov_b64 exec, -1""")
    sa()
    P("s_cmp_ge_u32 s30, 4\ns_cbranch_scc1 L_fqw\ns_mov_b64 exec, 63\nbuffer_load_dword v59, v58, s[20:23], s43 offen sc1\ns_waitcnt vmcnt(0)")
    poll_check(58, 59, "s43", 2, f"s_sleep {opt.get('SLQ', 3)}\n")
    P("s_mov_b64 exec, -1\nL_fqw:\ns_barrier")
    sa()
    P("""buffer_load_dwordx2 v[16:17], v15, s[20:23], s40 offen sc1
buffer_load_dwordx2 v[18:19], v15, s[20:23], s40 offen offset:256 sc1
buffer_load_dwordx2 v[20:21], v27, s[20:23], s40 offen offset:1024 sc1
buffer_load_dword v252, v249, s[20:23], s33 offen sc1""")
    P("s_cmp_ge_u32 s30, 4\ns_cbranch_scc1 L_b0")
    kvdma()
    P("L_b0:")
    P("s_and_b32 s27, s26, 3\ns_lshl_b32 s28, s25, 2\ns_add_u32 s27, s27, s28\ns_lshr_b32 s28, s2, 5\ns_lshl_b32 s31, s25, 3\ns_add_u32 s31, s31, s30")
    P(f"""v_mov_b32 v22, 0
v_mov_b32 v23, 0
s_add_u32 s41, s41, {KV_LDS}
v_add_u32 v24, s41, v15
v_add_u32 v25, s41, v27
v_mul_u32_u24 v26, 320, v14
v_lshl_add_u32 v26, v13, 4, v26
v_add_u32 v26, s41, v26
s_waitcnt lgkmcnt(0)""")
    srd(P, 12, 4, SZ); srd(P, 16, 6, SZ)
    S, KF, VF, OA, PM, CA = 32, 176, 200, 224, 240, 8
    RMV, L4V, FXV, L7V, MODEV = 248, 249, 250, 251, 252
    for r in range(16):
        m = 0
        for l in range(64):
            if 8*(r >> 2) + 4*(l >> 5) + (r & 3) <= (l & 31): m |= 1 << l
        P(f"s_mov_b32 s{48+2*r}, {m & 0xffffffff:#x}\ns_mov_b32 s{49+2*r}, {m >> 32:#x}")
    for b in range(3): P(f"v_mov_b32 v{KF+b*8+6}, 0\nv_mov_b32 v{KF+b*8+7}, 0")
    for r in range(24): P(f"v_mov_b32 v{VF+r}, {ONES}")
    for r in range(16): P(f"v_mov_b32 v{OA+r}, 0")
    P("v_mov_b32 v4, 0xffff\nv_mov_b32 v7, 0xffff0000")
    for p in range(8):
        P(f"v_cndmask_b32 v{PM+p}, 0, v4, s[{48+4*p}:{49+4*p}]\nv_cndmask_b32 v12, 0, v7, s[{50+4*p}:{51+4*p}]\nv_or_b32 v{PM+p}, v{PM+p}, v12")
    P(f"v_cmp_gt_u32 vcc, 32, v1\nv_mov_b32 v4, 0xbf80bf80\nv_mov_b32 v7, 0x0000bf80\nv_cndmask_b32 v{CA}, 0, v4, vcc\nv_cndmask_b32 v{CA+1}, 0, v7, vcc\nv_mov_b32 v{CA+2}, 0\nv_mov_b32 v{CA+3}, 0")
    P("s_mov_b32 s44, 0x000fffff\ns_mov_b32 s45, 0x000fffff")
    P("s_and_b32 s29, s30, 3\ns_lshl_b32 s43, s27, 2\ns_add_u32 s29, s29, s43")
    P("s_mul_i32 s34, s28, 5\ns_and_b32 s37, s28, 1\ns_lshr_b32 s35, s34, 1\ns_add_u32 s36, s35, 2\ns_lshl_b32 s43, s37, 1\ns_sub_u32 s36, s36, s43\ns_add_u32 s35, s35, s37")
    P(f"s_mul_i32 s32, s28, {L.SLICE_B}\ns_add_u32 s32, s32, {L.WS_OFF}")
    NR = (100 - 4*N1 + 7) // 8
    P(f"s_mul_i32 s39, s30, {NR}\ns_add_u32 s39, s39, {4*N1}\ns_min_u32 s39, s39, {100-NR}\ns_lshl_b32 s39, s39, 10\ns_add_u32 s38, s32, s39")
    P(f"v_lshrrev_b32 v{RMV}, 2, v1\nv_mul_u32_u24 v{RMV}, 1280, v{RMV}\nv_and_b32 v4, 3, v1\nv_lshl_add_u32 v{RMV}, v4, 4, v{RMV}")
    P(f"v_lshlrev_b32 v{L7V}, 7, v1")
    P(f"v_cmp_gt_u32 vcc, 4, v1\nv_cndmask_b32 v4, 0, 5, vcc\nv_and_b32 v7, 7, v1\nv_lshlrev_b32 v7, 2, v7\nv_add_u32 v7, {SY_LDS}, v7\ns_mov_b64 exec, 0xff\nds_write_b32 v7, v4\ns_mov_b64 exec, -1")
    vm = VM(P)
    side = []
    for i in range(NR):
        pre = f"s_add_u32 m0, s39, {i*1024}\ns_add_u32 s43, s38, {i*1024}\n" if i % 4 == 0 else ""
        side.append((1, pre + f"buffer_load_dwordx4 v3, s[20:23], s43 offen offset:{(i%4)*1024} sc1 lds"))
    side.append((0, f"""s_cmp_ge_u32 s30, 4
s_cbranch_scc1 L_side_l
s_mul_i32 s46, s29, 20480
s_lshl_b32 s43, s35, 6
s_add_u32 s43, s43, s46
s_mul_i32 s47, s30, 3072
s_add_u32 m0, s47, {XR_LDS}
s_nop 0
buffer_load_dwordx4 v{RMV}, s[12:15], s43 offen lds
s_add_u32 m0, s47, {XR_LDS+1024}
s_add_u32 s43, s43, 64
buffer_load_dwordx4 v{RMV}, s[12:15], s43 offen lds
s_lshl_b32 s43, s36, 6
s_add_u32 s43, s43, s46
s_add_u32 m0, s47, {XR_LDS+2048}
s_nop 0
buffer_load_dwordx4 v{RMV}, s[12:15], s43 offen lds
L_side_l:
L_side_e:"""))
    for k in range(NTOUCH):
        side.append((1, f"""s_and_b32 s46, s27, 3
s_lshl_b32 s46, s46, 3
s_add_u32 s46, s46, s30
s_lshl_b32 s46, s46, 13
s_add_u32 s46, s46, s32
s_add_u32 s46, s46, {5*20480 + k*262144}
buffer_load_dword v253, v{L7V}, s[20:23], s46 offen sc1"""))
    def do_side(k=1):
        for _ in range(k):
            if side:
                n, t = side.pop(0); vm.op(t, n)
    P("s_waitcnt vmcnt(0)")
    poll_check(L4V, MODEV, "s33", 1, f"s_sleep {SLP}\n")
    P("s_cmp_lt_u32 s30, 4\ns_cbranch_scc1 L_b1")
    kvdma()
    P("L_b1:")
    P(f"v_readfirstlane_b32 s43, v{MODEV}\nv_cmp_ne_u32 vcc, s43, v{MODEV}\ns_cmp_lg_u32 vcc_lo, 0\ns_cselect_b32 s24, 1, 0")
    if opt.get("SAFE"): P("s_mov_b32 s24, 1")
    P("v_cmp_gt_u32 vcc, 32, v1\nv_cndmask_b32 v20, 0, v20, vcc\nv_cndmask_b32 v21, 0, v21, vcc\ns_waitcnt lgkmcnt(0)")
    P("s_barrier")
    P("s_cmp_eq_u32 s8, 2\ns_cbranch_scc1 L_fpw\nL_fpwe:")
    tails.append("L_fpw:\ns_cmp_lg_u32 s30, 4\ns_cbranch_scc1 L_fpwe\nv_mov_b32 v30, 1\ns_mov_b64 exec, 1\nbuffer_store_dword v30, v2, s[20:23], s9 offen sc1\ns_mov_b64 exec, -1\ns_nop 1\ns_branch L_fpwe")
    sa()
    if STAMP or DBG: P("s_waitcnt lgkmcnt(0)")
    lg = LG(P)
    kid = {}
    def kread(t):
        b = t % 3
        kid[t] = lg.op(f"ds_read_b64 v[{KF+b*8}:{KF+b*8+1}], v24 offset:{t*1280}\nds_read_b64 v[{KF+b*8+2}:{KF+b*8+3}], v24 offset:{t*1280+256}\nds_read_b64 v[{KF+b*8+4}:{KF+b*8+5}], v25 offset:{t*1280+1024}", 3)
    M = 28
    mstate = {"n": 0}
    def maxops(t):
        ops = []
        for r in range(0, 16, 2):
            k = mstate["n"] & 1
            a, b = S + 16*t + r, S + 16*t + r + 1
            if mstate["n"] < 2: ops.append(f"v_max_f32 v{M+k}, v{a}, v{b}")
            else: ops.append(f"v_max3_f32 v{M+k}, v{M+k}, v{a}, v{b}")
            mstate["n"] += 1
        return ops
    kread(8); kread(7)
    for t in range(8, -1, -1):
        b = t % 3
        d = v(S + 16*t, 16)
        if t < 8:
            a, e = lab("ab"), lab("ae")
            P(f"s_cmp_eq_u32 s31, {7-t}\ns_cbranch_scc1 {a}\n{e}:")
            tails.append(f"{a}:\ns_nop 7\n" + "\n".join(f"v_mov_b32 v{OA+r}, 0xff800000" for r in range(16)) + f"\ns_nop 1\ns_branch {e}")
        mo = maxops(t + 1) if 1 <= t + 1 <= 7 else []
        lg.wait(kid[t])
        P(f"v_mfma_f32_32x32x16_bf16 {d}, {v(KF+b*8,4)}, v[16:19], {v(OA,16)}")
        if t - 2 >= 0: kread(t - 2)
        P(f"v_mfma_f32_32x32x16_bf16 {d}, {v(KF+b*8+4,4)}, v[20:23], {d}")
        if t % 2 == 0: do_side()
        for o in mo: P(o)
    for r in range(16): P(f"v_cndmask_b32 v{S+r}, v{S+r}, v{S+128+r}, s[{48+2*r}:{49+2*r}]")
    for o in maxops(0): P(o)
    P(f"v_max_f32 v{M}, v{M}, v{M+1}\nv_mov_b32 v{M+1}, v{M}")
    P(f"s_waitcnt vmcnt({vm.n})")
    P(f"v_permlane32_swap_b32 v{M}, v{M+1}\nv_max_f32 v{M}, v{M}, v{M+1}")
    P("s_barrier")
    vid = {}
    def vread(t, slot):
        P("s_mov_b64 exec, s[44:45]")
        vid[t] = lg.op(f"ds_read_b128 {v(VF+slot*8,4)}, v26 offset:{20480+t*1280}\nds_read_b128 {v(VF+slot*8+4,4)}, v26 offset:{20480+t*1280+640}", 2)
        P("s_mov_b64 exec, -1")
    P(f"""v_and_b32 v29, 0xffff0000, v{M}
v_sub_f32 v30, v{M}, v29
v_and_b32 v31, 0xffff0000, v30
v_sub_f32 v30, v30, v31
v_lshrrev_b32 v29, 16, v29
v_or_b32 v20, v29, v31
v_lshrrev_b32 v21, 16, v30""")
    order = [0, 1, 2, 3, 4, 5, 6, 7]
    slot_of = {8: 0, 0: 1}
    for i, t in enumerate(order[1:]): slot_of[t] = (2 + i) % 3
    def subm(t): P(f"v_mfma_f32_32x32x16_bf16 {v(S+16*t,16)}, {v(CA,4)}, v[20:23], {v(S+16*t,16)}")
    subm(0)
    vread(8, 0); vread(0, 1)
    pend = []
    firstpv = [True]
    def pv(vt, half, preg):
        def f():
            if half == 0: lg.wait(vid[vt])
            c = "0" if firstpv[0] else v(OA, 16); firstpv[0] = False
            P(f"v_mfma_f32_32x32x16_bf16 {v(OA,16)}, {v(VF+slot_of[vt]*8+4*half,4)}, {v(preg+4*half,4)}, {c}")
        return f
    D8 = S + 128
    for i, t in enumerate(order):
        base = S + 16*t
        ms = []
        if i + 1 < 8: ms.append(lambda tt=order[i+1]: (subm(tt), do_side()))
        ms += pend; pend = []
        nm = len(ms)
        pos = [int(k * 16 / nm) for k in range(nm)]
        for r in range(16):
            while pos and pos[0] == r:
                pos.pop(0); ms.pop(0)()
                if not pos and i + 1 < 8: vread(order[i+1], slot_of[order[i+1]]); do_side()
            P(f"v_exp_f32 v{base+r}, v{base+r}")
        for p in range(8): P(f"v_cvt_pk_bf16_f32 v{base+p}, v{base+2*p}, v{base+2*p+1}")
        if t == 0:
            for p in range(8): P(f"v_and_b32 v{D8+p}, v{PM+p}, v{base+p}\nv_bfi_b32 v{base+p}, v{PM+p}, 0, v{base+p}")
            pend = [pv(8, 0, D8), pv(8, 1, D8), pv(0, 0, base), pv(0, 1, base)]
        else:
            pend = [pv(t, 0, base), pv(t, 1, base)]
    assert not side, len(side)
    for f in pend: f()
    sa()
    P("v_cmp_gt_u32 vcc, 32, v1\nv_mov_b32 v10, 0x7ffffff0\nv_cndmask_b32 v18, v10, v27, vcc")
    P(f"v_rcp_f32 v28, v{OA+12}\nv_mov_b32 v29, v28")
    for p in range(6): P(f"v_pk_mul_f32 v[{OA+2*p}:{OA+2*p+1}], v[{OA+2*p}:{OA+2*p+1}], v[28:29]")
    for p in range(6): P(f"v_cvt_pk_bf16_f32 v{32+p}, v{OA+2*p}, v{OA+2*p+1}")
    store2(vm, ["buffer_store_dwordx4 v[32:35], v3, s[20:23], s40 offen", "buffer_store_dwordx2 v[36:37], v18, s[20:23], s40 offen offset:1024"])
    P(f"s_lshl_b32 s43, s31, 5\ns_add_u32 s43, s43, s26\ns_lshl_b32 s43, s43, 2\ns_add_u32 s43, s43, {L.FO_OFF}\nv_mov_b32 v2, 0\nv_mov_b32 v7, 1")
    P("s_waitcnt vmcnt(0)\ns_mov_b64 exec, 1")
    store2(vm, ["buffer_store_dword v7, v2, s[20:23], s43 offen"])
    P("s_mov_b64 exec, -1")
    sa()
    P(f"v_and_b32 v254, 3, v1\nv_lshlrev_b32 v254, 2, v254\nv_add_u32 v254, {SY_LDS}, v254")
    P(f"s_and_b32 s43, s30, 3\ns_lshl_b32 s43, s43, 2\ns_add_u32 s43, s43, {SY_LDS}\nv_mov_b32 v255, s43")
    P("s_cmp_ge_u32 s30, 4\ns_cbranch_scc1 L_loader")

    st0 = Stamper(48, 16)
    def st():
        if FOCUS == 0: st0()
    def sf(ph):
        if FOCUS == ph: st0()
    ACC, BF, ST, ST1, ST3, HP, ACC4, CS, PK, AF, A4 = 16, 40, 68, 72, 76, 80, 92, 112, 132, 144, 224
    NA4 = 6
    SYA, SYW, SYD, SYV = 254, 255, 90, 91
    D = 6
    P(f"s_lshr_b32 s43, s29, 1\ns_lshl_b32 s43, s43, 7\ns_add_u32 s45, s43, {L.FO_OFF}\nbuffer_load_dword v15, v{L4V}, s[20:23], s45 offen sc1")
    P("s_mul_i32 s40, s29, 20480\ns_lshl_b32 s41, s35, 10\ns_add_u32 s41, s41, s40\ns_lshl_b32 s42, s36, 10\ns_add_u32 s42, s42, s40\ns_lshl_b32 s43, s37, 3\ns_add_u32 s42, s42, s43")
    P("v_add_u32 v8, 0x10000, v3\nv_add_u32 v9, 0x20000, v3")
    P(f"s_mul_i32 s46, s30, 3072\ns_add_u32 s46, s46, {XR_LDS}")
    P("v_and_b32 v5, 15, v1\nv_lshlrev_b32 v5, 6, v5\nv_lshrrev_b32 v6, 4, v1\nv_lshl_add_u32 v5, v6, 4, v5\nv_add_u32 v5, s46, v5\ns_lshl_b32 s43, s37, 3\nv_add_u32 v6, s43, v5")
    P(f"v_and_b32 v7, 0x30, v1\nv_add_u32 v7, {CS1_LDS}, v7")
    P(f"s_lshl_b32 s33, s29, 7\ns_add_u32 s33, s33, {L.FR_OFF}\ns_lshl_b32 s43, s28, 2\ns_add_u32 s34, s33, s43")
    P("v_and_b32 v14, 7, v1\nv_lshlrev_b32 v14, 2, v14")
    P(f"s_lshl_b32 s46, s29, 11\ns_add_u32 s46, s46, {L.ST_OFF}")
    P(f"""s_mul_i32 s10, s25, 327680
s_bfe_u32 s43, s29, 0x30001
s_mul_i32 s43, s43, 1280
s_add_u32 s10, s10, s43
s_and_b32 s43, s29, 1
s_lshl_b32 s43, s43, 7
s_add_u32 s11, s10, s43
s_add_u32 s11, s11, {L.Q_OFF + 1024}
s_lshl_b32 s43, s43, 1
s_add_u32 s10, s10, s43
s_add_u32 s10, s10, {L.Q_OFF}
v_lshrrev_b32 v10, 5, v1
v_mul_u32_u24 v250, 10240, v10
v_bfe_u32 v10, v1, 4, 1
v_lshl_add_u32 v250, v10, 9, v250
v_and_b32 v10, 15, v1
v_lshl_add_u32 v250, v10, 4, v250
v_lshrrev_b32 v11, 4, v1
v_mul_u32_u24 v251, 20480, v11
v_lshl_add_u32 v251, v10, 3, v251""")
    def lds_off(stage, chunk):
        off = (stage % RING) * 20480 + chunk * 1024
        return (3 if off < 65536 else (8 if off < 131072 else 9)), off % 65536
    def unpack(dst, src, n):
        for i in range(n): P(f"v_lshlrev_b32 v{dst+2*i}, 16, v{src+i}\nv_and_b32 v{dst+2*i+1}, 0xffff0000, v{src+i}")
    def set_flag(vm, val):
        P(f"v_mov_b32 v4, {val}\ns_mov_b64 exec, 1")
        store2(vm, ["buffer_store_dword v4, v2, s[20:23], s34 offen"])
        P("s_mov_b64 exec, -1")
    cnt = [0]
    def rdw(lg, stage, chunk):
        ar, off = lds_off(stage, chunk)
        r = BF + (cnt[0] % (D + 1)) * 4; cnt[0] += 1
        return r, lg.op(f"ds_read_b128 {v(r,4)}, v{ar} offset:{off}")
    def free_sig(lg): lg.op(f"ds_write_b32 v{SYW}, v{SYV} offset:16")
    def rdy_read(lg): return lg.op(f"ds_read_b32 v{SYD}, v{SYA}")
    def stats_fin(R):
        P(f"v_add_f32 v{R}, v{R}, v{R+2}\nv_add_f32 v{R+1}, v{R+1}, v{R+3}")
        xg_reduce(P, [R, R+1], [R+2, R+3])
        P(f"v_mul_f32 v{R}, {f2u(1/640)}, v{R}\nv_mul_f32 v{R+1}, {f2u(1/640)}, v{R+1}\nv_fma_f32 v{R+1}, -v{R}, v{R}, v{R+1}\nv_max_f32 v{R+1}, 0, v{R+1}")
        P(f"v_add_f32 v{R+2}, {f2u(EPS)}, v{R+1}\nv_rsq_f32 v{R+2}, v{R+2}")
    def kloop(stage_chunk, tiles, aoff, vaddr_of_ks, accinit, frees, stat=None, ph=0, rdy_at_end=False):
        vm = VM(P); lg = LG(P)
        ids = {}
        def aload(ks):
            if aoff is None:
                kq, a = divmod(ks, 5)
                if a < 4: ids[ks] = vm.op(f"s_add_u32 s43, s10, {(4*kq+a)*20480}\nbuffer_load_dwordx4 {v(AF+4*ks,4)}, v250, s[20:23], s43 offen sc1")
                else: ids[ks] = vm.op(f"s_add_u32 s43, s11, {kq*81920}\nbuffer_load_dwordx2 {v(AF+4*ks,2)}, v251, s[20:23], s43 offen sc1\ns_add_u32 s43, s43, 10240\nbuffer_load_dwordx2 {v(AF+4*ks+2,2)}, v251, s[20:23], s43 offen sc1", 2)
                return
            if ks % 4 == 0: P(f"s_add_u32 s43, s40, {aoff + ks*1024}")
            ids[ks] = vm.op(f"buffer_load_dwordx4 {v(AF+4*ks,4)}, v{vaddr_of_ks(ks)}, s[20:23], s43 offen offset:{(ks%4)*1024} sc1")
        sf(ph)
        for ks in range(PRE): aload(ks)
        sf(ph)
        nt = len(tiles)
        items = [(ks, t) for ks in range(20) for t in tiles]
        N = len(items)
        rr = []
        def rd(n):
            ks, t = items[n]
            if t == tiles[0] and ks in frees: free_sig(lg)
            rr.append(rdw(lg, *stage_chunk(ks, t)))
            if n == N - 1 and 20 in frees: free_sig(lg)
            if n == N - 1 and rdy_at_end: rdy_read(lg)
        for n in range(D): rd(n)
        for n, (ks, t) in enumerate(items):
            if n + D < N: rd(n + D)
            if t == tiles[0]:
                if ks + PRE < 20: aload(ks + PRE)
                if stat and ks == 3: sp = vm.op("buffer_load_dword v15, v14, s[20:23], s33 offen sc1")
                if stat and ks == 9:
                    vm.wait(sp); poll_check(14, 15, "s33", stat[0])
                    sl = vm.op(f"s_add_u32 s44, s46, {stat[2]}\nbuffer_load_dwordx4 {v(stat[1],4)}, v3, s[20:23], s44 offen sc1")
                P(f"s_waitcnt vmcnt({vm.cnt(ids[ks])}) lgkmcnt({lg.cnt(rr[n][1])})")
                if ks in (0, 1, 2, 4, 8, 12, 16): sf(ph)
                for fk, fv in frees.items():
                    if ks == fk - 3: P(f"v_mov_b32 v{SYV}, {fv}")
            else:
                lg.wait(rr[n][1])
            a = ACC + 4 * tiles.index(t)
            P(f"v_mfma_f32_16x16x32_bf16 {v(a,4)}, {v(rr[n][0],4)}, {v(AF+4*ks,4)}, {v(a,4) if (accinit or ks > 0) else '0'}")
        sf(ph)
        return vm, lg
    def pack(dst, src, n):
        for i in range(n): P(f"v_cvt_pk_bf16_f32 v{dst+i}, v{src+2*i}, v{src+2*i+1}")
    def tile_then_stats(pk, off, stoff, f1):
        vm = VM(P)
        P(f"s_add_u32 s43, s41, {off}\ns_add_u32 s44, s42, {off}")
        store2(vm, [f"buffer_store_dwordx4 {v(pk,4)}, v3, s[20:23], s43 offen", f"buffer_store_dwordx4 {v(pk+4,4)}, v3, s[20:23], s43 offen offset:1024", f"buffer_store_dwordx2 {v(pk+8,2)}, v3, s[20:23], s44 offen"])
        P(f"v_mov_b32 v10, 0\nv_mov_b32 v11, 0\nv_mov_b32 v12, {ONES}")
        for i in range(10): P(f"v_dot2c_f32_bf16 v10, v{pk+i}, v12\nv_dot2c_f32_bf16 v11, v{pk+i}, v{pk+i}")
        xg_reduce(P, [10, 11], [12, 13])
        P(f"s_lshr_b32 s44, s28, 1\ns_lshl_b32 s44, s44, 8\ns_add_u32 s43, s46, s44\ns_lshl_b32 s44, s37, 3\ns_add_u32 s43, s43, s44\ns_add_u32 s43, s43, {stoff}")
        sf(8)
        P("s_waitcnt vmcnt(0)")
        sf(8)
        set_flag(vm, f1)
        P("s_mov_b64 exec, 0xffff")
        store2(vm, ["buffer_store_dwordx2 v[10:11], v3, s[20:23], s43 offen"])
        P("s_mov_b64 exec, -1")
    kk = 2 * 0.7978845608028654 * LOG2E
    def gelu_items(a0, c0, n, STR, pk):
        Lx = []
        pr = range(0, n, 2)
        for i in pr: Lx.append(f"v_pk_mul_f32 {v(c0+i,2)}, {v(c0+i,2)}, {v(STR,2)}")
        for i in pr: Lx.append(f"v_pk_fma_f32 {v(a0+i,2)}, {v(a0+i,2)}, {v(STR+2,2)}, {v(c0+i,2)} neg_lo:[0,0,1] neg_hi:[0,0,1]")
        for i in pr: Lx.append(f"v_pk_mul_f32 {v(c0+i,2)}, {v(a0+i,2)}, {v(a0+i,2)}")
        for i in pr: Lx.append(f"v_pk_fma_f32 {v(c0+i,2)}, {v(c0+i,2)}, v[10:11], v[12:13]")
        for i in pr: Lx.append(f"v_pk_mul_f32 {v(c0+i,2)}, {v(c0+i,2)}, {v(a0+i,2)}")
        for i in range(n): Lx.append(f"v_exp_f32 v{c0+i}, v{c0+i}")
        for i in pr: Lx.append(f"v_pk_add_f32 {v(c0+i,2)}, {v(c0+i,2)}, 1.0 op_sel_hi:[1,0]")
        for i in range(n): Lx.append(f"v_rcp_f32 v{c0+i}, v{c0+i}")
        for i in pr: Lx.append(f"v_pk_mul_f32 {v(a0+i,2)}, {v(a0+i,2)}, {v(c0+i,2)}")
        for i in pr: Lx.append(f"v_cvt_pk_bf16_f32 v{pk+i//2}, v{a0+i}, v{a0+i+1}")
        return Lx
    def gelu_consts():
        P(f"v_mov_b32 v10, {f2u(-kk*0.044715)}\nv_mov_b32 v11, v10\nv_mov_b32 v12, {f2u(-kk)}\nv_mov_b32 v13, v12")
    small = lambda b: (lambda ks, t: (b + ks // 4, (ks % 4) * 5 + t))
    T5 = [0, 1, 2, 3, 4]

    P(f"ds_read_b128 {v(HP,4)}, v5\nds_read_b128 {v(HP+4,4)}, v5 offset:1024\nds_read_b64 {v(HP+8,2)}, v6 offset:2048\ns_waitcnt lgkmcnt(0)")
    unpack(ACC, HP, 10)
    P("s_barrier")
    P("s_waitcnt vmcnt(0)")
    poll_check(L4V, 15, "s45", 1)
    P("s_or_b32 s43, s26, s30\ns_cmp_eq_u32 s43, 0\ns_cbranch_scc1 L_gl\nL_gle:")
    tails.append(f"L_gl:\ns_lshl_b32 s43, s25, 7\ns_add_u32 s43, s43, {L.GL_OFF}\nv_mov_b32 v4, 1\ns_mov_b64 exec, 1\nbuffer_store_dword v4, v2, s[20:23], s43 offen sc1\ns_mov_b64 exec, -1\ns_branch L_gle")
    st()
    kloop(small(0), T5, None, None, True, {12: 3, 20: 5}, ph=1, rdy_at_end=True)
    st()
    sf(8)
    pack(HP, ACC, 10)
    P("s_waitcnt lgkmcnt(0)")
    lds_check(SYA, SYD, 0, 6)
    tile_then_stats(HP, L.H_OFF, 0, 1)
    st(); sf(8)
    P("buffer_load_dword v15, v14, s[20:23], s33 offen sc1")
    P(f"ds_read_b32 v{SYD}, v{SYA}\ns_waitcnt vmcnt(1)")
    sf(8)
    vm = VM(P); set_flag(vm, 2)
    P("s_waitcnt lgkmcnt(0)")
    lds_check(SYA, SYD, 0, 10)
    sf(8)
    for t in range(5): P(f"ds_read_b128 {v(CS+4*t,4)}, v7 offset:{t*64}")
    P("s_waitcnt vmcnt(1) lgkmcnt(0)")
    sf(8)
    poll_check(14, 15, "s33", 1)
    st(); sf(8)
    kloop(small(5), T5, L.H_OFF, lambda ks: 3, False, {12: 8, 20: 10}, stat=(2, ST1, 0), ph=2)
    st()
    stats_fin(ST1)
    P(f"v_mul_f32 v{ST}, v{ST1+1}, v{ST1+2}\nv_mov_b32 v{ST+1}, {f2u(EPS)}\nv_fma_f32 v{ST}, v{ST}, v{ST1+2}, v{ST+1}\nv_rsq_f32 v{ST}, v{ST}")
    gelu_consts()
    P(f"v_mul_f32 v{ST+2}, v{ST}, v{ST1+2}\nv_mul_f32 v{ST}, v{ST1}, v{ST+2}\nv_mov_b32 v{ST+3}, v{ST+2}\nv_mov_b32 v{ST+1}, v{ST}")
    for l in gelu_items(ACC, CS, 20, ST, PK): P(l)
    P("s_lshr_b32 s43, s28, 2\ns_add_u32 s43, s43, 1\ns_sub_u32 s44, 0, s43\ns_bitcmp1_b32 s28, 1\ns_cselect_b32 s43, s44, s43")
    P("s_lshl_b32 s44, s29, 4\ns_add_u32 s44, s44, s43\nv_and_b32 v10, 15, v1\nv_add_u32 v10, s44, v10")
    P("v_ashrrev_i32 v12, 8, v10\nv_cmp_eq_u32 vcc, s25, v12\nv_cmp_gt_u32 s[26:27], 8, v12")
    P("v_lshrrev_b32 v11, 4, v10\nv_mul_u32_u24 v11, 20480, v11\nv_and_b32 v10, 15, v10\nv_lshl_add_u32 v11, v10, 4, v11\nv_and_b32 v10, 0x30, v1\nv_lshl_add_u32 v11, v10, 4, v11")
    P(f"s_sub_u32 s43, s41, s40\ns_sub_u32 s44, s42, s40\ns_add_u32 s43, s43, {L.T_OFF}\ns_add_u32 s44, s44, {L.T_OFF}")
    P("s_andn2_b64 s[26:27], s[26:27], vcc\ns_mov_b64 exec, vcc")
    vm = VM(P)
    tl = [f"buffer_store_dwordx4 {v(PK,4)}, v11, s[20:23], s43 offen", f"buffer_store_dwordx4 {v(PK+4,4)}, v11, s[20:23], s43 offen offset:1024", f"buffer_store_dwordx2 {v(PK+8,2)}, v11, s[20:23], s44 offen"]
    store2(vm, tl)
    P("s_cmp_lg_u64 s[26:27], 0\ns_cbranch_scc1 L_halo\nL_haloe:\ns_mov_b64 exec, -1")
    tails.append(f"L_halo:\ns_mov_b64 exec, s[26:27]\ns_add_u32 s43, s43, {L.TH_OFF - L.T_OFF}\ns_add_u32 s44, s44, {L.TH_OFF - L.T_OFF}\n" + "\n".join(l + " sc1" for l in tl) + "\ns_nop 1\ns_branch L_haloe")
    P(f"v_mul_f32 v{ST1}, v{ST1}, v{ST1+2}\nv_mov_b32 v{ST1+3}, v{ST1+2}\nv_mov_b32 v{ST1+1}, v{ST1}")
    P(f"""s_and_b32 s43, s29, 15
s_lshl_b32 s39, s25, 11
s_add_u32 s39, s39, {L.FHL_OFF}
s_sub_u32 s44, s33, 128
s_sub_u32 s45, s39, 1024
s_cmp_eq_u32 s43, 0
s_cselect_b32 s44, s45, s44
s_cselect_b32 s26, 5, 0
s_cmp_eq_u32 s29, 0
s_cselect_b32 s44, s33, s44
s_cselect_b32 s26, 0, s26
v_lshlrev_b32 v12, s26, v14
v_add_u32 v12, s44, v12
v_add_u32 v13, s33, v14
v_bfe_u32 v10, v1, 3, 2
v_cmp_eq_u32 vcc, 1, v10
s_add_u32 s44, s33, 128
s_add_u32 s45, s39, 2048
v_cndmask_b32 v13, v13, v12, vcc
s_cmp_eq_u32 s43, 15
s_cselect_b32 s44, s45, s44
s_cselect_b32 s26, 5, 0
s_cmp_eq_u32 s29, 127
s_cselect_b32 s44, s33, s44
s_cselect_b32 s26, 0, s26
v_lshlrev_b32 v12, s26, v14
v_add_u32 v12, s44, v12
v_cmp_eq_u32 vcc, 2, v10
s_and_b32 s44, s29, 1
s_lshl_b32 s44, s44, 3
s_add_u32 s44, s44, s28
s_lshl_b32 s44, s44, 7
s_add_u32 s39, s39, s44
v_cndmask_b32 v228, v13, v12, vcc
s_waitcnt vmcnt(0)""")
    set_flag(vm, 3)
    P("s_add_u32 s44, s29, 1\ns_and_b32 s44, s44, 14\ns_cmp_eq_u32 s44, 0\ns_cbranch_scc1 L_hf\nL_hfe:")
    tails.append(f"L_hf:\ns_mov_b64 exec, 1\nbuffer_store_dword v4, v2, s[20:23], s39 offen sc1\ns_mov_b64 exec, -1\ns_branch L_hfe")
    st()
    P(f"buffer_load_dword v15, v228, s[20:23], 0 offen sc1\nds_read_b32 v{SYD}, v{SYA}")
    P(f"""s_cmp_eq_u32 s43, 0
s_cselect_b32 s44, {L.TH_OFF - L.T_OFF}, 0
s_cmp_eq_u32 s29, 0
s_cselect_b32 s44, 0x40000000, s44
s_cmp_eq_u32 s43, 15
s_cselect_b32 s45, {L.TH_OFF - L.T_OFF}, 0
s_cmp_eq_u32 s29, 127
s_cselect_b32 s45, 0x40000000, s45
v_and_b32 v10, 15, v1
v_add_u32 v11, s44, v3
v_add_u32 v12, s45, v3
v_cmp_gt_u32 vcc, 1, v10
v_cndmask_b32 v224, v3, v11, vcc
v_cmp_lt_u32 vcc, 14, v10
v_cndmask_b32 v225, v3, v12, vcc
v_cmp_gt_u32 vcc, 2, v10
v_cndmask_b32 v226, v3, v11, vcc
v_cmp_lt_u32 vcc, 13, v10
v_cndmask_b32 v227, v3, v12, vcc""")
    unpack(ACC4, HP, 10)
    for i in range(0, 20, 2):
        P(f"v_pk_fma_f32 {v(ACC+i,2)}, {v(ACC4+i,2)}, {v(ST1+2,2)}, {v(ST1,2)} neg_lo:[0,0,1] neg_hi:[0,0,1]")
    P("s_waitcnt lgkmcnt(0)")
    lds_check(SYA, SYD, 0, 15)
    P("s_waitcnt vmcnt(0)")
    poll_check(228, 15, "0", 3)
    st()
    kloop(small(10), T5, L.T_OFF, lambda ks: 224 + ks // 5, True, {12: 13, 20: 15}, ph=3)
    st()
    pack(PK, ACC, 10)
    tile_then_stats(PK, L.X1_OFF, 1024, 4)
    st()
    P("buffer_load_dword v15, v14, s[20:23], s33 offen sc1")
    P(f"ds_read_b32 v{SYD}, v{SYA}")
    unpack(CS, PK, 10)
    for i in range(0, 20, 2): P(f"v_pk_add_f32 {v(ACC4+i,2)}, {v(ACC4+i,2)}, {v(CS+i,2)}")
    P("s_waitcnt vmcnt(1)")
    vm = VM(P); set_flag(vm, 5)
    gelu_consts()
    P(f"v_add_u32 v7, {CS3_LDS - CS1_LDS}, v7\ns_lshl_b32 s45, s28, 10\ns_waitcnt lgkmcnt(0)")
    sf(8)
    lds_check(SYA, SYD, 0, 19)
    sf(8)
    for i in range(4): P(f"ds_read_b128 {v(CS+4*i,4)}, v7 offset:{i*64}")
    P("s_waitcnt vmcnt(1) lgkmcnt(0)")
    sf(8)
    poll_check(14, 15, "s33", 4)
    st(); sf(8)
    vm, lg = kloop(lambda ks, t: (15 + t, ks), [0, 1, 2, 3], L.X1_OFF, lambda ks: 3, False, {20: 19}, stat=(5, ST3, 1024), ph=4)
    def a4reg(p):
        i = p % (NA4 + 20)
        return A4 + 4*i if i < NA4 else AF + 4*(i - NA4)
    ids4 = {}
    def a4load(p):
        if 16 <= p < 32:
            ids4[p] = vm.op(f"s_add_u32 s44, s10, {(p-16)*20480}\nbuffer_load_dwordx4 {v(a4reg(p),4)}, v250, s[20:23], s44 offen sc1"); return
        if p % 4 == 0:
            if p < 16: P(f"s_add_u32 s44, s40, {L.V_OFF + p*1024}")
            elif p < 52: P(f"s_add_u32 s44, s40, {L.K_OFF + (p-32)*1024}")
            else: P(f"s_add_u32 s44, s40, {L.V_OFF + 16384}")
        ids4[p] = vm.op(f"buffer_load_dwordx4 {v(a4reg(p),4)}, v3, s[20:23], s44 offen offset:{(p%4)*1024} sc1")
    gst = {}
    def gstore(q):
        va = 3
        if q < 2: P(f"s_add_u32 s43, s45, s40\ns_add_u32 s43, s43, {L.V_OFF + q*8192}")
        elif q < 4: P(f"s_mul_i32 s43, s45, 20\ns_add_u32 s43, s43, s10\ns_add_u32 s43, s43, {(q-2)*8*20480}"); va = 250
        elif q < 6: P(f"s_add_u32 s43, s45, s40\ns_add_u32 s43, s43, {L.K_OFF + (q-4)*8192}")
        else: P(f"s_cmp_ge_u32 s28, 4\ns_mov_b32 s43, {L.K_OFF + 16384}\ns_cmov_b32 s43, {L.V_OFF + 16384 - 4096}\ns_add_u32 s43, s43, s45\ns_add_u32 s43, s43, s40")
        gst[q] = store2(vm, [f"buffer_store_dwordx4 {v(PK+4*(q%2),4)}, v{va}, s[20:23], s43 offen"])
    items4 = [(p, t) for p in range(54) for t in range(5)]
    N4 = len(items4)
    groups = [[0, 1, 2, 3]] + [[t, t + 1] for t in range(4, 14, 2)]
    ry = rdy_read(lg)
    set_flag(vm, 6)
    stats_fin(ST3)
    P(f"v_mul_f32 v{ST3}, v{ST3}, v{ST3+2}\nv_mov_b32 v{ST3+3}, v{ST3+2}\nv_mov_b32 v{ST3+1}, v{ST3}")
    rr4 = []
    r4y = {}
    def rd4(n):
        p, t = items4[n]
        sg = 29 + p // 4
        if p % 8 == 0 and t == 0 and p > 0:
            free_sig(lg)
            lg.wait(r4y[sg]); lds_check(SYA, SYD, 0, min(sg + 2, NSTG))
        if p % 8 == 6 and t == 0 and p + 2 < 54: r4y[sg + 1] = rdy_read(lg)
        rr4.append(rdw(lg, sg, (p % 4) * 5 + t))
    for gi, g in enumerate(groups):
        if gi in (2, 3): sf(5)
        lg.wait(ry)
        if gi + 1 < len(groups):
            gn = groups[gi + 1]
            lds_check(SYA, SYD, 0, 15 + gn[-1] + 1)
            its = [(ks, t) for ks in range(20) for t in gn]
            rr = [rdw(lg, 15 + t, ks) for ks, t in its[:D]]
        else:
            st()
            lds_check(SYA, SYD, 0, 31)
            for n in range(D): rd4(n)
            vm.wait(poll1); poll_check(14, 15, "s33", 7)
            for p in range(PRE4): a4load(p)
        if gi in (2, 3): sf(5)
        for l in gelu_items(ACC, CS, 4*len(g), ST3, PK + 4*((g[0]//2) % 2)): P(l)
        if gi in (2, 3): sf(5)
        if gi == 3: vm.wait(poll0); poll_check(14, 15, "s33", 6)
        for t in g[1::2]: gstore(t // 2)
        if gi + 1 == len(groups): break
        P(f"v_mov_b32 v{SYV}, {15 + gn[-1] + 1}")
        if gi in (2, 3): sf(5)
        for n, (ks, t) in enumerate(its):
            if n + D < 40:
                rr.append(rdw(lg, 15 + its[n + D][1], its[n + D][0]))
                if n + D == 39: free_sig(lg); ry = rdy_read(lg)
            if n == 8:
                for i, tt in enumerate(gn): lg.op(f"ds_read_b128 {v(CS+4*i,4)}, v7 offset:{tt*64}")
            lg.wait(rr[n][1])
            acc = ACC + 4 * gn.index(t)
            P(f"v_mfma_f32_16x16x32_bf16 {v(acc,4)}, {v(rr[n][0],4)}, {v(AF+4*ks,4)}, {'0' if ks == 0 else v(acc,4)}")
            if gi == 2 and n == 10: poll0 = vm.op("buffer_load_dword v15, v14, s[20:23], s33 offen sc1")
            if gi == 4 and n == 0:
                vm.wait(gst[4]); set_flag(vm, 7)
            if gi == 4 and n == 22: poll1 = vm.op("buffer_load_dword v15, v14, s[20:23], s33 offen sc1")
    st()
    for n, (p, t) in enumerate(items4):
        if n + D < N4: rd4(n + D)
        if t == 0:
            if p == 3:
                vm.wait(gst[6]); set_flag(vm, 8)
            if p == 20: poll2 = vm.op("buffer_load_dword v15, v14, s[20:23], s33 offen sc1")
            if p + PRE4 == 40:
                vm.wait(poll2); poll_check(14, 15, "s33", 8)
            if p + PRE4 < 54: a4load(p + PRE4)
            P(f"s_waitcnt vmcnt({vm.cnt(ids4[p])}) lgkmcnt({lg.cnt(rr4[n][1])})")
            if p % 8 == 4: P(f"v_mov_b32 v{SYV}, {29 + p // 4 + 1}")
        else: lg.wait(rr4[n][1])
        P(f"v_mfma_f32_16x16x32_bf16 {v(ACC4+4*t,4)}, {v(rr4[n][0],4)}, {v(a4reg(p),4)}, {v(ACC4+4*t,4)}")
    st()
    P(f"s_mul_i32 s46, s30, 3072\ns_add_u32 s46, s46, {XR_LDS}\nv_add_u32 v10, s46, v3")
    P("s_lshl_b32 s43, s35, 6\ns_add_u32 s43, s43, s40\ns_lshl_b32 s44, s36, 6\ns_add_u32 s44, s44, s40\ns_lshl_b32 s45, s37, 3\ns_add_u32 s44, s44, s45")
    pack(PK, ACC4, 10)
    P(f"ds_write_b128 v5, {v(PK,4)}\nds_write_b128 v5, {v(PK+4,4)} offset:1024\nds_write_b64 v5, {v(PK+8,2)} offset:2048")
    P(f"ds_read_b128 {v(CS,4)}, v10\nds_read_b128 {v(CS+4,4)}, v10 offset:1024\nds_read_b64 {v(CS+8,2)}, v10 offset:2048")
    P(f"s_waitcnt lgkmcnt(2)\nbuffer_store_dwordx4 {v(CS,4)}, v{RMV}, s[16:19], s43 offen{OSF}\ns_waitcnt lgkmcnt(1)\nbuffer_store_dwordx4 {v(CS+4,4)}, v{RMV}, s[16:19], s43 offen offset:64{OSF}\ns_waitcnt lgkmcnt(0)\nbuffer_store_dwordx2 {v(CS+8,2)}, v{RMV}, s[16:19], s44 offen{OSF}")
    if DBG:
        P("s_waitcnt vmcnt(0)"); st0()
        P(f"s_cmp_lg_u32 s2, {DBG}\ns_cbranch_scc1 L_end\ns_cmp_lg_u32 s30, 0\ns_cbranch_scc1 L_end\ns_load_dwordx2 s[4:5], s[0:1], 72\ns_waitcnt lgkmcnt(0)")
        P(f"s_mov_b32 s12, s4\ns_and_b32 s13, s5, 0xffff\ns_mov_b32 s14, 256\ns_mov_b32 s15, 0x20000\nv_mov_b32 v39, {L.DUMMY_OFF + 2048}\nbuffer_load_dwordx4 v[52:55], v39, s[20:23], 0 offen\nbuffer_load_dwordx2 v[56:57], v39, s[20:23], 0 offen offset:16\ns_waitcnt vmcnt(0)\nv_mov_b32 v39, 0")
        regs = [80, 82, 84, 90, 48, 54, 60, 66, 70, 48 + 2*(st0.i-1)]
        for i, r in enumerate(regs): P(f"v_mov_b32 v{40+i}, s{r}")
        if "XA" in opt:
            vr = lambda k: 52 + k if k < 6 else 40 + k - 6
            P(f"v_readfirstlane_b32 s60, v{vr(opt['XA'])}\nv_readfirstlane_b32 s61, v{vr(opt['XB'])}\nv_readfirstlane_b32 s62, v49\ns_sub_u32 s60, s61, s60\ns_lshl_b32 s60, s60, 2\ns_min_u32 s60, s60, 100000")
            P("L_xspin:\ns_memrealtime s[64:65]\ns_waitcnt lgkmcnt(0)\ns_sub_u32 s64, s64, s62\ns_cmp_lt_u32 s64, s60\ns_cbranch_scc1 L_xspin")
        P("s_mov_b64 exec, 1\nbuffer_store_dwordx4 v[52:55], v39, s[12:15], 0 offen\nbuffer_store_dwordx2 v[56:57], v39, s[12:15], 0 offen offset:16\nbuffer_store_dwordx2 v[40:41], v39, s[12:15], 0 offen offset:24\nbuffer_store_dwordx4 v[42:45], v39, s[12:15], 0 offen offset:32\nbuffer_store_dwordx4 v[46:49], v39, s[12:15], 0 offen offset:48")
    if STAMP:
        P("s_waitcnt vmcnt(0)"); st0()
        if FOCUS != 21: stamp_dump([80 + 2*i for i in range(sa.i)] + [48 + 2*i for i in range(st0.i)])
    P("s_endpgm")

    P("L_loader:")
    P("s_sub_u32 s43, s30, 4\ns_mul_i32 s39, s43, 5120\ns_add_u32 s38, s32, s39")
    P("s_barrier")
    P(f"""s_mul_i32 s40, s28, 5
s_lshr_b32 s40, s40, 2
s_lshl_b32 s41, s40, 9
s_add_u32 s41, s41, {L.FP_OFF + 40*128}
s_lshl_b32 s42, s40, 10
s_add_u32 s42, s42, {L.FP_OFF + 201*128}
s_mul_i32 s44, s28, 7
s_cmp_eq_u32 s28, 7
s_subb_u32 s44, s44, 0
s_lshr_b32 s40, s44, 1
s_min_u32 s40, s40, 22
s_mul_i32 s40, s40, 384
s_add_u32 s40, s40, {L.FP_OFF + 120*128}
s_add_u32 s33, s25, 1
s_min_u32 s33, s33, 7
s_lshl_b32 s33, s33, 7
s_add_u32 s33, s33, {L.GL_OFF}""")
    spoll("s41", 0, 128, 8, 1, 4)
    def cs_load():
        P(f"""s_cmp_ge_u32 s30, 6
s_cbranch_scc1 L_nocs
s_lshl_b32 s44, s44, 7
s_add_u32 s44, s44, {L.CS3_OFF}
s_mov_b32 s45, 8192
s_mov_b32 s46, {CS3_LDS}
s_cmp_eq_u32 s30, 5
s_cbranch_scc1 L_cs1
s_mul_i32 s44, s28, 320
s_add_u32 s44, s44, {L.CS1_OFF}
s_mov_b32 s45, 2560
s_mov_b32 s46, {CS1_LDS}
L_cs1:""")
        P("s_sub_u32 s43, s30, 4\ns_lshl_b32 s43, s43, 30\nv_add_u32 v9, s43, v3")
        for i in range(4): P(f"buffer_load_dwordx4 {v(16+4*i,4)}, v{9 if i == 3 else 3}, s[20:23], s44 offen sc1\ns_add_u32 s44, s44, s45")
        P("L_nocs:")
    def cs_fin():
        P("s_cmp_ge_u32 s30, 6\ns_cbranch_scc1 L_nocs2\nv_add_u32 v8, s46, v3\ns_waitcnt vmcnt(0)")
        for r in range(4): P(f"v_add_f32 v{16+r}, v{16+r}, v{20+r}\nv_add_f32 v{24+r}, v{24+r}, v{28+r}")
        for r in range(4): P(f"v_add_f32 v{16+r}, v{16+r}, v{24+r}")
        P("ds_write_b128 v8, v[16:19]\nL_nocs2:")
    sl = Stamper(48, 16)
    vm = VM(P); last = {}
    pub = [5]
    def issue(sg, thin=False):
        slot = (sg % RING) * 20480
        for i in range(5):
            if i % 4 == 0: P(f"s_add_u32 m0, s39, {slot + i*1024}\ns_add_u32 s43, s38, {sg*20480 + i*1024}")
            if thin: P(f"s_waitcnt vmcnt({THIN})")
            last[sg] = vm.op(f"buffer_load_dwordx4 v3, s[20:23], s43 offen offset:{(i%4)*1024} sc1 lds")
    def publish(upto):
        P(f"v_mov_b32 v10, {upto}"); vm.wait(last[upto - 1]); P("ds_write_b32 v255, v10")
    def wait_free(n):
        P("ds_read_b32 v11, v254 offset:16\ns_waitcnt lgkmcnt(0)"); lds_check(254, 11, 16, n, 's_sleep 1\n')
    issue(5, True); issue(6, True)
    spoll("s41", 5120, 128, 8, 1, 4)
    spoll("s40", 0, 128, 15, 1, 4)
    spoll("s33", 0, 128, 1, 1, 4)
    P("v_mov_b32 v10, 6\nds_write_b32 v255, v10")
    for ph in range(3):
        b = 5 * ph
        wait_free(b + 3)
        if ph == 0: cs_load()
        for sg in range(b + 7, b + 10): issue(sg)
        if ph == 0: cs_fin()
        if ph == 1: spoll("s42", 0, 128, 16, 1, 4)
        publish(b + 10)
        wait_free(b + 5)
        issue(b + 10, True); issue(b + 11, True)
    publish(22)
    nxt = 22
    fr = [19, 21, 23, 25, 27, 29, 31, 33, 35, 37]
    for f in fr:
        if nxt >= NSTG: break
        sl(); wait_free(f)
        if opt.get("WBL", 0) == f:
            P("s_cmp_lg_u32 s30, 4\ns_cbranch_scc1 L_nowb\ns_cmp_lg_u32 s26, 0\ns_cbranch_scc1 L_nowb\nbuffer_wbl2 sc1\nL_nowb:")
        first = nxt
        while nxt < NSTG and nxt - RING < f:
            issue(nxt); nxt += 1
            if nxt - first == 2 and nxt < NSTG and nxt - RING < f: publish(nxt - 1)
        publish(nxt - 1)
    publish(NSTG)
    if opt.get("WBL", 0) == 1:
        P("s_cmp_lg_u32 s30, 4\ns_cbranch_scc1 L_nowb\ns_cmp_lg_u32 s26, 0\ns_cbranch_scc1 L_nowb\nbuffer_wbl2 sc1\ns_waitcnt vmcnt(0)\nL_nowb:")
    if STAMP:
        sl()
        stamp_dump([80 + 2*i for i in range(sa.i)] + [48 + 2*i for i in range(sl.i)])
    P("L_end:\ns_endpgm")
    for t in tails: P(t)
    P("L_code_end:")
    return (KN, 256, 512, max(LDS_TOTAL, STAT + 2048 + 128), 256)
```

```python
from asmlib import *
from gen1 import f2u, LOG2E, ONES, EPS, ARG, SZ, srd, header, xg_reduce, NAME

RING = 7
KV_LDS = 5 * 20480
XR_LDS = RING * 20480
CS1_LDS = XR_LDS + 12288
CS3_LDS = CS1_LDS + 1024
SY_LDS = 131072 + 28672 + 2144
LDS_TOTAL = SY_LDS + 32
SPIN_MAX = 400000
STAMP_OFF = 0x4000000

class VM:
    def __init__(s, P): s.P = P; s.n = 0
    def op(s, text, k=1): s.P(text); s.n += k; return s.n - 1
    def cnt(s, idx):
        c = s.n - 1 - idx
        assert c >= 0
        return min(63, c)
    def wait(s, idx, extra=""): s.P(f"s_waitcnt vmcnt({s.cnt(idx)}){extra}")
class LG(VM):
    def cnt(s, idx): return min(15, s.n - 1 - idx)
    def wait(s, idx): s.P(f"s_waitcnt lgkmcnt({s.cnt(idx)})")

_lab = [0]
def lab(p):
    _lab[0] += 1
    return f"L_{p}{_lab[0]}"

def gen(P, L, opt):
    STAMP = opt.get("STAMP", False); FOCUS = opt.get("FOCUS", 0)
    NTOUCH = opt.get("NTOUCH", 1); THIN = opt.get("THIN", 1); PRE = opt.get("PRE", 8); PRE4 = opt.get("PRE4", 12)
    OSF = ["", " sc1", " nt"][opt.get("OSF", 0)]
    NSTG = L.NSTG; DBG = opt.get("DBG", 0)
    tails = []
    def store2(vm, lines):
        a, b = lab("sf"), lab("se")
        P(f"s_cbranch_scc1 {a}" if False else f"s_cmp_lg_u32 s24, 0\ns_cbranch_scc1 {a}")
        for l in lines: P(l)
        P(f"{b}:")
        tails.append(f"{a}:\ns_nop 4\n" + "\n".join(l + " sc1" for l in lines) + f"\ns_nop 1\ns_branch {b}")
        vm.n += len(lines)
        return vm.n - 1
    def poll_check(vaddr, vdata, soff, need, back=''):
        a, b, c = lab("pl"), lab("pd"), lab("pr")
        P(f"v_cmp_gt_u32 vcc, {need}, v{vdata}\ns_cbranch_vccnz {a}\n{b}:")
        tails.append(f"""{a}:
s_mov_b32 s47, 0
{c}:
{back}buffer_load_dword v{vdata}, v{vaddr}, s[20:23], {soff} offen sc1
s_add_u32 s47, s47, 1
s_cmp_ge_u32 s47, {SPIN_MAX}
s_waitcnt vmcnt(0)
s_cbranch_scc1 {b}
v_cmp_gt_u32 vcc, {need}, v{vdata}
s_cbranch_vccnz {c}
s_branch {b}""")
    def lds_check(vaddr, vdata, off, need, back=''):
        a, b, c = lab("ll"), lab("ld"), lab("lr")
        P(f"v_cmp_gt_u32 vcc, {need}, v{vdata}\ns_cbranch_vccnz {a}\n{b}:")
        tails.append(f"""{a}:
s_mov_b32 s47, 0
{c}:
{back}ds_read_b32 v{vdata}, v{vaddr} offset:{off}
s_add_u32 s47, s47, 1
s_cmp_ge_u32 s47, {SPIN_MAX*4}
s_waitcnt lgkmcnt(0)
s_cbranch_scc1 {b}
v_cmp_gt_u32 vcc, {need}, v{vdata}
s_cbranch_vccnz {c}
s_branch {b}""")
    class Stamper:
        def __init__(s, base, n): s.i = 0; s.base = base; s.n = n
        def __call__(s):
            if not (STAMP or DBG): return
            assert s.i < s.n
            if DBG:
                P(f"s_memrealtime s[{s.base+2*s.i}:{s.base+2*s.i+1}]"); s.i += 1; return
            P(f"s_memtime s[{s.base+2*s.i}:{s.base+2*s.i+1}]"); s.i += 1
    def stamp_dump(regs):
        regs = regs + [regs[-1]] * (26 - len(regs))
        P("s_waitcnt lgkmcnt(0)\nv_mov_b32 v40, s100\ns_memrealtime s[100:101]\ns_waitcnt lgkmcnt(0)\nv_mov_b32 v41, s100\nv_mov_b32 v2, 0")
        for i, r in enumerate(regs): P(f"v_mov_b32 v{42+i}, s{r}")
        P("s_mov_b32 s22, 0x8000000")
        P(f"s_lshl_b32 s43, s2, 3\ns_add_u32 s43, s43, s30\ns_lshl_b32 s43, s43, 7\ns_add_u32 s43, s43, {STAMP_OFF + 2*0x100000}\ns_mov_b64 exec, 1")
        for i in range(7): P(f"buffer_store_dwordx4 v[{40+4*i}:{43+4*i}], v2, s[20:23], s43 offen offset:{16*i}")

    KN = NAME + "_kernel"
    PI = opt.get("PI", 3); PP = opt.get("PP", 6); PSP = opt.get("PSP", 2); ZI = opt.get("ZI", 2); SI = opt.get("SI", 7)
    NTF = " nt" if opt.get("PREP_NT", 1) else ""
    PSF = " sc1"; QSF = " sc1"
    N1 = opt.get("N1", 4); TD = opt.get("TD", 4)
    CST = opt.get("CST", 1); WB = opt.get("WB", 0)
    PB = 131072; STAT = PB + 28672
    SLP = opt.get("SLP", 6)
    RL = STAT + 2048 + 64
    def spoll(base, imm, stride, n, need, t0, srd_="s[20:23]", slp=None, va=58, scalar=True, part=3):
        b, c, d = lab("zq"), lab("zr"), lab("zs")
        if scalar:
            for k in range(n if part & 1 else 0):
                if isinstance(stride, str): P(f"s_buffer_load_dword s{t0+k}, {srd_}, s{int(base[1:])+k}")
                elif base == "0": P(f"s_buffer_load_dword s{t0+k}, {srd_}, {imm + k*stride}")
                else: P(f"s_buffer_load_dword s{t0+k}, {srd_}, {base} offset:{imm + k*stride}")
            if not part & 2: return
            P("s_waitcnt lgkmcnt(0)")
            for k in range(1, n): P(f"s_min_u32 s{t0}, s{t0}, s{t0+k}")
            P(f"s_cmp_lt_u32 s{t0}, {need}\ns_cbranch_scc1 {c}\n{b}:")
        body = f"""{c}:
s_mov_b32 s47, 0
v_mul_u32_u24 v{va}, {stride}, v1
v_add_u32 v{va}, {imm}, v{va}
s_mov_b64 exec, {(1 << n) - 1}
{d}:
buffer_load_dword v{va+1}, v{va}, {srd_}, {base} offen sc1
s_add_u32 s47, s47, 1
s_waitcnt vmcnt(0)
v_cmp_gt_u32 vcc, {need}, v{va+1}
s_cbranch_vccz {d}x
s_sleep {SLP if slp is None else slp}
s_cmp_lt_u32 s47, {SPIN_MAX}
s_cbranch_scc1 {d}
{d}x:
s_mov_b64 exec, -1"""
        if scalar: tails.append(body + f"\ns_branch {b}")
        else: P(body)
    header(P, KN)
    sa = Stamper(80, 10)
    P(f"s_load_dwordx4 s[4:7], s[0:1], 0\ns_load_dwordx4 s[72:75], s[0:1], {ARG['dbg']}")
    P("s_cmp_ge_u32 s2, 256\ns_cbranch_scc1 L_end")
    if STAMP: P("s_memrealtime s[100:101]")
    sa()
    P("v_lshrrev_b32 v2, 6, v0\nv_and_b32 v1, 63, v0\nv_readfirstlane_b32 s30, v2")
    P("""s_and_b32 s25, s2, 7
s_lshr_b32 s26, s2, 3
s_and_b32 s27, s26, 3
s_lshr_b32 s28, s26, 2
s_lshr_b32 s31, s25, 1
s_lshl_b32 s31, s31, 2
s_add_u32 s31, s31, s27
s_and_b32 s32, s25, 1
s_lshl_b32 s32, s32, 3
s_add_u32 s32, s32, s28
s_mul_i32 s29, s27, 3
s_and_b32 s35, s25, 6
s_add_u32 s29, s29, s35
s_add_u32 s29, s29, s32
s_mul_i32 s35, s29, 6554
s_lshr_b32 s35, s35, 16
s_mul_i32 s35, s35, 10
s_sub_u32 s29, s29, s35""")
    P("s_cmp_lt_u32 s30, 4\ns_cbranch_scc1 L_k1_comp")
    P("s_setprio 2\ns_sub_u32 s33, s30, 4")
    P("v_lshrrev_b32 v8, 3, v1\nv_and_b32 v9, 7, v1\nv_lshrrev_b32 v10, 4, v1")
    P("s_cmp_eq_u32 s32, 15\ns_cbranch_scc1 L_k1_spare_h")
    P("v_mul_u32_u24 v11, 1280, v8\nv_xor_b32 v12, v10, v9\nv_lshl_add_u32 v4, v12, 4, v11\nv_xor_b32 v5, 64, v4")
    P("v_mul_u32_u24 v11, 3840, v10\nv_bfe_u32 v12, v1, 2, 2\nv_xor_b32 v12, v12, v10\nv_lshl_add_u32 v11, v12, 6, v11\nv_and_b32 v12, 3, v1\nv_lshl_add_u32 v3, v12, 4, v11")
    P("s_lshl_b32 s36, s31, 2\ns_add_u32 s36, s36, s33\ns_mul_i32 s36, s36, 40960")
    P("s_mul_i32 s37, s33, 61440\ns_lshl_b32 s38, s32, 8\ns_add_u32 s37, s37, s38\ns_lshl_b32 s39, s33, 12")
    P("s_mov_b32 s34, s29")
    P(f"s_mov_b32 s14, {SZ}\ns_mov_b32 s15, 0x20000\ns_mov_b32 s18, {640*3840}\ns_mov_b32 s19, 0x20000\ns_waitcnt lgkmcnt(0)")
    P("s_mov_b32 s12, s4\ns_and_b32 s13, s5, 0xffff\ns_mov_b32 s16, s6\ns_and_b32 s17, s7, 0xffff")
    nvm = [0]; last = {}
    def dma_list(i):
        slot = (i % 4) * 32768
        Lx = []
        for j in range(4):
            pre = "s_lshl_b32 s40, s34, 7\ns_add_u32 s40, s40, s36\ns_mul_i32 s41, s34, 245760\ns_add_u32 s41, s41, s37\n" if j == 0 else ""
            Lx.append(pre + f"s_add_u32 m0, s39, {slot + j*1024}\ns_nop 0\nbuffer_load_dwordx4 v{4+(j&1)}, s[12:15], s40 offen lds")
            post = f"\ns_add_u32 s41, s41, {4*3840}" if j < 3 else "\ns_add_u32 s34, s34, 1\ns_cmp_eq_u32 s34, 10\ns_cselect_b32 s34, 0, s34"
            Lx.append(f"s_add_u32 m0, s39, {slot + 16384 + j*1024}\ns_add_u32 s40, s40, 10240\nbuffer_load_dwordx4 v3, s[16:19], s41 offen lds" + post)
        nvm[0] += 8; last[i] = nvm[0] - 1
        return Lx
    for l in dma_list(0): P(l)
    def hsetup():
        P(f"s_setprio 0\ns_load_dwordx2 s[10:11], s[0:1], {ARG['wo']}\ns_load_dwordx8 s[56:63], s[0:1], {ARG['w1']}\nv_lshlrev_b32 v14, 4, v1\nv_mov_b32 v2, 0\ns_waitcnt lgkmcnt(0)")
        srd(P, 20, 74, L.WS_USED); srd(P, 76, 72, 256)
        P(f"v_mov_b32 v13, {RL}\nds_write_b32 v13, v2\nds_write_b32 v13, v2 offset:4\nds_write_b32 v13, v2 offset:8\nds_write_b32 v13, v2 offset:12")
        for k in range(8): P(f"ds_write_b32 v13, v2 offset:{SY_LDS - RL + 4*k}")
        P("s_waitcnt lgkmcnt(0)")
    hsetup()
    def decode(tag):
        P(f"""s_mov_b32 s64, s10
s_mov_b32 s65, s11
s_mov_b32 s50, 1280
s_mov_b32 s51, 5
s_mov_b32 s52, 0
s_mov_b32 s53, 0
s_mov_b32 s55, 0
s_mov_b32 s66, 819200
s_mov_b32 s70, 20
s_mov_b32 s67, s48
s_cmp_lt_u32 s48, 40
s_cbranch_scc1 L_dec4{tag}
s_mov_b32 s64, s56
s_mov_b32 s65, s57
s_mov_b32 s52, 5
s_mov_b32 s55, {L.CS1_OFF}
s_sub_u32 s67, s48, 40
s_cmp_lt_u32 s48, 80
s_cbranch_scc1 L_dec4{tag}
s_mov_b32 s64, s58
s_mov_b32 s65, s59
s_mov_b32 s52, 10
s_mov_b32 s55, 0
s_sub_u32 s67, s48, 80
s_cmp_lt_u32 s48, 120
s_cbranch_scc1 L_dec4{tag}
s_mov_b32 s64, s60
s_mov_b32 s65, s61
s_mov_b32 s50, 3456
s_mov_b32 s52, 15
s_mov_b32 s53, 1
s_mov_b32 s55, {L.CS3_OFF}
s_mov_b32 s66, 2211840
s_mov_b32 s51, 7
s_sub_u32 s67, s48, 120
s_mul_i32 s68, s67, 21846
s_lshr_b32 s68, s68, 16
s_mul_i32 s69, s68, 3
s_sub_u32 s69, s67, s69
s_cmp_lt_u32 s48, 201
s_cbranch_scc1 L_decj{tag}
s_mov_b32 s64, s62
s_mov_b32 s65, s63
s_mov_b32 s50, 1280
s_mov_b32 s52, 29
s_mov_b32 s53, 2
s_mov_b32 s55, 0
s_mov_b32 s70, 54
s_sub_u32 s67, s48, 201
s_lshr_b32 s68, s67, 3
s_and_b32 s69, s67, 7
s_branch L_decj{tag}
L_dec4{tag}:
s_lshr_b32 s68, s67, 2
s_and_b32 s69, s67, 3
L_decj{tag}:
s_mov_b32 s24, s64
s_and_b32 s25, s65, 0xffff
s_mov_b32 s26, s66
s_mov_b32 s27, 0x20000
s_mul_i32 s54, s69, s51
s_sub_u32 s70, s70, s54
s_min_u32 s51, s51, s70
s_lshl_b32 s49, s54, 2
s_add_u32 s49, s49, s33
s_lshl_b32 s49, s49, 3
s_mul_i32 s49, s49, s50
s_lshl_b32 s42, s68, 7
s_add_u32 s49, s49, s42
v_mul_lo_u32 v13, v8, s50
v_lshl_add_u32 v13, v9, 4, v13""")
        P(f"""s_lshl_b32 s42, s68, 2
s_add_u32 s42, s42, s33
s_mul_i32 s52, s52, 20480
s_add_u32 s52, s52, {L.WS_OFF}
s_cmp_eq_u32 s53, 1
s_cbranch_scc1 L_dw3{tag}
s_mul_i32 s43, s42, 52429
s_lshr_b32 s43, s43, 18
s_mul_i32 s44, s43, 5
s_sub_u32 s44, s42, s44
s_cmp_eq_u32 s44, 0
s_cselect_b32 s45, 4, -1
s_bitcmp1_b32 s43, 0
s_cselect_b32 s45, s45, 0
s_add_u32 s44, s44, s45
s_add_u32 s42, s42, s45
s_lshl_b32 s44, s44, 10
s_mul_i32 s46, s69, 2560
s_branch L_dj2{tag}
L_dw3{tag}:
s_lshr_b32 s45, s42, 1
s_mul_i32 s43, s45, 9363
s_lshr_b32 s43, s43, 16
s_cmp_eq_u32 s45, 48
s_cselect_b32 s43, 7, s43
s_mul_i32 s44, s43, 7
s_sub_u32 s44, s45, s44
s_cmp_eq_u32 s43, 7
s_addc_u32 s44, s44, 0
s_lshl_b32 s44, s44, 1
s_and_b32 s45, s42, 1
s_add_u32 s44, s44, s45
s_add_u32 s45, s44, 132
s_cmp_eq_u32 s44, 7
s_cselect_b32 s45, 146, s45
s_cmp_lt_u32 s44, 7
s_cselect_b32 s44, s44, s45
s_lshl_b32 s44, s44, 10
s_mul_i32 s46, s69, 8192
L_dj2{tag}:
s_mul_i32 s43, s43, {L.SLICE_B}
s_add_u32 s52, s52, s43
s_add_u32 s52, s52, s44
s_lshl_b32 s42, s42, 6
s_add_u32 s42, s42, s46
s_cmp_eq_u32 s55, 0
s_cselect_b32 s42, 0, s42
s_add_u32 s55, s55, s42""")
    def prep_dma(ldsbase_sreg, NTF=NTF):
        P(f"s_lshl_b32 s42, s33, 10\ns_add_u32 s42, s42, {ldsbase_sreg}\ns_lshl_b32 s43, s50, 5\ns_mov_b32 s44, s49")
        for k in range(7):
            P(f"s_add_u32 m0, s42, {k*4096}\ns_nop 0\nbuffer_load_dwordx4 v13, s[24:27], s44 offen{NTF} lds")
            if k in (4, 5): P(f"s_cmp_eq_u32 s51, {k+1}\ns_cselect_b32 s43, 0, s43")
            if k < 6: P("s_add_u32 s44, s44, s43")
        nvm[0] += 7
    def prep_addr(tag, ldsbase_sreg):
        P(f"""v_bfe_u32 v11, v1, 2, 2
v_lshl_add_u32 v11, v10, 3, v11
v_lshlrev_b32 v11, 7, v11
v_and_b32 v12, 3, v1
v_lshl_add_u32 v11, v12, 4, v11
s_lshr_b32 s42, s33, 1
s_lshl_b32 s42, s42, 6
s_and_b32 s43, s33, 1
s_lshl_b32 s43, s43, 3
s_add_u32 s42, s42, s43
s_add_u32 s42, s42, {ldsbase_sreg}
v_add_u32 v11, s42, v11
v_lshrrev_b32 v6, 1, v10
v_lshlrev_b32 v6, 9, v6
v_and_b32 v7, 1, v10
v_lshlrev_b32 v7, 9, v7
v_sub_u32 v6, v6, v7
v_add_u32 v6, v6, v11
v_lshlrev_b32 v7, 12, v10
v_add_u32 v7, v7, v11
v_add_u32 v7, 2048, v7
s_cmp_eq_u32 s53, 1
s_mov_b32 s46, 5120
s_cmov_b32 s46, 7168""")
        for k in range(7):
            P(f"""s_add_u32 s42, s54, {k}
s_mul_i32 s43, s42, 9363
s_lshr_b32 s43, s43, 16
s_cmp_eq_u32 s42, 48
s_cselect_b32 s43, 7, s43
s_mul_i32 s44, s43, 7
s_sub_u32 s44, s42, s44
s_cmp_eq_u32 s43, 7
s_addc_u32 s44, s44, 0
s_lshl_b32 s44, s44, 2
s_lshr_b32 s44, 0x6315420, s44
s_and_b32 s44, s44, 7
s_lshl_b32 s44, s44, 3
s_add_u32 s44, s44, s43
s_cmp_eq_u32 s53, 2
s_cselect_b32 s42, s44, s42
s_mul_i32 s42, s42, s46
s_add_u32 s{92+k}, s42, s52""")
    def prep_reads(tag):
        P(f"s_cmp_lt_u32 s48, 40\ns_cbranch_scc1 L_prw{tag}")
        for k in range(7):
            P(f"ds_read_b64_tr_b16 v[{64+4*k}:{65+4*k}], v11 offset:{k*4096}\nds_read_b64_tr_b16 v[{66+4*k}:{67+4*k}], v11 offset:{k*4096+512}")
        P(f"L_pre{tag}:")
        t = f"L_prw{tag}:\n"
        for k in range(4): t += f"ds_read_b64_tr_b16 v[{64+4*k}:{65+4*k}], v6 offset:{k*5120}\nds_read_b64_tr_b16 v[{66+4*k}:{67+4*k}], v6 offset:{k*5120+1024}\n"
        for k in (4, 5, 6): t += f"ds_read_b64_tr_b16 v[{64+4*k}:{65+4*k}], v7 offset:0\nds_read_b64_tr_b16 v[{66+4*k}:{67+4*k}], v7 offset:2560\n"
        tails.append(t + f"s_branch L_pre{tag}")
    def prep_stores(tag):
        P("s_waitcnt lgkmcnt(0)")
        for k in range(7):
            if k >= 5: P(f"s_cmp_eq_u32 s51, {k}\ns_cbranch_scc1 L_pp5{tag}")
            P(f"buffer_store_dwordx4 v[{64+4*k}:{67+4*k}], v14, s[20:23], s{92+k} offen{PSF}")
        P(f"L_pp5{tag}:")
    def prep_cs(tag):
        P(f"s_cmp_eq_u32 s55, 0\ns_cbranch_scc1 L_ppe{tag}")
        for r in range(4): P(f"v_mov_b32 v{56+r}, {ONES}")
        for k in range(7):
            if k >= 5: P(f"s_cmp_eq_u32 s51, {k}\ns_cbranch_scc1 L_pc5{tag}")
            P(f"v_mfma_f32_16x16x32_bf16 v[92:95], v[56:59], v[{64+4*k}:{67+4*k}], {'0' if k == 0 else 'v[92:95]'}")
        P(f"L_pc5{tag}:")
        P("v_lshlrev_b32 v62, 2, v1\ns_mov_b64 exec, 0xffff\nbuffer_store_dword v92, v62, s[20:23], s55 offen sc1\ns_mov_b64 exec, -1")
        P(f"L_ppe{tag}:")
    P("s_mul_i32 s48, s31, 15\ns_add_u32 s48, s48, s32\ns_add_u32 s48, s48, 41")
    decode("m")
    if not CST: prep_addr("m", PB)
    P("v_add_u32 v15, s39, v14")
    XS = 96
    P(f"""v_and_b32 v48, 31, v1
v_lshrrev_b32 v49, 5, v1
v_mul_u32_u24 v50, 2560, v49
v_lshl_add_u32 v52, v48, 2, v50
v_lshlrev_b32 v51, 1, v52""")
    pid = None; sid = None
    def pretouch():
        P(f"""s_and_b32 s42, s2, 7
s_lshl_b32 s43, s42, 11
s_add_u32 s43, s43, {L.FR_OFF}
s_lshl_b32 s44, s42, 10
s_add_u32 s44, s44, {L.FO_OFF}
s_cmp_eq_u32 s33, 0
s_cselect_b32 s43, s43, s44
s_cselect_b32 s45, 5, 4
s_lshl_b32 s44, s42, 5
s_lshr_b32 s42, s2, 3
s_add_u32 s44, s44, s42
s_lshl_b32 s44, s44, 10
s_add_u32 s44, s44, {L.ST_OFF}
s_cmp_ge_u32 s33, 2
s_cselect_b32 s43, s44, s43
v_lshlrev_b32 v124, s45, v1
buffer_load_dword v120, v124, s[20:23], s43 offen sc1""")
        nvm[0] += 1
    def fp_write(idx_sreg, n=1):
        e = lab("fp")
        P(f"s_cmp_lg_u32 s30, 4\ns_cbranch_scc1 {e}\ns_lshl_b32 s42, {idx_sreg}, 7\ns_add_u32 s42, s42, {L.FP_OFF}\nv_mov_b32 v60, 1\nv_lshlrev_b32 v62, 11, v1\ns_mov_b64 exec, {n}\nbuffer_store_dword v60, v62, s[20:23], s42 offen sc1\ns_mov_b64 exec, -1\n{e}:")
    def fx_write():
        e = lab("fx")
        P(f"""s_cmp_lg_u32 s30, 5
s_cbranch_scc1 {e}
s_getreg_b32 s42, hwreg(HW_REG_XCC_ID)
s_and_b32 s42, s42, 15
s_add_u32 s42, s42, 1
v_mov_b32 v60, s42
s_and_b32 s42, s2, 7
s_lshl_b32 s42, s42, 5
s_lshr_b32 s43, s2, 3
s_add_u32 s42, s42, s43
s_lshl_b32 s42, s42, 2
s_add_u32 s42, s42, {L.FX_OFF}
s_mov_b64 exec, 1
buffer_store_dword v60, v2, s[20:23], s42 offen sc1
s_mov_b64 exec, -1
{e}:""")
    for i in range(10):
        P(f"s_waitcnt vmcnt({min(nvm[0] - 1 - last[i], nvm[0] - 1 - pid) if i == PP else nvm[0] - 1 - last[i]})")
        if i == ZI + 2: spoll("0", 0, 4, 1, 64, 64, "s[76:79]", part=2)
        if i == SI + 1: spoll("s56", 0, "s70", 5, 1, 64, part=2)
        P("s_barrier")
        if i == ZI + 2:
            fx_write()
            e = lab("fs")
            P(f"s_cmp_lg_u32 s30, 6\ns_cbranch_scc1 {e}\ns_lshl_b32 s42, s31, 4\ns_add_u32 s42, s42, s32\ns_lshl_b32 s42, s42, 7\ns_add_u32 s42, s42, {L.FQ_OFF}\nv_mov_b32 v60, 1\ns_mov_b64 exec, 1\nbuffer_store_dword v60, v2, s[20:23], s42 offen sc1\ns_mov_b64 exec, -1\n{e}:")
        if i == 0:
            for j in range(4): P(f"ds_read_b128 v[{XS+4*j}:{XS+4*j+3}], v15 offset:{j*1024}")
            for l in dma_list(1): P(l)
            for j in range(4):
                P(f"s_waitcnt lgkmcnt({3 - j})")
                for r in range(4):
                    P(f"v_lshlrev_b32 v{112+2*r}, 16, v{XS+4*j+r}\nv_and_b32 v{113+2*r}, 0xffff0000, v{XS+4*j+r}")
                P(f"v_add_f32 v{16+2*j}, v112, v113\nv_mul_f32 v{17+2*j}, v112, v112\nv_fmac_f32 v{17+2*j}, v113, v113")
                for r in range(2, 8): P(f"v_add_f32 v{16+2*j}, v{16+2*j}, v{112+r}\nv_fmac_f32 v{17+2*j}, v{112+r}, v{112+r}")
            for ctl in ("quad_perm:[1,0,3,2]", "quad_perm:[2,3,0,1]", "row_half_mirror"):
                for r in range(8): P(f"v_add_f32_dpp v{16+r}, v{16+r}, v{16+r} {ctl} row_mask:0xf bank_mask:0xf")
            for j in range(1, 4):
                P(f"v_cmp_eq_u32 vcc, {j}, v9\nv_cndmask_b32 v16, v16, v{16+2*j}, vcc\nv_cndmask_b32 v17, v17, v{17+2*j}, vcc")
            P(f"""v_lshl_add_u32 v18, v9, 3, v8
v_lshlrev_b32 v18, 3, v18
s_mul_i32 s42, s31, 10
s_add_u32 s42, s42, s29
s_lshl_b32 s42, s42, 2
s_add_u32 s42, s42, s33
s_lshl_b32 s42, s42, 8
s_add_u32 s42, s42, {L.SR_OFF}
s_cmp_lt_u32 s32, 10
s_cselect_b32 s43, 0, 0x40000000
v_add_u32 v18, s43, v18""")
        if i + 2 < 10:
            for l in dma_list(i + 2): P(l)
        if i == SI + 1:
            P(f"""s_mul_i32 s42, s31, 10240
s_lshl_b32 s43, s33, 8
s_add_u32 s42, s42, s43
s_add_u32 s42, s42, {L.SR_OFF}
s_add_u32 s44, s42, 4096
s_mul_i32 s43, s32, 5120
s_lshl_b32 s46, s33, 7
s_add_u32 s43, s43, s46
s_add_u32 s43, s43, {L.SC_OFF}""")
            for k in range(5): P(f"buffer_load_dwordx2 v[{16+2*k}:{17+2*k}], v51, s[20:23], s{42 if k < 4 else 44} offen offset:{(k%4)*1024} sc1")
            for k in range(5): P(f"buffer_load_dword v{26+k}, v52, s[20:23], s43 offen offset:{k*512} sc1")
            nvm[0] += 10; slid = nvm[0] - 1
        if i == 0:
            P("s_mov_b32 exec_lo, 0x0f0f0f0f\ns_mov_b32 exec_hi, 0x0f0f0f0f\nbuffer_store_dwordx2 v[16:17], v18, s[20:23], s42 offen sc1\ns_mov_b64 exec, -1"); nvm[0] += 1
        SPF = opt.get("SPF", 0)
        if SPF and 1 <= i <= 7:
            k = i - 1
            e = lab("pf")
            if k >= 5: P(f"s_cmp_le_u32 s51, {k}\ns_cbranch_scc1 {e}")
            P(f"s_mul_i32 s42, s50, {32*k}\ns_add_u32 s42, s42, s49")
            for r in range(8):
                P(f"s_buffer_load_dword s61, s[24:27], s42")
                if SPF == 2: P(f"s_buffer_load_dword s62, s[24:27], s42 offset:64")
                if r < 7: P("s_add_u32 s42, s42, s50")
            P(f"{e}:")
        if i == ZI + 1: spoll("0", 0, 4, 1, 64, 64, "s[76:79]", part=1)
        if i == SI:
            P(f"""s_and_b32 s56, s33, 1
s_mul_i32 s56, s56, 5
s_lshl_b32 s57, s31, 4
s_add_u32 s57, s57, s56
s_lshl_b32 s56, s56, 4
s_add_u32 s56, s56, s32
s_cmp_lt_u32 s33, 2
s_cselect_b32 s56, s57, s56
s_cselect_b32 s46, 128, 2048
s_lshl_b32 s56, s56, 7
s_add_u32 s56, s56, {L.FQ_OFF}
s_add_u32 s57, s56, s70
s_add_u32 s58, s57, s70
s_add_u32 s59, s58, s70
s_add_u32 s60, s59, s70""".replace("s_cselect_b32 s46, 128, 2048", "s_mov_b32 s70, 2048\ns_cmov_b32 s70, 128"))
            spoll("s56", 0, "s70", 5, 1, 64, part=1)
        if i == PI: prep_dma(PB, "" if opt.get("SPF", 0) else NTF); pid = nvm[0] - 1
        if i == PP and not CST: prep_reads("m"); P("s_waitcnt lgkmcnt(0)"); prep_cs("m")
        if PP <= i <= SI and not CST:
            nst = SI - PP + 1
            for k in range((i - PP) * 7 // nst, (i - PP + 1) * 7 // nst):
                kk_ = 6 - k
                e = lab("ps")
                if kk_ >= 5: P(f"s_cmp_le_u32 s51, {kk_}\ns_cbranch_scc1 {e}")
                P(f"buffer_store_dwordx4 v[{64+4*kk_}:{67+4*kk_}], v14, s[20:23], s{92+kk_} offen sc1\n{e}:")
                if kk_ < 5: nvm[0] += 1
        if i == SI + 2:
            P(f"s_waitcnt vmcnt({nvm[0] - 1 - slid})")
            for k in range(1, 5): P(f"v_add_f32 v16, v16, v{16+2*k}\nv_add_f32 v17, v17, v{17+2*k}\nv_add_f32 v26, v26, v{26+k}")
            P("v_mov_b32 v18, v16\nv_mov_b32 v19, v17\nv_mov_b32 v27, v26\nv_permlane32_swap_b32 v16, v18\nv_permlane32_swap_b32 v17, v19\nv_permlane32_swap_b32 v26, v27\nv_add_f32 v16, v16, v18\nv_add_f32 v17, v17, v19\nv_add_f32 v26, v26, v27")
            P(f"v_mul_f32 v16, {f2u(1/640)}, v16\nv_mul_f32 v17, {f2u(1/640)}, v17\nv_fma_f32 v17, -v16, v16, v17\nv_max_f32 v17, 0, v17\nv_add_f32 v17, {f2u(EPS)}, v17\nv_rsq_f32 v17, v17")
            P(f"s_cmp_lt_u32 s32, 5\ns_cselect_b32 s41, {f2u(20**-0.5*LOG2E)}, 1.0\ns_lshl_b32 s42, s33, 7\ns_add_u32 s42, s42, {STAT}\nv_and_b32 v18, 31, v1\nv_lshl_add_u32 v18, v18, 2, s42\nv_mul_f32 v17, s41, v17\nv_mul_f32 v16, v16, v17")
            P("ds_write_b32 v18, v17\nds_write_b32 v18, v16 offset:512\nds_write_b32 v18, v26 offset:1024\ns_waitcnt lgkmcnt(0)")
    P("s_barrier")
    def wo_block(tag):
        P(f"v_mov_b32 v12, {RL}\nv_mov_b32 v60, 1\ns_lshr_b32 s44, s2, 5\ns_mul_i32 s43, s44, 5\ns_and_b32 s43, s43, 0xfc\ns_lshl_b32 s43, s43, 7\ns_add_u32 s43, s43, {L.FP_OFF}")
        spoll("s43", 0, 128, 8, 1, 56)
        P(f"s_mul_i32 s44, s44, {L.SLICE_B}\ns_mul_i32 s42, s33, {N1*1024}\ns_add_u32 s44, s44, s42\ns_add_u32 s44, s44, {L.WS_OFF}")
        for i in range(N1):
            if i % 4 == 0: P(f"s_add_u32 m0, s42, {i*1024}\ns_add_u32 s46, s44, {i*1024}")
            if i >= TD: P(f"s_waitcnt vmcnt({TD-1})")
            P(f"buffer_load_dwordx4 v14, s[20:23], s46 offen offset:{(i%4)*1024} sc1 lds")
    assert CST
    pretouch()
    P("L_k1_wo:")
    sa.i = 1; sa()
    wo_block("s")
    sa()
    P("s_branch L_loader")
    P("L_k1_spare_h:")
    hsetup()
    P("s_mov_b32 s48, s31\ns_mov_b32 s71, 0\nL_sp1:")
    decode("a"); prep_dma("s71")
    P("s_add_u32 s48, s48, 16\ns_add_u32 s71, s71, 28672\ns_cmp_lt_u32 s48, 41\ns_cbranch_scc1 L_sp1")
    P("s_waitcnt vmcnt(0)\ns_barrier\ns_mov_b32 s48, s31\ns_mov_b32 s71, 0\nL_sp2:")
    decode("b")
    prep_addr("b", "s71"); prep_reads("b"); prep_stores("b"); prep_cs("b")
    P("s_nop 4\ns_add_u32 s48, s48, 16\ns_add_u32 s71, s71, 28672\ns_cmp_lt_u32 s48, 41\ns_cbranch_scc1 L_sp2")
    spoll("0", 0, 4, 1, 64, 64, "s[76:79]")
    P("s_waitcnt vmcnt(0)")
    P("s_barrier\ns_mov_b32 s48, s31")
    P("s_cmp_lt_u32 s31, 9\ns_cselect_b32 s70, 7, 3\ns_mov_b32 s71, 0")
    fp_write("s48", "s[70:71]"); fx_write(); pretouch()
    P("s_branch L_k1_wo")
    P("L_k1_comp:\ns_mov_b32 s71, 0")
    sa.i = 1
    if opt.get("CPF", 1):
        NSEG = opt.get("NSEG", 8)
        P(f"""s_getpc_b64 s[48:49]
L_pc0:
s_sub_u32 s48, s48, L_pc0-{KN}
s_subb_u32 s49, s49, 0
s_lshl_b32 s50, s26, 2
s_add_u32 s50, s50, s30
s_cmp_ge_u32 s50, {NSEG}
s_cbranch_scc1 L_nocpf
s_lshl_b32 s50, s50, 13
v_lshl_add_u32 v60, v1, 7, s50
v_min_u32 v60, L_code_end-{KN}-4, v60
v_mov_b32 v61, s49
v_add_co_u32 v60, vcc, s48, v60
v_addc_co_u32 v61, vcc, 0, v61, vcc
global_load_dword v62, v[60:61], off
L_nocpf:""")
    P("s_cmp_eq_u32 s32, 15\ns_cbranch_scc1 L_k1_spare_c")
    P("s_waitcnt lgkmcnt(0)")
    srd(P, 20, 74, L.WS_USED)
    if opt.get("TLBW", 0):
        st_ = opt.get("TLBS", 16)
        P(f"""s_sub_u32 s50, s26, 2
s_lshl_b32 s50, s50, 2
s_add_u32 s50, s50, s30
s_cmp_ge_u32 s50, {(L.WS_USED >> (st_ + 6)) + 2}
s_cbranch_scc1 L_notlb
v_lshlrev_b32 v60, {st_}, v1
s_cmp_eq_u32 s50, 0
s_cbranch_scc1 L_tlbo
s_sub_u32 s50, s50, 1
s_lshl_b32 s50, s50, {st_ + 6}
v_add_u32 v60, s50, v60
buffer_load_dword v63, v60, s[20:23], 0 offen
s_branch L_notlb
L_tlbo:
s_load_dwordx2 s[52:53], s[0:1], {ARG['out']}
s_waitcnt lgkmcnt(0)
s_and_b32 s53, s53, 0xffff
s_mov_b32 s54, {SZ}
s_mov_b32 s55, 0x20000
v_lshlrev_b32 v60, 16, v1
buffer_load_dword v63, v60, s[52:55], 0 offen
L_notlb:""")
    if CST:
        P("s_mov_b32 s33, s30\nv_lshrrev_b32 v8, 3, v1\nv_and_b32 v9, 7, v1\nv_lshrrev_b32 v10, 4, v1\ns_mul_i32 s48, s31, 15\ns_add_u32 s48, s48, s32\ns_add_u32 s48, s48, 41")
        decode("c"); prep_addr("c", PB)
        P("v_mov_b32 v14, v11\nv_lshlrev_b32 v15, 4, v1\ns_mov_b32 s38, s51\ns_mov_b32 s39, s55\ns_lshl_b32 s71, s48, 7")
        for r in range(4): P(f"v_mov_b32 v{56+r}, {ONES}")
    P("s_lshr_b32 s34, s30, 1\ns_and_b32 s35, s30, 1")
    P("""v_and_b32 v36, 31, v1
v_lshrrev_b32 v39, 5, v1
s_lshl_b32 s41, s34, 6
v_add_u32 v10, s41, v36
v_bfe_u32 v11, v10, 1, 3
v_xor_b32 v11, v11, v39
v_lshlrev_b32 v11, 4, v11
v_lshl_add_u32 v20, v10, 7, v11
s_lshl_b32 s41, s35, 12
v_add_u32 v20, s41, v20""")
    for kk in range(1, 4): P(f"v_xor_b32 v{20+kk}, {kk*32}, v20")
    for kk in range(4): P(f"v_add_u32 v{24+kk}, 0x10000, v{20+kk}")
    for kk in range(8): P(f"v_xor_b32 v{40+kk}, 0x1000, v{20+kk}")
    P("""v_bfe_u32 v10, v1, 2, 2
v_lshl_add_u32 v11, v39, 3, v10
v_lshlrev_b32 v11, 8, v11
v_bfe_u32 v12, v1, 4, 1
v_lshl_add_u32 v11, v12, 5, v11
v_and_b32 v12, 3, v1
v_lshl_add_u32 v11, v12, 3, v11
s_lshl_b32 s41, s35, 1
s_add_u32 s41, s41, s34
v_xor_b32 v12, s41, v10
v_lshl_add_u32 v28, v12, 6, v11
v_xor_b32 v29, 64, v28
v_add_u32 v30, 0x10000, v28
v_add_u32 v31, 0x10000, v29""")
    ACC, FX, FW, SEL, CSA, AD, RSA = 64, 128, 144, 4, 32, 224, 16
    P(f"v_and_b32 v10, 15, v1\nv_bfe_u32 v11, v1, 4, 1\nv_cmp_eq_u32 vcc, v10, v11\nv_mov_b32 v10, {ONES}")
    for i in range(4): P(f"v_cndmask_b32 v{SEL+i}, 0, v10, vcc")
    P("""s_lshl_b32 s43, s31, 2
s_lshl_b32 s44, s34, 1
s_add_u32 s43, s43, s44
s_add_u32 s43, s43, s35
s_lshr_b32 s44, s43, 3
s_mul_i32 s44, s44, 327680
s_and_b32 s45, s43, 7
s_xor_b32 s46, s45, 1
s_mul_i32 s45, s45, 1280
s_mul_i32 s46, s46, 1280
s_add_u32 s45, s45, s44
s_add_u32 s46, s46, s44""")
    P("s_cmp_ge_u32 s32, 10\ns_cbranch_scc1 L_k1_v")
    for variant in ("qk", "v"):
        if variant == "v":
            P("L_k1_v:")
            sa.i = 1
            P(f"s_sub_u32 s41, s32, 10\ns_lshl_b32 s41, s41, 7\ns_lshl_b32 s42, s35, 6\ns_add_u32 s41, s41, s42\ns_lshl_b32 s42, s34, 5\ns_add_u32 s41, s41, s42\ns_add_u32 s45, s45, {L.V_OFF}\ns_add_u32 s46, s46, {L.V_OFF}")
            for ct in range(2):
                P(f"v_add_u32 v10, s41, v36\nv_xor_b32 v10, {32*ct}, v10\nv_mul_u32_u24 v11, 52429, v10\nv_lshrrev_b32 v11, 20, v11\nv_mul_u32_u24 v11, {10240-320}, v11\nv_lshl_add_u32 v11, v10, 4, v11\nv_mul_u32_u24 v12, 320, v39\nv_add_u32 v{AD+ct}, v11, v12")
        else:
            P(f"s_cmp_ge_u32 s32, 5\ns_cselect_b32 s42, 5, 0\ns_cselect_b32 s47, {L.K_OFF}, {L.Q_OFF}\ns_sub_u32 s41, s32, s42\ns_lshl_b32 s41, s41, 5\ns_lshl_b32 s42, s35, 4\ns_add_u32 s41, s41, s42\ns_lshl_b32 s42, s34, 3\ns_add_u32 s41, s41, s42\ns_add_u32 s45, s45, s47\ns_add_u32 s46, s46, s47")
            for ct in range(2):
                for b in range(4):
                    P(f"v_add_u32 v10, s41, v39\nv_xor_b32 v10, {8*ct}, v10\nv_add_u32 v10, {2*b}, v10\nv_mul_u32_u24 v11, 52429, v10\nv_lshrrev_b32 v11, 18, v11\nv_mul_u32_u24 v11, {10240-1280}, v11\nv_lshl_add_u32 v11, v10, 8, v11\nv_lshl_add_u32 v{AD+ct*4+b}, v36, 3, v11")
        P(f"""s_lshl_b32 s41, s35, 1
s_add_u32 s41, s41, s34
s_lshl_b32 s41, s41, 7
s_mul_i32 s40, s32, 10
s_add_u32 s40, s40, s29
s_lshl_b32 s40, s40, 9
s_add_u32 s40, s40, s41
s_add_u32 s40, s40, {L.SC_OFF}
s_cmp_lt_u32 s31, 10
s_cselect_b32 s43, 0, 0x40000000
s_add_u32 s41, s41, {STAT+1024}
v_lshl_add_u32 v37, v36, 2, s43
s_lshl_b32 s42, s34, 1
s_add_u32 s42, s42, s35
s_lshl_b32 s42, s42, 7
s_add_u32 s42, s42, {STAT}""")
        def rlist(n):
            st, kk = divmod(n, 4)
            b = n & 1
            slot = (st % 4) * 32768
            hi = slot >= 65536
            off = slot - (65536 if hi else 0)
            def xr(rt): return f"ds_read_b128 v[{FX+b*8+rt*4}:{FX+b*8+rt*4+3}], v{(40 if rt else 20)+(4 if hi else 0)+kk} offset:{off}"
            def wr(ct, h):
                ar = 28 + ct + (2 if hi else 0)
                return f"ds_read_b64_tr_b16 v[{FW+b*8+ct*4+2*h}:{FW+b*8+ct*4+2*h+1}], v{ar} offset:{off+16384+kk*4096+1024*h}"
            return [xr(0), wr(0, 0), wr(0, 1), wr(1, 0), wr(1, 1), xr(1)]
        P("s_barrier"); sa()
        for l in rlist(0): P(l)
        for n in range(40):
            b = n & 1
            nx = rlist(n + 1) if n + 1 < 40 else []
            def mf(t):
                rt, ct = t >> 1, t & 1
                x = v(FX + b*8 + rt*4, 4); w = v(FW + b*8 + ct*4, 4); d = v(ACC + t*16, 16)
                c = "0" if n == 0 else d
                if variant == "qk": P(f"v_mfma_f32_32x32x16_bf16 {d}, {w}, {x}, {c}")
                else: P(f"v_mfma_f32_32x32x16_bf16 {d}, {x}, {w}, {c}")
            P("s_waitcnt lgkmcnt(3)")
            mf(0)
            if nx and (n + 1) % 4 == 0:
                if (n + 1) // 4 in (ZI + 2, WB): P("s_waitcnt vmcnt(0)")
                P("s_barrier")
                if (n + 1) // 4 == WB:
                    assert 4*PP + 1 + 6*PSP + 1 < n
                    e = lab("wb"); P(f"s_cmp_lg_u32 s30, 0\ns_cbranch_scc1 {e}\nbuffer_wbl2 sc1\n{e}:")
                if FOCUS == 21 and STAMP: P(f"s_memtime s[{52+2*((n+1)//4-1)}:{53+2*((n+1)//4-1)}]")
            k = 0
            if CST:
                pk_, pr_ = divmod(n - (4*PP + 1), PSP)
                if 0 <= pk_ < 7 and pr_ == 0:
                    P(f"ds_read_b64_tr_b16 v[{160+4*pk_}:{161+4*pk_}], v14 offset:{pk_*4096}\nds_read_b64_tr_b16 v[{162+4*pk_}:{163+4*pk_}], v14 offset:{pk_*4096+512}"); k += 2
                if 0 <= pk_ < 7 and pr_ == 1:
                    e = lab("ps")
                    if pk_ >= 5: P(f"s_cmp_le_u32 s38, {pk_}\ns_cbranch_scc1 {e}")
                    P(f"buffer_store_dwordx4 v[{160+4*pk_}:{163+4*pk_}], v15, s[20:23], s{92+pk_} offen{'' if WB else ' sc1'}")
                    P(f"v_mfma_f32_16x16x32_bf16 v[16:19], v[56:59], v[{160+4*pk_}:{163+4*pk_}], {'0' if pk_ == 0 else 'v[16:19]'}\n{e}:")
            for l in nx[:2]: P(l); k += 1
            P(f"s_waitcnt lgkmcnt({1 + k})")
            mf(1)
            for l in nx[2:4]: P(l); k += 1
            P(f"s_waitcnt lgkmcnt({k})")
            mf(2)
            for l in nx[4:6]: P(l)
            mf(3)
            if n < 4: P(f"v_mfma_f32_16x16x32_bf16 {v(CSA,4)}, {v(SEL,4)}, {v(FW+b*8,4)}, {'0' if n == 0 else v(CSA,4)}")
            if n == 4:
                P(f"s_mov_b64 exec, 0xffff\nbuffer_store_dword v{CSA}, v37, s[20:23], s40 offen sc1\nbuffer_store_dword v{CSA+1}, v37, s[20:23], s40 offen offset:64 sc1\ns_mov_b64 exec, -1")
        sa()
        if CST:
            assert 4*PP + 1 + 6*PSP + 1 <= 39
            e = lab("pc")
            P(f"s_cmp_eq_u32 s39, 0\ns_cbranch_scc1 {e}\nv_lshlrev_b32 v62, 2, v1\ns_mov_b64 exec, 0xffff\nbuffer_store_dword v16, v62, s[20:23], s39 offen sc1\ns_mov_b64 exec, -1\n{e}:")
        P("s_barrier")
        if variant == "qk":
            P(f"""v_lshl_add_u32 v37, v36, 2, s42
v_xor_b32 v38, 128, v37
ds_read_b32 v40, v37
ds_read_b32 v42, v37 offset:512
ds_read_b32 v44, v38
ds_read_b32 v46, v38 offset:512
v_lshl_add_u32 v37, v39, 4, s41
v_xor_b32 v38, 128, v37""")
            for ct in range(2):
                for b in range(4):
                    P(f"ds_read_b128 v[{128+ct*16+b*4}:{128+ct*16+b*4+3}], v{37+ct} offset:{b*32}")
            P("s_waitcnt lgkmcnt(8)")
            for r in (40, 42, 44, 46): P(f"v_mov_b32 v{r+1}, v{r}")
            P("s_waitcnt lgkmcnt(0)")
            for t in range(4):
                rt, ct = t >> 1, t & 1
                A = v(40 + rt*4, 2); B = v(42 + rt*4, 2)
                for p in range(8):
                    r = ACC + t*16 + 2*p
                    P(f"v_pk_mul_f32 v[{48+2*(p&3)}:{49+2*(p&3)}], v[{128+ct*16+2*p}:{128+ct*16+2*p+1}], {B}")
                    P(f"v_pk_fma_f32 v[{r}:{r+1}], v[{r}:{r+1}], {A}, v[{48+2*(p&3)}:{49+2*(p&3)}] neg_lo:[0,0,1] neg_hi:[0,0,1]")
                for p in range(8):
                    r = ACC + t*16 + 2*p
                    P(f"v_cvt_pk_bf16_f32 v{160+t*8+p}, v{r}, v{r+1}")
                for b in range(4):
                    P(f"buffer_store_dwordx2 v[{160+t*8+2*b}:{160+t*8+2*b+1}], v{AD+ct*4+b}, s[20:23], s{45+rt} offen{QSF}")
        else:
            P(f"""v_lshl_add_u32 v37, v36, 2, s41
v_xor_b32 v38, 128, v37
ds_read_b32 v40, v37
ds_read_b32 v42, v38
v_lshl_add_u32 v37, v39, 4, s42
v_xor_b32 v38, 128, v37""")
            for rt in range(2):
                for b in range(4):
                    P(f"ds_read_b128 v[{128+rt*32+b*4}:{128+rt*32+b*4+3}], v{37+rt} offset:{b*32}")
                    P(f"ds_read_b128 v[{144+rt*32+b*4}:{144+rt*32+b*4+3}], v{37+rt} offset:{512+b*32}")
            P("s_waitcnt lgkmcnt(0)\nv_mov_b32 v41, v40\nv_mov_b32 v43, v42")
            for t in range(4):
                rt, ct = t >> 1, t & 1
                C = v(40 + ct*2, 2)
                for p in range(8):
                    r = ACC + t*16 + 2*p
                    P(f"v_pk_mul_f32 v[{48+2*(p&3)}:{49+2*(p&3)}], v[{144+rt*32+2*p}:{144+rt*32+2*p+1}], {C}")
                    P(f"v_pk_fma_f32 v[{r}:{r+1}], v[{r}:{r+1}], v[{128+rt*32+2*p}:{128+rt*32+2*p+1}], v[{48+2*(p&3)}:{49+2*(p&3)}] neg_lo:[0,0,1] neg_hi:[0,0,1]")
                for p in range(8):
                    r = ACC + t*16 + 2*p
                    P(f"v_cvt_pk_bf16_f32 v{192+t*8+p}, v{r}, v{r+1}")
                for u in range(2):
                    P(f"buffer_store_dwordx4 v[{192+t*8+4*u}:{192+t*8+4*u+3}], v{AD+ct}, s[20:23], s{45+rt} offen offset:{640*u}{QSF}")
        sa()
        if FOCUS == 21 and STAMP:
            stamp_dump([80, 82] + [52 + 2*i for i in range(9)] + [84, 86]); P(f"s_mov_b64 exec, -1\ns_mov_b32 s22, {L.WS_USED}")
        P(f"v_mov_b32 v10, {RL}\nv_mov_b32 v11, 1\ns_mov_b64 exec, 1\nds_add_u32 v10, v11 offset:12\ns_mov_b64 exec, -1")
        P("s_mov_b32 s24, 1\ns_branch L_k2")
    P("L_k1_spare_c:\ns_waitcnt lgkmcnt(0)")
    srd(P, 20, 74, L.WS_USED); srd(P, 76, 72, 256)
    P(f"v_lshlrev_b32 v3, 4, v1\nv_mov_b32 v4, 0\nv_mov_b32 v5, 0\nv_mov_b32 v6, 0\nv_mov_b32 v7, 0\ns_lshl_b32 s43, s31, 2\ns_add_u32 s43, s43, s30\ns_lshl_b32 s44, s43, 12\ns_lshl_b32 s43, s43, 11\ns_add_u32 s43, s43, {L.FLAG_OFF}\ns_add_u32 s44, s44, {L.ST_OFF}")
    P("buffer_store_dwordx4 v[4:7], v3, s[20:23], s43 offen sc1\nbuffer_store_dwordx4 v[4:7], v3, s[20:23], s43 offen offset:1024 sc1")
    for k in range(4): P(f"buffer_store_dwordx4 v[4:7], v3, s[20:23], s44 offen offset:{k*1024} sc1")
    P("v_mov_b32 v8, 1\ns_waitcnt vmcnt(0)\ns_mov_b64 exec, 1\nbuffer_atomic_add v8, v4, s[76:79], 0 offen sc1\ns_mov_b64 exec, -1")
    sa.i = 1; sa(); sa(); sa()
    P("s_barrier\ns_barrier\ns_mov_b32 s24, 0")
    IDS = """s_and_b32 s25, s2, 7
s_lshr_b32 s26, s2, 3
s_and_b32 s27, s26, 3
s_lshl_b32 s28, s25, 2
s_add_u32 s27, s27, s28
s_lshr_b32 s28, s2, 5
s_and_b32 s29, s30, 3
s_lshl_b32 s43, s27, 2
s_add_u32 s29, s29, s43
s_mul_i32 s34, s28, 5
s_and_b32 s37, s28, 1
s_lshr_b32 s35, s34, 1
s_add_u32 s36, s35, 2
s_lshl_b32 s43, s37, 1
s_sub_u32 s36, s36, s43
s_add_u32 s35, s35, s37"""
    P("L_k2:")
    P(f"s_load_dwordx2 s[6:7], s[0:1], {ARG['out']}")
    P(f"s_lshl_b32 s42, s31, 4\ns_add_u32 s42, s42, s32\ns_lshl_b32 s42, s42, 7\ns_add_u32 s42, s42, {L.FQ_OFF}\ns_add_u32 s9, s71, {L.FP_OFF}")
    P(IDS)
    S, KF, VF, OA, PM, CA, MB = 32, 176, 200, 224, 240, 248, 4
    L4V, MODEV, SYA, SYW, RMV = 252, 253, 254, 255, 248
    QR = [16, 8]
    P(f"""v_lshlrev_b32 v3, 4, v1
s_mul_i32 s40, s25, 327680
s_mul_i32 s41, s26, 10240
s_add_u32 s40, s40, s41
s_mul_i32 s41, s30, 1280
s_add_u32 s40, s40, s41
s_add_u32 s39, s40, 5120
s_lshl_b32 s31, s25, 3
s_add_u32 s31, s31, s30
v_and_b32 v30, 31, v1
v_lshrrev_b32 v31, 5, v1
v_lshlrev_b32 v27, 3, v30
v_lshl_add_u32 v28, v31, 9, v27
s_add_u32 s41, s41, {KV_LDS}
v_add_u32 v24, s41, v28
v_add_u32 v25, s41, v27
v_mul_u32_u24 v26, 320, v31
v_lshl_add_u32 v26, v30, 4, v26
v_add_u32 v26, s41, v26
v_lshlrev_b32 v{L4V}, 2, v30
s_lshl_b32 s44, s25, 1
s_add_u32 s43, s30, s44
s_max_u32 s43, s43, 2
s_sub_u32 s43, s43, 2
s_mul_i32 s45, s26, 20
s_lshr_b32 s44, s45, 7
s_add_u32 s45, s45, 19
s_lshr_b32 s45, s45, 7
s_sub_u32 s45, s45, s44
s_lshl_b32 s45, s45, 7
s_lshl_b32 s43, s43, 4
s_add_u32 s43, s43, s44
s_lshl_b32 s43, s43, 7
s_add_u32 s38, s43, {L.FQ_OFF}
v_lshrrev_b32 v58, 1, v1
v_mul_u32_u24 v58, 640, v58
v_and_b32 v59, 1, v1
v_mul_lo_u32 v59, v59, s45
v_add_u32 v58, v58, v59
s_lshl_b32 s33, s25, 7
s_add_u32 s33, s33, {L.FX_OFF}
v_mov_b32 v2, 0
v_mov_b32 v5, 1
v_mov_b32 v6, {RL + 4}""")
    for r in range(16):
        m = 0
        for l in range(64):
            if 8*(r >> 2) + 4*(l >> 5) + (r & 3) <= (l & 31): m |= 1 << l
        P(f"s_mov_b32 s{48+2*r}, {m & 0xffffffff:#x}\ns_mov_b32 s{49+2*r}, {m >> 32:#x}")
    P(f"""s_cmp_lg_u32 s24, 1
s_cbranch_scc1 L_nofq
s_mov_b64 exec, 1
s_waitcnt vmcnt(0)
ds_add_rtn_u32 v7, v6, v5
s_waitcnt lgkmcnt(0)
v_readfirstlane_b32 s46, v7
s_cmp_lg_u32 s46, 3
s_cbranch_scc1 L_nofq
v_mov_b32 v7, 2
buffer_store_dword v7, v2, s[20:23], s42 offen sc1
buffer_store_dword v7, v2, s[20:23], s9 offen sc1
L_nofq:
s_mov_b64 exec, -1""")
    sa()
    P(f"buffer_load_dword v{MODEV}, v{L4V}, s[20:23], s33 offen sc1\ns_waitcnt lgkmcnt(0)")
    srd(P, 16, 6, SZ)
    for b in range(3): P(f"v_mov_b32 v{KF+b*8+6}, 0\nv_mov_b32 v{KF+b*8+7}, 0")
    for r in range(24): P(f"v_mov_b32 v{VF+r}, {ONES}")
    P("v_mov_b32 v4, 0xffff\nv_mov_b32 v7, 0xffff0000")
    for p in range(8):
        P(f"v_cndmask_b32 v{PM+p}, 0, v4, s[{48+4*p}:{49+4*p}]\nv_cndmask_b32 v12, 0, v7, s[{50+4*p}:{51+4*p}]\nv_or_b32 v{PM+p}, v{PM+p}, v12")
    P(f"v_cmp_gt_u32 vcc, 32, v1\nv_mov_b32 v4, 0xbf80bf80\nv_mov_b32 v7, 0x0000bf80\nv_cndmask_b32 v{CA}, 0, v4, vcc\nv_cndmask_b32 v{CA+1}, 0, v7, vcc\nv_mov_b32 v{CA+2}, 0\nv_mov_b32 v{CA+3}, 0")
    P("v_mov_b32 v4, 0x7ffffff0\nv_cndmask_b32 v27, v4, v27, vcc")
    P("s_mov_b32 s44, 0x000fffff\ns_mov_b32 s45, 0x000fffff\nv_mov_b32 v6, 0\nv_mov_b32 v7, 0\nv_mov_b32 v14, 0\nv_mov_b32 v15, 0\nv_mov_b32 v22, 0\nv_mov_b32 v23, 0")
    P(f"v_and_b32 v{SYA}, 3, v1\nv_lshlrev_b32 v{SYA}, 2, v{SYA}\nv_add_u32 v{SYA}, {SY_LDS}, v{SYA}\ns_lshl_b32 s43, s30, 2\ns_add_u32 s43, s43, {SY_LDS}\nv_mov_b32 v{SYW}, s43")
    P(f"s_lshl_b32 s8, s31, 5\ns_add_u32 s8, s8, s26\ns_lshl_b32 s8, s8, 2\ns_add_u32 s8, s8, {L.FO_OFF}")
    P("s_waitcnt vmcnt(0)")
    poll_check(L4V, MODEV, "s33", 1, f"s_sleep {SLP}\n")
    P(f"v_readfirstlane_b32 s43, v{MODEV}\nv_cmp_ne_u32 vcc, s43, v{MODEV}\ns_cmp_lg_u32 vcc_lo, 0\ns_cselect_b32 s24, 1, 0")
    if opt.get("SAFE"): P("s_mov_b32 s24, 1")
    P("s_mov_b64 exec, 63\nbuffer_load_dword v59, v58, s[20:23], s38 offen sc1\ns_waitcnt vmcnt(0)")
    poll_check(58, 59, "s38", 2, f"s_sleep {opt.get('SLQ', 3)}\n")
    P("s_mov_b64 exec, -1\ns_barrier")
    sa()
    for a in range(2):
        q = QR[a]; so = "s40" if a == 0 else "s39"
        P(f"buffer_load_dwordx2 v[{q}:{q+1}], v28, s[20:23], {so} offen sc1\nbuffer_load_dwordx2 v[{q+2}:{q+3}], v28, s[20:23], {so} offen offset:256 sc1\nbuffer_load_dwordx2 v[{q+4}:{q+5}], v27, s[20:23], {so} offen offset:1024 sc1")
    P(f"s_waitcnt vmcnt(0)\nds_read_b32 v{MODEV}, v{SYA}\ns_waitcnt lgkmcnt(0)")
    lds_check(SYA, MODEV, 0, 1)
    sa()
    if STAMP or DBG: P("s_waitcnt lgkmcnt(0)")
    lg = LG(P); vm = VM(P)
    M = 28
    qko = [8, 0, 1, 2, 3, 4, 5, 6, 7]
    kseq = [(a, t) for a in range(2) for t in qko]
    kid = {}; kpos = [0]
    def kread():
        if kpos[0] >= len(kseq): return
        a, t = kseq[kpos[0]]; b = kpos[0] % 3; kpos[0] += 1
        o = t*1280 + a*5120
        kid[(a, t)] = (b, lg.op(f"ds_read_b64 v[{KF+b*8}:{KF+b*8+1}], v24 offset:{o}\nds_read_b64 v[{KF+b*8+2}:{KF+b*8+3}], v24 offset:{o+256}\nds_read_b64 v[{KF+b*8+4}:{KF+b*8+5}], v25 offset:{o+1024}", 3))
    def qk(a, t, half):
        def f():
            b, i = kid[(a, t)]; d = v(S + 16*t, 16)
            if half == 0:
                lg.wait(i)
                P(f"v_mfma_f32_32x32x16_bf16 {d}, {v(KF+b*8,4)}, {v(QR[a],4)}, 0")
            else:
                P(f"v_mfma_f32_32x32x16_bf16 {d}, {v(KF+b*8+4,4)}, {v(QR[a]+4,4)}, {d}")
                kread()
        return f
    mst = [0, 0]
    def maxops(a, t):
        ops = []
        if t == 8: return ops
        lim = 8 - t - 4*a
        if lim > 0:
            x, e = lab("ab"), lab("ae")
            ops.append(f"s_cmp_lt_u32 s31, {lim}\ns_cbranch_scc1 {x}\n{e}:")
            tails.append(f"{x}:\ns_nop 11\n" + "\n".join(f"v_mov_b32 v{S+16*t+r}, 0xff800000" for r in range(16)) + f"\ns_branch {e}")
        if t == 0:
            for r in range(16): ops.append(f"v_cndmask_b32 v{S+r}, v{S+r}, v{S+128+r}, s[{48+2*r}:{49+2*r}]")
        for r in range(0, 16, 2):
            k = mst[a] & 1; x, y = S + 16*t + r, S + 16*t + r + 1
            ops.append(f"v_max_f32 v{M+k}, v{x}, v{y}" if mst[a] < 2 else f"v_max3_f32 v{M+k}, v{M+k}, v{x}, v{y}")
            mst[a] += 1
        return ops
    def mfin():
        P(f"""v_max_f32 v{M}, v{M}, v{M+1}
v_mov_b32 v{M+1}, v{M}
v_permlane32_swap_b32 v{M}, v{M+1}
v_max_f32 v{M}, v{M}, v{M+1}
v_and_b32 v29, 0xffff0000, v{M}
v_sub_f32 v30, v{M}, v29
v_and_b32 v31, 0xffff0000, v30
v_sub_f32 v30, v30, v31
v_lshrrev_b32 v29, 16, v29
v_or_b32 v{MB}, v29, v31
v_lshrrev_b32 v{MB+1}, 16, v30""")
    vseq = [(a, t) for a in range(2) for t in qko]
    vid = {}; vpos = [0]
    def vread(n=1):
        if vpos[0] >= len(vseq): return
        P("s_mov_b64 exec, s[44:45]")
        for _ in range(n):
            a, t = vseq[vpos[0]]; b = vpos[0] % 3; vpos[0] += 1
            o = 20480 + t*1280 + a*5120
            vid[(a, t)] = (b, lg.op(f"ds_read_b128 {v(VF+b*8,4)}, v26 offset:{o}\nds_read_b128 {v(VF+b*8+4,4)}, v26 offset:{o+640}", 2))
        P("s_mov_b64 exec, -1")
    def subm(t): P(f"v_mfma_f32_32x32x16_bf16 {v(S+16*t,16)}, {v(CA,4)}, {v(MB,4)}, {v(S+16*t,16)}")
    def pv(a, vt, half, preg):
        def f():
            b, i = vid[(a, vt)]
            if half == 0: lg.wait(i)
            c = "0" if (vt == 8 and half == 0) else v(OA, 16)
            P(f"v_mfma_f32_32x32x16_bf16 {v(OA,16)}, {v(VF+b*8+4*half,4)}, {v(preg+4*half,4)}, {c}")
            if half == 1: vread()
        return f
    def mix(valu, mfs):
        n = len(valu); k = len(mfs)
        pos = [int(j * n / k) for j in range(k)] if k else []
        for i, o in enumerate(valu):
            while pos and pos[0] == i: pos.pop(0); mfs.pop(0)()
            P(o)
        for f in mfs: f()
    D8 = S + 128
    def o_out(a):
        P(f"v_rcp_f32 v30, v{OA+12}")
        for r in range(12): P(f"v_mul_f32 v{OA+r}, v{OA+r}, v30")
        for p in range(6): P(f"v_cvt_pk_bf16_f32 v{16+p}, v{OA+2*p}, v{OA+2*p+1}")
        so = "s40" if a == 0 else "s39"
        return store2(vm, [f"buffer_store_dwordx4 v[16:19], v3, s[20:23], {so} offen", f"buffer_store_dwordx2 v[20:21], v27, s[20:23], {so} offen offset:1024"])
    def o_flag(a):
        P(f"v_mov_b32 v30, 1\ns_waitcnt vmcnt(0)\ns_mov_b64 exec, 1")
        store2(vm, [f"buffer_store_dword v30, v2, s[20:23], s8 offen offset:{512*a}"])
        P("s_mov_b64 exec, -1")
    kread(); kread(); kread()
    for i, t in enumerate(qko):
        prev = maxops(0, qko[i-1]) if i >= 2 else []
        qk(0, t, 0)(); qk(0, t, 1)()
        if i == 7: ry = lg.op(f"ds_read_b32 v{MODEV}, v{SYA}")
        for o in prev: P(o)
    for o in maxops(0, 7): P(o)
    mfin()
    if FOCUS == 30 and STAMP: P("s_memtime s[82:83]")
    lg.wait(ry); lds_check(SYA, MODEV, 0, 2)
    if FOCUS == 30 and STAMP: P("s_memtime s[84:85]")
    for a in range(2):
        subm(0)
        if a == 0: vread(3)
        pend = []
        for i in range(8):
            base = S + 16*i
            mfs = [lambda tt=i+1: subm(tt)] if i < 7 else []
            mfs += pend
            valu = [f"v_exp_f32 v{base+r}, v{base+r}" for r in range(16)]
            if a == 0:
                for t in ([8, 0] if i == 2 else ([i - 2] if i >= 3 else [])): mfs += [qk(1, t, 0), qk(1, t, 1)]
                if i >= 3: valu += maxops(1, i - 3)
            if a == 1 and i == 1: valu.insert(8, None)
            valu += [f"v_cvt_pk_bf16_f32 v{base+p}, v{base+2*p}, v{base+2*p+1}" for p in range(8)]
            if None in valu:
                k = valu.index(None); valu.pop(k)
                mfs.append(lambda: o_flag(0))
            mix(valu, mfs)
            if FOCUS == 30 and STAMP and a == 0 and i in (1, 4, 7): P(f"s_memtime s[{86+2*(i//3)}:{87+2*(i//3)}]")
            if i == 0:
                for p in range(8): P(f"v_and_b32 v{D8+p}, v{PM+p}, v{base+p}\nv_bfi_b32 v{base+p}, v{PM+p}, 0, v{base+p}")
                pend = [pv(a, 8, 0, D8), pv(a, 8, 1, D8), pv(a, 0, 0, base), pv(a, 0, 1, base)]
            else: pend = [pv(a, i, 0, base), pv(a, i, 1, base)]
        if a == 0:
            mix(maxops(1, 5), [qk(1, 6, 0), qk(1, 6, 1)] + pend + [qk(1, 7, 0), qk(1, 7, 1)])
            for o in maxops(1, 6): P(o)
            o_out(0)
            for o in maxops(1, 7): P(o)
            mfin()
            sa()
        else:
            for f in pend: f()
            P(f"v_mov_b32 v31, 1\nds_write_b32 v{SYW}, v31 offset:16")
            sa()
            o_out(1)

    st0 = Stamper(48, 16)
    def st():
        if FOCUS == 0: st0()
    def sf(ph):
        if FOCUS == ph: st0()
    ACC, BF, ST, ST1, ST3, HP, ACC4, CS, PK, AF, A4 = 16, 40, 68, 72, 76, 80, 92, 112, 132, 144, 224
    NA4 = 6
    SYD, SYV = 90, 91
    D = 6
    P(f"ds_read_b32 v{SYD}, v{SYA}\ns_lshr_b32 s43, s29, 1\ns_lshl_b32 s43, s43, 7\ns_add_u32 s45, s43, {L.FO_OFF}")
    P(f"v_lshrrev_b32 v{RMV}, 2, v1\nv_mul_u32_u24 v{RMV}, 1280, v{RMV}\nv_and_b32 v4, 3, v1\nv_lshl_add_u32 v{RMV}, v4, 4, v{RMV}")
    P("s_mul_i32 s40, s29, 20480\ns_lshl_b32 s41, s35, 10\ns_add_u32 s41, s41, s40\ns_lshl_b32 s42, s36, 10\ns_add_u32 s42, s42, s40\ns_lshl_b32 s43, s37, 3\ns_add_u32 s42, s42, s43")
    P("v_add_u32 v8, 0x10000, v3\nv_add_u32 v9, 0x20000, v3")
    P(f"s_mul_i32 s46, s30, 3072\ns_add_u32 s46, s46, {XR_LDS}")
    P("v_and_b32 v5, 15, v1\nv_lshlrev_b32 v5, 6, v5\nv_lshrrev_b32 v6, 4, v1\nv_lshl_add_u32 v5, v6, 4, v5\nv_add_u32 v5, s46, v5\ns_lshl_b32 s43, s37, 3\nv_add_u32 v6, s43, v5")
    P(f"v_and_b32 v7, 0x30, v1\nv_add_u32 v7, {CS1_LDS}, v7")
    P(f"s_lshl_b32 s33, s29, 7\ns_add_u32 s33, s33, {L.FR_OFF}\ns_lshl_b32 s43, s28, 2\ns_add_u32 s34, s33, s43")
    P("v_and_b32 v14, 7, v1\nv_lshlrev_b32 v14, 2, v14")
    P(f"s_lshl_b32 s46, s29, 11\ns_add_u32 s46, s46, {L.ST_OFF}")
    P("s_lshr_b32 s44, s28, 1\ns_lshl_b32 s44, s44, 8\ns_add_u32 s9, s46, s44\ns_lshl_b32 s44, s37, 3\ns_add_u32 s9, s9, s44")
    P(f"""s_mul_i32 s10, s25, 327680
s_bfe_u32 s43, s29, 0x30001
s_mul_i32 s43, s43, 1280
s_add_u32 s10, s10, s43
s_and_b32 s43, s29, 1
s_lshl_b32 s43, s43, 7
s_add_u32 s11, s10, s43
s_add_u32 s11, s11, {L.Q_OFF + 1024}
s_lshl_b32 s43, s43, 1
s_add_u32 s10, s10, s43
s_add_u32 s10, s10, {L.Q_OFF}
v_lshrrev_b32 v10, 5, v1
v_mul_u32_u24 v250, 10240, v10
v_bfe_u32 v10, v1, 4, 1
v_lshl_add_u32 v250, v10, 9, v250
v_and_b32 v10, 15, v1
v_lshl_add_u32 v250, v10, 4, v250
v_lshrrev_b32 v11, 4, v1
v_mul_u32_u24 v251, 20480, v11
v_lshl_add_u32 v251, v10, 3, v251""")
    def lds_off(stage, chunk):
        off = (stage % RING) * 20480 + chunk * 1024
        return (3 if off < 65536 else (8 if off < 131072 else 9)), off % 65536
    def unpack(dst, src, n):
        for i in range(n): P(f"v_lshlrev_b32 v{dst+2*i}, 16, v{src+i}\nv_and_b32 v{dst+2*i+1}, 0xffff0000, v{src+i}")
    def set_flag(vm, val):
        P(f"v_mov_b32 v4, {val}\ns_mov_b64 exec, 1")
        store2(vm, ["buffer_store_dword v4, v2, s[20:23], s34 offen"])
        P("s_mov_b64 exec, -1")
    cnt = [0]
    def rdw(lg, stage, chunk):
        ar, off = lds_off(stage, chunk)
        r = BF + (cnt[0] % (D + 1)) * 4; cnt[0] += 1
        return r, lg.op(f"ds_read_b128 {v(r,4)}, v{ar} offset:{off}")
    def free_sig(lg): lg.op(f"ds_write_b32 v{SYW}, v{SYV} offset:16")
    def rdy_read(lg): return lg.op(f"ds_read_b32 v{SYD}, v{SYA}")
    def stats_fin(R):
        P(f"v_add_f32 v{R}, v{R}, v{R+2}\nv_add_f32 v{R+1}, v{R+1}, v{R+3}")
        xg_reduce(P, [R, R+1], [R+2, R+3])
        P(f"v_mul_f32 v{R}, {f2u(1/640)}, v{R}\nv_mul_f32 v{R+1}, {f2u(1/640)}, v{R+1}\nv_fma_f32 v{R+1}, -v{R}, v{R}, v{R+1}\nv_max_f32 v{R+1}, 0, v{R+1}")
        P(f"v_add_f32 v{R+2}, {f2u(EPS)}, v{R+1}\nv_rsq_f32 v{R+2}, v{R+2}")
    def kloop(stage_chunk, tiles, aoff, vaddr_of_ks, accinit, frees, stat=None, ph=0, rdy_at_end=False, rdy=None, shadow=None):
        vm = VM(P); lg = LG(P)
        ids = {}
        def aload(ks):
            if aoff is None:
                kq, a = divmod(ks, 5)
                if a < 4: ids[ks] = vm.op(f"s_add_u32 s43, s10, {(4*kq+a)*20480}\nbuffer_load_dwordx4 {v(AF+4*ks,4)}, v250, s[20:23], s43 offen sc1")
                else: ids[ks] = vm.op(f"s_add_u32 s43, s11, {kq*81920}\nbuffer_load_dwordx2 {v(AF+4*ks,2)}, v251, s[20:23], s43 offen sc1\ns_add_u32 s43, s43, 10240\nbuffer_load_dwordx2 {v(AF+4*ks+2,2)}, v251, s[20:23], s43 offen sc1", 2)
                return
            if ks % 4 == 0: P(f"s_add_u32 s43, s40, {aoff + ks*1024}")
            ids[ks] = vm.op(f"buffer_load_dwordx4 {v(AF+4*ks,4)}, v{vaddr_of_ks(ks)}, s[20:23], s43 offen offset:{(ks%4)*1024} sc1")
        sf(ph)
        if rdy: P(f"ds_read_b32 v{SYD}, v{SYA}")
        for ks in range(PRE): aload(ks)
        if stat:
            P(f"s_add_u32 s44, s9, {stat[2]}\ns_mov_b64 exec, 0xffff")
            sst = store2(vm, ["buffer_store_dwordx2 v[36:37], v3, s[20:23], s44 offen"])
            P("s_mov_b64 exec, -1")
        if rdy:
            P("s_waitcnt lgkmcnt(0)"); lds_check(SYA, SYD, 0, rdy)
        sf(ph)
        nt = len(tiles)
        items = [(ks, t) for ks in range(20) for t in tiles]
        N = len(items)
        rr = []
        def rd(n):
            ks, t = items[n]
            if t == tiles[0] and ks in frees: free_sig(lg)
            rr.append(rdw(lg, *stage_chunk(ks, t)))
            if n == N - 1 and 20 in frees: free_sig(lg)
            if n == N - 1 and rdy_at_end: rdy_read(lg)
        for n in range(D): rd(n)
        if shadow: shadow(lg)
        for n, (ks, t) in enumerate(items):
            if n + D < N: rd(n + D)
            if t == tiles[0]:
                if stat and ks == 4: vm.wait(sst); set_flag(vm, stat[0])
                if ks + PRE < 20: aload(ks + PRE)
                if stat and ks == 9: sp = vm.op("buffer_load_dword v15, v14, s[20:23], s33 offen sc1")
                if stat and ks == 14:
                    vm.wait(sp); poll_check(14, 15, "s33", stat[0])
                    sl = vm.op(f"s_add_u32 s44, s46, {stat[2]}\nbuffer_load_dwordx4 {v(stat[1],4)}, v3, s[20:23], s44 offen sc1")
                P(f"s_waitcnt vmcnt({vm.cnt(ids[ks])}) lgkmcnt({lg.cnt(rr[n][1])})")
                if ks in (0, 1, 2, 4, 8, 12, 16): sf(ph)
                for fk, fv in frees.items():
                    if ks == fk - 3: P(f"v_mov_b32 v{SYV}, {fv}")
            else:
                lg.wait(rr[n][1])
            a = ACC + 4 * tiles.index(t)
            P(f"v_mfma_f32_16x16x32_bf16 {v(a,4)}, {v(rr[n][0],4)}, {v(AF+4*ks,4)}, {v(a,4) if (accinit or ks > 0) else '0'}")
        sf(ph)
        if stat: vm.wait(sl)
        return vm, lg
    def pack(dst, src, n):
        for i in range(n): P(f"v_cvt_pk_bf16_f32 v{dst+i}, v{src+2*i}, v{src+2*i+1}")
    def tile_then_stats(pk, off, f1):
        vm = VM(P)
        P(f"s_add_u32 s43, s41, {off}\ns_add_u32 s44, s42, {off}")
        store2(vm, [f"buffer_store_dwordx4 {v(pk,4)}, v3, s[20:23], s43 offen", f"buffer_store_dwordx4 {v(pk+4,4)}, v3, s[20:23], s43 offen offset:1024", f"buffer_store_dwordx2 {v(pk+8,2)}, v3, s[20:23], s44 offen"])
        P(f"v_mov_b32 v36, 0\nv_mov_b32 v37, 0\nv_mov_b32 v38, {ONES}")
        for i in range(10): P(f"v_dot2c_f32_bf16 v36, v{pk+i}, v38\nv_dot2c_f32_bf16 v37, v{pk+i}, v{pk+i}")
        sf(8)
        P("s_waitcnt vmcnt(0)")
        sf(8)
        set_flag(vm, f1)
        P("buffer_load_dword v15, v14, s[20:23], s33 offen sc1")
        xg_reduce(P, [36, 37], [38, 39])
    kk = 2 * 0.7978845608028654 * LOG2E
    GC = [(76, 78, 10, 12), (68, 70, 72, 74)]
    def gelu_items(a0, c0, n, pk, t0=None, g=0):
        if t0 is None: t0 = c0
        m, ia, A2, A1 = [v(x, 2) for x in GC[g]]
        pr = range(0, n, 2)
        return [[f"v_pk_fma_f32 {v(a0+i,2)}, {v(c0+i,2)}, {m}, {v(a0+i,2)} neg_lo:[1,0,0] neg_hi:[1,0,0]" for i in pr],
                [f"v_pk_mul_f32 {v(t0+i,2)}, {v(a0+i,2)}, {v(a0+i,2)}" for i in pr],
                [f"v_pk_fma_f32 {v(t0+i,2)}, {v(t0+i,2)}, {A2}, {A1}" for i in pr],
                [f"v_pk_mul_f32 {v(t0+i,2)}, {v(t0+i,2)}, {v(a0+i,2)}" for i in pr],
                [f"v_exp_f32 v{t0+i}, v{t0+i}" for i in range(n)],
                [f"v_pk_fma_f32 {v(t0+i,2)}, {v(t0+i,2)}, {ia}, {ia}" for i in pr],
                [f"v_rcp_f32 v{t0+i}, v{t0+i}" for i in range(n)],
                [f"v_pk_mul_f32 {v(a0+i,2)}, {v(a0+i,2)}, {v(t0+i,2)}" for i in pr],
                [f"v_cvt_pk_bf16_f32 v{pk+i//2}, v{a0+i}, v{a0+i+1}" for i in pr]]
    def gelu_consts(mreg, areg, g=0):
        m, ia, A2, A1 = GC[g]
        P(f"""v_rcp_f32 v{ia+1}, v{areg}
v_mul_f32 v{A1}, {f2u(-kk)}, v{areg}
v_mul_f32 v{A2}, v{areg}, v{areg}
v_mov_b32 v{m+1}, v{mreg}
v_mul_f32 v{A2}, v{A2}, v{A1}
v_mov_b32 v{A1+1}, v{A1}
v_mul_f32 v{A2}, {f2u(0.044715)}, v{A2}
v_mov_b32 v{m}, v{m+1}
v_mov_b32 v{ia}, v{ia+1}
v_mov_b32 v{A2+1}, v{A2}""")
    small = lambda b: (lambda ks, t: (b + ks // 4, (ks % 4) * 5 + t))
    T5 = [0, 1, 2, 3, 4]

    o_flag(1)
    sa()
    P(f"buffer_load_dword v15, v{L4V}, s[20:23], s45 offen sc1\ns_waitcnt lgkmcnt(0)")
    lds_check(SYA, SYD, 0, 5)
    P(f"ds_read_b128 {v(HP,4)}, v5\nds_read_b128 {v(HP+4,4)}, v5 offset:1024\nds_read_b64 {v(HP+8,2)}, v6 offset:2048")
    P("s_waitcnt vmcnt(0) lgkmcnt(0)")
    poll_check(L4V, 15, "s45", 1)
    st()
    def sh_wo(lg):
        unpack(ACC, HP, 10)
    kloop(small(0), T5, None, None, True, {12: 3, 20: 5}, ph=1, rdy_at_end=True, shadow=sh_wo)
    st(); sf(8)
    P("s_waitcnt lgkmcnt(0)")
    lds_check(SYA, SYD, 0, 6)
    pack(HP, ACC, 10)
    tile_then_stats(HP, L.H_OFF, 1)
    st(); sf(8)
    P("L_c1:")
    P("s_lshr_b32 s43, s28, 2\ns_add_u32 s43, s43, 1\ns_sub_u32 s44, 0, s43\ns_bitcmp1_b32 s28, 1\ns_cselect_b32 s43, s44, s43")
    P("s_lshl_b32 s44, s29, 4\ns_add_u32 s44, s44, s43\nv_and_b32 v10, 15, v1\nv_add_u32 v10, s44, v10")
    P("v_ashrrev_i32 v12, 8, v10\nv_cmp_eq_u32 s[12:13], s25, v12\nv_cmp_gt_u32 s[14:15], 8, v12")
    P("v_lshrrev_b32 v11, 4, v10\nv_mul_u32_u24 v11, 20480, v11\nv_and_b32 v10, 15, v10\nv_lshl_add_u32 v11, v10, 4, v11\nv_and_b32 v10, 0x30, v1\nv_lshl_add_u32 v229, v10, 4, v11")
    P(f"""s_and_b32 s43, s29, 15
s_lshl_b32 s39, s25, 11
s_add_u32 s39, s39, {L.FHL_OFF}
s_sub_u32 s44, s33, 128
s_sub_u32 s45, s39, 1024
s_cmp_eq_u32 s43, 0
s_cselect_b32 s44, s45, s44
s_cselect_b32 s27, 5, 0
s_cmp_eq_u32 s29, 0
s_cselect_b32 s44, s33, s44
s_cselect_b32 s27, 0, s27
v_lshlrev_b32 v12, s27, v14
v_add_u32 v12, s44, v12
v_add_u32 v13, s33, v14
v_bfe_u32 v10, v1, 3, 2
v_cmp_eq_u32 vcc, 1, v10
s_add_u32 s44, s33, 128
s_add_u32 s45, s39, 2048
v_cndmask_b32 v13, v13, v12, vcc
s_cmp_eq_u32 s43, 15
s_cselect_b32 s44, s45, s44
s_cselect_b32 s27, 5, 0
s_cmp_eq_u32 s29, 127
s_cselect_b32 s44, s33, s44
s_cselect_b32 s27, 0, s27
v_lshlrev_b32 v12, s27, v14
v_add_u32 v12, s44, v12
v_cmp_eq_u32 vcc, 2, v10
s_and_b32 s44, s29, 1
s_lshl_b32 s44, s44, 3
s_add_u32 s44, s44, s28
s_lshl_b32 s44, s44, 7
s_add_u32 s39, s39, s44
v_cndmask_b32 v228, v13, v12, vcc""")
    P(f"""s_cmp_eq_u32 s43, 0
s_cselect_b32 s44, {L.TH_OFF - L.T_OFF}, 0
s_cmp_eq_u32 s29, 0
s_cselect_b32 s44, 0x40000000, s44
s_cmp_eq_u32 s43, 15
s_cselect_b32 s45, {L.TH_OFF - L.T_OFF}, 0
s_cmp_eq_u32 s29, 127
s_cselect_b32 s45, 0x40000000, s45
v_and_b32 v10, 15, v1
v_add_u32 v11, s44, v3
v_add_u32 v12, s45, v3
v_cmp_gt_u32 vcc, 1, v10
v_cndmask_b32 v224, v3, v11, vcc
v_cmp_lt_u32 vcc, 14, v10
v_cndmask_b32 v225, v3, v12, vcc
v_cmp_gt_u32 vcc, 2, v10
v_cndmask_b32 v226, v3, v11, vcc
v_cmp_lt_u32 vcc, 13, v10
v_cndmask_b32 v227, v3, v12, vcc""")
    if opt.get("NOHALO"):
        P("s_mov_b64 s[14:15], 0\nv_add_u32 v228, s33, v14\nv_mov_b32 v224, v3\nv_mov_b32 v225, v3\nv_mov_b32 v226, v3\nv_mov_b32 v227, v3")
    P("s_andn2_b64 s[14:15], s[14:15], s[12:13]\ns_waitcnt vmcnt(0)")
    sf(8)
    poll_check(14, 15, "s33", 1)
    st(); sf(8)
    def sh_w1(lg):
        for t in range(5): lg.op(f"ds_read_b128 {v(CS+4*t,4)}, v7 offset:{t*64}")
        unpack(ACC4, HP, 10)
    kloop(small(5), T5, L.H_OFF, lambda ks: 3, False, {12: 8, 20: 10}, stat=(2, ST1, 0), ph=2, rdy=10, shadow=sh_w1)
    st()
    stats_fin(ST1)
    P(f"v_mul_f32 v{ST}, v{ST1+1}, v{ST1+2}\nv_mov_b32 v{ST+1}, {f2u(EPS)}\nv_fma_f32 v{ST}, v{ST}, v{ST1+2}, v{ST+1}\nv_rsq_f32 v{ST}, v{ST}")
    P(f"s_sub_u32 s43, s41, s40\ns_sub_u32 s44, s42, s40\ns_add_u32 s43, s43, {L.T_OFF}\ns_add_u32 s44, s44, {L.T_OFF}")
    P(f"v_mul_f32 v{ST+2}, v{ST}, v{ST1+2}")
    gelu_consts(ST1, ST + 2)
    for grp in gelu_items(ACC, CS, 20, PK):
        for l in grp: P(l)
    vm = VM(P)
    tl = [f"buffer_store_dwordx4 {v(PK,4)}, v229, s[20:23], s43 offen", f"buffer_store_dwordx4 {v(PK+4,4)}, v229, s[20:23], s43 offen offset:1024", f"buffer_store_dwordx2 {v(PK+8,2)}, v229, s[20:23], s44 offen"]
    P("s_mov_b64 exec, s[12:13]")
    store2(vm, tl)
    P("s_cmp_lg_u64 s[14:15], 0\ns_cbranch_scc1 L_halo\nL_haloe:\ns_mov_b64 exec, -1")
    tails.append(f"L_halo:\ns_mov_b64 exec, s[14:15]\ns_add_u32 s43, s43, {L.TH_OFF - L.T_OFF}\ns_add_u32 s44, s44, {L.TH_OFF - L.T_OFF}\n" + "\n".join(l + " sc1" for l in tl) + "\ns_nop 1\ns_branch L_haloe")
    P(f"v_mul_f32 v{ST1}, v{ST1}, v{ST1+2}\nv_mov_b32 v{ST1+3}, v{ST1+2}\nv_mov_b32 v{ST1+1}, v{ST1}")
    for i in range(0, 20, 2):
        P(f"v_pk_fma_f32 {v(ACC+i,2)}, {v(ACC4+i,2)}, {v(ST1+2,2)}, {v(ST1,2)} neg_lo:[0,0,1] neg_hi:[0,0,1]")
    P("s_waitcnt vmcnt(0)")
    set_flag(vm, 3)
    P("s_add_u32 s44, s29, 1\ns_and_b32 s44, s44, 14\ns_cmp_eq_u32 s44, " + ("99" if opt.get("NOHALO") else "0") + "\ns_cbranch_scc1 L_hf\nL_hfe:")
    tails.append("L_hf:\ns_mov_b64 exec, 1\nbuffer_store_dword v4, v2, s[20:23], s39 offen sc1\ns_mov_b64 exec, -1\ns_branch L_hfe")
    st()
    def sh_w2(lg):
        P(f"""s_bfe_u32 s15, s29, 0x10002
s_xor_b32 s12, s29, 4
s_mul_i32 s12, s12, 20480
s_mul_i32 s44, s15, 5120
s_add_u32 s13, s10, 2560
s_sub_u32 s13, s13, s44
s_xor_b32 s8, s34, 512
s_andn2_b32 s33, s33, 512
v_bfe_u32 v10, v1, 3, 1
v_lshl_add_u32 v14, v10, 9, v14
s_lshl_b32 s45, s28, 10
s_lshl_b32 s38, s15, 12
s_mul_i32 s39, s15, 81920
s_lshl_b32 s26, s15, 13
s_add_u32 s26, s26, s45
s_add_u32 s26, s26, {L.V_OFF}
s_mul_i32 s14, s45, 20
s_lshl_b32 s27, s39, 1
s_add_u32 s27, s27, s14
s_cmp_ge_u32 s28, 4
s_mov_b32 s31, {L.K_OFF + 16384}
s_cmov_b32 s31, {L.V_OFF + 16384 - 4096}
s_cmp_eq_u32 s15, 0
s_cmov_b32 s31, {L.K_OFF}
s_mov_b32 s11, {L.V_OFF + 16384}
s_cmov_b32 s11, {L.K_OFF + 16384}
s_add_u32 s31, s31, s45
s_lshl_b32 s32, s15, 3
s_add_u32 s32, s32, s45
s_add_u32 s32, s32, {L.K_OFF + 8192}
s_lshl_b32 s44, s15, 6
s_add_u32 s44, s44, {CS3_LDS - CS1_LDS + 384}
v_add_u32 v251, s44, v7
s_lshl_b32 s44, s15, 9
s_add_u32 s44, s44, {CS3_LDS - CS1_LDS}
v_add_u32 v7, s44, v7""")
    P("buffer_load_dword v15, v228, s[20:23], 0 offen sc1\ns_waitcnt vmcnt(0)")
    poll_check(228, 15, "0", 3)
    st()
    kloop(small(10), T5, L.T_OFF, lambda ks: 224 + ks // 5, True, {12: 13, 20: 15}, ph=3, rdy=15, shadow=sh_w2)
    st()
    pack(PK, ACC, 10)
    tile_then_stats(PK, L.X1_OFF, 4)
    st()
    P("L_c3:")
    unpack(CS, PK, 10)
    for i in range(0, 20, 2): P(f"v_pk_add_f32 {v(ACC4+i,2)}, {v(ACC4+i,2)}, {v(CS+i,2)}")
    P("s_waitcnt vmcnt(0)")
    poll_check(14, 15, "s33", 4)
    st(); sf(6)
    AC3, AR3, ACC5 = 144, 200, 16
    RB = ["s40", "s12"]; QB = ["s10", "s13"]
    vm = VM(P); lg = LG(P)
    ids = {}
    LA = opt.get("LA3", 5)
    def aload(ks, rs=(0, 1)):
        for r in rs:
            if ks % 4 == 0: P(f"s_add_u32 s{4+r}, {RB[r]}, {L.X1_OFF + ks*1024}")
            ids[ks] = vm.op(f"buffer_load_dwordx4 {v(AR3+8*(ks%6)+4*r,4)}, v3, s[20:23], s{4+r} offen offset:{(ks%4)*1024} sc1")
    pol = {}
    def poll_issue(k): pol[k] = vm.op("buffer_load_dword v15, v14, s[20:23], s33 offen sc1")
    def poll_done(k): vm.wait(pol[k]); poll_check(14, 15, "s33", k)
    P(f"ds_read_b32 v{SYD}, v{SYA}")
    for ks in range(LA): aload(ks)
    P("s_add_u32 s44, s9, 1024\ns_mov_b64 exec, 0xffff")
    sst = store2(vm, ["buffer_store_dwordx2 v[36:37], v3, s[20:23], s44 offen"])
    P(f"s_mov_b64 exec, -1\nv_mov_b32 v{SYV}, 16\ns_waitcnt lgkmcnt(0)")
    R0 = opt.get("R0", 20)
    lds_check(SYA, SYD, 0, R0)
    items = [(ks, t) for ks in range(20) for t in range(7)]
    rr = []; ryy = [None]
    D3 = 4
    def rd3(n):
        sg = 15 + n // 20
        if n % 20 == 0 and n > 0:
            free_sig(lg)
            if sg >= R0: lg.wait(ryy[0]); lds_check(SYA, SYD, 0, sg + 1)
        if n % 20 == 14 and sg + 1 >= R0 and sg < 21: ryy[0] = rdy_read(lg)
        rr.append(rdw(lg, sg, n % 20))
        if n == 139: free_sig(lg)
    for n in range(D3): rd3(n)
    for n, (ks, t) in enumerate(items):
        if n + D3 < 140: rd3(n + D3)
        if t == 0: P(f"s_waitcnt vmcnt({vm.cnt(ids[ks])}) lgkmcnt({lg.cnt(rr[n][1])})")
        else: lg.wait(rr[n][1])
        for r in range(2):
            a = AC3 + 28*r + 4*t
            P(f"v_mfma_f32_16x16x32_bf16 {v(a,4)}, {v(rr[n][0],4)}, {v(AR3+8*(ks%6)+4*r,4)}, {'0' if ks == 0 else v(a,4)}")
            if r == 1: continue
            if n % 20 == 6: P(f"v_mov_b32 v{SYV}, {16 + n // 20}")
            if t in (0, 2) and ks + LA < 20: aload(ks + LA, (t // 2,))
            if t == 4:
                if ks == 2: vm.wait(sst); set_flag(vm, 5)
                if ks == 6: poll_issue(5)
                if ks == 9: poll_done(5)
                if ks == 17:
                    for i in range(2): lg.op(f"ds_read_b128 {v(CS+4*i,4)}, v7 offset:{i*64}")
                if ks == 19: set_flag(vm, 6)
            if ks == 9 and t in (5, 6):
                sl = vm.op(f"s_add_u32 s44, s46, 1024\ns_xor_b32 s44, s44, {8192*(t-5)}\nbuffer_load_dwordx4 {v(16+4*(t-5),4)}, v3, s[20:23], s44 offen sc1")
            if ks == 13 and t == 6:
                vm.wait(sl)
                keep = P.items; P.items = []
                for g in range(2): stats_fin(16 + 4*g); gelu_consts(16 + 4*g, 18 + 4*g, g)
                h = len(P.items) // 2
                fin = [x for pr_ in zip(P.items[:h], P.items[h:]) for x in pr_]; P.items = keep
            if ks >= 14:
                for _ in range(2):
                    if fin: P.items.append(fin.pop(0))
    assert not fin
    st(); sf(6)
    P("L_c4:")
    steps = [(i, e) for i in range(7) for e in range(4)]
    A4L = [AR3 + 8*i for i in range(6)] + [AC3 + 8*i for i in range(7)]
    ids4 = {}
    def a4load(k, rs=(0, 1)):
        i, e = steps[k]; base = A4L[k % len(A4L)]
        for r in rs:
            if i in (2, 3):
                P(f"s_add_u32 s{4+r}, {QB[r]}, s39\ns_add_u32 s{4+r}, s{4+r}, {((i-2)*8+e)*20480}")
                ids4[k] = vm.op(f"buffer_load_dwordx4 {v(base+4*r,4)}, v250, s[20:23], s{4+r} offen sc1")
                continue
            if e == 0:
                if i == 6: P(f"s_add_u32 s{4+r}, {RB[r]}, s11")
                else: P(f"s_add_u32 s{4+r}, {RB[r]}, s38\ns_add_u32 s{4+r}, s{4+r}, {(L.V_OFF + i*8192) if i < 2 else (L.K_OFF + (i-4)*8192)}")
            ids4[k] = vm.op(f"buffer_load_dwordx4 {v(base+4*r,4)}, v3, s[20:23], s{4+r} offen offset:{e*1024} sc1")
    nl = [0]
    def a4upto(k):
        while nl[0] < min(k, 28): a4load(nl[0]); nl[0] += 1
    gst = {}
    for j in range(4):
        n_ = 8 if j < 3 else 4
        cs = CS + 8*(j % 2)
        if j < 2:
            for i in range(2): lg.op(f"ds_read_b128 {v(CS+8*((j+1)%2)+4*i,4)}, v7 offset:{(2*j+2+i)*64}")
            P("s_waitcnt lgkmcnt(2)")
        elif j == 2:
            lg.op(f"ds_read_b128 {v(CS+8,4)}, v251"); P("s_waitcnt lgkmcnt(1)")
        else:
            ry = rdy_read(lg); P("s_waitcnt lgkmcnt(1)")
        pk = [PK + 4*r if j % 2 == 0 else 80 + 4*r for r in range(2)]
        if j == 2: poll_done(6)
        g0 = gelu_items(AC3 + 8*j, cs, n_, pk[0], 16, 0); g1 = gelu_items(AC3 + 28 + 8*j, cs, n_, pk[1], 24, 1)
        for k, (x, y) in enumerate(zip(g0, g1)):
            for l in x + y: P(l)
            if k == 0 and j == 1: poll_issue(6)
            if k == 4 and j == 2: poll_issue(7)
            if k == 4 and j == 3: poll_done(7); a4upto(3)
        if j in (1, 2): vm.wait(gst[j-1]); set_flag(vm, 6 + j)
        offs = ["s26", "s27", "s31", "s32"][j]; bases = QB if j == 1 else RB; va = 250 if j == 1 else 3
        P(f"s_add_u32 s43, {bases[0]}, {offs}\ns_add_u32 s44, {bases[1]}, {offs}")
        w = "x4" if j < 3 else "x2"; nn = 4 if j < 3 else 2
        gst[j] = store2(vm, [f"buffer_store_dword{w} {v(pk[r],nn)}, v{va}, s[20:23], s{43+r} offen" for r in range(2)])
        sf(6)
    lg.wait(ry); lds_check(SYA, SYD, 0, 23)
    st()
    items = [(k, t) for k in range(28) for t in range(5)]
    rr = []; ryy = [None]
    def rd(n):
        k, t = items[n]
        if n % 20 == 0 and n > 0: lg.wait(ryy[0]); lds_check(SYA, SYD, 0, 22 + k // 4 + 1)
        if n % 20 == 14 and n + 6 < 140: ryy[0] = rdy_read(lg)
        rr.append(rdw(lg, 22 + k // 4, (k % 4) * 5 + t))
    LA4 = opt.get("LA4", 5)
    a4upto(LA4)
    for n in range(D3): rd(n)
    for n, (k, t) in enumerate(items):
        if k == 26 and t == 0: P("s_cmp_lg_u32 s15, 0\ns_cbranch_scc1 L_w4e")
        if n + D3 < 140: rd(n + D3)
        if t == 0: P(f"s_waitcnt vmcnt({vm.cnt(ids4[k])}) lgkmcnt({lg.cnt(rr[n][1])})")
        else: lg.wait(rr[n][1])
        base = A4L[k % len(A4L)]
        for r in (1, 0):
            a = (ACC5 if r else ACC4) + 4*t
            P(f"v_mfma_f32_16x16x32_bf16 {v(a,4)}, {v(rr[n][0],4)}, {v(base+4*r,4)}, {'0' if (r and k == 0) else v(a,4)}")
            if r == 0: continue
            kk_ = k + LA4
            if t == 0 and kk_ == 8: poll_done(8)
            if t == 0 and kk_ == 16: poll_done(9)
            if t in (1, 3) and kk_ < 28: a4load(kk_, (t // 2,))
            if t == 4:
                if k == 0: poll_issue(8)
                if k == 1: P(f"v_mov_b32 v{SYV}, 23")
                if k == 2: vm.wait(gst[3]); set_flag(vm, 9); free_sig(lg)
                if k == 7: poll_issue(9)
                if k == 19: set_flag(vm, 10)
                if k == 24: poll_issue(10)
    P("L_w4e:\ns_waitcnt vmcnt(0) lgkmcnt(0)")
    st()
    poll_check(14, 15, "s33", 10)
    def ex_addr(r):
        P(f"s_add_u32 s4, {RB[r]}, s45\ns_add_u32 s5, s4, {L.K_OFF}\ns_add_u32 s4, s4, {L.V_OFF}\ns_add_u32 s43, s4, 8192\ns_add_u32 s44, {QB[r]}, s14\ns_add_u32 s38, s44, {8*20480}")
        return [(3, "s4"), (3, "s43"), (250, "s44"), (250, "s38"), (3, "s5")]
    vm = VM(P)
    store2(vm, [f"buffer_store_dwordx4 {v(ACC5+4*e,4)}, v{va}, s[20:23], {so} offen" for e, (va, so) in enumerate(ex_addr(1))])
    ea = ex_addr(0)
    P("s_waitcnt vmcnt(0)")
    set_flag(vm, 11)
    P("buffer_load_dword v15, v2, s[20:23], s8 offen sc1\ns_waitcnt vmcnt(0)")
    poll_check(2, 15, "s8", 11)
    for e, (va, so) in enumerate(ea): P(f"buffer_load_dwordx4 {v(ACC5+4*e,4)}, v{va}, s[20:23], {so} offen sc1")
    st()
    P(f"s_mul_i32 s46, s30, 3072\ns_add_u32 s46, s46, {XR_LDS}\nv_add_u32 v10, s46, v3")
    P("s_lshl_b32 s43, s35, 6\ns_add_u32 s43, s43, s40\ns_lshl_b32 s44, s36, 6\ns_add_u32 s44, s44, s40\ns_lshl_b32 s45, s37, 3\ns_add_u32 s44, s44, s45")
    for e in range(5):
        P(f"s_waitcnt vmcnt({4-e})\nv_pk_add_f32 {v(ACC4+4*e,2)}, {v(ACC4+4*e,2)}, {v(ACC5+4*e,2)}\nv_pk_add_f32 {v(ACC4+4*e+2,2)}, {v(ACC4+4*e+2,2)}, {v(ACC5+4*e+2,2)}")
    pack(PK, ACC4, 10)
    P(f"ds_write_b128 v5, {v(PK,4)}\nds_write_b128 v5, {v(PK+4,4)} offset:1024\nds_write_b64 v5, {v(PK+8,2)} offset:2048")
    P(f"ds_read_b128 {v(CS,4)}, v10\nds_read_b128 {v(CS+4,4)}, v10 offset:1024\nds_read_b64 {v(CS+8,2)}, v10 offset:2048")
    P(f"s_waitcnt lgkmcnt(2)\nbuffer_store_dwordx4 {v(CS,4)}, v{RMV}, s[16:19], s43 offen{OSF}\ns_waitcnt lgkmcnt(1)\nbuffer_store_dwordx4 {v(CS+4,4)}, v{RMV}, s[16:19], s43 offen offset:64{OSF}\ns_waitcnt lgkmcnt(0)\nbuffer_store_dwordx2 {v(CS+8,2)}, v{RMV}, s[16:19], s44 offen{OSF}")
    if DBG:
        P("s_waitcnt vmcnt(0)"); st0()
        P(f"s_cmp_lg_u32 s2, {DBG}\ns_cbranch_scc1 L_end\ns_cmp_lg_u32 s30, 0\ns_cbranch_scc1 L_end\ns_load_dwordx2 s[4:5], s[0:1], 72\ns_waitcnt lgkmcnt(0)")
        P(f"s_mov_b32 s12, s4\ns_and_b32 s13, s5, 0xffff\ns_mov_b32 s14, 256\ns_mov_b32 s15, 0x20000\nv_mov_b32 v39, {L.DUMMY_OFF + 2048}\nbuffer_load_dwordx4 v[52:55], v39, s[20:23], 0 offen\nbuffer_load_dwordx2 v[56:57], v39, s[20:23], 0 offen offset:16\ns_waitcnt vmcnt(0)\nv_mov_b32 v39, 0")
        regs = [80, 82, 84, 90, 48, 54, 60, 66, 70, 48 + 2*(st0.i-1)]
        for i, r in enumerate(regs): P(f"v_mov_b32 v{40+i}, s{r}")
        if "XA" in opt:
            vr = lambda k: 52 + k if k < 6 else 40 + k - 6
            P(f"v_readfirstlane_b32 s60, v{vr(opt['XA'])}\nv_readfirstlane_b32 s61, v{vr(opt['XB'])}\nv_readfirstlane_b32 s62, v49\ns_sub_u32 s60, s61, s60\ns_lshl_b32 s60, s60, 2\ns_min_u32 s60, s60, 100000")
            P("L_xspin:\ns_memrealtime s[64:65]\ns_waitcnt lgkmcnt(0)\ns_sub_u32 s64, s64, s62\ns_cmp_lt_u32 s64, s60\ns_cbranch_scc1 L_xspin")
        P("s_mov_b64 exec, 1\nbuffer_store_dwordx4 v[52:55], v39, s[12:15], 0 offen\nbuffer_store_dwordx2 v[56:57], v39, s[12:15], 0 offen offset:16\nbuffer_store_dwordx2 v[40:41], v39, s[12:15], 0 offen offset:24\nbuffer_store_dwordx4 v[42:45], v39, s[12:15], 0 offen offset:32\nbuffer_store_dwordx4 v[46:49], v39, s[12:15], 0 offen offset:48")
    if STAMP:
        P("s_waitcnt vmcnt(0)"); st0()
        if FOCUS != 21: stamp_dump([80 + 2*i for i in range(sa.i)] + [48 + 2*i for i in range(st0.i)])
    P("s_endpgm")

    P("L_loader:")
    P(IDS)
    P(f"""v_lshlrev_b32 v3, 4, v1
s_sub_u32 s33, s30, 4
s_mul_i32 s32, s28, {L.SLICE_B}
s_add_u32 s32, s32, {L.WS_OFF}
s_mul_i32 s39, s33, 5120
s_add_u32 s38, s32, s39
s_mul_i32 s10, s26, 10240
s_lshr_b32 s43, s33, 1
s_add_u32 s43, s43, s25
s_max_u32 s43, s43, 1
s_sub_u32 s43, s43, 1
s_mul_i32 s43, s43, 327680
s_add_u32 s10, s10, s43
s_and_b32 s43, s33, 1
s_mul_i32 s43, s43, 5120
s_add_u32 s10, s10, s43
s_add_u32 s11, s39, {KV_LDS}
v_and_b32 v4, 3, v1
v_lshlrev_b32 v4, 2, v4
v_add_u32 v4, {SY_LDS}, v4
s_lshl_b32 s43, s33, 2
s_add_u32 s43, s43, {SY_LDS}
v_mov_b32 v5, s43
v_add_u32 v12, s39, v3
v_add_u32 v13, 0x10000, v12
v_add_u32 v14, 0x20000, v12
v_lshrrev_b32 v15, 2, v1
v_mul_u32_u24 v15, 1280, v15
v_and_b32 v8, 3, v1
v_lshl_add_u32 v15, v8, 4, v15
s_mul_i32 s40, s28, 5
s_lshr_b32 s40, s40, 2
s_lshl_b32 s41, s40, 9
s_add_u32 s41, s41, {L.FP_OFF + 40*128}
s_lshl_b32 s42, s40, 10
s_add_u32 s42, s42, {L.FP_OFF + 201*128}
s_mul_i32 s44, s28, 7
s_cmp_eq_u32 s28, 7
s_subb_u32 s44, s44, 0
s_lshr_b32 s40, s44, 1
s_min_u32 s40, s40, 22
s_mul_i32 s40, s40, 384
s_add_u32 s40, s40, {L.FP_OFF + 120*128}
s_add_u32 s31, s25, 1
s_min_u32 s31, s31, 7
s_lshl_b32 s31, s31, 7
s_add_u32 s31, s31, {L.GL_OFF}""")
    srd(P, 12, 4, SZ)
    def ctouch(l0, roff):
        if not opt.get("CT", 1): return
        e, pc = lab("ct"), lab("pc")
        P(f"""s_cmp_lg_u32 s33, 0
s_cbranch_scc1 {e}
s_sub_u32 s43, s26, {roff}
s_and_b32 s43, s43, 31
s_lshl_b32 s43, s43, 12
s_cmp_ge_u32 s43, L_code_end-{l0}
s_cbranch_scc1 {e}
s_getpc_b64 s[66:67]
{pc}:
s_sub_u32 s66, s66, {pc}-{l0}
s_subb_u32 s67, s67, 0
v_lshl_add_u32 v32, v1, 6, s43
v_min_u32 v32, L_code_end-{l0}-4, v32
v_mov_b32 v33, s67
v_add_co_u32 v32, vcc, s66, v32
v_addc_co_u32 v33, vcc, 0, v33, vcc
global_load_dword v34, v[32:33], off
{e}:""")
    ctouch("L_k2", 0)
    sa.i = 3; sa()
    P("s_barrier")
    sa()
    vm = VM(P); last = {}
    def rdy(val): P(f"v_mov_b32 v10, {val}\nds_write_b32 v5, v10")
    for j, (go, lo) in enumerate(((L.K_OFF, 0), (L.V_OFF, 20480))):
        P(f"s_add_u32 m0, s11, {lo}\ns_add_u32 s43, s10, {go}")
        for i in range(4): vm.op(f"buffer_load_dwordx4 v3, s[20:23], s43 offen offset:{i*1024} sc1 lds")
        last["kv"[j]] = vm.op(f"s_add_u32 m0, s11, {lo+4096}\ns_add_u32 s43, s10, {go+4096}\nbuffer_load_dwordx4 v3, s[20:23], s43 offen sc1 lds")
        if j == 0 and opt.get("VLATE", 1): vm.wait(last["k"]); rdy(1)
    if not opt.get("VLATE", 1): vm.wait(last["k"]); rdy(1)
    spoll("s41", 0, 128, 8, 1, 48, va=6, part=1)
    vm.wait(last["v"]); rdy(2)
    sa()
    NR = 25 - N1
    P(f"s_mul_i32 s45, s33, {NR*1024}\ns_add_u32 s45, s45, {4*N1*1024}\ns_add_u32 s46, s45, s32")
    for i in range(NR):
        if i % 4 == 0: P(f"s_add_u32 m0, s45, {i*1024}\ns_add_u32 s43, s46, {i*1024}")
        vm.op(f"buffer_load_dwordx4 v3, s[20:23], s43 offen offset:{(i%4)*1024} sc1 lds")
    last["wo"] = vm.op(f"""s_mul_i32 s46, s29, 20480
s_lshl_b32 s43, s35, 6
s_add_u32 s43, s43, s46
s_mul_i32 s45, s33, 3072
s_add_u32 m0, s45, {XR_LDS}
s_nop 0
buffer_load_dwordx4 v15, s[12:15], s43 offen lds
s_add_u32 m0, s45, {XR_LDS+1024}
s_add_u32 s43, s43, 64
buffer_load_dwordx4 v15, s[12:15], s43 offen lds
s_lshl_b32 s43, s36, 6
s_add_u32 s43, s43, s46
s_add_u32 m0, s45, {XR_LDS+2048}
s_nop 0
buffer_load_dwordx4 v15, s[12:15], s43 offen lds""", 3)
    spoll("s41", 0, 128, 8, 1, 48, va=6, part=2)
    spoll("s41", 5120, 128, 8, 1, 48, va=6)
    spoll("s40", 0, 128, 15, 1, 48, va=6)
    P(f"""s_cmp_ge_u32 s30, 6
s_cbranch_scc1 L_nocs
s_lshl_b32 s44, s44, 7
s_add_u32 s44, s44, {L.CS3_OFF}
s_mov_b32 s45, 8192
s_mov_b32 s46, {CS3_LDS}
s_cmp_eq_u32 s30, 5
s_cbranch_scc1 L_cs1
s_mul_i32 s44, s28, 320
s_add_u32 s44, s44, {L.CS1_OFF}
s_mov_b32 s45, 2560
s_mov_b32 s46, {CS1_LDS}
L_cs1:
s_lshl_b32 s43, s33, 30
v_add_u32 v9, s43, v3""")
    for i in range(4): P(f"buffer_load_dwordx4 {v(16+4*i,4)}, v{9 if i == 3 else 3}, s[20:23], s44 offen sc1\ns_add_u32 s44, s44, s45")
    P("L_nocs:")
    NSTASH = opt.get("NSTASH", 11); BD = opt.get("BD", 0); BS = opt.get("BS", 0)
    sreg = {}; freeb = list(range(11))
    P(f"s_and_b32 s43, s27, 1\ns_mul_i32 s7, s43, 20480\ns_mul_i32 s6, s7, 7\ns_add_u32 s6, s6, s38\ns_add_u32 s7, s7, s38")
    def src(l):
        if l < 15: return "s38", l * 20480
        if l < 22: return "s6", l * 20480
        return "s7", (29 + 2*(l - 22)) * 20480
    def stash(sg, bs=BS):
        b = freeb.pop(0); sreg[sg] = b
        for i in range(5):
            if i % 4 == 0: P(f"s_add_u32 s43, {src(sg)[0]}, {src(sg)[1] + i*1024}")
            if bs: P(f"s_waitcnt vmcnt({bs-1})")
            last[sg] = vm.op(f"buffer_load_dwordx4 {v(36+20*b+4*i,4)}, v3, s[20:23], s43 offen offset:{(i%4)*1024} sc1")
    def issue(sg, thin=False):
        slot = (sg % RING) * 20480
        if sg >= opt.get("SKIPW", 99): last[sg] = None; return
        if sg in sreg:
            b = sreg.pop(sg); vm.wait(last[sg])
            for i in range(5):
                o = slot + i*1024
                hi = (slot + 4*5120 - 1) >> 16; lo_ = slot >> 16
                k = o >> 16
                P(f"ds_write_b128 v{12+k}, {v(36+20*b+4*i,4)} offset:{o & 0xffff}")
            freeb.append(b); last[sg] = None
            return
        for i in range(5):
            if i % 4 == 0: P(f"s_add_u32 m0, s39, {slot + i*1024}\ns_add_u32 s43, {src(sg)[0]}, {src(sg)[1] + i*1024}")
            if thin: P(f"s_waitcnt vmcnt({THIN})")
            elif BD: P(f"s_waitcnt vmcnt({BD-1})")
            last[sg] = vm.op(f"buffer_load_dwordx4 v3, s[20:23], s43 offen offset:{(i%4)*1024} sc1 lds")
    pubd = [5]
    def publish(upto):
        if upto <= pubd[0]: return
        w = [last[k] for k in range(pubd[0], upto) if last[k] is not None]
        if w: vm.wait(max(w))
        rdy(upto); pubd[0] = upto
    def wait_free(n):
        P("ds_read_b32 v11, v4 offset:16\ns_waitcnt lgkmcnt(0)"); lds_check(4, 11, 16, n, f's_sleep {opt.get("SLL", 1)}\n')
    for sg in range(5, 5 + NSTASH):
        stash(sg)
        if sg == 7:
            vm.wait(last[5])
            P("s_cmp_ge_u32 s30, 6\ns_cbranch_scc1 L_nocs2\nv_add_u32 v8, s46, v3")
            for r in range(4): P(f"v_add_f32 v{16+r}, v{16+r}, v{20+r}\nv_add_f32 v{24+r}, v{24+r}, v{28+r}")
            for r in range(4): P(f"v_add_f32 v{16+r}, v{16+r}, v{24+r}")
            P("ds_write_b128 v8, v[16:19]\nL_nocs2:")
            rdy(5)
            sa()
    sa()
    P(f"s_or_b32 s43, s26, s33\ns_cmp_lg_u32 s43, 0\ns_cbranch_scc1 L_gle\ns_lshl_b32 s44, s25, 10\ns_add_u32 s44, s44, {L.FO_OFF}")
    spoll("s44", 0, 4, 32, 1, 48, va=6, scalar=False, slp=2)
    P(f"s_lshl_b32 s44, s25, 7\ns_add_u32 s44, s44, {L.GL_OFF}\nv_mov_b32 v6, 0\nv_mov_b32 v7, 1\ns_mov_b64 exec, 1\nbuffer_store_dword v7, v6, s[20:23], s44 offen sc1\ns_mov_b64 exec, -1\nL_gle:")
    spoll("s42", 0, 128, 16, 1, 48, va=6)
    sl = Stamper(48, 16)
    nst = 5 + NSTASH
    wait_free(1)
    issue(5, True); issue(6, True)
    spoll("s31", 0, 128, 1, 1, 64, va=6)
    rdy(6)
    RS = [opt.get("RS1", 1), opt.get("RS2", 2), opt.get("RS3", 0)]
    NL = 29
    cand = list(range(nst, NL))
    done_ = set(range(7))
    def restash(n, bs=BS):
        P("s_waitcnt lgkmcnt(0)")
        while n > 0 and freeb and cand:
            sg = cand.pop(0)
            if sg in done_: continue
            stash(sg, bs); n -= 1
    def fill(sgs, thin=False):
        for sg in sorted(sgs, key=lambda x: x in sreg):
            issue(sg, thin); done_.add(sg)
    for ph in range(3):
        b = 5 * ph
        wait_free(b + 3)
        if ph == 0: ctouch("L_c1", 12)
        if ph == 2: ctouch("L_c3", 22)
        restash(RS[ph])
        fill([sg for sg in range(b + 7, b + 10) if sg < R0])
        publish(min(R0, b + 10))
        wait_free(b + 5)
        fill([sg for sg in (b + 10, b + 11) if sg < R0], True)
    publish(R0)
    sl()
    BD = opt.get("BD3", 5)
    for sg in range(R0, NL):
        if sg == opt.get("PZ", 99): publish(sg); wait_free(23)
        wait_free(max(16, sg - RING + 1))
        issue(sg)
        publish(sg)
        if sg in (21, 23, 25, 27): sl()
    publish(NL)
    if opt.get("WBL", 0) == 1:
        P("s_cmp_lg_u32 s30, 4\ns_cbranch_scc1 L_nowb\ns_cmp_lg_u32 s26, 0\ns_cbranch_scc1 L_nowb\nbuffer_wbl2 sc1\ns_waitcnt vmcnt(0)\nL_nowb:")
    if STAMP:
        sl()
        stamp_dump([80 + 2*i for i in range(sa.i)] + [48 + 2*i for i in range(sl.i)])
    P("L_end:\ns_endpgm")
    for t in tails: P(t)
    P("L_code_end:")
    return (KN, 256, 512, max(LDS_TOTAL, STAT + 2048 + 128), 256)
```

```python
from asmlib import *
from gen1 import f2u, LOG2E, ONES, EPS, ARG, SZ, srd, header, xg_reduce, NAME

RING = 7
KV_LDS = 5 * 20480
XR_LDS = RING * 20480
CS1_LDS = XR_LDS + 12288
CS3_LDS = CS1_LDS + 1024
SY_LDS = 131072 + 28672 + 2144
LDS_TOTAL = SY_LDS + 32
SPIN_MAX = 400000
STAMP_OFF = 0x4000000

class VM:
    def __init__(s, P): s.P = P; s.n = 0
    def op(s, text, k=1): s.P(text); s.n += k; return s.n - 1
    def cnt(s, idx):
        c = s.n - 1 - idx
        assert c >= 0
        return min(63, c)
    def wait(s, idx, extra=""): s.P(f"s_waitcnt vmcnt({s.cnt(idx)}){extra}")
class LG(VM):
    def cnt(s, idx): return min(15, s.n - 1 - idx)
    def wait(s, idx): s.P(f"s_waitcnt lgkmcnt({s.cnt(idx)})")

_lab = [0]
def lab(p):
    _lab[0] += 1
    return f"L_{p}{_lab[0]}"

def gen(P, L, opt):
    STAMP = opt.get("STAMP", False); FOCUS = opt.get("FOCUS", 0)
    NTOUCH = opt.get("NTOUCH", 1); THIN = opt.get("THIN", 1); PRE = opt.get("PRE", 8); PRE4 = opt.get("PRE4", 12)
    OSF = ["", " sc1", " nt"][opt.get("OSF", 0)]
    NSTG = L.NSTG; DBG = opt.get("DBG", 0)
    tails = []
    def store2(vm, lines):
        a, b = lab("sf"), lab("se")
        P(f"s_cbranch_scc1 {a}" if False else f"s_cmp_lg_u32 s24, 0\ns_cbranch_scc1 {a}")
        for l in lines: P(l)
        P(f"{b}:")
        tails.append(f"{a}:\ns_nop 4\n" + "\n".join(l + " sc1" for l in lines) + f"\ns_nop 1\ns_branch {b}")
        vm.n += len(lines)
        return vm.n - 1
    def poll_check(vaddr, vdata, soff, need, back=''):
        a, b, c = lab("pl"), lab("pd"), lab("pr")
        P(f"v_cmp_gt_u32 vcc, {need}, v{vdata}\ns_cbranch_vccnz {a}\n{b}:")
        tails.append(f"""{a}:
s_mov_b32 s47, 0
{c}:
{back}buffer_load_dword v{vdata}, v{vaddr}, s[20:23], {soff} offen sc1
s_add_u32 s47, s47, 1
s_cmp_ge_u32 s47, {SPIN_MAX}
s_waitcnt vmcnt(0)
s_cbranch_scc1 {b}
v_cmp_gt_u32 vcc, {need}, v{vdata}
s_cbranch_vccnz {c}
s_branch {b}""")
    def lds_check(vaddr, vdata, off, need, back=''):
        a, b, c = lab("ll"), lab("ld"), lab("lr")
        P(f"v_cmp_gt_u32 vcc, {need}, v{vdata}\ns_cbranch_vccnz {a}\n{b}:")
        tails.append(f"""{a}:
s_mov_b32 s47, 0
{c}:
{back}ds_read_b32 v{vdata}, v{vaddr} offset:{off}
s_add_u32 s47, s47, 1
s_cmp_ge_u32 s47, {SPIN_MAX*4}
s_waitcnt lgkmcnt(0)
s_cbranch_scc1 {b}
v_cmp_gt_u32 vcc, {need}, v{vdata}
s_cbranch_vccnz {c}
s_branch {b}""")
    class Stamper:
        def __init__(s, base, n): s.i = 0; s.base = base; s.n = n
        def __call__(s):
            if not (STAMP or DBG): return
            assert s.i < s.n
            if DBG:
                P(f"s_memrealtime s[{s.base+2*s.i}:{s.base+2*s.i+1}]"); s.i += 1; return
            P(f"s_memtime s[{s.base+2*s.i}:{s.base+2*s.i+1}]"); s.i += 1
    def stamp_dump(regs):
        regs = regs + [regs[-1]] * (26 - len(regs))
        P("s_waitcnt lgkmcnt(0)\nv_mov_b32 v40, s100\ns_memrealtime s[100:101]\ns_waitcnt lgkmcnt(0)\nv_mov_b32 v41, s100\nv_mov_b32 v2, 0")
        for i, r in enumerate(regs): P(f"v_mov_b32 v{42+i}, s{r}")
        P("s_mov_b32 s22, 0x8000000")
        P(f"s_lshl_b32 s43, s2, 3\ns_add_u32 s43, s43, s30\ns_lshl_b32 s43, s43, 7\ns_add_u32 s43, s43, {STAMP_OFF + 2*0x100000}\ns_mov_b64 exec, 1")
        for i in range(7): P(f"buffer_store_dwordx4 v[{40+4*i}:{43+4*i}], v2, s[20:23], s43 offen offset:{16*i}")

    KN = NAME + "_kernel"
    PI = opt.get("PI", 3); PP = opt.get("PP", 6); PSP = opt.get("PSP", 2); ZI = opt.get("ZI", 2); SI = opt.get("SI", 7)
    NTF = " nt" if opt.get("PREP_NT", 1) else ""
    PSF = " sc1"; QSF = " sc1"
    N1 = opt.get("N1", 4); TD = opt.get("TD", 4)
    CST = opt.get("CST", 1); WB = opt.get("WB", 0)
    PB = 131072; STAT = PB + 28672
    SLP = opt.get("SLP", 6)
    RL = STAT + 2048 + 64
    def spoll(base, imm, stride, n, need, t0, srd_="s[20:23]", slp=None, va=58, scalar=True, part=3):
        b, c, d = lab("zq"), lab("zr"), lab("zs")
        if scalar:
            for k in range(n if part & 1 else 0):
                if isinstance(stride, str): P(f"s_buffer_load_dword s{t0+k}, {srd_}, s{int(base[1:])+k}")
                elif base == "0": P(f"s_buffer_load_dword s{t0+k}, {srd_}, {imm + k*stride}")
                else: P(f"s_buffer_load_dword s{t0+k}, {srd_}, {base} offset:{imm + k*stride}")
            if not part & 2: return
            P("s_waitcnt lgkmcnt(0)")
            for k in range(1, n): P(f"s_min_u32 s{t0}, s{t0}, s{t0+k}")
            P(f"s_cmp_lt_u32 s{t0}, {need}\ns_cbranch_scc1 {c}\n{b}:")
        body = f"""{c}:
s_mov_b32 s47, 0
v_mul_u32_u24 v{va}, {stride}, v1
v_add_u32 v{va}, {imm}, v{va}
s_mov_b64 exec, {(1 << n) - 1}
{d}:
buffer_load_dword v{va+1}, v{va}, {srd_}, {base} offen sc1
s_add_u32 s47, s47, 1
s_waitcnt vmcnt(0)
v_cmp_gt_u32 vcc, {need}, v{va+1}
s_cbranch_vccz {d}x
s_sleep {SLP if slp is None else slp}
s_cmp_lt_u32 s47, {SPIN_MAX}
s_cbranch_scc1 {d}
{d}x:
s_mov_b64 exec, -1"""
        if scalar: tails.append(body + f"\ns_branch {b}")
        else: P(body)
    header(P, KN)
    sa = Stamper(80, 10)
    P(f"s_load_dwordx4 s[4:7], s[0:1], 0\ns_load_dwordx4 s[72:75], s[0:1], {ARG['dbg']}")
    P("s_cmp_ge_u32 s2, 256\ns_cbranch_scc1 L_end")
    if STAMP: P("s_memrealtime s[100:101]")
    sa()
    P("v_lshrrev_b32 v2, 6, v0\nv_and_b32 v1, 63, v0\nv_readfirstlane_b32 s30, v2")
    P("""s_and_b32 s25, s2, 7
s_lshr_b32 s26, s2, 3
s_and_b32 s27, s26, 3
s_lshr_b32 s28, s26, 2
s_lshr_b32 s31, s25, 1
s_lshl_b32 s31, s31, 2
s_add_u32 s31, s31, s27
s_and_b32 s32, s25, 1
s_lshl_b32 s32, s32, 3
s_add_u32 s32, s32, s28
s_mul_i32 s29, s27, 3
s_and_b32 s35, s25, 6
s_add_u32 s29, s29, s35
s_add_u32 s29, s29, s32
s_mul_i32 s35, s29, 6554
s_lshr_b32 s35, s35, 16
s_mul_i32 s35, s35, 10
s_sub_u32 s29, s29, s35""")
    P("s_cmp_lt_u32 s30, 4\ns_cbranch_scc1 L_k1_comp")
    P("s_setprio 2\ns_sub_u32 s33, s30, 4")
    P("v_lshrrev_b32 v8, 3, v1\nv_and_b32 v9, 7, v1\nv_lshrrev_b32 v10, 4, v1")
    P("s_cmp_eq_u32 s32, 15\ns_cbranch_scc1 L_k1_spare_h")
    P("v_mul_u32_u24 v11, 1280, v8\nv_xor_b32 v12, v10, v9\nv_lshl_add_u32 v4, v12, 4, v11\nv_xor_b32 v5, 64, v4")
    P("v_mul_u32_u24 v11, 3840, v10\nv_bfe_u32 v12, v1, 2, 2\nv_xor_b32 v12, v12, v10\nv_lshl_add_u32 v11, v12, 6, v11\nv_and_b32 v12, 3, v1\nv_lshl_add_u32 v3, v12, 4, v11")
    P("s_lshl_b32 s36, s31, 2\ns_add_u32 s36, s36, s33\ns_mul_i32 s36, s36, 40960")
    P("s_mul_i32 s37, s33, 61440\ns_lshl_b32 s38, s32, 8\ns_add_u32 s37, s37, s38\ns_lshl_b32 s39, s33, 12")
    P("s_mov_b32 s34, s29")
    P(f"s_mov_b32 s14, {SZ}\ns_mov_b32 s15, 0x20000\ns_mov_b32 s18, {640*3840}\ns_mov_b32 s19, 0x20000\ns_waitcnt lgkmcnt(0)")
    P("s_mov_b32 s12, s4\ns_and_b32 s13, s5, 0xffff\ns_mov_b32 s16, s6\ns_and_b32 s17, s7, 0xffff")
    nvm = [0]; last = {}
    def dma_list(i):
        slot = (i % 4) * 32768
        Lx = []
        for j in range(4):
            pre = "s_lshl_b32 s40, s34, 7\ns_add_u32 s40, s40, s36\ns_mul_i32 s41, s34, 245760\ns_add_u32 s41, s41, s37\n" if j == 0 else ""
            Lx.append(pre + f"s_add_u32 m0, s39, {slot + j*1024}\ns_nop 0\nbuffer_load_dwordx4 v{4+(j&1)}, s[12:15], s40 offen lds")
            post = f"\ns_add_u32 s41, s41, {4*3840}" if j < 3 else "\ns_add_u32 s34, s34, 1\ns_cmp_eq_u32 s34, 10\ns_cselect_b32 s34, 0, s34"
            Lx.append(f"s_add_u32 m0, s39, {slot + 16384 + j*1024}\ns_add_u32 s40, s40, 10240\nbuffer_load_dwordx4 v3, s[16:19], s41 offen lds" + post)
        nvm[0] += 8; last[i] = nvm[0] - 1
        return Lx
    for l in dma_list(0): P(l)
    def hsetup():
        P(f"s_setprio 0\ns_load_dwordx2 s[10:11], s[0:1], {ARG['wo']}\ns_load_dwordx8 s[56:63], s[0:1], {ARG['w1']}\nv_lshlrev_b32 v14, 4, v1\nv_mov_b32 v2, 0\ns_waitcnt lgkmcnt(0)")
        srd(P, 20, 74, L.WS_USED); srd(P, 76, 72, 256)
        P(f"v_mov_b32 v13, {RL}\nds_write_b32 v13, v2\nds_write_b32 v13, v2 offset:4\nds_write_b32 v13, v2 offset:8\nds_write_b32 v13, v2 offset:12")
        for k in range(8): P(f"ds_write_b32 v13, v2 offset:{SY_LDS - RL + 4*k}")
        P("s_waitcnt lgkmcnt(0)")
    hsetup()
    def decode(tag):
        P(f"""s_mov_b32 s64, s10
s_mov_b32 s65, s11
s_mov_b32 s50, 1280
s_mov_b32 s51, 5
s_mov_b32 s52, 0
s_mov_b32 s53, 0
s_mov_b32 s55, 0
s_mov_b32 s66, 819200
s_mov_b32 s70, 20
s_mov_b32 s67, s48
s_cmp_lt_u32 s48, 40
s_cbranch_scc1 L_dec4{tag}
s_mov_b32 s64, s56
s_mov_b32 s65, s57
s_mov_b32 s52, 5
s_mov_b32 s55, {L.CS1_OFF}
s_sub_u32 s67, s48, 40
s_cmp_lt_u32 s48, 80
s_cbranch_scc1 L_dec4{tag}
s_mov_b32 s64, s58
s_mov_b32 s65, s59
s_mov_b32 s52, 10
s_mov_b32 s55, 0
s_sub_u32 s67, s48, 80
s_cmp_lt_u32 s48, 120
s_cbranch_scc1 L_dec4{tag}
s_mov_b32 s64, s60
s_mov_b32 s65, s61
s_mov_b32 s50, 3456
s_mov_b32 s52, 15
s_mov_b32 s53, 1
s_mov_b32 s55, {L.CS3_OFF}
s_mov_b32 s66, 2211840
s_mov_b32 s51, 7
s_sub_u32 s67, s48, 120
s_mul_i32 s68, s67, 21846
s_lshr_b32 s68, s68, 16
s_mul_i32 s69, s68, 3
s_sub_u32 s69, s67, s69
s_cmp_lt_u32 s48, 201
s_cbranch_scc1 L_decj{tag}
s_mov_b32 s64, s62
s_mov_b32 s65, s63
s_mov_b32 s50, 1280
s_mov_b32 s52, 29
s_mov_b32 s53, 2
s_mov_b32 s55, 0
s_mov_b32 s70, 54
s_sub_u32 s67, s48, 201
s_lshr_b32 s68, s67, 3
s_and_b32 s69, s67, 7
s_branch L_decj{tag}
L_dec4{tag}:
s_lshr_b32 s68, s67, 2
s_and_b32 s69, s67, 3
L_decj{tag}:
s_mov_b32 s24, s64
s_and_b32 s25, s65, 0xffff
s_mov_b32 s26, s66
s_mov_b32 s27, 0x20000
s_mul_i32 s54, s69, s51
s_sub_u32 s70, s70, s54
s_min_u32 s51, s51, s70
s_lshl_b32 s49, s54, 2
s_add_u32 s49, s49, s33
s_lshl_b32 s49, s49, 3
s_mul_i32 s49, s49, s50
s_lshl_b32 s42, s68, 7
s_add_u32 s49, s49, s42
v_mul_lo_u32 v13, v8, s50
v_lshl_add_u32 v13, v9, 4, v13""")
        P(f"""s_lshl_b32 s42, s68, 2
s_add_u32 s42, s42, s33
s_mul_i32 s52, s52, 20480
s_add_u32 s52, s52, {L.WS_OFF}
s_cmp_eq_u32 s53, 1
s_cbranch_scc1 L_dw3{tag}
s_mul_i32 s43, s42, 52429
s_lshr_b32 s43, s43, 18
s_mul_i32 s44, s43, 5
s_sub_u32 s44, s42, s44
s_cmp_eq_u32 s44, 0
s_cselect_b32 s45, 4, -1
s_bitcmp1_b32 s43, 0
s_cselect_b32 s45, s45, 0
s_add_u32 s44, s44, s45
s_add_u32 s42, s42, s45
s_lshl_b32 s44, s44, 10
s_mul_i32 s46, s69, 2560
s_branch L_dj2{tag}
L_dw3{tag}:
s_lshr_b32 s45, s42, 1
s_mul_i32 s43, s45, 9363
s_lshr_b32 s43, s43, 16
s_cmp_eq_u32 s45, 48
s_cselect_b32 s43, 7, s43
s_mul_i32 s44, s43, 7
s_sub_u32 s44, s45, s44
s_cmp_eq_u32 s43, 7
s_addc_u32 s44, s44, 0
s_lshl_b32 s44, s44, 1
s_and_b32 s45, s42, 1
s_add_u32 s44, s44, s45
s_add_u32 s45, s44, 132
s_cmp_eq_u32 s44, 7
s_cselect_b32 s45, 146, s45
s_cmp_lt_u32 s44, 7
s_cselect_b32 s44, s44, s45
s_lshl_b32 s44, s44, 10
s_mul_i32 s46, s69, 8192
L_dj2{tag}:
s_mul_i32 s43, s43, {L.SLICE_B}
s_add_u32 s52, s52, s43
s_add_u32 s52, s52, s44
s_lshl_b32 s42, s42, 6
s_add_u32 s42, s42, s46
s_cmp_eq_u32 s55, 0
s_cselect_b32 s42, 0, s42
s_add_u32 s55, s55, s42""")
    def prep_dma(ldsbase_sreg, NTF=NTF):
        P(f"s_lshl_b32 s42, s33, 10\ns_add_u32 s42, s42, {ldsbase_sreg}\ns_lshl_b32 s43, s50, 5\ns_mov_b32 s44, s49")
        for k in range(7):
            P(f"s_add_u32 m0, s42, {k*4096}\ns_nop 0\nbuffer_load_dwordx4 v13, s[24:27], s44 offen{NTF} lds")
            if k in (4, 5): P(f"s_cmp_eq_u32 s51, {k+1}\ns_cselect_b32 s43, 0, s43")
            if k < 6: P("s_add_u32 s44, s44, s43")
        nvm[0] += 7
    def prep_addr(tag, ldsbase_sreg):
        P(f"""v_bfe_u32 v11, v1, 2, 2
v_lshl_add_u32 v11, v10, 3, v11
v_lshlrev_b32 v11, 7, v11
v_and_b32 v12, 3, v1
v_lshl_add_u32 v11, v12, 4, v11
s_lshr_b32 s42, s33, 1
s_lshl_b32 s42, s42, 6
s_and_b32 s43, s33, 1
s_lshl_b32 s43, s43, 3
s_add_u32 s42, s42, s43
s_add_u32 s42, s42, {ldsbase_sreg}
v_add_u32 v11, s42, v11
v_lshrrev_b32 v6, 1, v10
v_lshlrev_b32 v6, 9, v6
v_and_b32 v7, 1, v10
v_lshlrev_b32 v7, 9, v7
v_sub_u32 v6, v6, v7
v_add_u32 v6, v6, v11
v_lshlrev_b32 v7, 12, v10
v_add_u32 v7, v7, v11
v_add_u32 v7, 2048, v7
s_cmp_eq_u32 s53, 1
s_mov_b32 s46, 5120
s_cmov_b32 s46, 7168""")
        for k in range(7):
            P(f"""s_add_u32 s42, s54, {k}
s_mul_i32 s43, s42, 9363
s_lshr_b32 s43, s43, 16
s_cmp_eq_u32 s42, 48
s_cselect_b32 s43, 7, s43
s_mul_i32 s44, s43, 7
s_sub_u32 s44, s42, s44
s_cmp_eq_u32 s43, 7
s_addc_u32 s44, s44, 0
s_lshl_b32 s44, s44, 2
s_lshr_b32 s44, 0x6315420, s44
s_and_b32 s44, s44, 7
s_lshl_b32 s44, s44, 3
s_add_u32 s44, s44, s43
s_cmp_eq_u32 s53, 2
s_cselect_b32 s42, s44, s42
s_mul_i32 s42, s42, s46
s_add_u32 s{92+k}, s42, s52""")
    def prep_reads(tag):
        P(f"s_cmp_lt_u32 s48, 40\ns_cbranch_scc1 L_prw{tag}")
        for k in range(7):
            P(f"ds_read_b64_tr_b16 v[{64+4*k}:{65+4*k}], v11 offset:{k*4096}\nds_read_b64_tr_b16 v[{66+4*k}:{67+4*k}], v11 offset:{k*4096+512}")
        P(f"L_pre{tag}:")
        t = f"L_prw{tag}:\n"
        for k in range(4): t += f"ds_read_b64_tr_b16 v[{64+4*k}:{65+4*k}], v6 offset:{k*5120}\nds_read_b64_tr_b16 v[{66+4*k}:{67+4*k}], v6 offset:{k*5120+1024}\n"
        for k in (4, 5, 6): t += f"ds_read_b64_tr_b16 v[{64+4*k}:{65+4*k}], v7 offset:0\nds_read_b64_tr_b16 v[{66+4*k}:{67+4*k}], v7 offset:2560\n"
        tails.append(t + f"s_branch L_pre{tag}")
    def prep_stores(tag):
        P("s_waitcnt lgkmcnt(0)")
        for k in range(7):
            if k >= 5: P(f"s_cmp_eq_u32 s51, {k}\ns_cbranch_scc1 L_pp5{tag}")
            P(f"buffer_store_dwordx4 v[{64+4*k}:{67+4*k}], v14, s[20:23], s{92+k} offen{PSF}")
        P(f"L_pp5{tag}:")
    def prep_cs(tag):
        P(f"s_cmp_eq_u32 s55, 0\ns_cbranch_scc1 L_ppe{tag}")
        for r in range(4): P(f"v_mov_b32 v{56+r}, {ONES}")
        for k in range(7):
            if k >= 5: P(f"s_cmp_eq_u32 s51, {k}\ns_cbranch_scc1 L_pc5{tag}")
            P(f"v_mfma_f32_16x16x32_bf16 v[92:95], v[56:59], v[{64+4*k}:{67+4*k}], {'0' if k == 0 else 'v[92:95]'}")
        P(f"L_pc5{tag}:")
        P("v_lshlrev_b32 v62, 2, v1\ns_mov_b64 exec, 0xffff\nbuffer_store_dword v92, v62, s[20:23], s55 offen sc1\ns_mov_b64 exec, -1")
        P(f"L_ppe{tag}:")
    P("s_mul_i32 s48, s31, 15\ns_add_u32 s48, s48, s32\ns_add_u32 s48, s48, 41")
    decode("m")
    if not CST: prep_addr("m", PB)
    P("v_add_u32 v15, s39, v14")
    XS = 96
    P(f"""v_and_b32 v48, 31, v1
v_lshrrev_b32 v49, 5, v1
v_mul_u32_u24 v50, 2560, v49
v_lshl_add_u32 v52, v48, 2, v50
v_lshlrev_b32 v51, 1, v52""")
    pid = None; sid = None
    def pretouch():
        P(f"""s_and_b32 s42, s2, 7
s_lshl_b32 s43, s42, 11
s_add_u32 s43, s43, {L.FR_OFF}
s_lshl_b32 s44, s42, 10
s_add_u32 s44, s44, {L.FO_OFF}
s_cmp_eq_u32 s33, 0
s_cselect_b32 s43, s43, s44
s_cselect_b32 s45, 5, 4
s_lshl_b32 s44, s42, 5
s_lshr_b32 s42, s2, 3
s_add_u32 s44, s44, s42
s_lshl_b32 s44, s44, 10
s_add_u32 s44, s44, {L.ST_OFF}
s_cmp_ge_u32 s33, 2
s_cselect_b32 s43, s44, s43
v_lshlrev_b32 v124, s45, v1
buffer_load_dword v120, v124, s[20:23], s43 offen sc1""")
        nvm[0] += 1
    def fp_write(idx_sreg, n=1):
        e = lab("fp")
        P(f"s_cmp_lg_u32 s30, 4\ns_cbranch_scc1 {e}\ns_lshl_b32 s42, {idx_sreg}, 7\ns_add_u32 s42, s42, {L.FP_OFF}\nv_mov_b32 v60, 1\nv_lshlrev_b32 v62, 11, v1\ns_mov_b64 exec, {n}\nbuffer_store_dword v60, v62, s[20:23], s42 offen sc1\ns_mov_b64 exec, -1\n{e}:")
    def fx_write():
        e = lab("fx")
        P(f"""s_cmp_lg_u32 s30, 5
s_cbranch_scc1 {e}
s_getreg_b32 s42, hwreg(HW_REG_XCC_ID)
s_and_b32 s42, s42, 15
s_add_u32 s42, s42, 1
v_mov_b32 v60, s42
s_and_b32 s42, s2, 7
s_lshl_b32 s42, s42, 5
s_lshr_b32 s43, s2, 3
s_add_u32 s42, s42, s43
s_lshl_b32 s42, s42, 2
s_add_u32 s42, s42, {L.FX_OFF}
s_mov_b64 exec, 1
buffer_store_dword v60, v2, s[20:23], s42 offen sc1
s_mov_b64 exec, -1
{e}:""")
    for i in range(10):
        P(f"s_waitcnt vmcnt({min(nvm[0] - 1 - last[i], nvm[0] - 1 - pid) if i == PP else nvm[0] - 1 - last[i]})")
        if i == ZI + 2: spoll("0", 0, 4, 1, 64, 64, "s[76:79]", part=2)
        if i == SI + 1: spoll("s56", 0, "s70", 5, 1, 64, part=2)
        P("s_barrier")
        if i == ZI + 2:
            fx_write()
            e = lab("fs")
            P(f"s_cmp_lg_u32 s30, 6\ns_cbranch_scc1 {e}\ns_lshl_b32 s42, s31, 4\ns_add_u32 s42, s42, s32\ns_lshl_b32 s42, s42, 7\ns_add_u32 s42, s42, {L.FQ_OFF}\nv_mov_b32 v60, 1\ns_mov_b64 exec, 1\nbuffer_store_dword v60, v2, s[20:23], s42 offen sc1\ns_mov_b64 exec, -1\n{e}:")
        if i == 0:
            for j in range(4): P(f"ds_read_b128 v[{XS+4*j}:{XS+4*j+3}], v15 offset:{j*1024}")
            for l in dma_list(1): P(l)
            for j in range(4):
                P(f"s_waitcnt lgkmcnt({3 - j})")
                for r in range(4):
                    P(f"v_lshlrev_b32 v{112+2*r}, 16, v{XS+4*j+r}\nv_and_b32 v{113+2*r}, 0xffff0000, v{XS+4*j+r}")
                P(f"v_add_f32 v{16+2*j}, v112, v113\nv_mul_f32 v{17+2*j}, v112, v112\nv_fmac_f32 v{17+2*j}, v113, v113")
                for r in range(2, 8): P(f"v_add_f32 v{16+2*j}, v{16+2*j}, v{112+r}\nv_fmac_f32 v{17+2*j}, v{112+r}, v{112+r}")
            for ctl in ("quad_perm:[1,0,3,2]", "quad_perm:[2,3,0,1]", "row_half_mirror"):
                for r in range(8): P(f"v_add_f32_dpp v{16+r}, v{16+r}, v{16+r} {ctl} row_mask:0xf bank_mask:0xf")
            for j in range(1, 4):
                P(f"v_cmp_eq_u32 vcc, {j}, v9\nv_cndmask_b32 v16, v16, v{16+2*j}, vcc\nv_cndmask_b32 v17, v17, v{17+2*j}, vcc")
            P(f"""v_lshl_add_u32 v18, v9, 3, v8
v_lshlrev_b32 v18, 3, v18
s_mul_i32 s42, s31, 10
s_add_u32 s42, s42, s29
s_lshl_b32 s42, s42, 2
s_add_u32 s42, s42, s33
s_lshl_b32 s42, s42, 8
s_add_u32 s42, s42, {L.SR_OFF}
s_cmp_lt_u32 s32, 10
s_cselect_b32 s43, 0, 0x40000000
v_add_u32 v18, s43, v18""")
        if i + 2 < 10:
            for l in dma_list(i + 2): P(l)
        if i == SI + 1:
            P(f"""s_mul_i32 s42, s31, 10240
s_lshl_b32 s43, s33, 8
s_add_u32 s42, s42, s43
s_add_u32 s42, s42, {L.SR_OFF}
s_add_u32 s44, s42, 4096
s_mul_i32 s43, s32, 5120
s_lshl_b32 s46, s33, 7
s_add_u32 s43, s43, s46
s_add_u32 s43, s43, {L.SC_OFF}""")
            for k in range(5): P(f"buffer_load_dwordx2 v[{16+2*k}:{17+2*k}], v51, s[20:23], s{42 if k < 4 else 44} offen offset:{(k%4)*1024} sc1")
            for k in range(5): P(f"buffer_load_dword v{26+k}, v52, s[20:23], s43 offen offset:{k*512} sc1")
            nvm[0] += 10; slid = nvm[0] - 1
        if i == 0:
            P("s_mov_b32 exec_lo, 0x0f0f0f0f\ns_mov_b32 exec_hi, 0x0f0f0f0f\nbuffer_store_dwordx2 v[16:17], v18, s[20:23], s42 offen sc1\ns_mov_b64 exec, -1"); nvm[0] += 1
        SPF = opt.get("SPF", 0)
        if SPF and 1 <= i <= 7:
            k = i - 1
            e = lab("pf")
            if k >= 5: P(f"s_cmp_le_u32 s51, {k}\ns_cbranch_scc1 {e}")
            P(f"s_mul_i32 s42, s50, {32*k}\ns_add_u32 s42, s42, s49")
            for r in range(8):
                P(f"s_buffer_load_dword s61, s[24:27], s42")
                if SPF == 2: P(f"s_buffer_load_dword s62, s[24:27], s42 offset:64")
                if r < 7: P("s_add_u32 s42, s42, s50")
            P(f"{e}:")
        if i == ZI + 1: spoll("0", 0, 4, 1, 64, 64, "s[76:79]", part=1)
        if i == SI:
            P(f"""s_and_b32 s56, s33, 1
s_mul_i32 s56, s56, 5
s_lshl_b32 s57, s31, 4
s_add_u32 s57, s57, s56
s_lshl_b32 s56, s56, 4
s_add_u32 s56, s56, s32
s_cmp_lt_u32 s33, 2
s_cselect_b32 s56, s57, s56
s_cselect_b32 s46, 128, 2048
s_lshl_b32 s56, s56, 7
s_add_u32 s56, s56, {L.FQ_OFF}
s_add_u32 s57, s56, s70
s_add_u32 s58, s57, s70
s_add_u32 s59, s58, s70
s_add_u32 s60, s59, s70""".replace("s_cselect_b32 s46, 128, 2048", "s_mov_b32 s70, 2048\ns_cmov_b32 s70, 128"))
            spoll("s56", 0, "s70", 5, 1, 64, part=1)
        if i == PI: prep_dma(PB, "" if opt.get("SPF", 0) else NTF); pid = nvm[0] - 1
        if i == PP and not CST: prep_reads("m"); P("s_waitcnt lgkmcnt(0)"); prep_cs("m")
        if PP <= i <= SI and not CST:
            nst = SI - PP + 1
            for k in range((i - PP) * 7 // nst, (i - PP + 1) * 7 // nst):
                kk_ = 6 - k
                e = lab("ps")
                if kk_ >= 5: P(f"s_cmp_le_u32 s51, {kk_}\ns_cbranch_scc1 {e}")
                P(f"buffer_store_dwordx4 v[{64+4*kk_}:{67+4*kk_}], v14, s[20:23], s{92+kk_} offen sc1\n{e}:")
                if kk_ < 5: nvm[0] += 1
        if i == SI + 2:
            P(f"s_waitcnt vmcnt({nvm[0] - 1 - slid})")
            for k in range(1, 5): P(f"v_add_f32 v16, v16, v{16+2*k}\nv_add_f32 v17, v17, v{17+2*k}\nv_add_f32 v26, v26, v{26+k}")
            P("v_mov_b32 v18, v16\nv_mov_b32 v19, v17\nv_mov_b32 v27, v26\nv_permlane32_swap_b32 v16, v18\nv_permlane32_swap_b32 v17, v19\nv_permlane32_swap_b32 v26, v27\nv_add_f32 v16, v16, v18\nv_add_f32 v17, v17, v19\nv_add_f32 v26, v26, v27")
            P(f"v_mul_f32 v16, {f2u(1/640)}, v16\nv_mul_f32 v17, {f2u(1/640)}, v17\nv_fma_f32 v17, -v16, v16, v17\nv_max_f32 v17, 0, v17\nv_add_f32 v17, {f2u(EPS)}, v17\nv_rsq_f32 v17, v17")
            P(f"s_cmp_lt_u32 s32, 5\ns_cselect_b32 s41, {f2u(20**-0.5*LOG2E)}, 1.0\ns_lshl_b32 s42, s33, 7\ns_add_u32 s42, s42, {STAT}\nv_and_b32 v18, 31, v1\nv_lshl_add_u32 v18, v18, 2, s42\nv_mul_f32 v17, s41, v17\nv_mul_f32 v16, v16, v17")
            P("ds_write_b32 v18, v17\nds_write_b32 v18, v16 offset:512\nds_write_b32 v18, v26 offset:1024\ns_waitcnt lgkmcnt(0)")
    P("s_barrier")
    def wo_block(tag):
        P(f"v_mov_b32 v12, {RL}\nv_mov_b32 v60, 1\ns_lshr_b32 s44, s2, 5\ns_mul_i32 s43, s44, 5\ns_and_b32 s43, s43, 0xfc\ns_lshl_b32 s43, s43, 7\ns_add_u32 s43, s43, {L.FP_OFF}")
        spoll("s43", 0, 128, 8, 1, 56)
        P(f"s_mul_i32 s44, s44, {L.SLICE_B}\ns_mul_i32 s42, s33, {N1*1024}\ns_add_u32 s44, s44, s42\ns_add_u32 s44, s44, {L.WS_OFF}")
        for i in range(N1):
            if i % 4 == 0: P(f"s_add_u32 m0, s42, {i*1024}\ns_add_u32 s46, s44, {i*1024}")
            if i >= TD: P(f"s_waitcnt vmcnt({TD-1})")
            P(f"buffer_load_dwordx4 v14, s[20:23], s46 offen offset:{(i%4)*1024} sc1 lds")
    assert CST
    pretouch()
    if opt.get("WAS", 1):
        P(f"v_mov_b32 v12, {RL}\nds_read_b32 v61, v12 offset:12\ns_waitcnt lgkmcnt(0)")
        lds_check(12, 61, 12, 4, "s_sleep 1\n")
    P("L_k1_wo:")
    sa.i = 1; sa()
    wo_block("s")
    sa()
    P("s_branch L_loader")
    P("L_k1_spare_h:")
    hsetup()
    P("s_mov_b32 s48, s31\ns_mov_b32 s71, 0\nL_sp1:")
    decode("a"); prep_dma("s71")
    P("s_add_u32 s48, s48, 16\ns_add_u32 s71, s71, 28672\ns_cmp_lt_u32 s48, 41\ns_cbranch_scc1 L_sp1")
    P("s_waitcnt vmcnt(0)\ns_barrier\ns_mov_b32 s48, s31\ns_mov_b32 s71, 0\nL_sp2:")
    decode("b")
    prep_addr("b", "s71"); prep_reads("b"); prep_stores("b"); prep_cs("b")
    P("s_nop 4\ns_add_u32 s48, s48, 16\ns_add_u32 s71, s71, 28672\ns_cmp_lt_u32 s48, 41\ns_cbranch_scc1 L_sp2")
    spoll("0", 0, 4, 1, 64, 64, "s[76:79]")
    P("s_waitcnt vmcnt(0)")
    P("s_barrier\ns_mov_b32 s48, s31")
    P("s_cmp_lt_u32 s31, 9\ns_cselect_b32 s70, 7, 3\ns_mov_b32 s71, 0")
    fp_write("s48", "s[70:71]"); fx_write(); pretouch()
    P("s_branch L_k1_wo")
    P("L_k1_comp:\ns_mov_b32 s71, 0")
    sa.i = 1
    if opt.get("CPF", 1):
        NSEG = opt.get("NSEG", 8)
        P(f"""s_getpc_b64 s[48:49]
L_pc0:
s_sub_u32 s48, s48, L_pc0-{KN}
s_subb_u32 s49, s49, 0
s_lshl_b32 s50, s26, 2
s_add_u32 s50, s50, s30
s_cmp_ge_u32 s50, {NSEG}
s_cbranch_scc1 L_nocpf
s_lshl_b32 s50, s50, 13
v_lshl_add_u32 v60, v1, 7, s50
v_min_u32 v60, L_code_end-{KN}-4, v60
v_mov_b32 v61, s49
v_add_co_u32 v60, vcc, s48, v60
v_addc_co_u32 v61, vcc, 0, v61, vcc
global_load_dword v62, v[60:61], off
L_nocpf:""")
    P("s_cmp_eq_u32 s32, 15\ns_cbranch_scc1 L_k1_spare_c")
    P("s_waitcnt lgkmcnt(0)")
    srd(P, 20, 74, L.WS_USED)
    if opt.get("TLBW", 0):
        st_ = opt.get("TLBS", 16)
        P(f"""s_sub_u32 s50, s26, 2
s_lshl_b32 s50, s50, 2
s_add_u32 s50, s50, s30
s_cmp_ge_u32 s50, {(L.WS_USED >> (st_ + 6)) + 2}
s_cbranch_scc1 L_notlb
v_lshlrev_b32 v60, {st_}, v1
s_cmp_eq_u32 s50, 0
s_cbranch_scc1 L_tlbo
s_sub_u32 s50, s50, 1
s_lshl_b32 s50, s50, {st_ + 6}
v_add_u32 v60, s50, v60
buffer_load_dword v63, v60, s[20:23], 0 offen
s_branch L_notlb
L_tlbo:
s_load_dwordx2 s[52:53], s[0:1], {ARG['out']}
s_waitcnt lgkmcnt(0)
s_and_b32 s53, s53, 0xffff
s_mov_b32 s54, {SZ}
s_mov_b32 s55, 0x20000
v_lshlrev_b32 v60, 16, v1
buffer_load_dword v63, v60, s[52:55], 0 offen
L_notlb:""")
    if CST:
        P("s_mov_b32 s33, s30\nv_lshrrev_b32 v8, 3, v1\nv_and_b32 v9, 7, v1\nv_lshrrev_b32 v10, 4, v1\ns_mul_i32 s48, s31, 15\ns_add_u32 s48, s48, s32\ns_add_u32 s48, s48, 41")
        decode("c"); prep_addr("c", PB)
        P("v_mov_b32 v14, v11\nv_lshlrev_b32 v15, 4, v1\ns_mov_b32 s38, s51\ns_mov_b32 s39, s55\ns_lshl_b32 s71, s48, 7")
        for r in range(4): P(f"v_mov_b32 v{56+r}, {ONES}")
    P("s_lshr_b32 s34, s30, 1\ns_and_b32 s35, s30, 1")
    P("""v_and_b32 v36, 31, v1
v_lshrrev_b32 v39, 5, v1
s_lshl_b32 s41, s34, 6
v_add_u32 v10, s41, v36
v_bfe_u32 v11, v10, 1, 3
v_xor_b32 v11, v11, v39
v_lshlrev_b32 v11, 4, v11
v_lshl_add_u32 v20, v10, 7, v11
s_lshl_b32 s41, s35, 12
v_add_u32 v20, s41, v20""")
    for kk in range(1, 4): P(f"v_xor_b32 v{20+kk}, {kk*32}, v20")
    for kk in range(4): P(f"v_add_u32 v{24+kk}, 0x10000, v{20+kk}")
    for kk in range(8): P(f"v_xor_b32 v{40+kk}, 0x1000, v{20+kk}")
    P("""v_bfe_u32 v10, v1, 2, 2
v_lshl_add_u32 v11, v39, 3, v10
v_lshlrev_b32 v11, 8, v11
v_bfe_u32 v12, v1, 4, 1
v_lshl_add_u32 v11, v12, 5, v11
v_and_b32 v12, 3, v1
v_lshl_add_u32 v11, v12, 3, v11
s_lshl_b32 s41, s35, 1
s_add_u32 s41, s41, s34
v_xor_b32 v12, s41, v10
v_lshl_add_u32 v28, v12, 6, v11
v_xor_b32 v29, 64, v28
v_add_u32 v30, 0x10000, v28
v_add_u32 v31, 0x10000, v29""")
    ACC, FX, FW, SEL, CSA, AD, RSA = 64, 128, 144, 4, 32, 224, 16
    P(f"v_and_b32 v10, 15, v1\nv_bfe_u32 v11, v1, 4, 1\nv_cmp_eq_u32 vcc, v10, v11\nv_mov_b32 v10, {ONES}")
    for i in range(4): P(f"v_cndmask_b32 v{SEL+i}, 0, v10, vcc")
    P("""s_lshl_b32 s43, s31, 2
s_lshl_b32 s44, s34, 1
s_add_u32 s43, s43, s44
s_add_u32 s43, s43, s35
s_lshr_b32 s44, s43, 3
s_mul_i32 s44, s44, 327680
s_and_b32 s45, s43, 7
s_xor_b32 s46, s45, 1
s_mul_i32 s45, s45, 1280
s_mul_i32 s46, s46, 1280
s_add_u32 s45, s45, s44
s_add_u32 s46, s46, s44""")
    P("s_cmp_ge_u32 s32, 10\ns_cbranch_scc1 L_k1_v")
    for variant in ("qk", "v"):
        if variant == "v":
            P("L_k1_v:")
            sa.i = 1
            P(f"s_sub_u32 s41, s32, 10\ns_lshl_b32 s41, s41, 7\ns_lshl_b32 s42, s35, 6\ns_add_u32 s41, s41, s42\ns_lshl_b32 s42, s34, 5\ns_add_u32 s41, s41, s42\ns_add_u32 s45, s45, {L.V_OFF}\ns_add_u32 s46, s46, {L.V_OFF}")
            for ct in range(2):
                P(f"v_add_u32 v10, s41, v36\nv_xor_b32 v10, {32*ct}, v10\nv_mul_u32_u24 v11, 52429, v10\nv_lshrrev_b32 v11, 20, v11\nv_mul_u32_u24 v11, {10240-320}, v11\nv_lshl_add_u32 v11, v10, 4, v11\nv_mul_u32_u24 v12, 320, v39\nv_add_u32 v{AD+ct}, v11, v12")
        else:
            P(f"s_cmp_ge_u32 s32, 5\ns_cselect_b32 s42, 5, 0\ns_cselect_b32 s47, {L.K_OFF}, {L.Q_OFF}\ns_sub_u32 s41, s32, s42\ns_lshl_b32 s41, s41, 5\ns_lshl_b32 s42, s35, 4\ns_add_u32 s41, s41, s42\ns_lshl_b32 s42, s34, 3\ns_add_u32 s41, s41, s42\ns_add_u32 s45, s45, s47\ns_add_u32 s46, s46, s47")
            for ct in range(2):
                for b in range(4):
                    P(f"v_add_u32 v10, s41, v39\nv_xor_b32 v10, {8*ct}, v10\nv_add_u32 v10, {2*b}, v10\nv_mul_u32_u24 v11, 52429, v10\nv_lshrrev_b32 v11, 18, v11\nv_mul_u32_u24 v11, {10240-1280}, v11\nv_lshl_add_u32 v11, v10, 8, v11\nv_lshl_add_u32 v{AD+ct*4+b}, v36, 3, v11")
        P(f"""s_lshl_b32 s41, s35, 1
s_add_u32 s41, s41, s34
s_lshl_b32 s41, s41, 7
s_mul_i32 s40, s32, 10
s_add_u32 s40, s40, s29
s_lshl_b32 s40, s40, 9
s_add_u32 s40, s40, s41
s_add_u32 s40, s40, {L.SC_OFF}
s_cmp_lt_u32 s31, 10
s_cselect_b32 s43, 0, 0x40000000
s_add_u32 s41, s41, {STAT+1024}
v_lshl_add_u32 v37, v36, 2, s43
s_lshl_b32 s42, s34, 1
s_add_u32 s42, s42, s35
s_lshl_b32 s42, s42, 7
s_add_u32 s42, s42, {STAT}""")
        def rlist(n):
            st, kk = divmod(n, 4)
            b = n & 1
            slot = (st % 4) * 32768
            hi = slot >= 65536
            off = slot - (65536 if hi else 0)
            def xr(rt): return f"ds_read_b128 v[{FX+b*8+rt*4}:{FX+b*8+rt*4+3}], v{(40 if rt else 20)+(4 if hi else 0)+kk} offset:{off}"
            def wr(ct, h):
                ar = 28 + ct + (2 if hi else 0)
                return f"ds_read_b64_tr_b16 v[{FW+b*8+ct*4+2*h}:{FW+b*8+ct*4+2*h+1}], v{ar} offset:{off+16384+kk*4096+1024*h}"
            return [xr(0), wr(0, 0), wr(0, 1), wr(1, 0), wr(1, 1), xr(1)]
        P("s_barrier"); sa()
        for l in rlist(0): P(l)
        for n in range(40):
            b = n & 1
            nx = rlist(n + 1) if n + 1 < 40 else []
            def mf(t):
                rt, ct = t >> 1, t & 1
                x = v(FX + b*8 + rt*4, 4); w = v(FW + b*8 + ct*4, 4); d = v(ACC + t*16, 16)
                c = "0" if n == 0 else d
                if variant == "qk": P(f"v_mfma_f32_32x32x16_bf16 {d}, {w}, {x}, {c}")
                else: P(f"v_mfma_f32_32x32x16_bf16 {d}, {x}, {w}, {c}")
            P("s_waitcnt lgkmcnt(3)")
            mf(0)
            if nx and (n + 1) % 4 == 0:
                if (n + 1) // 4 in (ZI + 2, WB): P("s_waitcnt vmcnt(0)")
                P("s_barrier")
                if (n + 1) // 4 == WB:
                    assert 4*PP + 1 + 6*PSP + 1 < n
                    e = lab("wb"); P(f"s_cmp_lg_u32 s30, 0\ns_cbranch_scc1 {e}\nbuffer_wbl2 sc1\n{e}:")
                if FOCUS == 21 and STAMP: P(f"s_memtime s[{52+2*((n+1)//4-1)}:{53+2*((n+1)//4-1)}]")
            k = 0
            if CST:
                pk_, pr_ = divmod(n - (4*PP + 1), PSP)
                if 0 <= pk_ < 7 and pr_ == 0:
                    P(f"ds_read_b64_tr_b16 v[{160+4*pk_}:{161+4*pk_}], v14 offset:{pk_*4096}\nds_read_b64_tr_b16 v[{162+4*pk_}:{163+4*pk_}], v14 offset:{pk_*4096+512}"); k += 2
                if 0 <= pk_ < 7 and pr_ == 1:
                    e = lab("ps")
                    if pk_ >= 5: P(f"s_cmp_le_u32 s38, {pk_}\ns_cbranch_scc1 {e}")
                    P(f"buffer_store_dwordx4 v[{160+4*pk_}:{163+4*pk_}], v15, s[20:23], s{92+pk_} offen{'' if WB else ' sc1'}")
                    P(f"v_mfma_f32_16x16x32_bf16 v[16:19], v[56:59], v[{160+4*pk_}:{163+4*pk_}], {'0' if pk_ == 0 else 'v[16:19]'}\n{e}:")
            for l in nx[:2]: P(l); k += 1
            P(f"s_waitcnt lgkmcnt({1 + k})")
            mf(1)
            for l in nx[2:4]: P(l); k += 1
            P(f"s_waitcnt lgkmcnt({k})")
            mf(2)
            for l in nx[4:6]: P(l)
            mf(3)
            if n < 4: P(f"v_mfma_f32_16x16x32_bf16 {v(CSA,4)}, {v(SEL,4)}, {v(FW+b*8,4)}, {'0' if n == 0 else v(CSA,4)}")
            if n == 4:
                P(f"s_mov_b64 exec, 0xffff\nbuffer_store_dword v{CSA}, v37, s[20:23], s40 offen sc1\nbuffer_store_dword v{CSA+1}, v37, s[20:23], s40 offen offset:64 sc1\ns_mov_b64 exec, -1")
        sa()
        if CST:
            assert 4*PP + 1 + 6*PSP + 1 <= 39
            e = lab("pc")
            P(f"s_cmp_eq_u32 s39, 0\ns_cbranch_scc1 {e}\nv_lshlrev_b32 v62, 2, v1\ns_mov_b64 exec, 0xffff\nbuffer_store_dword v16, v62, s[20:23], s39 offen sc1\ns_mov_b64 exec, -1\n{e}:")
        P("s_barrier")
        if variant == "qk":
            P(f"""v_lshl_add_u32 v37, v36, 2, s42
v_xor_b32 v38, 128, v37
ds_read_b32 v40, v37
ds_read_b32 v42, v37 offset:512
ds_read_b32 v44, v38
ds_read_b32 v46, v38 offset:512
v_lshl_add_u32 v37, v39, 4, s41
v_xor_b32 v38, 128, v37""")
            for ct in range(2):
                for b in range(4):
                    P(f"ds_read_b128 v[{128+ct*16+b*4}:{128+ct*16+b*4+3}], v{37+ct} offset:{b*32}")
            P("s_waitcnt lgkmcnt(8)")
            for r in (40, 42, 44, 46): P(f"v_mov_b32 v{r+1}, v{r}")
            P("s_waitcnt lgkmcnt(0)")
            for t in range(4):
                rt, ct = t >> 1, t & 1
                A = v(40 + rt*4, 2); B = v(42 + rt*4, 2)
                for p in range(8):
                    r = ACC + t*16 + 2*p
                    P(f"v_pk_mul_f32 v[{48+2*(p&3)}:{49+2*(p&3)}], v[{128+ct*16+2*p}:{128+ct*16+2*p+1}], {B}")
                    P(f"v_pk_fma_f32 v[{r}:{r+1}], v[{r}:{r+1}], {A}, v[{48+2*(p&3)}:{49+2*(p&3)}] neg_lo:[0,0,1] neg_hi:[0,0,1]")
                for p in range(8):
                    r = ACC + t*16 + 2*p
                    P(f"v_cvt_pk_bf16_f32 v{160+t*8+p}, v{r}, v{r+1}")
                for b in range(4):
                    P(f"buffer_store_dwordx2 v[{160+t*8+2*b}:{160+t*8+2*b+1}], v{AD+ct*4+b}, s[20:23], s{45+rt} offen{QSF}")
        else:
            P(f"""v_lshl_add_u32 v37, v36, 2, s41
v_xor_b32 v38, 128, v37
ds_read_b32 v40, v37
ds_read_b32 v42, v38
v_lshl_add_u32 v37, v39, 4, s42
v_xor_b32 v38, 128, v37""")
            for rt in range(2):
                for b in range(4):
                    P(f"ds_read_b128 v[{128+rt*32+b*4}:{128+rt*32+b*4+3}], v{37+rt} offset:{b*32}")
                    P(f"ds_read_b128 v[{144+rt*32+b*4}:{144+rt*32+b*4+3}], v{37+rt} offset:{512+b*32}")
            P("s_waitcnt lgkmcnt(0)\nv_mov_b32 v41, v40\nv_mov_b32 v43, v42")
            for t in range(4):
                rt, ct = t >> 1, t & 1
                C = v(40 + ct*2, 2)
                for p in range(8):
                    r = ACC + t*16 + 2*p
                    P(f"v_pk_mul_f32 v[{48+2*(p&3)}:{49+2*(p&3)}], v[{144+rt*32+2*p}:{144+rt*32+2*p+1}], {C}")
                    P(f"v_pk_fma_f32 v[{r}:{r+1}], v[{r}:{r+1}], v[{128+rt*32+2*p}:{128+rt*32+2*p+1}], v[{48+2*(p&3)}:{49+2*(p&3)}] neg_lo:[0,0,1] neg_hi:[0,0,1]")
                for p in range(8):
                    r = ACC + t*16 + 2*p
                    P(f"v_cvt_pk_bf16_f32 v{192+t*8+p}, v{r}, v{r+1}")
                for u in range(2):
                    P(f"buffer_store_dwordx4 v[{192+t*8+4*u}:{192+t*8+4*u+3}], v{AD+ct}, s[20:23], s{45+rt} offen offset:{640*u}{QSF}")
        sa()
        if FOCUS == 21 and STAMP:
            stamp_dump([80, 82] + [52 + 2*i for i in range(9)] + [84, 86]); P(f"s_mov_b64 exec, -1\ns_mov_b32 s22, {L.WS_USED}")
        P(f"v_mov_b32 v10, {RL}\nv_mov_b32 v11, 1\ns_mov_b64 exec, 1\nds_add_u32 v10, v11 offset:12\ns_mov_b64 exec, -1")
        P("s_mov_b32 s24, 1\ns_branch L_k2")
    P("L_k1_spare_c:\ns_waitcnt lgkmcnt(0)")
    srd(P, 20, 74, L.WS_USED); srd(P, 76, 72, 256)
    P(f"v_lshlrev_b32 v3, 4, v1\nv_mov_b32 v4, 0\nv_mov_b32 v5, 0\nv_mov_b32 v6, 0\nv_mov_b32 v7, 0\ns_lshl_b32 s43, s31, 2\ns_add_u32 s43, s43, s30\ns_lshl_b32 s44, s43, 12\ns_lshl_b32 s43, s43, 11\ns_add_u32 s43, s43, {L.FLAG_OFF}\ns_add_u32 s44, s44, {L.ST_OFF}")
    P("buffer_store_dwordx4 v[4:7], v3, s[20:23], s43 offen sc1\nbuffer_store_dwordx4 v[4:7], v3, s[20:23], s43 offen offset:1024 sc1")
    for k in range(4): P(f"buffer_store_dwordx4 v[4:7], v3, s[20:23], s44 offen offset:{k*1024} sc1")
    P("v_mov_b32 v8, 1\ns_waitcnt vmcnt(0)\ns_mov_b64 exec, 1\nbuffer_atomic_add v8, v4, s[76:79], 0 offen sc1\ns_mov_b64 exec, -1")
    sa.i = 1; sa(); sa(); sa()
    P("s_barrier\ns_barrier\ns_mov_b32 s24, 0")
    IDS = """s_and_b32 s25, s2, 7
s_lshr_b32 s26, s2, 3
s_and_b32 s27, s26, 3
s_lshl_b32 s28, s25, 2
s_add_u32 s27, s27, s28
s_lshr_b32 s28, s2, 5
s_and_b32 s29, s30, 3
s_lshl_b32 s43, s27, 2
s_add_u32 s29, s29, s43
s_mul_i32 s34, s28, 5
s_and_b32 s37, s28, 1
s_lshr_b32 s35, s34, 1
s_add_u32 s36, s35, 2
s_lshl_b32 s43, s37, 1
s_sub_u32 s36, s36, s43
s_add_u32 s35, s35, s37"""
    P("L_k2:")
    P(f"s_load_dwordx2 s[6:7], s[0:1], {ARG['out']}")
    P(f"s_lshl_b32 s42, s31, 4\ns_add_u32 s42, s42, s32\ns_lshl_b32 s42, s42, 7\ns_add_u32 s42, s42, {L.FQ_OFF}\ns_add_u32 s9, s71, {L.FP_OFF}")
    P(IDS)
    S, KF, VF, OA, PM, CA, MB = 32, 176, 200, 224, 240, 248, 4
    L4V, MODEV, SYA, SYW, RMV = 252, 253, 254, 255, 248
    QR = [16, 8]
    P(f"""v_lshlrev_b32 v3, 4, v1
s_mul_i32 s40, s25, 327680
s_mul_i32 s41, s26, 10240
s_add_u32 s40, s40, s41
s_mul_i32 s41, s30, 1280
s_add_u32 s40, s40, s41
s_add_u32 s39, s40, 5120
s_lshl_b32 s31, s25, 3
s_add_u32 s31, s31, s30
v_and_b32 v30, 31, v1
v_lshrrev_b32 v31, 5, v1
v_lshlrev_b32 v27, 3, v30
v_lshl_add_u32 v28, v31, 9, v27
s_add_u32 s41, s41, {KV_LDS}
v_add_u32 v24, s41, v28
v_add_u32 v25, s41, v27
v_mul_u32_u24 v26, 320, v31
v_lshl_add_u32 v26, v30, 4, v26
v_add_u32 v26, s41, v26
v_lshlrev_b32 v{L4V}, 2, v30
s_lshl_b32 s44, s25, 1
s_add_u32 s43, s30, s44
s_max_u32 s43, s43, 2
s_sub_u32 s43, s43, 2
s_mul_i32 s45, s26, 20
s_lshr_b32 s44, s45, 7
s_add_u32 s45, s45, 19
s_lshr_b32 s45, s45, 7
s_sub_u32 s45, s45, s44
s_lshl_b32 s45, s45, 7
s_lshl_b32 s43, s43, 4
s_add_u32 s43, s43, s44
s_lshl_b32 s43, s43, 7
s_add_u32 s38, s43, {L.FQ_OFF}
s_add_u32 s32, s38, s45
v_lshrrev_b32 v58, 1, v1
v_mul_u32_u24 v58, 640, v58
v_and_b32 v59, 1, v1
v_mul_lo_u32 v59, v59, s45
v_add_u32 v58, v58, v59
s_lshl_b32 s33, s25, 7
s_add_u32 s33, s33, {L.FX_OFF}
v_mov_b32 v2, 0
v_mov_b32 v5, 1
v_mov_b32 v6, {RL + 4}""")
    for r in range(16):
        m = 0
        for l in range(64):
            if 8*(r >> 2) + 4*(l >> 5) + (r & 3) <= (l & 31): m |= 1 << l
        P(f"s_mov_b32 s{48+2*r}, {m & 0xffffffff:#x}\ns_mov_b32 s{49+2*r}, {m >> 32:#x}")
    P(f"""s_cmp_lg_u32 s24, 1
s_cbranch_scc1 L_nofq
s_mov_b64 exec, 1
s_waitcnt vmcnt(0)
ds_add_rtn_u32 v7, v6, v5
s_waitcnt lgkmcnt(0)
v_readfirstlane_b32 s46, v7
s_cmp_lg_u32 s46, 3
s_cbranch_scc1 L_nofq
v_mov_b32 v7, 2
buffer_store_dword v7, v2, s[20:23], s42 offen sc1
buffer_store_dword v7, v2, s[20:23], s9 offen sc1
L_nofq:
s_mov_b64 exec, -1""")
    sa()
    P(f"buffer_load_dword v{MODEV}, v{L4V}, s[20:23], s33 offen sc1\ns_waitcnt lgkmcnt(0)")
    srd(P, 16, 6, SZ)
    for b in range(3): P(f"v_mov_b32 v{KF+b*8+6}, 0\nv_mov_b32 v{KF+b*8+7}, 0")
    for r in range(24): P(f"v_mov_b32 v{VF+r}, {ONES}")
    P("v_mov_b32 v4, 0xffff\nv_mov_b32 v7, 0xffff0000")
    for p in range(8):
        P(f"v_cndmask_b32 v{PM+p}, 0, v4, s[{48+4*p}:{49+4*p}]\nv_cndmask_b32 v12, 0, v7, s[{50+4*p}:{51+4*p}]\nv_or_b32 v{PM+p}, v{PM+p}, v12")
    P(f"v_cmp_gt_u32 vcc, 32, v1\nv_mov_b32 v4, 0xbf80bf80\nv_mov_b32 v7, 0x0000bf80\nv_cndmask_b32 v{CA}, 0, v4, vcc\nv_cndmask_b32 v{CA+1}, 0, v7, vcc\nv_mov_b32 v{CA+2}, 0\nv_mov_b32 v{CA+3}, 0")
    P("v_mov_b32 v4, 0x7ffffff0\nv_cndmask_b32 v27, v4, v27, vcc")
    P("s_mov_b32 s44, 0x000fffff\ns_mov_b32 s45, 0x000fffff\nv_mov_b32 v6, 0\nv_mov_b32 v7, 0\nv_mov_b32 v14, 0\nv_mov_b32 v15, 0\nv_mov_b32 v22, 0\nv_mov_b32 v23, 0")
    P(f"v_and_b32 v{SYA}, 3, v1\nv_lshlrev_b32 v{SYA}, 2, v{SYA}\nv_add_u32 v{SYA}, {SY_LDS}, v{SYA}\ns_lshl_b32 s43, s30, 2\ns_add_u32 s43, s43, {SY_LDS}\nv_mov_b32 v{SYW}, s43")
    P(f"s_lshl_b32 s8, s31, 5\ns_add_u32 s8, s8, s26\ns_lshl_b32 s8, s8, 2\ns_add_u32 s8, s8, {L.FO_OFF}")
    P("s_waitcnt vmcnt(0)")
    poll_check(L4V, MODEV, "s33", 1, f"s_sleep {SLP}\n")
    P(f"v_readfirstlane_b32 s43, v{MODEV}\nv_cmp_ne_u32 vcc, s43, v{MODEV}\ns_cmp_lg_u32 vcc_lo, 0\ns_cselect_b32 s24, 1, 0")
    if opt.get("SAFE"): P("s_mov_b32 s24, 1")
    if opt.get("SQ", 0):
        P("s_mov_b32 s47, 0\nL_fqp:")
        for k in range(3): P(f"s_buffer_load_dword s{10+2*k}, s[20:23], s38 offset:{640*k} glc\ns_buffer_load_dword s{11+2*k}, s[20:23], s32 offset:{640*k} glc")
        P("s_waitcnt lgkmcnt(0)")
        for k in range(1, 6): P(f"s_min_u32 s10, s10, s{10+k}")
        P(f"s_cmp_ge_u32 s10, 2\ns_cbranch_scc1 L_fqd\ns_sleep {opt.get('SLQ', 3)}\ns_add_u32 s47, s47, 1\ns_cmp_lt_u32 s47, {SPIN_MAX}\ns_cbranch_scc1 L_fqp\nL_fqd:\ns_barrier")
    else:
        P("s_mov_b64 exec, 63\nbuffer_load_dword v59, v58, s[20:23], s38 offen sc1\ns_waitcnt vmcnt(0)")
        poll_check(58, 59, "s38", 2, f"s_sleep {opt.get('SLQ', 3)}\n")
        P("s_mov_b64 exec, -1\ns_barrier")
    sa()
    for a in range(2):
        q = QR[a]; so = "s40" if a == 0 else "s39"
        P(f"buffer_load_dwordx2 v[{q}:{q+1}], v28, s[20:23], {so} offen sc1\nbuffer_load_dwordx2 v[{q+2}:{q+3}], v28, s[20:23], {so} offen offset:256 sc1\nbuffer_load_dwordx2 v[{q+4}:{q+5}], v27, s[20:23], {so} offen offset:1024 sc1")
    P(f"s_waitcnt vmcnt(0)\nds_read_b32 v{MODEV}, v{SYA}\ns_waitcnt lgkmcnt(0)")
    lds_check(SYA, MODEV, 0, 1)
    sa()
    if STAMP or DBG: P("s_waitcnt lgkmcnt(0)")
    lg = LG(P); vm = VM(P)
    M = 28
    qko = [8, 0, 1, 2, 3, 4, 5, 6, 7]
    kseq = [(a, t) for a in range(2) for t in qko]
    kid = {}; kpos = [0]
    def kread():
        if kpos[0] >= len(kseq): return
        a, t = kseq[kpos[0]]; b = kpos[0] % 3; kpos[0] += 1
        o = t*1280 + a*5120
        kid[(a, t)] = (b, lg.op(f"ds_read_b64 v[{KF+b*8}:{KF+b*8+1}], v24 offset:{o}\nds_read_b64 v[{KF+b*8+2}:{KF+b*8+3}], v24 offset:{o+256}\nds_read_b64 v[{KF+b*8+4}:{KF+b*8+5}], v25 offset:{o+1024}", 3))
    def qk(a, t, half):
        def f():
            b, i = kid[(a, t)]; d = v(S + 16*t, 16)
            if half == 0:
                lg.wait(i)
                P(f"v_mfma_f32_32x32x16_bf16 {d}, {v(KF+b*8,4)}, {v(QR[a],4)}, 0")
            else:
                P(f"v_mfma_f32_32x32x16_bf16 {d}, {v(KF+b*8+4,4)}, {v(QR[a]+4,4)}, {d}")
                kread()
        return f
    mst = [0, 0]
    def maxops(a, t):
        ops = []
        if t == 8: return ops
        lim = 8 - t - 4*a
        if lim > 0:
            x, e = lab("ab"), lab("ae")
            ops.append(f"s_cmp_lt_u32 s31, {lim}\ns_cbranch_scc1 {x}\n{e}:")
            tails.append(f"{x}:\ns_nop 11\n" + "\n".join(f"v_mov_b32 v{S+16*t+r}, 0xff800000" for r in range(16)) + f"\ns_branch {e}")
        if t == 0:
            for r in range(16): ops.append(f"v_cndmask_b32 v{S+r}, v{S+r}, v{S+128+r}, s[{48+2*r}:{49+2*r}]")
        for r in range(0, 16, 2):
            k = mst[a] & 1; x, y = S + 16*t + r, S + 16*t + r + 1
            ops.append(f"v_max_f32 v{M+k}, v{x}, v{y}" if mst[a] < 2 else f"v_max3_f32 v{M+k}, v{M+k}, v{x}, v{y}")
            mst[a] += 1
        return ops
    def mfin():
        P(f"""v_max_f32 v{M}, v{M}, v{M+1}
v_mov_b32 v{M+1}, v{M}
v_permlane32_swap_b32 v{M}, v{M+1}
v_max_f32 v{M}, v{M}, v{M+1}
v_and_b32 v29, 0xffff0000, v{M}
v_sub_f32 v30, v{M}, v29
v_and_b32 v31, 0xffff0000, v30
v_sub_f32 v30, v30, v31
v_lshrrev_b32 v29, 16, v29
v_or_b32 v{MB}, v29, v31
v_lshrrev_b32 v{MB+1}, 16, v30""")
    vseq = [(a, t) for a in range(2) for t in qko]
    vid = {}; vpos = [0]
    def vread(n=1):
        if vpos[0] >= len(vseq): return
        P("s_mov_b64 exec, s[44:45]")
        for _ in range(n):
            a, t = vseq[vpos[0]]; b = vpos[0] % 3; vpos[0] += 1
            o = 20480 + t*1280 + a*5120
            vid[(a, t)] = (b, lg.op(f"ds_read_b128 {v(VF+b*8,4)}, v26 offset:{o}\nds_read_b128 {v(VF+b*8+4,4)}, v26 offset:{o+640}", 2))
        P("s_mov_b64 exec, -1")
    def subm(t): P(f"v_mfma_f32_32x32x16_bf16 {v(S+16*t,16)}, {v(CA,4)}, {v(MB,4)}, {v(S+16*t,16)}")
    def pv(a, vt, half, preg):
        def f():
            b, i = vid[(a, vt)]
            if half == 0: lg.wait(i)
            c = "0" if (vt == 8 and half == 0) else v(OA, 16)
            P(f"v_mfma_f32_32x32x16_bf16 {v(OA,16)}, {v(VF+b*8+4*half,4)}, {v(preg+4*half,4)}, {c}")
            if half == 1: vread()
        return f
    def mix(valu, mfs):
        n = len(valu); k = len(mfs)
        pos = [int(j * n / k) for j in range(k)] if k else []
        for i, o in enumerate(valu):
            while pos and pos[0] == i: pos.pop(0); mfs.pop(0)()
            P(o)
        for f in mfs: f()
    D8 = S + 128
    def o_out(a):
        P(f"v_rcp_f32 v30, v{OA+12}")
        for r in range(12): P(f"v_mul_f32 v{OA+r}, v{OA+r}, v30")
        for p in range(6): P(f"v_cvt_pk_bf16_f32 v{16+p}, v{OA+2*p}, v{OA+2*p+1}")
        so = "s40" if a == 0 else "s39"
        return store2(vm, [f"buffer_store_dwordx4 v[16:19], v3, s[20:23], {so} offen", f"buffer_store_dwordx2 v[20:21], v27, s[20:23], {so} offen offset:1024"])
    def o_flag(a):
        P(f"v_mov_b32 v30, 1\ns_waitcnt vmcnt(0)\ns_mov_b64 exec, 1")
        store2(vm, [f"buffer_store_dword v30, v2, s[20:23], s8 offen offset:{512*a}"])
        P("s_mov_b64 exec, -1")
    rdyv = []
    kread(); kread(); kread()
    qk(0, 8, 0)()
    for i in range(1, 11):
        mfs = []
        if i < 9: mfs.append(qk(0, qko[i], 0))
        if i < 10: mfs.append(qk(0, qko[i-1], 1))
        if i == 8: mfs.append(lambda: rdyv.append(lg.op(f"ds_read_b32 v{MODEV}, v{SYA}")))
        mix(maxops(0, qko[i-2]) if i >= 3 else [], mfs)
    ry = rdyv[0]
    mfin()
    if FOCUS == 30 and STAMP: P("s_memtime s[82:83]")
    lg.wait(ry); lds_check(SYA, MODEV, 0, 2)
    if FOCUS == 30 and STAMP: P("s_memtime s[84:85]")
    for a in range(2):
        subm(0)
        if a == 0: vread(3)
        pend = []
        for i in range(8):
            base = S + 16*i
            mfs = [lambda tt=i+1: subm(tt)] if i < 7 else []
            mfs += pend
            valu = [f"v_exp_f32 v{base+r}, v{base+r}" for r in range(16)]
            if a == 0:
                for t in ([8, 0] if i == 2 else ([i - 2] if i >= 3 else [])): mfs += [qk(1, t, 0), qk(1, t, 1)]
                if i >= 3: valu += maxops(1, i - 3)
            if a == 1 and i == 1: valu.insert(8, None)
            valu += [f"v_cvt_pk_bf16_f32 v{base+p}, v{base+2*p}, v{base+2*p+1}" for p in range(8)]
            if None in valu:
                k = valu.index(None); valu.pop(k)
                mfs.append(lambda: o_flag(0))
            mix(valu, mfs)
            if FOCUS == 30 and STAMP and a == 0 and i in (1, 4, 7): P(f"s_memtime s[{86+2*(i//3)}:{87+2*(i//3)}]")
            if i == 0:
                for p in range(8): P(f"v_and_b32 v{D8+p}, v{PM+p}, v{base+p}\nv_bfi_b32 v{base+p}, v{PM+p}, 0, v{base+p}")
                pend = [pv(a, 8, 0, D8), pv(a, 8, 1, D8), pv(a, 0, 0, base), pv(a, 0, 1, base)]
            else: pend = [pv(a, i, 0, base), pv(a, i, 1, base)]
        if a == 0:
            mix(maxops(1, 5), [qk(1, 6, 0), qk(1, 6, 1)] + pend + [qk(1, 7, 0), qk(1, 7, 1)])
            for o in maxops(1, 6): P(o)
            o_out(0)
            for o in maxops(1, 7): P(o)
            mfin()
            sa()
        else:
            for f in pend: f()
            P(f"v_mov_b32 v31, 1\nds_write_b32 v{SYW}, v31 offset:16")
            sa()
            o_out(1)

    st0 = Stamper(48, 16)
    def st():
        if FOCUS == 0: st0()
    def sf(ph):
        if FOCUS == ph: st0()
    ACC, BF, ST, ST1, ST3, HP, ACC4, CS, PK, AF, A4 = 16, 40, 68, 72, 76, 80, 92, 112, 132, 144, 224
    NA4 = 6
    SYD, SYV = 90, 91
    D = 6
    P(f"ds_read_b32 v{SYD}, v{SYA}\ns_lshr_b32 s43, s29, 1\ns_lshl_b32 s43, s43, 7\ns_add_u32 s45, s43, {L.FO_OFF}")
    P(f"v_lshrrev_b32 v{RMV}, 2, v1\nv_mul_u32_u24 v{RMV}, 1280, v{RMV}\nv_and_b32 v4, 3, v1\nv_lshl_add_u32 v{RMV}, v4, 4, v{RMV}")
    P("s_mul_i32 s40, s29, 20480\ns_lshl_b32 s41, s35, 10\ns_add_u32 s41, s41, s40\ns_lshl_b32 s42, s36, 10\ns_add_u32 s42, s42, s40\ns_lshl_b32 s43, s37, 3\ns_add_u32 s42, s42, s43")
    P("v_add_u32 v8, 0x10000, v3\nv_add_u32 v9, 0x20000, v3")
    P(f"s_mul_i32 s46, s30, 3072\ns_add_u32 s46, s46, {XR_LDS}")
    P("v_and_b32 v5, 15, v1\nv_lshlrev_b32 v5, 6, v5\nv_lshrrev_b32 v6, 4, v1\nv_lshl_add_u32 v5, v6, 4, v5\nv_add_u32 v5, s46, v5\ns_lshl_b32 s43, s37, 3\nv_add_u32 v6, s43, v5")
    P(f"v_and_b32 v7, 0x30, v1\nv_add_u32 v7, {CS1_LDS}, v7")
    P(f"s_lshl_b32 s33, s29, 7\ns_add_u32 s33, s33, {L.FR_OFF}\ns_lshl_b32 s43, s28, 2\ns_add_u32 s34, s33, s43")
    P("v_and_b32 v14, 7, v1\nv_lshlrev_b32 v14, 2, v14")
    P(f"s_lshl_b32 s46, s29, 11\ns_add_u32 s46, s46, {L.ST_OFF}")
    P("s_lshr_b32 s44, s28, 1\ns_lshl_b32 s44, s44, 8\ns_add_u32 s9, s46, s44\ns_lshl_b32 s44, s37, 3\ns_add_u32 s9, s9, s44")
    P(f"""s_mul_i32 s10, s25, 327680
s_bfe_u32 s43, s29, 0x30001
s_mul_i32 s43, s43, 1280
s_add_u32 s10, s10, s43
s_and_b32 s43, s29, 1
s_lshl_b32 s43, s43, 7
s_add_u32 s11, s10, s43
s_add_u32 s11, s11, {L.Q_OFF + 1024}
s_lshl_b32 s43, s43, 1
s_add_u32 s10, s10, s43
s_add_u32 s10, s10, {L.Q_OFF}
v_lshrrev_b32 v10, 5, v1
v_mul_u32_u24 v250, 10240, v10
v_bfe_u32 v10, v1, 4, 1
v_lshl_add_u32 v250, v10, 9, v250
v_and_b32 v10, 15, v1
v_lshl_add_u32 v250, v10, 4, v250
v_lshrrev_b32 v11, 4, v1
v_mul_u32_u24 v251, 20480, v11
v_lshl_add_u32 v251, v10, 3, v251""")
    def lds_off(stage, chunk):
        off = (stage % RING) * 20480 + chunk * 1024
        return (3 if off < 65536 else (8 if off < 131072 else 9)), off % 65536
    def unpack(dst, src, n):
        for i in range(n): P(f"v_lshlrev_b32 v{dst+2*i}, 16, v{src+i}\nv_and_b32 v{dst+2*i+1}, 0xffff0000, v{src+i}")
    def set_flag(vm, val):
        P(f"v_mov_b32 v4, {val}\ns_mov_b64 exec, 1")
        store2(vm, ["buffer_store_dword v4, v2, s[20:23], s34 offen"])
        P("s_mov_b64 exec, -1")
    cnt = [0]
    def rdw(lg, stage, chunk):
        ar, off = lds_off(stage, chunk)
        r = BF + (cnt[0] % (D + 1)) * 4; cnt[0] += 1
        return r, lg.op(f"ds_read_b128 {v(r,4)}, v{ar} offset:{off}")
    def free_sig(lg): lg.op(f"ds_write_b32 v{SYW}, v{SYV} offset:16")
    def rdy_read(lg): return lg.op(f"ds_read_b32 v{SYD}, v{SYA}")
    def stats_fin(R):
        P(f"v_add_f32 v{R}, v{R}, v{R+2}\nv_add_f32 v{R+1}, v{R+1}, v{R+3}")
        xg_reduce(P, [R, R+1], [R+2, R+3])
        P(f"v_mul_f32 v{R}, {f2u(1/640)}, v{R}\nv_mul_f32 v{R+1}, {f2u(1/640)}, v{R+1}\nv_fma_f32 v{R+1}, -v{R}, v{R}, v{R+1}\nv_max_f32 v{R+1}, 0, v{R+1}")
        P(f"v_add_f32 v{R+2}, {f2u(EPS)}, v{R+1}\nv_rsq_f32 v{R+2}, v{R+2}")
    def kloop(stage_chunk, tiles, aoff, vaddr_of_ks, accinit, frees, stat=None, ph=0, rdy_at_end=False, rdy=None, shadow=None):
        vm = VM(P); lg = LG(P)
        ids = {}
        def aload(ks):
            if aoff is None:
                kq, a = divmod(ks, 5)
                if a < 4: ids[ks] = vm.op(f"s_add_u32 s43, s10, {(4*kq+a)*20480}\nbuffer_load_dwordx4 {v(AF+4*ks,4)}, v250, s[20:23], s43 offen sc1")
                else: ids[ks] = vm.op(f"s_add_u32 s43, s11, {kq*81920}\nbuffer_load_dwordx2 {v(AF+4*ks,2)}, v251, s[20:23], s43 offen sc1\ns_add_u32 s43, s43, 10240\nbuffer_load_dwordx2 {v(AF+4*ks+2,2)}, v251, s[20:23], s43 offen sc1", 2)
                return
            if ks % 4 == 0: P(f"s_add_u32 s43, s40, {aoff + ks*1024}")
            ids[ks] = vm.op(f"buffer_load_dwordx4 {v(AF+4*ks,4)}, v{vaddr_of_ks(ks)}, s[20:23], s43 offen offset:{(ks%4)*1024} sc1")
        sf(ph)
        if rdy: P(f"ds_read_b32 v{SYD}, v{SYA}")
        for ks in range(PRE): aload(ks)
        if stat:
            P(f"s_add_u32 s44, s9, {stat[2]}\ns_mov_b64 exec, 0xffff")
            sst = store2(vm, ["buffer_store_dwordx2 v[36:37], v3, s[20:23], s44 offen"])
            P("s_mov_b64 exec, -1")
        if rdy:
            P("s_waitcnt lgkmcnt(0)"); lds_check(SYA, SYD, 0, rdy)
        sf(ph)
        nt = len(tiles)
        items = [(ks, t) for ks in range(20) for t in tiles]
        N = len(items)
        rr = []
        def rd(n):
            ks, t = items[n]
            if t == tiles[0] and ks in frees: free_sig(lg)
            rr.append(rdw(lg, *stage_chunk(ks, t)))
            if n == N - 1 and 20 in frees: free_sig(lg)
            if n == N - 1 and rdy_at_end: rdy_read(lg)
        for n in range(D): rd(n)
        if shadow: shadow(lg)
        for n, (ks, t) in enumerate(items):
            if n + D < N: rd(n + D)
            if t == tiles[0]:
                if stat and ks == 4: vm.wait(sst); set_flag(vm, stat[0])
                if ks + PRE < 20: aload(ks + PRE)
                if stat and ks == 9: sp = vm.op("buffer_load_dword v15, v14, s[20:23], s33 offen sc1")
                if stat and ks == 14:
                    vm.wait(sp); poll_check(14, 15, "s33", stat[0])
                    sl = vm.op(f"s_add_u32 s44, s46, {stat[2]}\nbuffer_load_dwordx4 {v(stat[1],4)}, v3, s[20:23], s44 offen sc1")
                P(f"s_waitcnt vmcnt({vm.cnt(ids[ks])}) lgkmcnt({lg.cnt(rr[n][1])})")
                if ks in (0, 1, 2, 4, 8, 12, 16): sf(ph)
                for fk, fv in frees.items():
                    if ks == fk - 3: P(f"v_mov_b32 v{SYV}, {fv}")
            else:
                lg.wait(rr[n][1])
            a = ACC + 4 * tiles.index(t)
            P(f"v_mfma_f32_16x16x32_bf16 {v(a,4)}, {v(rr[n][0],4)}, {v(AF+4*ks,4)}, {v(a,4) if (accinit or ks > 0) else '0'}")
        sf(ph)
        if stat: vm.wait(sl)
        return vm, lg
    def pack(dst, src, n):
        for i in range(n): P(f"v_cvt_pk_bf16_f32 v{dst+i}, v{src+2*i}, v{src+2*i+1}")
    def tile_then_stats(pk, off, f1):
        vm = VM(P)
        P(f"s_add_u32 s43, s41, {off}\ns_add_u32 s44, s42, {off}")
        store2(vm, [f"buffer_store_dwordx4 {v(pk,4)}, v3, s[20:23], s43 offen", f"buffer_store_dwordx4 {v(pk+4,4)}, v3, s[20:23], s43 offen offset:1024", f"buffer_store_dwordx2 {v(pk+8,2)}, v3, s[20:23], s44 offen"])
        P(f"v_mov_b32 v36, 0\nv_mov_b32 v37, 0\nv_mov_b32 v38, {ONES}")
        for i in range(10): P(f"v_dot2c_f32_bf16 v36, v{pk+i}, v38\nv_dot2c_f32_bf16 v37, v{pk+i}, v{pk+i}")
        sf(8)
        P("s_waitcnt vmcnt(0)")
        sf(8)
        set_flag(vm, f1)
        P("buffer_load_dword v15, v14, s[20:23], s33 offen sc1")
        xg_reduce(P, [36, 37], [38, 39])
    kk = 2 * 0.7978845608028654 * LOG2E
    GC = [(76, 78, 10, 12), (68, 70, 72, 74)]
    def gelu_items(a0, c0, n, pk, t0=None, g=0):
        if t0 is None: t0 = c0
        m, ia, A2, A1 = [v(x, 2) for x in GC[g]]
        pr = range(0, n, 2)
        return [[f"v_pk_fma_f32 {v(a0+i,2)}, {v(c0+i,2)}, {m}, {v(a0+i,2)} neg_lo:[1,0,0] neg_hi:[1,0,0]" for i in pr],
                [f"v_pk_mul_f32 {v(t0+i,2)}, {v(a0+i,2)}, {v(a0+i,2)}" for i in pr],
                [f"v_pk_fma_f32 {v(t0+i,2)}, {v(t0+i,2)}, {A2}, {A1}" for i in pr],
                [f"v_pk_mul_f32 {v(t0+i,2)}, {v(t0+i,2)}, {v(a0+i,2)}" for i in pr],
                [f"v_exp_f32 v{t0+i}, v{t0+i}" for i in range(n)],
                [f"v_pk_fma_f32 {v(t0+i,2)}, {v(t0+i,2)}, {ia}, {ia}" for i in pr],
                [f"v_rcp_f32 v{t0+i}, v{t0+i}" for i in range(n)],
                [f"v_pk_mul_f32 {v(a0+i,2)}, {v(a0+i,2)}, {v(t0+i,2)}" for i in pr],
                [f"v_cvt_pk_bf16_f32 v{pk+i//2}, v{a0+i}, v{a0+i+1}" for i in pr]]
    def gelu_consts(mreg, areg, g=0):
        m, ia, A2, A1 = GC[g]
        P(f"""v_rcp_f32 v{ia+1}, v{areg}
v_mul_f32 v{A1}, {f2u(-kk)}, v{areg}
v_mul_f32 v{A2}, v{areg}, v{areg}
v_mov_b32 v{m+1}, v{mreg}
v_mul_f32 v{A2}, v{A2}, v{A1}
v_mov_b32 v{A1+1}, v{A1}
v_mul_f32 v{A2}, {f2u(0.044715)}, v{A2}
v_mov_b32 v{m}, v{m+1}
v_mov_b32 v{ia}, v{ia+1}
v_mov_b32 v{A2+1}, v{A2}""")
    small = lambda b: (lambda ks, t: (b + ks // 4, (ks % 4) * 5 + t))
    T5 = [0, 1, 2, 3, 4]

    o_flag(1)
    sa()
    P(f"buffer_load_dword v15, v{L4V}, s[20:23], s45 offen sc1\ns_waitcnt lgkmcnt(0)")
    lds_check(SYA, SYD, 0, 5)
    P(f"ds_read_b128 {v(HP,4)}, v5\nds_read_b128 {v(HP+4,4)}, v5 offset:1024\nds_read_b64 {v(HP+8,2)}, v6 offset:2048")
    P("s_waitcnt vmcnt(0) lgkmcnt(0)")
    poll_check(L4V, 15, "s45", 1)
    st()
    def sh_wo(lg):
        unpack(ACC, HP, 10)
    kloop(small(0), T5, None, None, True, {12: 3, 20: 5}, ph=1, rdy_at_end=True, shadow=sh_wo)
    st(); sf(8)
    P("s_waitcnt lgkmcnt(0)")
    lds_check(SYA, SYD, 0, 6)
    pack(HP, ACC, 10)
    tile_then_stats(HP, L.H_OFF, 1)
    st(); sf(8)
    P("L_c1:")
    P("s_lshr_b32 s43, s28, 2\ns_add_u32 s43, s43, 1\ns_sub_u32 s44, 0, s43\ns_bitcmp1_b32 s28, 1\ns_cselect_b32 s43, s44, s43")
    P("s_lshl_b32 s44, s29, 4\ns_add_u32 s44, s44, s43\nv_and_b32 v10, 15, v1\nv_add_u32 v10, s44, v10")
    P("v_ashrrev_i32 v12, 8, v10\nv_cmp_eq_u32 s[12:13], s25, v12\nv_cmp_gt_u32 s[14:15], 8, v12")
    P("v_lshrrev_b32 v11, 4, v10\nv_mul_u32_u24 v11, 20480, v11\nv_and_b32 v10, 15, v10\nv_lshl_add_u32 v11, v10, 4, v11\nv_and_b32 v10, 0x30, v1\nv_lshl_add_u32 v229, v10, 4, v11")
    P(f"""s_and_b32 s43, s29, 15
s_lshl_b32 s39, s25, 11
s_add_u32 s39, s39, {L.FHL_OFF}
s_sub_u32 s44, s33, 128
s_sub_u32 s45, s39, 1024
s_cmp_eq_u32 s43, 0
s_cselect_b32 s44, s45, s44
s_cselect_b32 s27, 5, 0
s_cmp_eq_u32 s29, 0
s_cselect_b32 s44, s33, s44
s_cselect_b32 s27, 0, s27
v_lshlrev_b32 v12, s27, v14
v_add_u32 v12, s44, v12
v_add_u32 v13, s33, v14
v_bfe_u32 v10, v1, 3, 2
v_cmp_eq_u32 vcc, 1, v10
s_add_u32 s44, s33, 128
s_add_u32 s45, s39, 2048
v_cndmask_b32 v13, v13, v12, vcc
s_cmp_eq_u32 s43, 15
s_cselect_b32 s44, s45, s44
s_cselect_b32 s27, 5, 0
s_cmp_eq_u32 s29, 127
s_cselect_b32 s44, s33, s44
s_cselect_b32 s27, 0, s27
v_lshlrev_b32 v12, s27, v14
v_add_u32 v12, s44, v12
v_cmp_eq_u32 vcc, 2, v10
s_and_b32 s44, s29, 1
s_lshl_b32 s44, s44, 3
s_add_u32 s44, s44, s28
s_lshl_b32 s44, s44, 7
s_add_u32 s39, s39, s44
v_cndmask_b32 v228, v13, v12, vcc""")
    P(f"""s_cmp_eq_u32 s43, 0
s_cselect_b32 s44, {L.TH_OFF - L.T_OFF}, 0
s_cmp_eq_u32 s29, 0
s_cselect_b32 s44, 0x40000000, s44
s_cmp_eq_u32 s43, 15
s_cselect_b32 s45, {L.TH_OFF - L.T_OFF}, 0
s_cmp_eq_u32 s29, 127
s_cselect_b32 s45, 0x40000000, s45
v_and_b32 v10, 15, v1
v_add_u32 v11, s44, v3
v_add_u32 v12, s45, v3
v_cmp_gt_u32 vcc, 1, v10
v_cndmask_b32 v224, v3, v11, vcc
v_cmp_lt_u32 vcc, 14, v10
v_cndmask_b32 v225, v3, v12, vcc
v_cmp_gt_u32 vcc, 2, v10
v_cndmask_b32 v226, v3, v11, vcc
v_cmp_lt_u32 vcc, 13, v10
v_cndmask_b32 v227, v3, v12, vcc""")
    if opt.get("NOHALO"):
        P("s_mov_b64 s[14:15], 0\nv_add_u32 v228, s33, v14\nv_mov_b32 v224, v3\nv_mov_b32 v225, v3\nv_mov_b32 v226, v3\nv_mov_b32 v227, v3")
    P("s_andn2_b64 s[14:15], s[14:15], s[12:13]\ns_waitcnt vmcnt(0)")
    sf(8)
    poll_check(14, 15, "s33", 1)
    st(); sf(8)
    def sh_w1(lg):
        for t in range(5): lg.op(f"ds_read_b128 {v(CS+4*t,4)}, v7 offset:{t*64}")
        unpack(ACC4, HP, 10)
    kloop(small(5), T5, L.H_OFF, lambda ks: 3, False, {12: 8, 20: 10}, stat=(2, ST1, 0), ph=2, rdy=10, shadow=sh_w1)
    st()
    stats_fin(ST1)
    P(f"v_mul_f32 v{ST}, v{ST1+1}, v{ST1+2}\nv_mov_b32 v{ST+1}, {f2u(EPS)}\nv_fma_f32 v{ST}, v{ST}, v{ST1+2}, v{ST+1}\nv_rsq_f32 v{ST}, v{ST}")
    P(f"s_sub_u32 s43, s41, s40\ns_sub_u32 s44, s42, s40\ns_add_u32 s43, s43, {L.T_OFF}\ns_add_u32 s44, s44, {L.T_OFF}")
    P(f"v_mul_f32 v{ST+2}, v{ST}, v{ST1+2}")
    gelu_consts(ST1, ST + 2)
    for grp in gelu_items(ACC, CS, 20, PK):
        for l in grp: P(l)
    vm = VM(P)
    tl = [f"buffer_store_dwordx4 {v(PK,4)}, v229, s[20:23], s43 offen", f"buffer_store_dwordx4 {v(PK+4,4)}, v229, s[20:23], s43 offen offset:1024", f"buffer_store_dwordx2 {v(PK+8,2)}, v229, s[20:23], s44 offen"]
    P("s_mov_b64 exec, s[12:13]")
    store2(vm, tl)
    P("s_cmp_lg_u64 s[14:15], 0\ns_cbranch_scc1 L_halo\nL_haloe:\ns_mov_b64 exec, -1")
    tails.append(f"L_halo:\ns_mov_b64 exec, s[14:15]\ns_add_u32 s43, s43, {L.TH_OFF - L.T_OFF}\ns_add_u32 s44, s44, {L.TH_OFF - L.T_OFF}\n" + "\n".join(l + " sc1" for l in tl) + "\ns_nop 1\ns_branch L_haloe")
    P(f"v_mul_f32 v{ST1}, v{ST1}, v{ST1+2}\nv_mov_b32 v{ST1+3}, v{ST1+2}\nv_mov_b32 v{ST1+1}, v{ST1}")
    for i in range(0, 20, 2):
        P(f"v_pk_fma_f32 {v(ACC+i,2)}, {v(ACC4+i,2)}, {v(ST1+2,2)}, {v(ST1,2)} neg_lo:[0,0,1] neg_hi:[0,0,1]")
    P("s_waitcnt vmcnt(0)")
    set_flag(vm, 3)
    P("s_add_u32 s44, s29, 1\ns_and_b32 s44, s44, 14\ns_cmp_eq_u32 s44, " + ("99" if opt.get("NOHALO") else "0") + "\ns_cbranch_scc1 L_hf\nL_hfe:")
    tails.append("L_hf:\ns_mov_b64 exec, 1\nbuffer_store_dword v4, v2, s[20:23], s39 offen sc1\ns_mov_b64 exec, -1\ns_branch L_hfe")
    st()
    def sh_w2(lg):
        P(f"""s_bfe_u32 s15, s29, 0x10002
s_xor_b32 s12, s29, 4
s_mul_i32 s12, s12, 20480
s_mul_i32 s44, s15, 5120
s_add_u32 s13, s10, 2560
s_sub_u32 s13, s13, s44
s_xor_b32 s8, s34, 512
s_andn2_b32 s33, s33, 512
v_bfe_u32 v10, v1, 3, 1
v_lshl_add_u32 v14, v10, 9, v14
s_lshl_b32 s45, s28, 10
s_lshl_b32 s38, s15, 12
s_mul_i32 s39, s15, 81920
s_lshl_b32 s26, s15, 13
s_add_u32 s26, s26, s45
s_add_u32 s26, s26, {L.V_OFF}
s_mul_i32 s14, s45, 20
s_lshl_b32 s27, s39, 1
s_add_u32 s27, s27, s14
s_cmp_ge_u32 s28, 4
s_mov_b32 s31, {L.K_OFF + 16384}
s_cmov_b32 s31, {L.V_OFF + 16384 - 4096}
s_cmp_eq_u32 s15, 0
s_cmov_b32 s31, {L.K_OFF}
s_mov_b32 s11, {L.V_OFF + 16384}
s_cmov_b32 s11, {L.K_OFF + 16384}
s_add_u32 s31, s31, s45
s_lshl_b32 s32, s15, 3
s_add_u32 s32, s32, s45
s_add_u32 s32, s32, {L.K_OFF + 8192}
s_lshl_b32 s44, s15, 6
s_add_u32 s44, s44, {CS3_LDS - CS1_LDS + 384}
v_add_u32 v251, s44, v7
s_lshl_b32 s44, s15, 9
s_add_u32 s44, s44, {CS3_LDS - CS1_LDS}
v_add_u32 v7, s44, v7""")
    P("buffer_load_dword v15, v228, s[20:23], 0 offen sc1\ns_waitcnt vmcnt(0)")
    poll_check(228, 15, "0", 3)
    st()
    kloop(small(10), T5, L.T_OFF, lambda ks: 224 + ks // 5, True, {12: 13, 20: 15}, ph=3, rdy=15, shadow=sh_w2)
    st()
    pack(PK, ACC, 10)
    tile_then_stats(PK, L.X1_OFF, 4)
    st()
    P("L_c3:")
    unpack(CS, PK, 10)
    for i in range(0, 20, 2): P(f"v_pk_add_f32 {v(ACC4+i,2)}, {v(ACC4+i,2)}, {v(CS+i,2)}")
    P("s_waitcnt vmcnt(0)")
    poll_check(14, 15, "s33", 4)
    st(); sf(6)
    AC3, AR3, ACC5 = 144, 200, 16
    RB = ["s40", "s12"]; QB = ["s10", "s13"]
    vm = VM(P); lg = LG(P)
    ids = {}
    LA = opt.get("LA3", 5)
    def aload(ks, rs=(0, 1)):
        for r in rs:
            if ks % 4 == 0: P(f"s_add_u32 s{4+r}, {RB[r]}, {L.X1_OFF + ks*1024}")
            ids[ks] = vm.op(f"buffer_load_dwordx4 {v(AR3+8*(ks%6)+4*r,4)}, v3, s[20:23], s{4+r} offen offset:{(ks%4)*1024} sc1")
    pol = {}
    def poll_issue(k): pol[k] = vm.op("buffer_load_dword v15, v14, s[20:23], s33 offen sc1")
    def poll_done(k): vm.wait(pol[k]); poll_check(14, 15, "s33", k)
    P(f"ds_read_b32 v{SYD}, v{SYA}")
    for ks in range(LA): aload(ks)
    P("s_add_u32 s44, s9, 1024\ns_mov_b64 exec, 0xffff")
    sst = store2(vm, ["buffer_store_dwordx2 v[36:37], v3, s[20:23], s44 offen"])
    P(f"s_mov_b64 exec, -1\nv_mov_b32 v{SYV}, 16\ns_waitcnt lgkmcnt(0)")
    R0 = opt.get("R0", 20)
    lds_check(SYA, SYD, 0, R0)
    items = [(ks, t) for ks in range(20) for t in range(7)]
    rr = []; ryy = [None]
    D3 = 4
    def rd3(n):
        sg = 15 + n // 20
        if n % 20 == 0 and n > 0:
            free_sig(lg)
            if sg >= R0: lg.wait(ryy[0]); lds_check(SYA, SYD, 0, sg + 1)
        if n % 20 == 14 and sg + 1 >= R0 and sg < 21: ryy[0] = rdy_read(lg)
        rr.append(rdw(lg, sg, n % 20))
        if n == 139: free_sig(lg)
    for n in range(D3): rd3(n)
    for n, (ks, t) in enumerate(items):
        if n + D3 < 140: rd3(n + D3)
        if t == 0: P(f"s_waitcnt vmcnt({vm.cnt(ids[ks])}) lgkmcnt({lg.cnt(rr[n][1])})")
        else: lg.wait(rr[n][1])
        for r in range(2):
            a = AC3 + 28*r + 4*t
            P(f"v_mfma_f32_16x16x32_bf16 {v(a,4)}, {v(rr[n][0],4)}, {v(AR3+8*(ks%6)+4*r,4)}, {'0' if ks == 0 else v(a,4)}")
            if r == 1: continue
            if n % 20 == 6: P(f"v_mov_b32 v{SYV}, {16 + n // 20}")
            if t in (0, 2) and ks + LA < 20: aload(ks + LA, (t // 2,))
            if t == 4:
                if ks == 2: vm.wait(sst); set_flag(vm, 5)
                if ks == 6: poll_issue(5)
                if ks == 9: poll_done(5)
                if ks == 17:
                    for i in range(2): lg.op(f"ds_read_b128 {v(CS+4*i,4)}, v7 offset:{i*64}")
                if ks == 19: set_flag(vm, 6)
            if ks == 9 and t in (5, 6):
                sl = vm.op(f"s_add_u32 s44, s46, 1024\ns_xor_b32 s44, s44, {8192*(t-5)}\nbuffer_load_dwordx4 {v(16+4*(t-5),4)}, v3, s[20:23], s44 offen sc1")
            if ks == 13 and t == 6:
                vm.wait(sl)
                keep = P.items; P.items = []
                for g in range(2): stats_fin(16 + 4*g); gelu_consts(16 + 4*g, 18 + 4*g, g)
                h = len(P.items) // 2
                fin = [x for pr_ in zip(P.items[:h], P.items[h:]) for x in pr_]; P.items = keep
            if ks >= 14:
                for _ in range(2):
                    if fin: P.items.append(fin.pop(0))
    assert not fin
    st(); sf(6)
    P("L_c4:")
    steps = [(i, e) for i in range(7) for e in range(4)]
    A4L = [AR3 + 8*i for i in range(6)] + [AC3 + 8*i for i in range(7)]
    ids4 = {}
    def a4load(k, rs=(0, 1)):
        i, e = steps[k]; base = A4L[k % len(A4L)]
        for r in rs:
            if i in (2, 3):
                P(f"s_add_u32 s{4+r}, {QB[r]}, s39\ns_add_u32 s{4+r}, s{4+r}, {((i-2)*8+e)*20480}")
                ids4[k] = vm.op(f"buffer_load_dwordx4 {v(base+4*r,4)}, v250, s[20:23], s{4+r} offen sc1")
                continue
            if e == 0:
                if i == 6: P(f"s_add_u32 s{4+r}, {RB[r]}, s11")
                else: P(f"s_add_u32 s{4+r}, {RB[r]}, s38\ns_add_u32 s{4+r}, s{4+r}, {(L.V_OFF + i*8192) if i < 2 else (L.K_OFF + (i-4)*8192)}")
            ids4[k] = vm.op(f"buffer_load_dwordx4 {v(base+4*r,4)}, v3, s[20:23], s{4+r} offen offset:{e*1024} sc1")
    nl = [0]
    def a4upto(k):
        while nl[0] < min(k, 28): a4load(nl[0]); nl[0] += 1
    gst = {}
    for j in range(4):
        n_ = 8 if j < 3 else 4
        cs = CS + 8*(j % 2)
        if j < 2:
            for i in range(2): lg.op(f"ds_read_b128 {v(CS+8*((j+1)%2)+4*i,4)}, v7 offset:{(2*j+2+i)*64}")
            P("s_waitcnt lgkmcnt(2)")
        elif j == 2:
            lg.op(f"ds_read_b128 {v(CS+8,4)}, v251"); P("s_waitcnt lgkmcnt(1)")
        else:
            ry = rdy_read(lg); P("s_waitcnt lgkmcnt(1)")
        pk = [PK + 4*r if j % 2 == 0 else 80 + 4*r for r in range(2)]
        if j == 2: poll_done(6)
        g0 = gelu_items(AC3 + 8*j, cs, n_, pk[0], 16, 0); g1 = gelu_items(AC3 + 28 + 8*j, cs, n_, pk[1], 24, 1)
        for k, (x, y) in enumerate(zip(g0, g1)):
            for l in x + y: P(l)
            if k == 0 and j == 1: poll_issue(6)
            if k == 4 and j == 2: poll_issue(7)
            if k == 4 and j == 3: poll_done(7); a4upto(3)
        if j in (1, 2): vm.wait(gst[j-1]); set_flag(vm, 6 + j)
        offs = ["s26", "s27", "s31", "s32"][j]; bases = QB if j == 1 else RB; va = 250 if j == 1 else 3
        P(f"s_add_u32 s43, {bases[0]}, {offs}\ns_add_u32 s44, {bases[1]}, {offs}")
        w = "x4" if j < 3 else "x2"; nn = 4 if j < 3 else 2
        gst[j] = store2(vm, [f"buffer_store_dword{w} {v(pk[r],nn)}, v{va}, s[20:23], s{43+r} offen" for r in range(2)])
        sf(6)
    lg.wait(ry); lds_check(SYA, SYD, 0, 23)
    st()
    items = [(k, t) for k in range(28) for t in range(5)]
    rr = []; ryy = [None]
    def rd(n):
        k, t = items[n]
        if n % 20 == 0 and n > 0: lg.wait(ryy[0]); lds_check(SYA, SYD, 0, 22 + k // 4 + 1)
        if n % 20 == 14 and n + 6 < 140: ryy[0] = rdy_read(lg)
        rr.append(rdw(lg, 22 + k // 4, (k % 4) * 5 + t))
    LA4 = opt.get("LA4", 4)
    a4upto(LA4)
    for n in range(D3): rd(n)
    for n, (k, t) in enumerate(items):
        if k == 26 and t == 0: P("s_cmp_lg_u32 s15, 0\ns_cbranch_scc1 L_w4e")
        if n + D3 < 140: rd(n + D3)
        if t == 0: P(f"s_waitcnt vmcnt({vm.cnt(ids4[k])}) lgkmcnt({lg.cnt(rr[n][1])})")
        else: lg.wait(rr[n][1])
        base = A4L[k % len(A4L)]
        for r in (1, 0):
            a = (ACC5 if r else ACC4) + 4*t
            P(f"v_mfma_f32_16x16x32_bf16 {v(a,4)}, {v(rr[n][0],4)}, {v(base+4*r,4)}, {'0' if (r and k == 0) else v(a,4)}")
            if r == 0: continue
            kk_ = k + LA4
            if t == 0 and kk_ == 8: poll_done(8)
            if t == 0 and kk_ == 16: poll_done(9)
            if t in (1, 3) and kk_ < 28: a4load(kk_, (t // 2,))
            if t == 4:
                if k == 0: poll_issue(8)
                if k == 1: P(f"v_mov_b32 v{SYV}, 23")
                if k == 2: vm.wait(gst[3]); set_flag(vm, 9); free_sig(lg)
                if k == 7: poll_issue(9)
                if k == 19: set_flag(vm, 10)
                if k == 24: poll_issue(10)
    P("L_w4e:\ns_waitcnt vmcnt(0) lgkmcnt(0)")
    st()
    poll_check(14, 15, "s33", 10)
    def ex_addr(r):
        P(f"s_add_u32 s4, {RB[r]}, s45\ns_add_u32 s5, s4, {L.K_OFF}\ns_add_u32 s4, s4, {L.V_OFF}\ns_add_u32 s43, s4, 8192\ns_add_u32 s44, {QB[r]}, s14\ns_add_u32 s38, s44, {8*20480}")
        return [(3, "s4"), (3, "s43"), (250, "s44"), (250, "s38"), (3, "s5")]
    vm = VM(P)
    store2(vm, [f"buffer_store_dwordx4 {v(ACC5+4*e,4)}, v{va}, s[20:23], {so} offen" for e, (va, so) in enumerate(ex_addr(1))])
    ea = ex_addr(0)
    P("s_waitcnt vmcnt(0)")
    set_flag(vm, 11)
    P("buffer_load_dword v15, v2, s[20:23], s8 offen sc1\ns_waitcnt vmcnt(0)")
    poll_check(2, 15, "s8", 11)
    for e, (va, so) in enumerate(ea): P(f"buffer_load_dwordx4 {v(ACC5+4*e,4)}, v{va}, s[20:23], {so} offen sc1")
    st()
    P(f"s_mul_i32 s46, s30, 3072\ns_add_u32 s46, s46, {XR_LDS}\nv_add_u32 v10, s46, v3")
    P("s_lshl_b32 s43, s35, 6\ns_add_u32 s43, s43, s40\ns_lshl_b32 s44, s36, 6\ns_add_u32 s44, s44, s40\ns_lshl_b32 s45, s37, 3\ns_add_u32 s44, s44, s45")
    for e in range(5):
        P(f"s_waitcnt vmcnt({4-e})\nv_pk_add_f32 {v(ACC4+4*e,2)}, {v(ACC4+4*e,2)}, {v(ACC5+4*e,2)}\nv_pk_add_f32 {v(ACC4+4*e+2,2)}, {v(ACC4+4*e+2,2)}, {v(ACC5+4*e+2,2)}")
    pack(PK, ACC4, 10)
    P(f"ds_write_b128 v5, {v(PK,4)}\nds_write_b128 v5, {v(PK+4,4)} offset:1024\nds_write_b64 v5, {v(PK+8,2)} offset:2048")
    P(f"ds_read_b128 {v(CS,4)}, v10\nds_read_b128 {v(CS+4,4)}, v10 offset:1024\nds_read_b64 {v(CS+8,2)}, v10 offset:2048")
    P(f"s_waitcnt lgkmcnt(2)\nbuffer_store_dwordx4 {v(CS,4)}, v{RMV}, s[16:19], s43 offen{OSF}\ns_waitcnt lgkmcnt(1)\nbuffer_store_dwordx4 {v(CS+4,4)}, v{RMV}, s[16:19], s43 offen offset:64{OSF}\ns_waitcnt lgkmcnt(0)\nbuffer_store_dwordx2 {v(CS+8,2)}, v{RMV}, s[16:19], s44 offen{OSF}")
    if DBG:
        P("s_waitcnt vmcnt(0)"); st0()
        P(f"s_cmp_lg_u32 s2, {DBG}\ns_cbranch_scc1 L_end\ns_cmp_lg_u32 s30, 0\ns_cbranch_scc1 L_end\ns_load_dwordx2 s[4:5], s[0:1], 72\ns_waitcnt lgkmcnt(0)")
        P(f"s_mov_b32 s12, s4\ns_and_b32 s13, s5, 0xffff\ns_mov_b32 s14, 256\ns_mov_b32 s15, 0x20000\nv_mov_b32 v39, {L.DUMMY_OFF + 2048}\nbuffer_load_dwordx4 v[52:55], v39, s[20:23], 0 offen\nbuffer_load_dwordx2 v[56:57], v39, s[20:23], 0 offen offset:16\ns_waitcnt vmcnt(0)\nv_mov_b32 v39, 0")
        regs = [80, 82, 84, 90, 48, 54, 60, 66, 70, 48 + 2*(st0.i-1)]
        for i, r in enumerate(regs): P(f"v_mov_b32 v{40+i}, s{r}")
        if "XA" in opt:
            vr = lambda k: 52 + k if k < 6 else 40 + k - 6
            P(f"v_readfirstlane_b32 s60, v{vr(opt['XA'])}\nv_readfirstlane_b32 s61, v{vr(opt['XB'])}\nv_readfirstlane_b32 s62, v49\ns_sub_u32 s60, s61, s60\ns_lshl_b32 s60, s60, 2\ns_min_u32 s60, s60, 100000")
            P("L_xspin:\ns_memrealtime s[64:65]\ns_waitcnt lgkmcnt(0)\ns_sub_u32 s64, s64, s62\ns_cmp_lt_u32 s64, s60\ns_cbranch_scc1 L_xspin")
        P("s_mov_b64 exec, 1\nbuffer_store_dwordx4 v[52:55], v39, s[12:15], 0 offen\nbuffer_store_dwordx2 v[56:57], v39, s[12:15], 0 offen offset:16\nbuffer_store_dwordx2 v[40:41], v39, s[12:15], 0 offen offset:24\nbuffer_store_dwordx4 v[42:45], v39, s[12:15], 0 offen offset:32\nbuffer_store_dwordx4 v[46:49], v39, s[12:15], 0 offen offset:48")
    if STAMP:
        P("s_waitcnt vmcnt(0)"); st0()
        if FOCUS != 21: stamp_dump([80 + 2*i for i in range(sa.i)] + [48 + 2*i for i in range(st0.i)])
    P("s_endpgm")

    P("L_loader:")
    P(IDS)
    P(f"""v_lshlrev_b32 v3, 4, v1
s_sub_u32 s33, s30, 4
s_mul_i32 s32, s28, {L.SLICE_B}
s_add_u32 s32, s32, {L.WS_OFF}
s_mul_i32 s39, s33, 5120
s_add_u32 s38, s32, s39
s_mul_i32 s10, s26, 10240
s_lshr_b32 s43, s33, 1
s_add_u32 s43, s43, s25
s_max_u32 s43, s43, 1
s_sub_u32 s43, s43, 1
s_mul_i32 s43, s43, 327680
s_add_u32 s10, s10, s43
s_and_b32 s43, s33, 1
s_mul_i32 s43, s43, 5120
s_add_u32 s10, s10, s43
s_add_u32 s11, s39, {KV_LDS}
v_and_b32 v4, 3, v1
v_lshlrev_b32 v4, 2, v4
v_add_u32 v4, {SY_LDS}, v4
s_lshl_b32 s43, s33, 2
s_add_u32 s43, s43, {SY_LDS}
v_mov_b32 v5, s43
v_add_u32 v12, s39, v3
v_add_u32 v13, 0x10000, v12
v_add_u32 v14, 0x20000, v12
v_lshrrev_b32 v15, 2, v1
v_mul_u32_u24 v15, 1280, v15
v_and_b32 v8, 3, v1
v_lshl_add_u32 v15, v8, 4, v15
s_mul_i32 s40, s28, 5
s_lshr_b32 s40, s40, 2
s_lshl_b32 s41, s40, 9
s_add_u32 s41, s41, {L.FP_OFF + 40*128}
s_lshl_b32 s42, s40, 10
s_add_u32 s42, s42, {L.FP_OFF + 201*128}
s_mul_i32 s44, s28, 7
s_cmp_eq_u32 s28, 7
s_subb_u32 s44, s44, 0
s_lshr_b32 s40, s44, 1
s_min_u32 s40, s40, 22
s_mul_i32 s40, s40, 384
s_add_u32 s40, s40, {L.FP_OFF + 120*128}
s_add_u32 s31, s25, 1
s_min_u32 s31, s31, 7
s_lshl_b32 s31, s31, 7
s_add_u32 s31, s31, {L.GL_OFF}""")
    srd(P, 12, 4, SZ)
    def ctouch(l0, roff):
        if not opt.get("CT", 1): return
        e, pc = lab("ct"), lab("pc")
        P(f"""s_cmp_lg_u32 s33, 0
s_cbranch_scc1 {e}
s_sub_u32 s43, s26, {roff}
s_and_b32 s43, s43, 31
s_lshl_b32 s43, s43, 12
s_cmp_ge_u32 s43, L_code_end-{l0}
s_cbranch_scc1 {e}
s_getpc_b64 s[66:67]
{pc}:
s_sub_u32 s66, s66, {pc}-{l0}
s_subb_u32 s67, s67, 0
v_lshl_add_u32 v32, v1, 6, s43
v_min_u32 v32, L_code_end-{l0}-4, v32
v_mov_b32 v33, s67
v_add_co_u32 v32, vcc, s66, v32
v_addc_co_u32 v33, vcc, 0, v33, vcc
global_load_dword v34, v[32:33], off
{e}:""")
    ctouch("L_k2", 0)
    sa.i = 3; sa()
    P("s_barrier")
    sa()
    vm = VM(P); last = {}
    def rdy(val): P(f"v_mov_b32 v10, {val}\nds_write_b32 v5, v10")
    for j, (go, lo) in enumerate(((L.K_OFF, 0), (L.V_OFF, 20480))):
        P(f"s_add_u32 m0, s11, {lo}\ns_add_u32 s43, s10, {go}")
        for i in range(4): vm.op(f"buffer_load_dwordx4 v3, s[20:23], s43 offen offset:{i*1024} sc1 lds")
        last["kv"[j]] = vm.op(f"s_add_u32 m0, s11, {lo+4096}\ns_add_u32 s43, s10, {go+4096}\nbuffer_load_dwordx4 v3, s[20:23], s43 offen sc1 lds")
        if j == 0 and opt.get("VLATE", 1): vm.wait(last["k"]); rdy(1)
    if not opt.get("VLATE", 1): vm.wait(last["k"]); rdy(1)
    spoll("s41", 0, 128, 8, 1, 48, va=6, part=1)
    vm.wait(last["v"]); rdy(2)
    sa()
    NR = 25 - N1
    P(f"s_mul_i32 s45, s33, {NR*1024}\ns_add_u32 s45, s45, {4*N1*1024}\ns_add_u32 s46, s45, s32")
    for i in range(NR):
        if i % 4 == 0: P(f"s_add_u32 m0, s45, {i*1024}\ns_add_u32 s43, s46, {i*1024}")
        vm.op(f"buffer_load_dwordx4 v3, s[20:23], s43 offen offset:{(i%4)*1024} sc1 lds")
    last["wo"] = vm.op(f"""s_mul_i32 s46, s29, 20480
s_lshl_b32 s43, s35, 6
s_add_u32 s43, s43, s46
s_mul_i32 s45, s33, 3072
s_add_u32 m0, s45, {XR_LDS}
s_nop 0
buffer_load_dwordx4 v15, s[12:15], s43 offen lds
s_add_u32 m0, s45, {XR_LDS+1024}
s_add_u32 s43, s43, 64
buffer_load_dwordx4 v15, s[12:15], s43 offen lds
s_lshl_b32 s43, s36, 6
s_add_u32 s43, s43, s46
s_add_u32 m0, s45, {XR_LDS+2048}
s_nop 0
buffer_load_dwordx4 v15, s[12:15], s43 offen lds""", 3)
    spoll("s41", 0, 128, 8, 1, 48, va=6, part=2)
    spoll("s41", 5120, 128, 8, 1, 48, va=6)
    spoll("s40", 0, 128, 15, 1, 48, va=6)
    P(f"""s_cmp_ge_u32 s30, 6
s_cbranch_scc1 L_nocs
s_lshl_b32 s44, s44, 7
s_add_u32 s44, s44, {L.CS3_OFF}
s_mov_b32 s45, 8192
s_mov_b32 s46, {CS3_LDS}
s_cmp_eq_u32 s30, 5
s_cbranch_scc1 L_cs1
s_mul_i32 s44, s28, 320
s_add_u32 s44, s44, {L.CS1_OFF}
s_mov_b32 s45, 2560
s_mov_b32 s46, {CS1_LDS}
L_cs1:
s_lshl_b32 s43, s33, 30
v_add_u32 v9, s43, v3""")
    for i in range(4): P(f"buffer_load_dwordx4 {v(16+4*i,4)}, v{9 if i == 3 else 3}, s[20:23], s44 offen sc1\ns_add_u32 s44, s44, s45")
    P("L_nocs:")
    NSTASH = opt.get("NSTASH", 11); BD = opt.get("BD", 0); BS = opt.get("BS", 0)
    sreg = {}; freeb = list(range(11))
    P(f"s_and_b32 s43, s27, 1\ns_mul_i32 s7, s43, 20480\ns_mul_i32 s6, s7, 7\ns_add_u32 s6, s6, s38\ns_add_u32 s7, s7, s38")
    def src(l):
        if l < 15: return "s38", l * 20480
        if l < 22: return "s6", l * 20480
        return "s7", (29 + 2*(l - 22)) * 20480
    def stash(sg, bs=BS):
        b = freeb.pop(0); sreg[sg] = b
        for i in range(5):
            if i % 4 == 0: P(f"s_add_u32 s43, {src(sg)[0]}, {src(sg)[1] + i*1024}")
            if bs: P(f"s_waitcnt vmcnt({bs-1})")
            last[sg] = vm.op(f"buffer_load_dwordx4 {v(36+20*b+4*i,4)}, v3, s[20:23], s43 offen offset:{(i%4)*1024} sc1")
    def issue(sg, thin=False):
        slot = (sg % RING) * 20480
        if sg >= opt.get("SKIPW", 99): last[sg] = None; return
        if sg in sreg:
            b = sreg.pop(sg); vm.wait(last[sg])
            for i in range(5):
                o = slot + i*1024
                hi = (slot + 4*5120 - 1) >> 16; lo_ = slot >> 16
                k = o >> 16
                P(f"ds_write_b128 v{12+k}, {v(36+20*b+4*i,4)} offset:{o & 0xffff}")
            freeb.append(b); last[sg] = None
            return
        for i in range(5):
            if i % 4 == 0: P(f"s_add_u32 m0, s39, {slot + i*1024}\ns_add_u32 s43, {src(sg)[0]}, {src(sg)[1] + i*1024}")
            if thin: P(f"s_waitcnt vmcnt({THIN})")
            elif BD: P(f"s_waitcnt vmcnt({BD-1})")
            last[sg] = vm.op(f"buffer_load_dwordx4 v3, s[20:23], s43 offen offset:{(i%4)*1024} sc1 lds")
    pubd = [5]
    def publish(upto):
        if upto <= pubd[0]: return
        w = [last[k] for k in range(pubd[0], upto) if last[k] is not None]
        if w: vm.wait(max(w))
        rdy(upto); pubd[0] = upto
    def wait_free(n):
        P("ds_read_b32 v11, v4 offset:16\ns_waitcnt lgkmcnt(0)"); lds_check(4, 11, 16, n, f's_sleep {opt.get("SLL", 1)}\n')
    for sg in range(5, 5 + NSTASH):
        stash(sg, opt.get("BSL", 6) if sg >= opt.get("BSF", 99) else BS)
        if sg == 7:
            vm.wait(last[5])
            P("s_cmp_ge_u32 s30, 6\ns_cbranch_scc1 L_nocs2\nv_add_u32 v8, s46, v3")
            for r in range(4): P(f"v_add_f32 v{16+r}, v{16+r}, v{20+r}\nv_add_f32 v{24+r}, v{24+r}, v{28+r}")
            for r in range(4): P(f"v_add_f32 v{16+r}, v{16+r}, v{24+r}")
            P("ds_write_b128 v8, v[16:19]\nL_nocs2:")
            rdy(5)
            sa()
    sa()
    P(f"s_or_b32 s43, s26, s33\ns_cmp_lg_u32 s43, 0\ns_cbranch_scc1 L_gle\ns_lshl_b32 s44, s25, 10\ns_add_u32 s44, s44, {L.FO_OFF}")
    spoll("s44", 0, 4, 32, 1, 48, va=6, scalar=False, slp=2)
    P(f"s_lshl_b32 s44, s25, 7\ns_add_u32 s44, s44, {L.GL_OFF}\nv_mov_b32 v6, 0\nv_mov_b32 v7, 1\ns_mov_b64 exec, 1\nbuffer_store_dword v7, v6, s[20:23], s44 offen sc1\ns_mov_b64 exec, -1\nL_gle:")
    spoll("s42", 0, 128, 16, 1, 48, va=6)
    sl = Stamper(48, 16)
    nst = 5 + NSTASH
    wait_free(1)
    issue(5, True); issue(6, True)
    spoll("s31", 0, 128, 1, 1, 64, va=6)
    rdy(6)
    RS = [opt.get("RS1", 1), opt.get("RS2", 2), opt.get("RS3", 0)]
    NL = 29
    cand = list(range(nst, NL))
    done_ = set(range(7))
    def restash(n, bs=BS):
        P("s_waitcnt lgkmcnt(0)")
        while n > 0 and freeb and cand:
            sg = cand.pop(0)
            if sg in done_: continue
            stash(sg, bs); n -= 1
    def fill(sgs, thin=False):
        for sg in sorted(sgs, key=lambda x: x in sreg):
            issue(sg, thin); done_.add(sg)
    for ph in range(3):
        b = 5 * ph
        wait_free(b + 3)
        if ph == 0: ctouch("L_c1", 12)
        if ph == 2: ctouch("L_c3", 22)
        restash(RS[ph])
        fill([sg for sg in range(b + 7, b + 10) if sg < R0])
        publish(min(R0, b + 10))
        wait_free(b + 5)
        fill([sg for sg in (b + 10, b + 11) if sg < R0], True)
    publish(R0)
    sl()
    BD = opt.get("BD3", 6)
    for sg in range(R0, NL):
        if sg == opt.get("PZ", 26): publish(sg); wait_free(23)
        wait_free(max(16, sg - RING + 1))
        issue(sg)
        publish(sg)
        if sg in (21, 23, 25, 27): sl()
    publish(NL)
    if opt.get("WBL", 0) == 1:
        P("s_cmp_lg_u32 s30, 4\ns_cbranch_scc1 L_nowb\ns_cmp_lg_u32 s26, 0\ns_cbranch_scc1 L_nowb\nbuffer_wbl2 sc1\ns_waitcnt vmcnt(0)\nL_nowb:")
    if STAMP:
        sl()
        stamp_dump([80 + 2*i for i in range(sa.i)] + [48 + 2*i for i in range(sl.i)])
    P("L_end:\ns_endpgm")
    for t in tails: P(t)
    P("L_code_end:")
    return (KN, 256, 512, max(LDS_TOTAL, STAT + 2048 + 128), 256)
```

```python
from asmlib import *
from gen1 import f2u, LOG2E, ONES, EPS, ARG, SZ, srd, header, xg_reduce, NAME

RING = 7
KV_LDS = 5 * 20480
XR_LDS = RING * 20480
CS1_LDS = XR_LDS + 12288
CS3_LDS = CS1_LDS + 1024
SY_LDS = 131072 + 28672 + 2144
LDS_TOTAL = SY_LDS + 32
SPIN_MAX = 400000
STAMP_OFF = 0x4000000

class VM:
    def __init__(s, P): s.P = P; s.n = 0
    def op(s, text, k=1): s.P(text); s.n += k; return s.n - 1
    def cnt(s, idx):
        c = s.n - 1 - idx
        assert c >= 0
        return min(63, c)
    def wait(s, idx, extra=""): s.P(f"s_waitcnt vmcnt({s.cnt(idx)}){extra}")
class LG(VM):
    def cnt(s, idx): return min(15, s.n - 1 - idx)
    def wait(s, idx): s.P(f"s_waitcnt lgkmcnt({s.cnt(idx)})")

_lab = [0]
def lab(p):
    _lab[0] += 1
    return f"L_{p}{_lab[0]}"

def gen(P, L, opt):
    STAMP = opt.get("STAMP", False); FOCUS = opt.get("FOCUS", 0)
    NTOUCH = opt.get("NTOUCH", 1); THIN = opt.get("THIN", 1); PRE = opt.get("PRE", 8); PRE4 = opt.get("PRE4", 12)
    OSF = ["", " sc1", " nt"][opt.get("OSF", 0)]
    NSTG = L.NSTG; DBG = opt.get("DBG", 0)
    tails = []
    def store2(vm, lines):
        a, b = lab("sf"), lab("se")
        P(f"s_cbranch_scc1 {a}" if False else f"s_cmp_lg_u32 s24, 0\ns_cbranch_scc1 {a}")
        for l in lines: P(l)
        P(f"{b}:")
        tails.append(f"{a}:\ns_nop 4\n" + "\n".join(l + " sc1" for l in lines) + f"\ns_nop 1\ns_branch {b}")
        vm.n += len(lines)
        return vm.n - 1
    def poll_check(vaddr, vdata, soff, need, back=''):
        a, b, c = lab("pl"), lab("pd"), lab("pr")
        P(f"v_cmp_gt_u32 vcc, {need}, v{vdata}\ns_cbranch_vccnz {a}\n{b}:")
        tails.append(f"""{a}:
s_mov_b32 s47, 0
{c}:
{back}buffer_load_dword v{vdata}, v{vaddr}, s[20:23], {soff} offen sc1
s_add_u32 s47, s47, 1
s_cmp_ge_u32 s47, {SPIN_MAX}
s_waitcnt vmcnt(0)
s_cbranch_scc1 {b}
v_cmp_gt_u32 vcc, {need}, v{vdata}
s_cbranch_vccnz {c}
s_branch {b}""")
    def lds_check(vaddr, vdata, off, need, back=''):
        a, b, c = lab("ll"), lab("ld"), lab("lr")
        P(f"v_cmp_gt_u32 vcc, {need}, v{vdata}\ns_cbranch_vccnz {a}\n{b}:")
        tails.append(f"""{a}:
s_mov_b32 s47, 0
{c}:
{back}ds_read_b32 v{vdata}, v{vaddr} offset:{off}
s_add_u32 s47, s47, 1
s_cmp_ge_u32 s47, {SPIN_MAX*4}
s_waitcnt lgkmcnt(0)
s_cbranch_scc1 {b}
v_cmp_gt_u32 vcc, {need}, v{vdata}
s_cbranch_vccnz {c}
s_branch {b}""")
    class Stamper:
        def __init__(s, base, n): s.i = 0; s.base = base; s.n = n
        def __call__(s):
            if not (STAMP or DBG): return
            assert s.i < s.n
            if DBG:
                P(f"s_memrealtime s[{s.base+2*s.i}:{s.base+2*s.i+1}]"); s.i += 1; return
            P(f"s_memtime s[{s.base+2*s.i}:{s.base+2*s.i+1}]"); s.i += 1
    def stamp_dump(regs):
        regs = regs + [regs[-1]] * (26 - len(regs))
        P("s_waitcnt lgkmcnt(0)\nv_mov_b32 v40, s100\ns_memrealtime s[100:101]\ns_waitcnt lgkmcnt(0)\nv_mov_b32 v41, s100\nv_mov_b32 v2, 0")
        for i, r in enumerate(regs): P(f"v_mov_b32 v{42+i}, s{r}")
        P("s_mov_b32 s22, 0x8000000")
        P(f"s_lshl_b32 s43, s2, 3\ns_add_u32 s43, s43, s30\ns_lshl_b32 s43, s43, 7\ns_add_u32 s43, s43, {STAMP_OFF + 2*0x100000}\ns_mov_b64 exec, 1")
        for i in range(7): P(f"buffer_store_dwordx4 v[{40+4*i}:{43+4*i}], v2, s[20:23], s43 offen offset:{16*i}")

    KN = NAME + "_kernel"
    PI = opt.get("PI", 3); PP = opt.get("PP", 6); PSP = opt.get("PSP", 2); ZI = opt.get("ZI", 2); SI = opt.get("SI", 7)
    NTF = " nt" if opt.get("PREP_NT", 1) else ""
    PSF = " sc1"; QSF = " sc1"
    N1 = opt.get("N1", 4); TD = opt.get("TD", 4)
    VD = opt.get("VD", 0); vst = []
    CST = opt.get("CST", 1); WB = opt.get("WB", 0)
    PB = 131072; STAT = PB + 28672
    SLP = opt.get("SLP", 6)
    PAR = STAT + 1536
    RL = STAT + 2048 + 64
    def spoll(base, imm, stride, n, need, t0, srd_="s[20:23]", slp=None, va=58, scalar=True, part=3):
        b, c, d = lab("zq"), lab("zr"), lab("zs")
        if scalar:
            for k in range(n if part & 1 else 0):
                if isinstance(stride, str): P(f"s_buffer_load_dword s{t0+k}, {srd_}, s{int(base[1:])+k}")
                elif base == "0": P(f"s_buffer_load_dword s{t0+k}, {srd_}, {imm + k*stride}")
                else: P(f"s_buffer_load_dword s{t0+k}, {srd_}, {base} offset:{imm + k*stride}")
            if not part & 2: return
            P("s_waitcnt lgkmcnt(0)")
            for k in range(1, n): P(f"s_min_u32 s{t0}, s{t0}, s{t0+k}")
            P(f"s_cmp_lt_u32 s{t0}, {need}\ns_cbranch_scc1 {c}\n{b}:")
        body = f"""{c}:
s_mov_b32 s47, 0
v_mul_u32_u24 v{va}, {stride}, v1
v_add_u32 v{va}, {imm}, v{va}
s_mov_b64 exec, {(1 << n) - 1}
{d}:
buffer_load_dword v{va+1}, v{va}, {srd_}, {base} offen sc1
s_add_u32 s47, s47, 1
s_waitcnt vmcnt(0)
v_cmp_gt_u32 vcc, {need}, v{va+1}
s_cbranch_vccz {d}x
s_sleep {SLP if slp is None else slp}
s_cmp_lt_u32 s47, {SPIN_MAX}
s_cbranch_scc1 {d}
{d}x:
s_mov_b64 exec, -1"""
        if scalar: tails.append(body + f"\ns_branch {b}")
        else: P(body)
    header(P, KN)
    sa = Stamper(80, 10)
    P(f"s_load_dwordx4 s[4:7], s[0:1], 0\ns_load_dwordx4 s[72:75], s[0:1], {ARG['dbg']}")
    P("s_cmp_ge_u32 s2, 256\ns_cbranch_scc1 L_end")
    if STAMP: P("s_memrealtime s[100:101]")
    sa()
    P("v_lshrrev_b32 v2, 6, v0\nv_and_b32 v1, 63, v0\nv_readfirstlane_b32 s30, v2")
    P("s_cmp_ge_u32 s30, 4\ns_cbranch_scc1 L_nocpf")
    if opt.get("CPF", 1):
        NSEG = opt.get("NSEG", 8)
        P(f"""s_getpc_b64 s[48:49]
L_pc0:
s_sub_u32 s48, s48, L_pc0-{KN}
s_subb_u32 s49, s49, 0
s_lshr_b32 s50, s2, 3
s_lshl_b32 s50, s50, 2
s_add_u32 s50, s50, s30
s_cmp_ge_u32 s50, {NSEG}
s_cbranch_scc1 L_nocpf
s_lshl_b32 s50, s50, 13
v_lshl_add_u32 v60, v1, 7, s50
v_min_u32 v60, L_code_end-{KN}-4, v60
v_mov_b32 v61, s49
v_add_co_u32 v60, vcc, s48, v60
v_addc_co_u32 v61, vcc, 0, v61, vcc
global_load_dword v62, v[60:61], off
L_nocpf:""")
    P("""s_and_b32 s25, s2, 7
s_lshr_b32 s26, s2, 3
s_and_b32 s27, s26, 3
s_lshr_b32 s28, s26, 2
s_lshr_b32 s31, s25, 1
s_lshl_b32 s31, s31, 2
s_add_u32 s31, s31, s27
s_and_b32 s32, s25, 1
s_lshl_b32 s35, s28, 1
s_add_u32 s32, s32, s35
s_mul_i32 s29, s27, 3
s_and_b32 s35, s25, 6
s_add_u32 s29, s29, s35
s_cmp_ge_u32 s32, 10
s_addc_u32 s29, s29, s32
s_mul_i32 s35, s29, 6554
s_lshr_b32 s35, s35, 16
s_mul_i32 s35, s35, 10
s_sub_u32 s29, s29, s35""")
    P("s_cmp_lt_u32 s30, 4\ns_cbranch_scc1 L_k1_comp")
    P("s_setprio 2\ns_sub_u32 s33, s30, 4")
    P("v_lshrrev_b32 v8, 3, v1\nv_and_b32 v9, 7, v1\nv_lshrrev_b32 v10, 4, v1")
    P("s_cmp_eq_u32 s32, 15\ns_cbranch_scc1 L_k1_spare_h")
    P("v_mul_u32_u24 v11, 1280, v8\nv_xor_b32 v12, v10, v9\nv_lshl_add_u32 v4, v12, 4, v11\nv_xor_b32 v5, 64, v4")
    P("v_mul_u32_u24 v11, 3840, v10\nv_bfe_u32 v12, v1, 2, 2\nv_xor_b32 v12, v12, v10\nv_lshl_add_u32 v11, v12, 6, v11\nv_and_b32 v12, 3, v1\nv_lshl_add_u32 v3, v12, 4, v11")
    P("s_lshl_b32 s36, s31, 2\ns_add_u32 s36, s36, s33\ns_mul_i32 s36, s36, 40960")
    P("s_mul_i32 s37, s33, 61440\ns_lshl_b32 s38, s32, 8\ns_add_u32 s37, s37, s38\ns_lshl_b32 s39, s33, 12")
    P("s_mov_b32 s34, s29")
    P(f"s_mov_b32 s14, {SZ}\ns_mov_b32 s15, 0x20000\ns_mov_b32 s18, {640*3840}\ns_mov_b32 s19, 0x20000\ns_waitcnt lgkmcnt(0)")
    P("s_mov_b32 s12, s4\ns_and_b32 s13, s5, 0xffff\ns_mov_b32 s16, s6\ns_and_b32 s17, s7, 0xffff")
    nvm = [0]; last = {}
    def dma_list(i):
        slot = (i % 4) * 32768
        Lx = []
        for j in range(4):
            pre = "s_lshl_b32 s40, s34, 7\ns_add_u32 s40, s40, s36\ns_mul_i32 s41, s34, 245760\ns_add_u32 s41, s41, s37\n" if j == 0 else ""
            Lx.append(pre + f"s_add_u32 m0, s39, {slot + j*1024}\ns_nop 0\nbuffer_load_dwordx4 v{4+(j&1)}, s[12:15], s40 offen lds")
            post = f"\ns_add_u32 s41, s41, {4*3840}" if j < 3 else "\ns_add_u32 s34, s34, 1\ns_cmp_eq_u32 s34, 10\ns_cselect_b32 s34, 0, s34"
            Lx.append(f"s_add_u32 m0, s39, {slot + 16384 + j*1024}\ns_add_u32 s40, s40, 10240\nbuffer_load_dwordx4 v3, s[16:19], s41 offen lds" + post)
        nvm[0] += 8; last[i] = nvm[0] - 1
        return Lx
    if FOCUS == 21 and STAMP: P("s_memtime s[98:99]")
    for l in dma_list(0): P(l)
    def hsetup():
        P(f"s_setprio 0\ns_load_dwordx2 s[10:11], s[0:1], {ARG['wo']}\ns_load_dwordx8 s[56:63], s[0:1], {ARG['w1']}\nv_lshlrev_b32 v14, 4, v1\nv_mov_b32 v2, 0\ns_waitcnt lgkmcnt(0)")
        srd(P, 20, 74, L.WS_USED); srd(P, 76, 72, 256)
        P(f"v_mov_b32 v13, {RL}\nds_write_b32 v13, v2\nds_write_b32 v13, v2 offset:4\nds_write_b32 v13, v2 offset:8\nds_write_b32 v13, v2 offset:12")
        for k in range(8): P(f"ds_write_b32 v13, v2 offset:{SY_LDS - RL + 4*k}")
        P("s_waitcnt lgkmcnt(0)")
    def decode(tag):
        P(f"""s_mov_b32 s64, s10
s_mov_b32 s65, s11
s_mov_b32 s50, 1280
s_mov_b32 s51, 5
s_mov_b32 s52, 0
s_mov_b32 s53, 0
s_mov_b32 s55, 0
s_mov_b32 s66, 819200
s_mov_b32 s70, 20
s_mov_b32 s67, s48
s_cmp_lt_u32 s48, 40
s_cbranch_scc1 L_dec4{tag}
s_mov_b32 s64, s56
s_mov_b32 s65, s57
s_mov_b32 s52, 5
s_mov_b32 s55, {L.CS1_OFF}
s_sub_u32 s67, s48, 40
s_cmp_lt_u32 s48, 80
s_cbranch_scc1 L_dec4{tag}
s_mov_b32 s64, s58
s_mov_b32 s65, s59
s_mov_b32 s52, 10
s_mov_b32 s55, 0
s_sub_u32 s67, s48, 80
s_cmp_lt_u32 s48, 120
s_cbranch_scc1 L_dec4{tag}
s_mov_b32 s64, s60
s_mov_b32 s65, s61
s_mov_b32 s50, 3456
s_mov_b32 s52, 15
s_mov_b32 s53, 1
s_mov_b32 s55, {L.CS3_OFF}
s_mov_b32 s66, 2211840
s_mov_b32 s51, 7
s_sub_u32 s67, s48, 120
s_mul_i32 s68, s67, 21846
s_lshr_b32 s68, s68, 16
s_mul_i32 s69, s68, 3
s_sub_u32 s69, s67, s69
s_cmp_lt_u32 s48, 201
s_cbranch_scc1 L_decj{tag}
s_mov_b32 s64, s62
s_mov_b32 s65, s63
s_mov_b32 s50, 1280
s_mov_b32 s52, 29
s_mov_b32 s53, 2
s_mov_b32 s55, 0
s_mov_b32 s70, 54
s_sub_u32 s67, s48, 201
s_lshr_b32 s68, s67, 3
s_and_b32 s69, s67, 7
s_branch L_decj{tag}
L_dec4{tag}:
s_lshr_b32 s68, s67, 2
s_and_b32 s69, s67, 3
L_decj{tag}:
s_mov_b32 s24, s64
s_and_b32 s25, s65, 0xffff
s_mov_b32 s26, s66
s_mov_b32 s27, 0x20000
s_mul_i32 s54, s69, s51
s_sub_u32 s70, s70, s54
s_min_u32 s51, s51, s70
s_lshl_b32 s49, s54, 2
s_add_u32 s49, s49, s33
s_lshl_b32 s49, s49, 3
s_mul_i32 s49, s49, s50
s_lshl_b32 s42, s68, 7
s_add_u32 s49, s49, s42
v_mul_lo_u32 v13, v8, s50
v_lshl_add_u32 v13, v9, 4, v13""")
        P(f"""s_lshl_b32 s42, s68, 2
s_add_u32 s42, s42, s33
s_mul_i32 s52, s52, 20480
s_add_u32 s52, s52, {L.WS_OFF}
s_cmp_eq_u32 s53, 1
s_cbranch_scc1 L_dw3{tag}
s_mul_i32 s43, s42, 52429
s_lshr_b32 s43, s43, 18
s_mul_i32 s44, s43, 5
s_sub_u32 s44, s42, s44
s_cmp_eq_u32 s44, 0
s_cselect_b32 s45, 4, -1
s_bitcmp1_b32 s43, 0
s_cselect_b32 s45, s45, 0
s_add_u32 s44, s44, s45
s_add_u32 s42, s42, s45
s_lshl_b32 s44, s44, 10
s_mul_i32 s46, s69, 2560
s_branch L_dj2{tag}
L_dw3{tag}:
s_lshr_b32 s45, s42, 1
s_mul_i32 s43, s45, 9363
s_lshr_b32 s43, s43, 16
s_cmp_eq_u32 s45, 48
s_cselect_b32 s43, 7, s43
s_mul_i32 s44, s43, 7
s_sub_u32 s44, s45, s44
s_cmp_eq_u32 s43, 7
s_addc_u32 s44, s44, 0
s_lshl_b32 s44, s44, 1
s_and_b32 s45, s42, 1
s_add_u32 s44, s44, s45
s_add_u32 s45, s44, 132
s_cmp_eq_u32 s44, 7
s_cselect_b32 s45, 146, s45
s_cmp_lt_u32 s44, 7
s_cselect_b32 s44, s44, s45
s_lshl_b32 s44, s44, 10
s_mul_i32 s46, s69, 8192
L_dj2{tag}:
s_mul_i32 s43, s43, {L.SLICE_B}
s_add_u32 s52, s52, s43
s_add_u32 s52, s52, s44
s_lshl_b32 s42, s42, 6
s_add_u32 s42, s42, s46
s_cmp_eq_u32 s55, 0
s_cselect_b32 s42, 0, s42
s_add_u32 s55, s55, s42""")
    def prep_dma(ldsbase_sreg, NTF=NTF):
        P(f"s_lshl_b32 s42, s33, 10\ns_add_u32 s42, s42, {ldsbase_sreg}\ns_lshl_b32 s43, s50, 5\ns_mov_b32 s44, s49")
        for k in range(7):
            P(f"s_add_u32 m0, s42, {k*4096}\ns_nop 0\nbuffer_load_dwordx4 v13, s[24:27], s44 offen{NTF} lds")
            if k in (4, 5): P(f"s_cmp_eq_u32 s51, {k+1}\ns_cselect_b32 s43, 0, s43")
            if k < 6: P("s_add_u32 s44, s44, s43")
        nvm[0] += 7
    def prep_addr(tag, ldsbase_sreg):
        P(f"""v_bfe_u32 v11, v1, 2, 2
v_lshl_add_u32 v11, v10, 3, v11
v_lshlrev_b32 v11, 7, v11
v_and_b32 v12, 3, v1
v_lshl_add_u32 v11, v12, 4, v11
s_lshr_b32 s42, s33, 1
s_lshl_b32 s42, s42, 6
s_and_b32 s43, s33, 1
s_lshl_b32 s43, s43, 3
s_add_u32 s42, s42, s43
s_add_u32 s42, s42, {ldsbase_sreg}
v_add_u32 v11, s42, v11
v_lshrrev_b32 v6, 1, v10
v_lshlrev_b32 v6, 9, v6
v_and_b32 v7, 1, v10
v_lshlrev_b32 v7, 9, v7
v_sub_u32 v6, v6, v7
v_add_u32 v6, v6, v11
v_lshlrev_b32 v7, 12, v10
v_add_u32 v7, v7, v11
v_add_u32 v7, 2048, v7
s_cmp_eq_u32 s53, 1
s_mov_b32 s46, 5120
s_cmov_b32 s46, 7168""")
        for k in range(7):
            P(f"""s_add_u32 s42, s54, {k}
s_mul_i32 s43, s42, 9363
s_lshr_b32 s43, s43, 16
s_cmp_eq_u32 s42, 48
s_cselect_b32 s43, 7, s43
s_mul_i32 s44, s43, 7
s_sub_u32 s44, s42, s44
s_cmp_eq_u32 s43, 7
s_addc_u32 s44, s44, 0
s_lshl_b32 s44, s44, 2
s_lshr_b32 s44, 0x6315420, s44
s_and_b32 s44, s44, 7
s_lshl_b32 s44, s44, 3
s_add_u32 s44, s44, s43
s_cmp_eq_u32 s53, 2
s_cselect_b32 s42, s44, s42
s_mul_i32 s42, s42, s46
s_add_u32 s{92+k}, s42, s52""")
    def prep_reads(tag):
        P(f"s_cmp_lt_u32 s48, 40\ns_cbranch_scc1 L_prw{tag}")
        for k in range(7):
            P(f"ds_read_b64_tr_b16 v[{64+4*k}:{65+4*k}], v11 offset:{k*4096}\nds_read_b64_tr_b16 v[{66+4*k}:{67+4*k}], v11 offset:{k*4096+512}")
        P(f"L_pre{tag}:")
        t = f"L_prw{tag}:\n"
        for k in range(4): t += f"ds_read_b64_tr_b16 v[{64+4*k}:{65+4*k}], v6 offset:{k*5120}\nds_read_b64_tr_b16 v[{66+4*k}:{67+4*k}], v6 offset:{k*5120+1024}\n"
        for k in (4, 5, 6): t += f"ds_read_b64_tr_b16 v[{64+4*k}:{65+4*k}], v7 offset:0\nds_read_b64_tr_b16 v[{66+4*k}:{67+4*k}], v7 offset:2560\n"
        tails.append(t + f"s_branch L_pre{tag}")
    def prep_stores(tag):
        P("s_waitcnt lgkmcnt(0)")
        for k in range(7):
            if k >= 5: P(f"s_cmp_eq_u32 s51, {k}\ns_cbranch_scc1 L_pp5{tag}")
            P(f"buffer_store_dwordx4 v[{64+4*k}:{67+4*k}], v14, s[20:23], s{92+k} offen{PSF}")
        P(f"L_pp5{tag}:")
    def prep_cs(tag):
        P(f"s_cmp_eq_u32 s55, 0\ns_cbranch_scc1 L_ppe{tag}")
        for r in range(4): P(f"v_mov_b32 v{56+r}, {ONES}")
        for k in range(7):
            if k >= 5: P(f"s_cmp_eq_u32 s51, {k}\ns_cbranch_scc1 L_pc5{tag}")
            P(f"v_mfma_f32_16x16x32_bf16 v[92:95], v[56:59], v[{64+4*k}:{67+4*k}], {'0' if k == 0 else 'v[92:95]'}")
        P(f"L_pc5{tag}:")
        P("v_lshlrev_b32 v62, 2, v1\ns_mov_b64 exec, 0xffff\nbuffer_store_dword v92, v62, s[20:23], s55 offen sc1\ns_mov_b64 exec, -1")
        P(f"L_ppe{tag}:")
    def hlate():
        hsetup()
        P("s_mul_i32 s48, s31, 15\ns_add_u32 s48, s48, s32\ns_add_u32 s48, s48, 41")
        decode("m"); prep_addr("m", PB)
        for j in range(7): P(f"v_mov_b32 v{64+j}, s{92+j}")
        P(f"v_mov_b32 v71, s51\nv_mov_b32 v72, s55\ns_lshl_b32 s42, s33, 6\ns_add_u32 s42, s42, {PAR}\nv_mov_b32 v73, s42\ns_mov_b64 exec, 1\nds_write_b128 v73, v[64:67]\nds_write_b128 v73, v[68:71] offset:16\nds_write_b32 v73, v72 offset:32\ns_mov_b64 exec, -1\ns_waitcnt lgkmcnt(0)")
    srd(P, 20, 74, L.WS_USED)
    P("v_lshlrev_b32 v14, 4, v1\nv_add_u32 v15, s39, v14")
    XS = 96
    P(f"""v_and_b32 v48, 31, v1
v_lshrrev_b32 v49, 5, v1
v_mul_u32_u24 v50, 2560, v49
v_lshl_add_u32 v52, v48, 2, v50
v_lshlrev_b32 v51, 1, v52""")
    pid = None; sid = None
    def pretouch():
        P(f"""s_and_b32 s42, s2, 7
s_lshl_b32 s43, s42, 11
s_add_u32 s43, s43, {L.FR_OFF}
s_lshl_b32 s44, s42, 10
s_add_u32 s44, s44, {L.FO_OFF}
s_cmp_eq_u32 s33, 0
s_cselect_b32 s43, s43, s44
s_cselect_b32 s45, 5, 4
s_lshl_b32 s44, s42, 5
s_lshr_b32 s42, s2, 3
s_add_u32 s44, s44, s42
s_lshl_b32 s44, s44, 10
s_add_u32 s44, s44, {L.ST_OFF}
s_cmp_ge_u32 s33, 2
s_cselect_b32 s43, s44, s43
v_lshlrev_b32 v124, s45, v1
buffer_load_dword v120, v124, s[20:23], s43 offen sc1""")
        nvm[0] += 1
    def fp_write(idx_sreg, n=1):
        e = lab("fp")
        P(f"s_cmp_lg_u32 s30, 4\ns_cbranch_scc1 {e}\ns_lshl_b32 s42, {idx_sreg}, 7\ns_add_u32 s42, s42, {L.FP_OFF}\nv_mov_b32 v60, 1\nv_lshlrev_b32 v62, 11, v1\ns_mov_b64 exec, {n}\nbuffer_store_dword v60, v62, s[20:23], s42 offen sc1\ns_mov_b64 exec, -1\n{e}:")
    def fx_write():
        e = lab("fx")
        P(f"""s_cmp_lg_u32 s30, 5
s_cbranch_scc1 {e}
s_getreg_b32 s42, hwreg(HW_REG_XCC_ID)
s_and_b32 s42, s42, 15
s_add_u32 s42, s42, 1
v_mov_b32 v60, s42
s_and_b32 s42, s2, 7
s_lshl_b32 s42, s42, 5
s_lshr_b32 s43, s2, 3
s_add_u32 s42, s42, s43
s_lshl_b32 s42, s42, 2
s_add_u32 s42, s42, {L.FX_OFF}
s_mov_b64 exec, 1
buffer_store_dword v60, v2, s[20:23], s42 offen sc1
s_mov_b64 exec, -1
{e}:""")
    E1 = opt.get("E1", 4)
    d1 = dma_list(1)
    hlate()
    for l in d1[:E1]: P(l)
    for i in range(10):
        if i == 0:
            if FOCUS == 21 and STAMP: P("s_memtime s[96:97]")
            P(f"s_waitcnt vmcnt({E1})")
            if FOCUS == 21 and STAMP: P("s_memtime s[94:95]\ns_waitcnt lgkmcnt(0)"); stamp_dump([80, 98, 96, 94]); P(f"s_mov_b64 exec, -1\ns_mov_b32 s22, {L.WS_USED}\ns_waitcnt vmcnt(0)")
        else: P(f"s_waitcnt vmcnt({min(nvm[0] - 1 - last[i], nvm[0] - 1 - pid) if i == PP else nvm[0] - 1 - last[i]})")
        if i == ZI + 2: spoll("0", 0, 4, 1, 64, 64, "s[76:79]", part=2)
        if i == SI + 1: spoll("s56", 0, "s70", 5, 1, 64, part=2)
        P("s_barrier")
        if i == ZI + 2:
            fx_write()
            e = lab("fs")
            P(f"s_cmp_lg_u32 s30, 6\ns_cbranch_scc1 {e}\ns_lshl_b32 s42, s31, 4\ns_add_u32 s42, s42, s32\ns_lshl_b32 s42, s42, 7\ns_add_u32 s42, s42, {L.FQ_OFF}\nv_mov_b32 v60, 1\ns_mov_b64 exec, 1\nbuffer_store_dword v60, v2, s[20:23], s42 offen sc1\ns_mov_b64 exec, -1\n{e}:")
        if i == 0:
            for j in range(4): P(f"ds_read_b128 v[{XS+4*j}:{XS+4*j+3}], v15 offset:{j*1024}")
            for l in d1[E1:]: P(l)
            for j in range(4):
                P(f"s_waitcnt lgkmcnt({3 - j})")
                for r in range(4):
                    P(f"v_lshlrev_b32 v{112+2*r}, 16, v{XS+4*j+r}\nv_and_b32 v{113+2*r}, 0xffff0000, v{XS+4*j+r}")
                P(f"v_add_f32 v{16+2*j}, v112, v113\nv_mul_f32 v{17+2*j}, v112, v112\nv_fmac_f32 v{17+2*j}, v113, v113")
                for r in range(2, 8): P(f"v_add_f32 v{16+2*j}, v{16+2*j}, v{112+r}\nv_fmac_f32 v{17+2*j}, v{112+r}, v{112+r}")
            for ctl in ("quad_perm:[1,0,3,2]", "quad_perm:[2,3,0,1]", "row_half_mirror"):
                for r in range(8): P(f"v_add_f32_dpp v{16+r}, v{16+r}, v{16+r} {ctl} row_mask:0xf bank_mask:0xf")
            for j in range(1, 4):
                P(f"v_cmp_eq_u32 vcc, {j}, v9\nv_cndmask_b32 v16, v16, v{16+2*j}, vcc\nv_cndmask_b32 v17, v17, v{17+2*j}, vcc")
            P(f"""v_lshl_add_u32 v18, v9, 3, v8
v_lshlrev_b32 v18, 3, v18
s_mul_i32 s42, s31, 10
s_add_u32 s42, s42, s29
s_lshl_b32 s42, s42, 2
s_add_u32 s42, s42, s33
s_lshl_b32 s42, s42, 8
s_add_u32 s42, s42, {L.SR_OFF}
s_cmp_lt_u32 s32, 10
s_cselect_b32 s43, 0, 0x40000000
v_add_u32 v18, s43, v18""")
        if i + 2 < 10:
            for l in dma_list(i + 2): P(l)
        if i == SI + 1:
            P(f"""s_mul_i32 s42, s31, 10240
s_lshl_b32 s43, s33, 8
s_add_u32 s42, s42, s43
s_add_u32 s42, s42, {L.SR_OFF}
s_add_u32 s44, s42, 4096
s_mul_i32 s43, s32, 5120
s_lshl_b32 s46, s33, 7
s_add_u32 s43, s43, s46
s_add_u32 s43, s43, {L.SC_OFF}""")
            for k in range(5): P(f"buffer_load_dwordx2 v[{16+2*k}:{17+2*k}], v51, s[20:23], s{42 if k < 4 else 44} offen offset:{(k%4)*1024} sc1")
            for k in range(5): P(f"buffer_load_dword v{26+k}, v52, s[20:23], s43 offen offset:{k*512} sc1")
            nvm[0] += 10; slid = nvm[0] - 1
        if i == 0:
            P("s_mov_b32 exec_lo, 0x0f0f0f0f\ns_mov_b32 exec_hi, 0x0f0f0f0f\nbuffer_store_dwordx2 v[16:17], v18, s[20:23], s42 offen sc1\ns_mov_b64 exec, -1"); nvm[0] += 1
        SPF = opt.get("SPF", 0)
        if SPF and 1 <= i <= 7:
            k = i - 1
            e = lab("pf")
            if k >= 5: P(f"s_cmp_le_u32 s51, {k}\ns_cbranch_scc1 {e}")
            P(f"s_mul_i32 s42, s50, {32*k}\ns_add_u32 s42, s42, s49")
            for r in range(8):
                P(f"s_buffer_load_dword s61, s[24:27], s42")
                if SPF == 2: P(f"s_buffer_load_dword s62, s[24:27], s42 offset:64")
                if r < 7: P("s_add_u32 s42, s42, s50")
            P(f"{e}:")
        if i == ZI + 1: spoll("0", 0, 4, 1, 64, 64, "s[76:79]", part=1)
        if i == SI:
            P(f"""s_and_b32 s56, s33, 1
s_mul_i32 s56, s56, 5
s_lshl_b32 s57, s31, 4
s_add_u32 s57, s57, s56
s_lshl_b32 s56, s56, 4
s_add_u32 s56, s56, s32
s_cmp_lt_u32 s33, 2
s_cselect_b32 s56, s57, s56
s_cselect_b32 s46, 128, 2048
s_lshl_b32 s56, s56, 7
s_add_u32 s56, s56, {L.FQ_OFF}
s_add_u32 s57, s56, s70
s_add_u32 s58, s57, s70
s_add_u32 s59, s58, s70
s_add_u32 s60, s59, s70""".replace("s_cselect_b32 s46, 128, 2048", "s_mov_b32 s70, 2048\ns_cmov_b32 s70, 128"))
            spoll("s56", 0, "s70", 5, 1, 64, part=1)
        if i == PI: prep_dma(PB, "" if opt.get("SPF", 0) else NTF); pid = nvm[0] - 1
        if i == PP and not CST: prep_reads("m"); P("s_waitcnt lgkmcnt(0)"); prep_cs("m")
        if PP <= i <= SI and not CST:
            nst = SI - PP + 1
            for k in range((i - PP) * 7 // nst, (i - PP + 1) * 7 // nst):
                kk_ = 6 - k
                e = lab("ps")
                if kk_ >= 5: P(f"s_cmp_le_u32 s51, {kk_}\ns_cbranch_scc1 {e}")
                P(f"buffer_store_dwordx4 v[{64+4*kk_}:{67+4*kk_}], v14, s[20:23], s{92+kk_} offen sc1\n{e}:")
                if kk_ < 5: nvm[0] += 1
        if i == SI + 2:
            P(f"s_waitcnt vmcnt({nvm[0] - 1 - slid})")
            for k in range(1, 5): P(f"v_add_f32 v16, v16, v{16+2*k}\nv_add_f32 v17, v17, v{17+2*k}\nv_add_f32 v26, v26, v{26+k}")
            P("v_mov_b32 v18, v16\nv_mov_b32 v19, v17\nv_mov_b32 v27, v26\nv_permlane32_swap_b32 v16, v18\nv_permlane32_swap_b32 v17, v19\nv_permlane32_swap_b32 v26, v27\nv_add_f32 v16, v16, v18\nv_add_f32 v17, v17, v19\nv_add_f32 v26, v26, v27")
            P(f"v_mul_f32 v16, {f2u(1/640)}, v16\nv_mul_f32 v17, {f2u(1/640)}, v17\nv_fma_f32 v17, -v16, v16, v17\nv_max_f32 v17, 0, v17\nv_add_f32 v17, {f2u(EPS)}, v17\nv_rsq_f32 v17, v17")
            P(f"s_cmp_lt_u32 s32, 5\ns_cselect_b32 s41, {f2u(20**-0.5*LOG2E)}, 1.0\ns_lshl_b32 s42, s33, 7\ns_add_u32 s42, s42, {STAT}\nv_and_b32 v18, 31, v1\nv_lshl_add_u32 v18, v18, 2, s42\nv_mul_f32 v17, s41, v17\nv_mul_f32 v16, v16, v17")
            P("ds_write_b32 v18, v17\nds_write_b32 v18, v16 offset:512\nds_write_b32 v18, v26 offset:1024\ns_waitcnt lgkmcnt(0)")
    P("s_barrier")
    def wo_block(tag):
        P(f"v_mov_b32 v12, {RL}\nv_mov_b32 v60, 1\ns_lshr_b32 s44, s2, 5\ns_mul_i32 s43, s44, 5\ns_and_b32 s43, s43, 0xfc\ns_lshl_b32 s43, s43, 7\ns_add_u32 s43, s43, {L.FP_OFF}")
        spoll("s43", 0, 128, 8, 1, 56)
        P(f"s_mul_i32 s44, s44, {L.SLICE_B}\ns_mul_i32 s42, s33, {N1*1024}\ns_add_u32 s44, s44, s42\ns_add_u32 s44, s44, {L.WS_OFF}")
        for i in range(N1):
            if i % 4 == 0: P(f"s_add_u32 m0, s42, {i*1024}\ns_add_u32 s46, s44, {i*1024}")
            if i >= TD: P(f"s_waitcnt vmcnt({TD-1})")
            P(f"buffer_load_dwordx4 v14, s[20:23], s46 offen offset:{(i%4)*1024} sc1 lds")
    assert CST
    pretouch()
    if opt.get("WAS", 1):
        P(f"v_mov_b32 v12, {RL}\nds_read_b32 v61, v12 offset:12\ns_waitcnt lgkmcnt(0)")
        lds_check(12, 61, 12, 4, "s_sleep 1\n")
    P("L_k1_wo:")
    sa.i = 1; sa()
    wo_block("s")
    sa()
    P("s_branch L_loader")
    P("L_k1_spare_h:")
    hsetup()
    P("s_mov_b32 s48, s31\ns_mov_b32 s71, 0\nL_sp1:")
    decode("a"); prep_dma("s71")
    P("s_add_u32 s48, s48, 16\ns_add_u32 s71, s71, 28672\ns_cmp_lt_u32 s48, 41\ns_cbranch_scc1 L_sp1")
    P("s_waitcnt vmcnt(0)\ns_barrier\ns_mov_b32 s48, s31\ns_mov_b32 s71, 0\nL_sp2:")
    decode("b")
    prep_addr("b", "s71"); prep_reads("b"); prep_stores("b"); prep_cs("b")
    P("s_nop 4\ns_add_u32 s48, s48, 16\ns_add_u32 s71, s71, 28672\ns_cmp_lt_u32 s48, 41\ns_cbranch_scc1 L_sp2")
    spoll("0", 0, 4, 1, 64, 64, "s[76:79]")
    P("s_waitcnt vmcnt(0)")
    P("s_barrier\ns_mov_b32 s48, s31")
    P("s_cmp_lt_u32 s31, 9\ns_cselect_b32 s70, 7, 3\ns_mov_b32 s71, 0")
    fp_write("s48", "s[70:71]"); fx_write(); pretouch()
    P("s_branch L_k1_wo")
    P("L_k1_comp:\ns_mov_b32 s71, 0")
    sa.i = 1
    P("s_cmp_eq_u32 s32, 15\ns_cbranch_scc1 L_k1_spare_c")
    P("s_waitcnt lgkmcnt(0)")
    srd(P, 20, 74, L.WS_USED)
    if opt.get("TLBW", 0):
        st_ = opt.get("TLBS", 16)
        P(f"""s_sub_u32 s50, s26, 2
s_lshl_b32 s50, s50, 2
s_add_u32 s50, s50, s30
s_cmp_ge_u32 s50, {(L.WS_USED >> (st_ + 6)) + 2}
s_cbranch_scc1 L_notlb
v_lshlrev_b32 v60, {st_}, v1
s_cmp_eq_u32 s50, 0
s_cbranch_scc1 L_tlbo
s_sub_u32 s50, s50, 1
s_lshl_b32 s50, s50, {st_ + 6}
v_add_u32 v60, s50, v60
buffer_load_dword v63, v60, s[20:23], 0 offen
s_branch L_notlb
L_tlbo:
s_load_dwordx2 s[52:53], s[0:1], {ARG['out']}
s_waitcnt lgkmcnt(0)
s_and_b32 s53, s53, 0xffff
s_mov_b32 s54, {SZ}
s_mov_b32 s55, 0x20000
v_lshlrev_b32 v60, 16, v1
buffer_load_dword v63, v60, s[52:55], 0 offen
L_notlb:""")
    P("s_lshr_b32 s34, s30, 1\ns_and_b32 s35, s30, 1")
    P("""v_and_b32 v36, 31, v1
v_lshrrev_b32 v39, 5, v1
s_lshl_b32 s41, s34, 6
v_add_u32 v10, s41, v36
v_bfe_u32 v11, v10, 1, 3
v_xor_b32 v11, v11, v39
v_lshlrev_b32 v11, 4, v11
v_lshl_add_u32 v20, v10, 7, v11
s_lshl_b32 s41, s35, 12
v_add_u32 v20, s41, v20""")
    for kk in range(1, 4): P(f"v_xor_b32 v{20+kk}, {kk*32}, v20")
    for kk in range(4): P(f"v_add_u32 v{24+kk}, 0x10000, v{20+kk}")
    for kk in range(8): P(f"v_xor_b32 v{40+kk}, 0x1000, v{20+kk}")
    P("""v_bfe_u32 v10, v1, 2, 2
v_lshl_add_u32 v11, v39, 3, v10
v_lshlrev_b32 v11, 8, v11
v_bfe_u32 v12, v1, 4, 1
v_lshl_add_u32 v11, v12, 5, v11
v_and_b32 v12, 3, v1
v_lshl_add_u32 v11, v12, 3, v11
s_lshl_b32 s41, s35, 1
s_add_u32 s41, s41, s34
v_xor_b32 v12, s41, v10
v_lshl_add_u32 v28, v12, 6, v11
v_xor_b32 v29, 64, v28
v_add_u32 v30, 0x10000, v28
v_add_u32 v31, 0x10000, v29""")
    ACC, FX, FW, SEL, CSA, AD, RSA = 64, 128, 144, 4, 32, 224, 16
    P(f"v_and_b32 v10, 15, v1\nv_bfe_u32 v11, v1, 4, 1\nv_cmp_eq_u32 vcc, v10, v11\nv_mov_b32 v10, {ONES}")
    for i in range(4): P(f"v_cndmask_b32 v{SEL+i}, 0, v10, vcc")
    P("s_cmp_ge_u32 s32, 10\ns_cbranch_scc1 L_k1_v")
    for variant in ("qk", "v"):
        if variant == "v":
            P("L_k1_v:")
            sa.i = 1
        def late_setup():
            P("""s_lshl_b32 s43, s31, 2
s_lshl_b32 s44, s34, 1
s_add_u32 s43, s43, s44
s_add_u32 s43, s43, s35
s_lshr_b32 s44, s43, 3
s_mul_i32 s44, s44, 327680
s_and_b32 s45, s43, 7
s_xor_b32 s46, s45, 1
s_mul_i32 s45, s45, 1280
s_mul_i32 s46, s46, 1280
s_add_u32 s45, s45, s44
s_add_u32 s46, s46, s44""")
            if variant == "v":
                P(f"s_sub_u32 s41, s32, 10\ns_lshl_b32 s41, s41, 7\ns_lshl_b32 s42, s35, 6\ns_add_u32 s41, s41, s42\ns_lshl_b32 s42, s34, 5\ns_add_u32 s41, s41, s42\ns_add_u32 s45, s45, {L.V_OFF}\ns_add_u32 s46, s46, {L.V_OFF}")
                for ct in range(2):
                    P(f"v_add_u32 v10, s41, v36\nv_xor_b32 v10, {32*ct}, v10\nv_mul_u32_u24 v11, 52429, v10\nv_lshrrev_b32 v11, 20, v11\nv_mul_u32_u24 v11, {10240-320}, v11\nv_lshl_add_u32 v11, v10, 4, v11\nv_mul_u32_u24 v12, 320, v39\nv_add_u32 v{AD+ct}, v11, v12")
            else:
                P(f"s_cmp_ge_u32 s32, 5\ns_cselect_b32 s42, 5, 0\ns_cselect_b32 s47, {L.K_OFF}, {L.Q_OFF}\ns_sub_u32 s41, s32, s42\ns_lshl_b32 s41, s41, 5\ns_lshl_b32 s42, s35, 4\ns_add_u32 s41, s41, s42\ns_lshl_b32 s42, s34, 3\ns_add_u32 s41, s41, s42\ns_add_u32 s45, s45, s47\ns_add_u32 s46, s46, s47")
                for ct in range(2):
                    for b in range(4):
                        P(f"v_add_u32 v10, s41, v39\nv_xor_b32 v10, {8*ct}, v10\nv_add_u32 v10, {2*b}, v10\nv_mul_u32_u24 v11, 52429, v10\nv_lshrrev_b32 v11, 18, v11\nv_mul_u32_u24 v11, {10240-1280}, v11\nv_lshl_add_u32 v11, v10, 8, v11\nv_lshl_add_u32 v{AD+ct*4+b}, v36, 3, v11")
            P(f"""s_lshl_b32 s41, s35, 1
s_add_u32 s41, s41, s34
s_lshl_b32 s41, s41, 7
s_mul_i32 s40, s32, 10
s_add_u32 s40, s40, s29
s_lshl_b32 s40, s40, 9
s_add_u32 s40, s40, s41
s_add_u32 s40, s40, {L.SC_OFF}
s_cmp_lt_u32 s31, 10
s_cselect_b32 s43, 0, 0x40000000
s_add_u32 s41, s41, {STAT+1024}
v_lshl_add_u32 v37, v36, 2, s43
s_lshl_b32 s42, s34, 1
s_add_u32 s42, s42, s35
s_lshl_b32 s42, s42, 7
s_add_u32 s42, s42, {STAT}""")
            P(f"""v_bfe_u32 v11, v1, 2, 2
v_lshrrev_b32 v10, 4, v1
v_lshl_add_u32 v11, v10, 3, v11
v_lshlrev_b32 v11, 7, v11
v_and_b32 v12, 3, v1
v_lshl_add_u32 v11, v12, 4, v11
s_lshl_b32 s43, s34, 6
s_lshl_b32 s44, s35, 3
s_add_u32 s43, s43, s44
s_add_u32 s43, s43, {PB}
v_add_u32 v14, s43, v11
v_lshlrev_b32 v15, 4, v1
s_mul_i32 s71, s31, 15
s_add_u32 s71, s71, s32
s_add_u32 s71, s71, 41
s_lshl_b32 s71, s71, 7
s_lshl_b32 s43, s30, 6
s_add_u32 s43, s43, {PAR}
v_mov_b32 v13, s43""")
            for r in range(4): P(f"v_mov_b32 v{56+r}, {ONES}")
        def rlist(n):
            st, kk = divmod(n, 4)
            b = n & 1
            slot = (st % 4) * 32768
            hi = slot >= 65536
            off = slot - (65536 if hi else 0)
            def xr(rt): return f"ds_read_b128 v[{FX+b*8+rt*4}:{FX+b*8+rt*4+3}], v{(40 if rt else 20)+(4 if hi else 0)+kk} offset:{off}"
            def wr(ct, h):
                ar = 28 + ct + (2 if hi else 0)
                return f"ds_read_b64_tr_b16 v[{FW+b*8+ct*4+2*h}:{FW+b*8+ct*4+2*h+1}], v{ar} offset:{off+16384+kk*4096+1024*h}"
            return [xr(0), wr(0, 0), wr(0, 1), wr(1, 0), wr(1, 1), xr(1)]
        if FOCUS == 21 and STAMP: P("s_memtime s[36:37]")
        P("s_barrier"); sa()
        for l in rlist(0): P(l)
        for n in range(40):
            b = n & 1
            nx = rlist(n + 1) if n + 1 < 40 else []
            def mf(t):
                rt, ct = t >> 1, t & 1
                x = v(FX + b*8 + rt*4, 4); w = v(FW + b*8 + ct*4, 4); d = v(ACC + t*16, 16)
                c = "0" if n == 0 else d
                if variant == "qk": P(f"v_mfma_f32_32x32x16_bf16 {d}, {w}, {x}, {c}")
                else: P(f"v_mfma_f32_32x32x16_bf16 {d}, {x}, {w}, {c}")
            P("s_waitcnt lgkmcnt(3)")
            mf(0)
            if nx and (n + 1) % 4 == 0:
                if n == 3: late_setup()
                if (n + 1) // 4 in (ZI + 2, WB): P("s_waitcnt vmcnt(0)")
                P("s_barrier")
                if (n + 1) // 4 == WB:
                    assert 4*PP + 1 + 6*PSP + 1 < n
                    e = lab("wb"); P(f"s_cmp_lg_u32 s30, 0\ns_cbranch_scc1 {e}\nbuffer_wbl2 sc1\n{e}:")
                if FOCUS == 21 and STAMP: P(f"s_memtime s[{52+2*((n+1)//4-1)}:{53+2*((n+1)//4-1)}]")
            k = 0
            if n == 4*PP - 3: P("ds_read_b128 v[192:195], v13\nds_read_b128 v[196:199], v13 offset:16\nds_read_b32 v200, v13 offset:32"); k += 3
            if n == 4*PP - 2:
                for j in range(7): P(f"v_add_u32 v{192+j}, v{192+j}, v15")
                P("v_readfirstlane_b32 s38, v199\nv_readfirstlane_b32 s39, v200")
            if CST:
                pk_, pr_ = divmod(n - (4*PP + 1), PSP)
                if 0 <= pk_ < 7 and pr_ == 0:
                    P(f"ds_read_b64_tr_b16 v[{160+4*pk_}:{161+4*pk_}], v14 offset:{pk_*4096}\nds_read_b64_tr_b16 v[{162+4*pk_}:{163+4*pk_}], v14 offset:{pk_*4096+512}"); k += 2
                if 0 <= pk_ < 7 and pr_ == 1:
                    e = lab("ps")
                    if pk_ >= 5: P(f"s_cmp_le_u32 s38, {pk_}\ns_cbranch_scc1 {e}")
                    P(f"buffer_store_dwordx4 v[{160+4*pk_}:{163+4*pk_}], v{192+pk_}, s[20:23], 0 offen sc1")
                    P(f"v_mfma_f32_16x16x32_bf16 v[16:19], v[56:59], v[{160+4*pk_}:{163+4*pk_}], {'0' if pk_ == 0 else 'v[16:19]'}\n{e}:")
            for l in nx[:2]: P(l); k += 1
            P(f"s_waitcnt lgkmcnt({1 + k})")
            mf(1)
            for l in nx[2:4]: P(l); k += 1
            P(f"s_waitcnt lgkmcnt({k})")
            mf(2)
            for l in nx[4:6]: P(l)
            mf(3)
            if n < 4: P(f"v_mfma_f32_16x16x32_bf16 {v(CSA,4)}, {v(SEL,4)}, {v(FW+b*8,4)}, {'0' if n == 0 else v(CSA,4)}")
            if n == 4:
                P(f"s_mov_b64 exec, 0xffff\nbuffer_store_dword v{CSA}, v37, s[20:23], s40 offen sc1\nbuffer_store_dword v{CSA+1}, v37, s[20:23], s40 offen offset:64 sc1\ns_mov_b64 exec, -1")
        sa()
        if CST:
            assert 4*PP + 1 + 6*PSP + 1 <= 39
            e = lab("pc")
            P(f"s_cmp_eq_u32 s39, 0\ns_cbranch_scc1 {e}\nv_lshlrev_b32 v62, 2, v1\ns_mov_b64 exec, 0xffff\nbuffer_store_dword v16, v62, s[20:23], s39 offen sc1\ns_mov_b64 exec, -1\n{e}:")
        P("s_barrier")
        if variant == "qk":
            P(f"""v_lshl_add_u32 v37, v36, 2, s42
v_xor_b32 v38, 128, v37
ds_read_b32 v40, v37
ds_read_b32 v42, v37 offset:512
ds_read_b32 v44, v38
ds_read_b32 v46, v38 offset:512
v_lshl_add_u32 v37, v39, 4, s41
v_xor_b32 v38, 128, v37""")
            for ct in range(2):
                for b in range(4):
                    P(f"ds_read_b128 v[{128+ct*16+b*4}:{128+ct*16+b*4+3}], v{37+ct} offset:{b*32}")
            P("s_waitcnt lgkmcnt(8)")
            for r in (40, 42, 44, 46): P(f"v_mov_b32 v{r+1}, v{r}")
            P("s_waitcnt lgkmcnt(0)")
            for t in range(4):
                rt, ct = t >> 1, t & 1
                A = v(40 + rt*4, 2); B = v(42 + rt*4, 2)
                for p in range(8):
                    r = ACC + t*16 + 2*p
                    P(f"v_pk_mul_f32 v[{48+2*(p&3)}:{49+2*(p&3)}], v[{128+ct*16+2*p}:{128+ct*16+2*p+1}], {B}")
                    P(f"v_pk_fma_f32 v[{r}:{r+1}], v[{r}:{r+1}], {A}, v[{48+2*(p&3)}:{49+2*(p&3)}] neg_lo:[0,0,1] neg_hi:[0,0,1]")
                for p in range(8):
                    r = ACC + t*16 + 2*p
                    P(f"v_cvt_pk_bf16_f32 v{160+t*8+p}, v{r}, v{r+1}")
                for b in range(4):
                    P(f"buffer_store_dwordx2 v[{160+t*8+2*b}:{160+t*8+2*b+1}], v{AD+ct*4+b}, s[20:23], s{45+rt} offen{QSF}")
        else:
            P(f"""v_lshl_add_u32 v37, v36, 2, s41
v_xor_b32 v38, 128, v37
ds_read_b32 v40, v37
ds_read_b32 v42, v38
v_lshl_add_u32 v37, v39, 4, s42
v_xor_b32 v38, 128, v37""")
            for rt in range(2):
                for b in range(4):
                    P(f"ds_read_b128 v[{128+rt*32+b*4}:{128+rt*32+b*4+3}], v{37+rt} offset:{b*32}")
                    P(f"ds_read_b128 v[{144+rt*32+b*4}:{144+rt*32+b*4+3}], v{37+rt} offset:{512+b*32}")
            P("s_waitcnt lgkmcnt(0)\nv_mov_b32 v41, v40\nv_mov_b32 v43, v42")
            for t in range(4):
                rt, ct = t >> 1, t & 1
                C = v(40 + ct*2, 2)
                for p in range(8):
                    r = ACC + t*16 + 2*p
                    P(f"v_pk_mul_f32 v[{48+2*(p&3)}:{49+2*(p&3)}], v[{144+rt*32+2*p}:{144+rt*32+2*p+1}], {C}")
                    P(f"v_pk_fma_f32 v[{r}:{r+1}], v[{r}:{r+1}], v[{128+rt*32+2*p}:{128+rt*32+2*p+1}], v[{48+2*(p&3)}:{49+2*(p&3)}] neg_lo:[0,0,1] neg_hi:[0,0,1]")
                for p in range(8):
                    r = ACC + t*16 + 2*p
                    P(f"v_cvt_pk_bf16_f32 v{ACC+t*16+p}, v{r}, v{r+1}")
                for u in range(2):
                    vst.append(f"buffer_store_dwordx4 v[{ACC+t*16+4*u}:{ACC+t*16+4*u+3}], v{AD+ct}, s[20:23], s{4+rt} offen offset:{640*u} sc1")
                    if not VD: P(vst[-1].replace(f"s{4+rt} offen", f"s{45+rt} offen"))
            P("s_mov_b32 s4, s45\ns_mov_b32 s5, s46")
        sa()
        if FOCUS == 21 and STAMP:
            stamp_dump([80, 36, 82] + [52 + 2*i for i in range(9)] + [84, 86]); P(f"s_mov_b64 exec, -1\ns_mov_b32 s22, {L.WS_USED}")
        P(f"v_mov_b32 v10, {RL}\nv_mov_b32 v11, 1\ns_mov_b64 exec, 1\nds_add_u32 v10, v11 offset:12\ns_mov_b64 exec, -1")
        P(f"s_mov_b32 s24, {3 if (variant == 'v' and VD) else 1}\ns_branch L_k2")
    P("L_k1_spare_c:\nv_mov_b32 v224, 0\nv_mov_b32 v225, 0\ns_waitcnt lgkmcnt(0)")
    srd(P, 20, 74, L.WS_USED); srd(P, 76, 72, 256)
    P(f"v_lshlrev_b32 v3, 4, v1\nv_mov_b32 v4, 0\nv_mov_b32 v5, 0\nv_mov_b32 v6, 0\nv_mov_b32 v7, 0\ns_lshl_b32 s43, s31, 2\ns_add_u32 s43, s43, s30\ns_lshl_b32 s44, s43, 12\ns_lshl_b32 s43, s43, 11\ns_add_u32 s43, s43, {L.FLAG_OFF}\ns_add_u32 s44, s44, {L.ST_OFF}")
    P("buffer_store_dwordx4 v[4:7], v3, s[20:23], s43 offen sc1\nbuffer_store_dwordx4 v[4:7], v3, s[20:23], s43 offen offset:1024 sc1")
    for k in range(4): P(f"buffer_store_dwordx4 v[4:7], v3, s[20:23], s44 offen offset:{k*1024} sc1")
    P("v_mov_b32 v8, 1\ns_waitcnt vmcnt(0)\ns_mov_b64 exec, 1\nbuffer_atomic_add v8, v4, s[76:79], 0 offen sc1\ns_mov_b64 exec, -1")
    sa.i = 1; sa(); sa(); sa()
    P("s_barrier\ns_barrier\ns_mov_b32 s24, 0")
    IDS = """s_and_b32 s25, s2, 7
s_lshr_b32 s26, s2, 3
s_and_b32 s27, s26, 3
s_lshl_b32 s28, s25, 2
s_add_u32 s27, s27, s28
s_lshr_b32 s28, s2, 5
s_and_b32 s29, s30, 3
s_lshl_b32 s43, s27, 2
s_add_u32 s29, s29, s43
s_mul_i32 s34, s28, 5
s_and_b32 s37, s28, 1
s_lshr_b32 s35, s34, 1
s_add_u32 s36, s35, 2
s_lshl_b32 s43, s37, 1
s_sub_u32 s36, s36, s43
s_add_u32 s35, s35, s37"""
    P("L_k2:")
    P(f"s_load_dwordx2 s[6:7], s[0:1], {ARG['out']}")
    P(f"s_lshl_b32 s42, s31, 4\ns_add_u32 s42, s42, s32\ns_lshl_b32 s42, s42, 7\ns_add_u32 s42, s42, {L.FQ_OFF}\ns_add_u32 s9, s71, {L.FP_OFF}")
    P(IDS)
    S, KF, VF, OA, PM, CA, MB = 32, 176, 200, 224, 240, 248, 4
    L4V, MODEV, SYA, SYW, RMV = 252, 253, 254, 255, 248
    QR = [16, 8]
    P(f"""v_lshlrev_b32 v3, 4, v1
s_mul_i32 s40, s25, 327680
s_mul_i32 s41, s26, 10240
s_add_u32 s40, s40, s41
s_mul_i32 s41, s30, 1280
s_add_u32 s40, s40, s41
s_add_u32 s39, s40, 5120
s_lshl_b32 s31, s25, 3
s_add_u32 s31, s31, s30
v_and_b32 v30, 31, v1
v_lshrrev_b32 v31, 5, v1
v_lshlrev_b32 v27, 3, v30
v_lshl_add_u32 v28, v31, 9, v27
s_add_u32 s41, s41, {KV_LDS}
v_add_u32 v24, s41, v28
v_add_u32 v25, s41, v27
v_mul_u32_u24 v26, 320, v31
v_lshl_add_u32 v26, v30, 4, v26
v_add_u32 v26, s41, v26
v_lshlrev_b32 v{L4V}, 2, v30
s_lshl_b32 s44, s25, 1
s_add_u32 s43, s30, s44
s_max_u32 s43, s43, 2
s_sub_u32 s43, s43, 2
s_mul_i32 s45, s26, 20
s_lshr_b32 s44, s45, 7
s_add_u32 s45, s45, 19
s_lshr_b32 s45, s45, 7
s_sub_u32 s45, s45, s44
s_lshl_b32 s45, s45, 7
s_lshl_b32 s43, s43, 4
s_add_u32 s43, s43, s44
s_lshl_b32 s43, s43, 7
s_add_u32 s38, s43, {L.FQ_OFF}
s_mov_b32 s32, s24
v_lshrrev_b32 v58, 1, v1
v_mul_u32_u24 v58, 640, v58
v_and_b32 v59, 1, v1
v_mul_lo_u32 v59, v59, s45
v_add_u32 v58, v58, v59
s_lshl_b32 s33, s25, 7
s_add_u32 s33, s33, {L.FX_OFF}
v_mov_b32 v2, 0
v_mov_b32 v5, 1
v_mov_b32 v6, {RL + 4}""")
    for r in range(16):
        m = 0
        for l in range(64):
            if 8*(r >> 2) + 4*(l >> 5) + (r & 3) <= (l & 31): m |= 1 << l
        P(f"s_mov_b32 s{48+2*r}, {m & 0xffffffff:#x}\ns_mov_b32 s{49+2*r}, {m >> 32:#x}")
    P(f"""s_cmp_eq_u32 s24, 0
s_cbranch_scc1 L_nofq
s_mov_b64 exec, 1
s_waitcnt vmcnt(0)
ds_add_rtn_u32 v7, v6, v5
s_waitcnt lgkmcnt(0)
v_readfirstlane_b32 s46, v7
s_cmp_lg_u32 s46, 3
s_cbranch_scc1 L_nofq
v_mov_b32 v7, 2
s_cmp_eq_u32 s24, 3
s_cbranch_scc1 L_nofq2
buffer_store_dword v7, v2, s[20:23], s42 offen sc1
L_nofq2:
buffer_store_dword v7, v2, s[20:23], s9 offen sc1
L_nofq:
s_mov_b64 exec, -1""")
    sa()
    P(f"buffer_load_dword v{MODEV}, v{L4V}, s[20:23], s33 offen sc1\ns_waitcnt lgkmcnt(0)")
    srd(P, 16, 6, SZ)
    for b in range(3): P(f"v_mov_b32 v{KF+b*8+6}, 0\nv_mov_b32 v{KF+b*8+7}, 0")
    for r in range(24): P(f"v_mov_b32 v{VF+r}, {ONES}")
    P("v_mov_b32 v4, 0xffff\nv_mov_b32 v7, 0xffff0000")
    for p in range(8):
        P(f"v_cndmask_b32 v{PM+p}, 0, v4, s[{48+4*p}:{49+4*p}]\nv_cndmask_b32 v12, 0, v7, s[{50+4*p}:{51+4*p}]\nv_or_b32 v{PM+p}, v{PM+p}, v12")
    P(f"v_cmp_gt_u32 vcc, 32, v1\nv_mov_b32 v4, 0xbf80bf80\nv_mov_b32 v7, 0x0000bf80\nv_cndmask_b32 v{CA}, 0, v4, vcc\nv_cndmask_b32 v{CA+1}, 0, v7, vcc\nv_mov_b32 v{CA+2}, 0\nv_mov_b32 v{CA+3}, 0")
    P("v_mov_b32 v4, 0x7ffffff0\nv_cndmask_b32 v27, v4, v27, vcc")
    P("s_mov_b32 s44, 0x000fffff\ns_mov_b32 s45, 0x000fffff\nv_mov_b32 v6, 0\nv_mov_b32 v7, 0\nv_mov_b32 v14, 0\nv_mov_b32 v15, 0\nv_mov_b32 v22, 0\nv_mov_b32 v23, 0")
    P(f"v_and_b32 v{SYA}, 3, v1\nv_lshlrev_b32 v{SYA}, 2, v{SYA}\nv_add_u32 v{SYA}, {SY_LDS}, v{SYA}\ns_lshl_b32 s43, s30, 2\ns_add_u32 s43, s43, {SY_LDS}\nv_mov_b32 v{SYW}, s43")
    P(f"s_lshl_b32 s8, s31, 5\ns_add_u32 s8, s8, s26\ns_lshl_b32 s8, s8, 2\ns_add_u32 s8, s8, {L.FO_OFF}")
    P("s_waitcnt vmcnt(0)")
    poll_check(L4V, MODEV, "s33", 1, f"s_sleep {SLP}\n")
    P(f"v_readfirstlane_b32 s43, v{MODEV}\nv_cmp_ne_u32 vcc, s43, v{MODEV}\ns_cmp_lg_u32 vcc_lo, 0\ns_cselect_b32 s24, 1, 0")
    if opt.get("SAFE"): P("s_mov_b32 s24, 1")
    if VD:
        P("s_cmp_eq_u32 s32, 3\ns_cbranch_scc1 L_vst\nL_vste:")
        tails.append("L_vst:\n" + "\n".join(vst) + f"""
v_mov_b32 v30, {RL + 8}
v_mov_b32 v31, 1
s_mov_b64 exec, 1
s_waitcnt vmcnt(0)
ds_add_rtn_u32 v29, v30, v31
s_waitcnt lgkmcnt(0)
v_readfirstlane_b32 s46, v29
s_cmp_lg_u32 s46, 3
s_cbranch_scc1 L_vsx
v_mov_b32 v29, 2
buffer_store_dword v29, v2, s[20:23], s42 offen sc1
L_vsx:
s_mov_b64 exec, -1
s_branch L_vste""")
    if False: pass
    else:
        P(f"s_mov_b64 exec, {15 if VD else 63}\nbuffer_load_dword v59, v58, s[20:23], s38 offen sc1\ns_waitcnt vmcnt(0)")
        poll_check(58, 59, "s38", 2, f"s_sleep {opt.get('SLQ', 3)}\n")
        P("s_mov_b64 exec, -1\ns_barrier")
    sa()
    for a in range(2):
        q = QR[a]; so = "s40" if a == 0 else "s39"
        P(f"buffer_load_dwordx2 v[{q}:{q+1}], v28, s[20:23], {so} offen sc1\nbuffer_load_dwordx2 v[{q+2}:{q+3}], v28, s[20:23], {so} offen offset:256 sc1\nbuffer_load_dwordx2 v[{q+4}:{q+5}], v27, s[20:23], {so} offen offset:1024 sc1")
    P(f"s_waitcnt vmcnt(0)\nds_read_b32 v{MODEV}, v{SYA}\ns_waitcnt lgkmcnt(0)")
    lds_check(SYA, MODEV, 0, 1)
    sa()
    if STAMP or DBG: P("s_waitcnt lgkmcnt(0)")
    lg = LG(P); vm = VM(P)
    M = 28
    qko = [8, 0, 1, 2, 3, 4, 5, 6, 7]
    kseq = [(a, t) for a in range(2) for t in qko]
    kid = {}; kpos = [0]
    def kread():
        if kpos[0] >= len(kseq): return
        a, t = kseq[kpos[0]]; b = kpos[0] % 3; kpos[0] += 1
        o = t*1280 + a*5120
        kid[(a, t)] = (b, lg.op(f"ds_read_b64 v[{KF+b*8}:{KF+b*8+1}], v24 offset:{o}\nds_read_b64 v[{KF+b*8+2}:{KF+b*8+3}], v24 offset:{o+256}\nds_read_b64 v[{KF+b*8+4}:{KF+b*8+5}], v25 offset:{o+1024}", 3))
    def qk(a, t, half):
        def f():
            b, i = kid[(a, t)]; d = v(S + 16*t, 16)
            if half == 0:
                lg.wait(i)
                P(f"v_mfma_f32_32x32x16_bf16 {d}, {v(KF+b*8,4)}, {v(QR[a],4)}, 0")
            else:
                P(f"v_mfma_f32_32x32x16_bf16 {d}, {v(KF+b*8+4,4)}, {v(QR[a]+4,4)}, {d}")
                kread()
        return f
    mst = [0, 0]
    def maxops(a, t):
        ops = []
        if t == 8: return ops
        lim = 8 - t - 4*a
        if lim > 0:
            x, e = lab("ab"), lab("ae")
            ops.append(f"s_cmp_lt_u32 s31, {lim}\ns_cbranch_scc1 {x}\n{e}:")
            tails.append(f"{x}:\ns_nop 11\n" + "\n".join(f"v_mov_b32 v{S+16*t+r}, 0xff800000" for r in range(16)) + f"\ns_branch {e}")
        if t == 0:
            for r in range(16): ops.append(f"v_cndmask_b32 v{S+r}, v{S+r}, v{S+128+r}, s[{48+2*r}:{49+2*r}]")
        for r in range(0, 16, 2):
            k = mst[a] & 1; x, y = S + 16*t + r, S + 16*t + r + 1
            ops.append(f"v_max_f32 v{M+k}, v{x}, v{y}" if mst[a] < 2 else f"v_max3_f32 v{M+k}, v{M+k}, v{x}, v{y}")
            mst[a] += 1
        return ops
    def mfin():
        P(f"""v_max_f32 v{M}, v{M}, v{M+1}
v_mov_b32 v{M+1}, v{M}
v_permlane32_swap_b32 v{M}, v{M+1}
v_max_f32 v{M}, v{M}, v{M+1}
v_and_b32 v29, 0xffff0000, v{M}
v_sub_f32 v30, v{M}, v29
v_and_b32 v31, 0xffff0000, v30
v_sub_f32 v30, v30, v31
v_lshrrev_b32 v29, 16, v29
v_or_b32 v{MB}, v29, v31
v_lshrrev_b32 v{MB+1}, 16, v30""")
    vseq = [(a, t) for a in range(2) for t in qko]
    vid = {}; vpos = [0]
    def vread(n=1):
        if vpos[0] >= len(vseq): return
        P("s_mov_b64 exec, s[44:45]")
        for _ in range(n):
            a, t = vseq[vpos[0]]; b = vpos[0] % 3; vpos[0] += 1
            o = 20480 + t*1280 + a*5120
            vid[(a, t)] = (b, lg.op(f"ds_read_b128 {v(VF+b*8,4)}, v26 offset:{o}\nds_read_b128 {v(VF+b*8+4,4)}, v26 offset:{o+640}", 2))
        P("s_mov_b64 exec, -1")
    def subm(t): P(f"v_mfma_f32_32x32x16_bf16 {v(S+16*t,16)}, {v(CA,4)}, {v(MB,4)}, {v(S+16*t,16)}")
    def pv(a, vt, half, preg):
        def f():
            b, i = vid[(a, vt)]
            if half == 0: lg.wait(i)
            c = "0" if (vt == 8 and half == 0) else v(OA, 16)
            P(f"v_mfma_f32_32x32x16_bf16 {v(OA,16)}, {v(VF+b*8+4*half,4)}, {v(preg+4*half,4)}, {c}")
            if half == 1: vread()
        return f
    def mix(valu, mfs):
        n = len(valu); k = len(mfs)
        pos = [int(j * n / k) for j in range(k)] if k else []
        for i, o in enumerate(valu):
            while pos and pos[0] == i: pos.pop(0); mfs.pop(0)()
            P(o)
        for f in mfs: f()
    D8 = S + 128
    def o_out(a):
        P(f"v_rcp_f32 v30, v{OA+12}")
        for r in range(12): P(f"v_mul_f32 v{OA+r}, v{OA+r}, v30")
        for p in range(6): P(f"v_cvt_pk_bf16_f32 v{16+p}, v{OA+2*p}, v{OA+2*p+1}")
        so = "s40" if a == 0 else "s39"
        return store2(vm, [f"buffer_store_dwordx4 v[16:19], v3, s[20:23], {so} offen", f"buffer_store_dwordx2 v[20:21], v27, s[20:23], {so} offen offset:1024"])
    def o_flag(a):
        P(f"v_mov_b32 v30, 1\ns_waitcnt vmcnt(0)\ns_mov_b64 exec, 1")
        store2(vm, [f"buffer_store_dword v30, v2, s[20:23], s8 offen offset:{512*a}"])
        P("s_mov_b64 exec, -1")
    rdyv = []
    kread(); kread(); kread()
    qk(0, 8, 0)()
    for i in range(1, 11):
        mfs = []
        if i < 9: mfs.append(qk(0, qko[i], 0))
        if i < 10: mfs.append(qk(0, qko[i-1], 1))
        if i == 8: mfs.append(lambda: rdyv.append(lg.op(f"ds_read_b32 v{MODEV}, v{SYA}")))
        mix(maxops(0, qko[i-2]) if i >= 3 else [], mfs)
    ry = rdyv[0]
    mfin()
    if FOCUS == 30 and STAMP: P("s_memtime s[82:83]")
    lg.wait(ry); lds_check(SYA, MODEV, 0, 2)
    if FOCUS == 30 and STAMP: P("s_memtime s[84:85]")
    for a in range(2):
        subm(0)
        if a == 0: vread(3)
        pend = []
        for i in range(8):
            base = S + 16*i
            mfs = [lambda tt=i+1: subm(tt)] if i < 7 else []
            mfs += pend
            valu = [f"v_exp_f32 v{base+r}, v{base+r}" for r in range(16)]
            if a == 0:
                for t in ([8, 0] if i == 2 else ([i - 2] if i >= 3 else [])): mfs += [qk(1, t, 0), qk(1, t, 1)]
                if i >= 3: valu += maxops(1, i - 3)
            if a == 1 and i == 1: valu.insert(8, None)
            valu += [f"v_cvt_pk_bf16_f32 v{base+p}, v{base+2*p}, v{base+2*p+1}" for p in range(8)]
            if None in valu:
                k = valu.index(None); valu.pop(k)
                mfs.append(lambda: o_flag(0))
            mix(valu, mfs)
            if FOCUS == 30 and STAMP and a == 0 and i in (1, 4, 7): P(f"s_memtime s[{86+2*(i//3)}:{87+2*(i//3)}]")
            if i == 0:
                for p in range(8): P(f"v_and_b32 v{D8+p}, v{PM+p}, v{base+p}\nv_bfi_b32 v{base+p}, v{PM+p}, 0, v{base+p}")
                pend = [pv(a, 8, 0, D8), pv(a, 8, 1, D8), pv(a, 0, 0, base), pv(a, 0, 1, base)]
            else: pend = [pv(a, i, 0, base), pv(a, i, 1, base)]
        if a == 0:
            mix(maxops(1, 5), [qk(1, 6, 0), qk(1, 6, 1)] + pend + [qk(1, 7, 0), qk(1, 7, 1)])
            for o in maxops(1, 6): P(o)
            o_out(0)
            for o in maxops(1, 7): P(o)
            mfin()
            sa()
        else:
            for f in pend: f()
            P(f"v_mov_b32 v31, 1\nds_write_b32 v{SYW}, v31 offset:16")
            sa()
            o_out(1)

    st0 = Stamper(48, 16)
    def st():
        if FOCUS == 0: st0()
    def sf(ph):
        if FOCUS == ph: st0()
    ACC, BF, ST, ST1, ST3, HP, ACC4, CS, PK, AF, A4 = 16, 40, 68, 72, 76, 80, 92, 112, 132, 144, 224
    NA4 = 6
    SYD, SYV = 90, 91
    D = 6
    P(f"ds_read_b32 v{SYD}, v{SYA}\ns_lshr_b32 s43, s29, 1\ns_lshl_b32 s43, s43, 7\ns_add_u32 s45, s43, {L.FO_OFF}")
    P(f"v_lshrrev_b32 v{RMV}, 2, v1\nv_mul_u32_u24 v{RMV}, 1280, v{RMV}\nv_and_b32 v4, 3, v1\nv_lshl_add_u32 v{RMV}, v4, 4, v{RMV}")
    P("s_mul_i32 s40, s29, 20480\ns_lshl_b32 s41, s35, 10\ns_add_u32 s41, s41, s40\ns_lshl_b32 s42, s36, 10\ns_add_u32 s42, s42, s40\ns_lshl_b32 s43, s37, 3\ns_add_u32 s42, s42, s43")
    P("v_add_u32 v8, 0x10000, v3\nv_add_u32 v9, 0x20000, v3")
    P(f"s_mul_i32 s46, s30, 3072\ns_add_u32 s46, s46, {XR_LDS}")
    P("v_and_b32 v5, 15, v1\nv_lshlrev_b32 v5, 6, v5\nv_lshrrev_b32 v6, 4, v1\nv_lshl_add_u32 v5, v6, 4, v5\nv_add_u32 v5, s46, v5\ns_lshl_b32 s43, s37, 3\nv_add_u32 v6, s43, v5")
    P(f"v_and_b32 v7, 0x30, v1\nv_add_u32 v7, {CS1_LDS}, v7")
    P(f"s_lshl_b32 s33, s29, 7\ns_add_u32 s33, s33, {L.FR_OFF}\ns_lshl_b32 s43, s28, 2\ns_add_u32 s34, s33, s43")
    P("v_and_b32 v14, 7, v1\nv_lshlrev_b32 v14, 2, v14")
    P(f"s_lshl_b32 s46, s29, 11\ns_add_u32 s46, s46, {L.ST_OFF}")
    P("s_lshr_b32 s44, s28, 1\ns_lshl_b32 s44, s44, 8\ns_add_u32 s9, s46, s44\ns_lshl_b32 s44, s37, 3\ns_add_u32 s9, s9, s44")
    P(f"""s_mul_i32 s10, s25, 327680
s_bfe_u32 s43, s29, 0x30001
s_mul_i32 s43, s43, 1280
s_add_u32 s10, s10, s43
s_and_b32 s43, s29, 1
s_lshl_b32 s43, s43, 7
s_add_u32 s11, s10, s43
s_add_u32 s11, s11, {L.Q_OFF + 1024}
s_lshl_b32 s43, s43, 1
s_add_u32 s10, s10, s43
s_add_u32 s10, s10, {L.Q_OFF}
v_lshrrev_b32 v10, 5, v1
v_mul_u32_u24 v250, 10240, v10
v_bfe_u32 v10, v1, 4, 1
v_lshl_add_u32 v250, v10, 9, v250
v_and_b32 v10, 15, v1
v_lshl_add_u32 v250, v10, 4, v250
v_lshrrev_b32 v11, 4, v1
v_mul_u32_u24 v251, 20480, v11
v_lshl_add_u32 v251, v10, 3, v251""")
    def lds_off(stage, chunk):
        off = (stage % RING) * 20480 + chunk * 1024
        return (3 if off < 65536 else (8 if off < 131072 else 9)), off % 65536
    def unpack(dst, src, n):
        for i in range(n): P(f"v_lshlrev_b32 v{dst+2*i}, 16, v{src+i}\nv_and_b32 v{dst+2*i+1}, 0xffff0000, v{src+i}")
    def set_flag(vm, val):
        P(f"v_mov_b32 v4, {val}\ns_mov_b64 exec, 1")
        store2(vm, ["buffer_store_dword v4, v2, s[20:23], s34 offen"])
        P("s_mov_b64 exec, -1")
    cnt = [0]
    def rdw(lg, stage, chunk):
        ar, off = lds_off(stage, chunk)
        r = BF + (cnt[0] % (D + 1)) * 4; cnt[0] += 1
        return r, lg.op(f"ds_read_b128 {v(r,4)}, v{ar} offset:{off}")
    def free_sig(lg): lg.op(f"ds_write_b32 v{SYW}, v{SYV} offset:16")
    def rdy_read(lg): return lg.op(f"ds_read_b32 v{SYD}, v{SYA}")
    def stats_fin(R):
        P(f"v_add_f32 v{R}, v{R}, v{R+2}\nv_add_f32 v{R+1}, v{R+1}, v{R+3}")
        xg_reduce(P, [R, R+1], [R+2, R+3])
        P(f"v_mul_f32 v{R}, {f2u(1/640)}, v{R}\nv_mul_f32 v{R+1}, {f2u(1/640)}, v{R+1}\nv_fma_f32 v{R+1}, -v{R}, v{R}, v{R+1}\nv_max_f32 v{R+1}, 0, v{R+1}")
        P(f"v_add_f32 v{R+2}, {f2u(EPS)}, v{R+1}\nv_rsq_f32 v{R+2}, v{R+2}")
    def kloop(stage_chunk, tiles, aoff, vaddr_of_ks, accinit, frees, stat=None, ph=0, rdy_at_end=False, rdy=None, shadow=None):
        vm = VM(P); lg = LG(P)
        ids = {}
        def aload(ks):
            if aoff is None:
                kq, a = divmod(ks, 5)
                if a < 4: ids[ks] = vm.op(f"s_add_u32 s43, s10, {(4*kq+a)*20480}\nbuffer_load_dwordx4 {v(AF+4*ks,4)}, v250, s[20:23], s43 offen sc1")
                else: ids[ks] = vm.op(f"s_add_u32 s43, s11, {kq*81920}\nbuffer_load_dwordx2 {v(AF+4*ks,2)}, v251, s[20:23], s43 offen sc1\ns_add_u32 s43, s43, 10240\nbuffer_load_dwordx2 {v(AF+4*ks+2,2)}, v251, s[20:23], s43 offen sc1", 2)
                return
            if ks % 4 == 0: P(f"s_add_u32 s43, s40, {aoff + ks*1024}")
            ids[ks] = vm.op(f"buffer_load_dwordx4 {v(AF+4*ks,4)}, v{vaddr_of_ks(ks)}, s[20:23], s43 offen offset:{(ks%4)*1024} sc1")
        sf(ph)
        if rdy: P(f"ds_read_b32 v{SYD}, v{SYA}")
        for ks in range(PRE): aload(ks)
        if stat:
            P(f"s_add_u32 s44, s9, {stat[2]}\ns_mov_b64 exec, 0xffff")
            sst = store2(vm, ["buffer_store_dwordx2 v[36:37], v3, s[20:23], s44 offen"])
            P("s_mov_b64 exec, -1")
        if rdy:
            P("s_waitcnt lgkmcnt(0)"); lds_check(SYA, SYD, 0, rdy)
        sf(ph)
        nt = len(tiles)
        items = [(ks, t) for ks in range(20) for t in tiles]
        N = len(items)
        rr = []
        def rd(n):
            ks, t = items[n]
            if t == tiles[0] and ks in frees: free_sig(lg)
            rr.append(rdw(lg, *stage_chunk(ks, t)))
            if n == N - 1 and 20 in frees: free_sig(lg)
            if n == N - 1 and rdy_at_end: rdy_read(lg)
        for n in range(D): rd(n)
        if shadow: shadow(lg)
        for n, (ks, t) in enumerate(items):
            if n + D < N: rd(n + D)
            if t == tiles[0]:
                if stat and ks == 4: vm.wait(sst); set_flag(vm, stat[0])
                if ks + PRE < 20: aload(ks + PRE)
                if stat and ks == 9: sp = vm.op("buffer_load_dword v15, v14, s[20:23], s33 offen sc1")
                if stat and ks == 14:
                    vm.wait(sp); poll_check(14, 15, "s33", stat[0])
                    sl = vm.op(f"s_add_u32 s44, s46, {stat[2]}\nbuffer_load_dwordx4 {v(stat[1],4)}, v3, s[20:23], s44 offen sc1")
                P(f"s_waitcnt vmcnt({vm.cnt(ids[ks])}) lgkmcnt({lg.cnt(rr[n][1])})")
                if ks in (0, 1, 2, 4, 8, 12, 16): sf(ph)
                for fk, fv in frees.items():
                    if ks == fk - 3: P(f"v_mov_b32 v{SYV}, {fv}")
            else:
                lg.wait(rr[n][1])
            a = ACC + 4 * tiles.index(t)
            P(f"v_mfma_f32_16x16x32_bf16 {v(a,4)}, {v(rr[n][0],4)}, {v(AF+4*ks,4)}, {v(a,4) if (accinit or ks > 0) else '0'}")
        sf(ph)
        if stat: vm.wait(sl)
        return vm, lg
    def pack(dst, src, n):
        for i in range(n): P(f"v_cvt_pk_bf16_f32 v{dst+i}, v{src+2*i}, v{src+2*i+1}")
    def tile_then_stats(pk, off, f1):
        vm = VM(P)
        P(f"s_add_u32 s43, s41, {off}\ns_add_u32 s44, s42, {off}")
        store2(vm, [f"buffer_store_dwordx4 {v(pk,4)}, v3, s[20:23], s43 offen", f"buffer_store_dwordx4 {v(pk+4,4)}, v3, s[20:23], s43 offen offset:1024", f"buffer_store_dwordx2 {v(pk+8,2)}, v3, s[20:23], s44 offen"])
        P(f"v_mov_b32 v36, 0\nv_mov_b32 v37, 0\nv_mov_b32 v38, {ONES}")
        for i in range(10): P(f"v_dot2c_f32_bf16 v36, v{pk+i}, v38\nv_dot2c_f32_bf16 v37, v{pk+i}, v{pk+i}")
        sf(8)
        P("s_waitcnt vmcnt(0)")
        sf(8)
        set_flag(vm, f1)
        P("buffer_load_dword v15, v14, s[20:23], s33 offen sc1")
        xg_reduce(P, [36, 37], [38, 39])
    kk = 2 * 0.7978845608028654 * LOG2E
    GC = [(76, 78, 10, 12), (68, 70, 72, 74)]
    def gelu_items(a0, c0, n, pk, t0=None, g=0):
        if t0 is None: t0 = c0
        m, ia, A2, A1 = [v(x, 2) for x in GC[g]]
        pr = range(0, n, 2)
        return [[f"v_pk_fma_f32 {v(a0+i,2)}, {v(c0+i,2)}, {m}, {v(a0+i,2)} neg_lo:[1,0,0] neg_hi:[1,0,0]" for i in pr],
                [f"v_pk_mul_f32 {v(t0+i,2)}, {v(a0+i,2)}, {v(a0+i,2)}" for i in pr],
                [f"v_pk_fma_f32 {v(t0+i,2)}, {v(t0+i,2)}, {A2}, {A1}" for i in pr],
                [f"v_pk_mul_f32 {v(t0+i,2)}, {v(t0+i,2)}, {v(a0+i,2)}" for i in pr],
                [f"v_exp_f32 v{t0+i}, v{t0+i}" for i in range(n)],
                [f"v_pk_fma_f32 {v(t0+i,2)}, {v(t0+i,2)}, {ia}, {ia}" for i in pr],
                [f"v_rcp_f32 v{t0+i}, v{t0+i}" for i in range(n)],
                [f"v_pk_mul_f32 {v(a0+i,2)}, {v(a0+i,2)}, {v(t0+i,2)}" for i in pr],
                [f"v_cvt_pk_bf16_f32 v{pk+i//2}, v{a0+i}, v{a0+i+1}" for i in pr]]
    def gelu_consts(mreg, areg, g=0):
        m, ia, A2, A1 = GC[g]
        P(f"""v_rcp_f32 v{ia+1}, v{areg}
v_mul_f32 v{A1}, {f2u(-kk)}, v{areg}
v_mul_f32 v{A2}, v{areg}, v{areg}
v_mov_b32 v{m+1}, v{mreg}
v_mul_f32 v{A2}, v{A2}, v{A1}
v_mov_b32 v{A1+1}, v{A1}
v_mul_f32 v{A2}, {f2u(0.044715)}, v{A2}
v_mov_b32 v{m}, v{m+1}
v_mov_b32 v{ia}, v{ia+1}
v_mov_b32 v{A2+1}, v{A2}""")
    small = lambda b: (lambda ks, t: (b + ks // 4, (ks % 4) * 5 + t))
    T5 = [0, 1, 2, 3, 4]

    o_flag(1)
    sa()
    P(f"buffer_load_dword v15, v{L4V}, s[20:23], s45 offen sc1\ns_waitcnt lgkmcnt(0)")
    lds_check(SYA, SYD, 0, 5)
    P(f"ds_read_b128 {v(HP,4)}, v5\nds_read_b128 {v(HP+4,4)}, v5 offset:1024\nds_read_b64 {v(HP+8,2)}, v6 offset:2048")
    P("s_waitcnt vmcnt(0) lgkmcnt(0)")
    poll_check(L4V, 15, "s45", 1)
    st()
    def sh_wo(lg):
        unpack(ACC, HP, 10)
    kloop(small(0), T5, None, None, True, {12: 3, 20: 5}, ph=1, rdy_at_end=True, shadow=sh_wo)
    st(); sf(8)
    P("s_waitcnt lgkmcnt(0)")
    lds_check(SYA, SYD, 0, 6)
    pack(HP, ACC, 10)
    tile_then_stats(HP, L.H_OFF, 1)
    st(); sf(8)
    P("L_c1:")
    P("s_lshr_b32 s43, s28, 2\ns_add_u32 s43, s43, 1\ns_sub_u32 s44, 0, s43\ns_bitcmp1_b32 s28, 1\ns_cselect_b32 s43, s44, s43")
    P("s_lshl_b32 s44, s29, 4\ns_add_u32 s44, s44, s43\nv_and_b32 v10, 15, v1\nv_add_u32 v10, s44, v10")
    P("v_ashrrev_i32 v12, 8, v10\nv_cmp_eq_u32 s[12:13], s25, v12\nv_cmp_gt_u32 s[14:15], 8, v12")
    P("v_lshrrev_b32 v11, 4, v10\nv_mul_u32_u24 v11, 20480, v11\nv_and_b32 v10, 15, v10\nv_lshl_add_u32 v11, v10, 4, v11\nv_and_b32 v10, 0x30, v1\nv_lshl_add_u32 v229, v10, 4, v11")
    P(f"""s_and_b32 s43, s29, 15
s_lshl_b32 s39, s25, 11
s_add_u32 s39, s39, {L.FHL_OFF}
s_sub_u32 s44, s33, 128
s_sub_u32 s45, s39, 1024
s_cmp_eq_u32 s43, 0
s_cselect_b32 s44, s45, s44
s_cselect_b32 s27, 5, 0
s_cmp_eq_u32 s29, 0
s_cselect_b32 s44, s33, s44
s_cselect_b32 s27, 0, s27
v_lshlrev_b32 v12, s27, v14
v_add_u32 v12, s44, v12
v_add_u32 v13, s33, v14
v_bfe_u32 v10, v1, 3, 2
v_cmp_eq_u32 vcc, 1, v10
s_add_u32 s44, s33, 128
s_add_u32 s45, s39, 2048
v_cndmask_b32 v13, v13, v12, vcc
s_cmp_eq_u32 s43, 15
s_cselect_b32 s44, s45, s44
s_cselect_b32 s27, 5, 0
s_cmp_eq_u32 s29, 127
s_cselect_b32 s44, s33, s44
s_cselect_b32 s27, 0, s27
v_lshlrev_b32 v12, s27, v14
v_add_u32 v12, s44, v12
v_cmp_eq_u32 vcc, 2, v10
s_and_b32 s44, s29, 1
s_lshl_b32 s44, s44, 3
s_add_u32 s44, s44, s28
s_lshl_b32 s44, s44, 7
s_add_u32 s39, s39, s44
v_cndmask_b32 v228, v13, v12, vcc""")
    P(f"""s_cmp_eq_u32 s43, 0
s_cselect_b32 s44, {L.TH_OFF - L.T_OFF}, 0
s_cmp_eq_u32 s29, 0
s_cselect_b32 s44, 0x40000000, s44
s_cmp_eq_u32 s43, 15
s_cselect_b32 s45, {L.TH_OFF - L.T_OFF}, 0
s_cmp_eq_u32 s29, 127
s_cselect_b32 s45, 0x40000000, s45
v_and_b32 v10, 15, v1
v_add_u32 v11, s44, v3
v_add_u32 v12, s45, v3
v_cmp_gt_u32 vcc, 1, v10
v_cndmask_b32 v224, v3, v11, vcc
v_cmp_lt_u32 vcc, 14, v10
v_cndmask_b32 v225, v3, v12, vcc
v_cmp_gt_u32 vcc, 2, v10
v_cndmask_b32 v226, v3, v11, vcc
v_cmp_lt_u32 vcc, 13, v10
v_cndmask_b32 v227, v3, v12, vcc""")
    if opt.get("NOHALO"):
        P("s_mov_b64 s[14:15], 0\nv_add_u32 v228, s33, v14\nv_mov_b32 v224, v3\nv_mov_b32 v225, v3\nv_mov_b32 v226, v3\nv_mov_b32 v227, v3")
    P("s_andn2_b64 s[14:15], s[14:15], s[12:13]\ns_waitcnt vmcnt(0)")
    sf(8)
    poll_check(14, 15, "s33", 1)
    st(); sf(8)
    def sh_w1(lg):
        for t in range(5): lg.op(f"ds_read_b128 {v(CS+4*t,4)}, v7 offset:{t*64}")
        unpack(ACC4, HP, 10)
    kloop(small(5), T5, L.H_OFF, lambda ks: 3, False, {12: 8, 20: 10}, stat=(2, ST1, 0), ph=2, rdy=10, shadow=sh_w1)
    st()
    stats_fin(ST1)
    P(f"v_mul_f32 v{ST}, v{ST1+1}, v{ST1+2}\nv_mov_b32 v{ST+1}, {f2u(EPS)}\nv_fma_f32 v{ST}, v{ST}, v{ST1+2}, v{ST+1}\nv_rsq_f32 v{ST}, v{ST}")
    P(f"s_sub_u32 s43, s41, s40\ns_sub_u32 s44, s42, s40\ns_add_u32 s43, s43, {L.T_OFF}\ns_add_u32 s44, s44, {L.T_OFF}")
    P(f"v_mul_f32 v{ST+2}, v{ST}, v{ST1+2}")
    gelu_consts(ST1, ST + 2)
    for grp in gelu_items(ACC, CS, 20, PK):
        for l in grp: P(l)
    vm = VM(P)
    tl = [f"buffer_store_dwordx4 {v(PK,4)}, v229, s[20:23], s43 offen", f"buffer_store_dwordx4 {v(PK+4,4)}, v229, s[20:23], s43 offen offset:1024", f"buffer_store_dwordx2 {v(PK+8,2)}, v229, s[20:23], s44 offen"]
    P("s_mov_b64 exec, s[12:13]")
    store2(vm, tl)
    P("s_cmp_lg_u64 s[14:15], 0\ns_cbranch_scc1 L_halo\nL_haloe:\ns_mov_b64 exec, -1")
    tails.append(f"L_halo:\ns_mov_b64 exec, s[14:15]\ns_add_u32 s43, s43, {L.TH_OFF - L.T_OFF}\ns_add_u32 s44, s44, {L.TH_OFF - L.T_OFF}\n" + "\n".join(l + " sc1" for l in tl) + "\ns_nop 1\ns_branch L_haloe")
    P(f"v_mul_f32 v{ST1}, v{ST1}, v{ST1+2}\nv_mov_b32 v{ST1+3}, v{ST1+2}\nv_mov_b32 v{ST1+1}, v{ST1}")
    for i in range(0, 20, 2):
        P(f"v_pk_fma_f32 {v(ACC+i,2)}, {v(ACC4+i,2)}, {v(ST1+2,2)}, {v(ST1,2)} neg_lo:[0,0,1] neg_hi:[0,0,1]")
    P("s_waitcnt vmcnt(0)")
    set_flag(vm, 3)
    P("s_add_u32 s44, s29, 1\ns_and_b32 s44, s44, 14\ns_cmp_eq_u32 s44, " + ("99" if opt.get("NOHALO") else "0") + "\ns_cbranch_scc1 L_hf\nL_hfe:")
    tails.append("L_hf:\ns_mov_b64 exec, 1\nbuffer_store_dword v4, v2, s[20:23], s39 offen sc1\ns_mov_b64 exec, -1\ns_branch L_hfe")
    st()
    def sh_w2(lg):
        P(f"""s_bfe_u32 s15, s29, 0x10002
s_xor_b32 s12, s29, 4
s_mul_i32 s12, s12, 20480
s_mul_i32 s44, s15, 5120
s_add_u32 s13, s10, 2560
s_sub_u32 s13, s13, s44
s_xor_b32 s8, s34, 512
s_andn2_b32 s33, s33, 512
v_bfe_u32 v10, v1, 3, 1
v_lshl_add_u32 v14, v10, 9, v14
s_lshl_b32 s45, s28, 10
s_lshl_b32 s38, s15, 12
s_mul_i32 s39, s15, 81920
s_lshl_b32 s26, s15, 13
s_add_u32 s26, s26, s45
s_add_u32 s26, s26, {L.V_OFF}
s_mul_i32 s14, s45, 20
s_lshl_b32 s27, s39, 1
s_add_u32 s27, s27, s14
s_cmp_ge_u32 s28, 4
s_mov_b32 s31, {L.K_OFF + 16384}
s_cmov_b32 s31, {L.V_OFF + 16384 - 4096}
s_cmp_eq_u32 s15, 0
s_cmov_b32 s31, {L.K_OFF}
s_mov_b32 s11, {L.V_OFF + 16384}
s_cmov_b32 s11, {L.K_OFF + 16384}
s_add_u32 s31, s31, s45
s_lshl_b32 s32, s15, 3
s_add_u32 s32, s32, s45
s_add_u32 s32, s32, {L.K_OFF + 8192}
s_lshl_b32 s44, s15, 6
s_add_u32 s44, s44, {CS3_LDS - CS1_LDS + 384}
v_add_u32 v251, s44, v7
s_lshl_b32 s44, s15, 9
s_add_u32 s44, s44, {CS3_LDS - CS1_LDS}
v_add_u32 v7, s44, v7""")
    P("buffer_load_dword v15, v228, s[20:23], 0 offen sc1\ns_waitcnt vmcnt(0)")
    poll_check(228, 15, "0", 3)
    st()
    kloop(small(10), T5, L.T_OFF, lambda ks: 224 + ks // 5, True, {12: 13, 20: 15}, ph=3, rdy=15, shadow=sh_w2)
    st()
    pack(PK, ACC, 10)
    tile_then_stats(PK, L.X1_OFF, 4)
    st()
    P("L_c3:")
    unpack(CS, PK, 10)
    for i in range(0, 20, 2): P(f"v_pk_add_f32 {v(ACC4+i,2)}, {v(ACC4+i,2)}, {v(CS+i,2)}")
    P("s_waitcnt vmcnt(0)")
    poll_check(14, 15, "s33", 4)
    st(); sf(6)
    AC3, AR3, ACC5 = 144, 200, 16
    RB = ["s40", "s12"]; QB = ["s10", "s13"]
    vm = VM(P); lg = LG(P)
    ids = {}
    LA = opt.get("LA3", 5)
    def aload(ks, rs=(0, 1)):
        for r in rs:
            if ks % 4 == 0: P(f"s_add_u32 s{4+r}, {RB[r]}, {L.X1_OFF + ks*1024}")
            ids[ks] = vm.op(f"buffer_load_dwordx4 {v(AR3+8*(ks%6)+4*r,4)}, v3, s[20:23], s{4+r} offen offset:{(ks%4)*1024} sc1")
    pol = {}
    def poll_issue(k): pol[k] = vm.op("buffer_load_dword v15, v14, s[20:23], s33 offen sc1")
    def poll_done(k): vm.wait(pol[k]); poll_check(14, 15, "s33", k)
    P(f"ds_read_b32 v{SYD}, v{SYA}")
    for ks in range(LA): aload(ks)
    P("s_add_u32 s44, s9, 1024\ns_mov_b64 exec, 0xffff")
    sst = store2(vm, ["buffer_store_dwordx2 v[36:37], v3, s[20:23], s44 offen"])
    P(f"s_mov_b64 exec, -1\nv_mov_b32 v{SYV}, 16\ns_waitcnt lgkmcnt(0)")
    R0 = opt.get("R0", 20)
    lds_check(SYA, SYD, 0, R0)
    items = [(ks, t) for ks in range(20) for t in range(7)]
    rr = []; ryy = [None]
    D3 = 4
    def rd3(n):
        sg = 15 + n // 20
        if n % 20 == 0 and n > 0:
            free_sig(lg)
            if sg >= R0: lg.wait(ryy[0]); lds_check(SYA, SYD, 0, sg + 1)
        if n % 20 == 14 and sg + 1 >= R0 and sg < 21: ryy[0] = rdy_read(lg)
        rr.append(rdw(lg, sg, n % 20))
        if n == 139: free_sig(lg)
    for n in range(D3): rd3(n)
    for n, (ks, t) in enumerate(items):
        if n + D3 < 140: rd3(n + D3)
        if t == 0: P(f"s_waitcnt vmcnt({vm.cnt(ids[ks])}) lgkmcnt({lg.cnt(rr[n][1])})")
        else: lg.wait(rr[n][1])
        for r in range(2):
            a = AC3 + 28*r + 4*t
            P(f"v_mfma_f32_16x16x32_bf16 {v(a,4)}, {v(rr[n][0],4)}, {v(AR3+8*(ks%6)+4*r,4)}, {'0' if ks == 0 else v(a,4)}")
            if r == 1: continue
            if n % 20 == 6: P(f"v_mov_b32 v{SYV}, {16 + n // 20}")
            if t in (0, 2) and ks + LA < 20: aload(ks + LA, (t // 2,))
            if t == 4:
                if ks == 2: vm.wait(sst); set_flag(vm, 5)
                if ks == 6: poll_issue(5)
                if ks == 9: poll_done(5)
                if ks == 17:
                    for i in range(2): lg.op(f"ds_read_b128 {v(CS+4*i,4)}, v7 offset:{i*64}")
                if ks == 19: set_flag(vm, 6)
            if ks == 9 and t in (5, 6):
                sl = vm.op(f"s_add_u32 s44, s46, 1024\ns_xor_b32 s44, s44, {8192*(t-5)}\nbuffer_load_dwordx4 {v(16+4*(t-5),4)}, v3, s[20:23], s44 offen sc1")
            if ks == 13 and t == 6:
                vm.wait(sl)
                keep = P.items; P.items = []
                for g in range(2): stats_fin(16 + 4*g); gelu_consts(16 + 4*g, 18 + 4*g, g)
                h = len(P.items) // 2
                fin = [x for pr_ in zip(P.items[:h], P.items[h:]) for x in pr_]; P.items = keep
            if ks >= 14:
                for _ in range(2):
                    if fin: P.items.append(fin.pop(0))
    assert not fin
    st(); sf(6)
    P("L_c4:")
    steps = [(i, e) for i in range(7) for e in range(4)]
    A4L = [AR3 + 8*i for i in range(6)] + [AC3 + 8*i for i in range(7)]
    ids4 = {}
    def a4load(k, rs=(0, 1)):
        i, e = steps[k]; base = A4L[k % len(A4L)]
        for r in rs:
            if i in (2, 3):
                P(f"s_add_u32 s{4+r}, {QB[r]}, s39\ns_add_u32 s{4+r}, s{4+r}, {((i-2)*8+e)*20480}")
                ids4[k] = vm.op(f"buffer_load_dwordx4 {v(base+4*r,4)}, v250, s[20:23], s{4+r} offen sc1")
                continue
            if e == 0:
                if i == 6: P(f"s_add_u32 s{4+r}, {RB[r]}, s11")
                else: P(f"s_add_u32 s{4+r}, {RB[r]}, s38\ns_add_u32 s{4+r}, s{4+r}, {(L.V_OFF + i*8192) if i < 2 else (L.K_OFF + (i-4)*8192)}")
            ids4[k] = vm.op(f"buffer_load_dwordx4 {v(base+4*r,4)}, v3, s[20:23], s{4+r} offen offset:{e*1024} sc1")
    nl = [0]
    def a4upto(k):
        while nl[0] < min(k, 28): a4load(nl[0]); nl[0] += 1
    gst = {}
    for j in range(4):
        n_ = 8 if j < 3 else 4
        cs = CS + 8*(j % 2)
        if j < 2:
            for i in range(2): lg.op(f"ds_read_b128 {v(CS+8*((j+1)%2)+4*i,4)}, v7 offset:{(2*j+2+i)*64}")
            P("s_waitcnt lgkmcnt(2)")
        elif j == 2:
            lg.op(f"ds_read_b128 {v(CS+8,4)}, v251"); P("s_waitcnt lgkmcnt(1)")
        else:
            ry = rdy_read(lg); P("s_waitcnt lgkmcnt(1)")
        pk = [PK + 4*r if j % 2 == 0 else 80 + 4*r for r in range(2)]
        if j == 2: poll_done(6)
        g0 = gelu_items(AC3 + 8*j, cs, n_, pk[0], 16, 0); g1 = gelu_items(AC3 + 28 + 8*j, cs, n_, pk[1], 24, 1)
        for k, (x, y) in enumerate(zip(g0, g1)):
            for l in x + y: P(l)
            if k == 0 and j == 1: poll_issue(6)
            if k == 4 and j == 2: poll_issue(7)
            if k == 4 and j == 3: poll_done(7); a4upto(3)
        if j in (1, 2): vm.wait(gst[j-1]); set_flag(vm, 6 + j)
        offs = ["s26", "s27", "s31", "s32"][j]; bases = QB if j == 1 else RB; va = 250 if j == 1 else 3
        P(f"s_add_u32 s43, {bases[0]}, {offs}\ns_add_u32 s44, {bases[1]}, {offs}")
        w = "x4" if j < 3 else "x2"; nn = 4 if j < 3 else 2
        gst[j] = store2(vm, [f"buffer_store_dword{w} {v(pk[r],nn)}, v{va}, s[20:23], s{43+r} offen" for r in range(2)])
        sf(6)
    lg.wait(ry); lds_check(SYA, SYD, 0, 23)
    st()
    items = [(k, t) for k in range(28) for t in range(5)]
    rr = []; ryy = [None]
    def rd(n):
        k, t = items[n]
        if n % 20 == 0 and n > 0: lg.wait(ryy[0]); lds_check(SYA, SYD, 0, 22 + k // 4 + 1)
        if n % 20 == 14 and n + 6 < 140: ryy[0] = rdy_read(lg)
        rr.append(rdw(lg, 22 + k // 4, (k % 4) * 5 + t))
    LA4 = opt.get("LA4", 4)
    a4upto(LA4)
    for n in range(D3): rd(n)
    for n, (k, t) in enumerate(items):
        if k == 26 and t == 0: P("s_cmp_lg_u32 s15, 0\ns_cbranch_scc1 L_w4e")
        if n + D3 < 140: rd(n + D3)
        if t == 0: P(f"s_waitcnt vmcnt({vm.cnt(ids4[k])}) lgkmcnt({lg.cnt(rr[n][1])})")
        else: lg.wait(rr[n][1])
        base = A4L[k % len(A4L)]
        for r in (1, 0):
            a = (ACC5 if r else ACC4) + 4*t
            P(f"v_mfma_f32_16x16x32_bf16 {v(a,4)}, {v(rr[n][0],4)}, {v(base+4*r,4)}, {'0' if (r and k == 0) else v(a,4)}")
            if r == 0: continue
            kk_ = k + LA4
            if t == 0 and kk_ == 8: poll_done(8)
            if t == 0 and kk_ == 16: poll_done(9)
            if t in (1, 3) and kk_ < 28: a4load(kk_, (t // 2,))
            if t == 4:
                if k == 0: poll_issue(8)
                if k == 1: P(f"v_mov_b32 v{SYV}, 23")
                if k == 2: vm.wait(gst[3]); set_flag(vm, 9); free_sig(lg)
                if k == 7: poll_issue(9)
                if k == 19: set_flag(vm, 10)
                if k == 24: poll_issue(10)
    P("L_w4e:\ns_waitcnt vmcnt(0) lgkmcnt(0)")
    st()
    poll_check(14, 15, "s33", 10)
    def ex_addr(r):
        P(f"s_add_u32 s4, {RB[r]}, s45\ns_add_u32 s5, s4, {L.K_OFF}\ns_add_u32 s4, s4, {L.V_OFF}\ns_add_u32 s43, s4, 8192\ns_add_u32 s44, {QB[r]}, s14\ns_add_u32 s38, s44, {8*20480}")
        return [(3, "s4"), (3, "s43"), (250, "s44"), (250, "s38"), (3, "s5")]
    vm = VM(P)
    store2(vm, [f"buffer_store_dwordx4 {v(ACC5+4*e,4)}, v{va}, s[20:23], {so} offen" for e, (va, so) in enumerate(ex_addr(1))])
    ea = ex_addr(0)
    P("s_waitcnt vmcnt(0)")
    set_flag(vm, 11)
    P("buffer_load_dword v15, v2, s[20:23], s8 offen sc1\ns_waitcnt vmcnt(0)")
    poll_check(2, 15, "s8", 11)
    for e, (va, so) in enumerate(ea): P(f"buffer_load_dwordx4 {v(ACC5+4*e,4)}, v{va}, s[20:23], {so} offen sc1")
    st()
    P(f"s_mul_i32 s46, s30, 3072\ns_add_u32 s46, s46, {XR_LDS}\nv_add_u32 v10, s46, v3")
    P("s_lshl_b32 s43, s35, 6\ns_add_u32 s43, s43, s40\ns_lshl_b32 s44, s36, 6\ns_add_u32 s44, s44, s40\ns_lshl_b32 s45, s37, 3\ns_add_u32 s44, s44, s45")
    for e in range(5):
        P(f"s_waitcnt vmcnt({4-e})\nv_pk_add_f32 {v(ACC4+4*e,2)}, {v(ACC4+4*e,2)}, {v(ACC5+4*e,2)}\nv_pk_add_f32 {v(ACC4+4*e+2,2)}, {v(ACC4+4*e+2,2)}, {v(ACC5+4*e+2,2)}")
    pack(PK, ACC4, 10)
    P(f"ds_write_b128 v5, {v(PK,4)}\nds_write_b128 v5, {v(PK+4,4)} offset:1024\nds_write_b64 v5, {v(PK+8,2)} offset:2048")
    P(f"ds_read_b128 {v(CS,4)}, v10\nds_read_b128 {v(CS+4,4)}, v10 offset:1024\nds_read_b64 {v(CS+8,2)}, v10 offset:2048")
    P(f"s_waitcnt lgkmcnt(2)\nbuffer_store_dwordx4 {v(CS,4)}, v{RMV}, s[16:19], s43 offen{OSF}\ns_waitcnt lgkmcnt(1)\nbuffer_store_dwordx4 {v(CS+4,4)}, v{RMV}, s[16:19], s43 offen offset:64{OSF}\ns_waitcnt lgkmcnt(0)\nbuffer_store_dwordx2 {v(CS+8,2)}, v{RMV}, s[16:19], s44 offen{OSF}")
    if DBG:
        P("s_waitcnt vmcnt(0)"); st0()
        P(f"s_cmp_lg_u32 s2, {DBG}\ns_cbranch_scc1 L_end\ns_cmp_lg_u32 s30, 0\ns_cbranch_scc1 L_end\ns_load_dwordx2 s[4:5], s[0:1], 72\ns_waitcnt lgkmcnt(0)")
        P(f"s_mov_b32 s12, s4\ns_and_b32 s13, s5, 0xffff\ns_mov_b32 s14, 256\ns_mov_b32 s15, 0x20000\nv_mov_b32 v39, {L.DUMMY_OFF + 2048}\nbuffer_load_dwordx4 v[52:55], v39, s[20:23], 0 offen\nbuffer_load_dwordx2 v[56:57], v39, s[20:23], 0 offen offset:16\ns_waitcnt vmcnt(0)\nv_mov_b32 v39, 0")
        regs = [80, 82, 84, 90, 48, 54, 60, 66, 70, 48 + 2*(st0.i-1)]
        for i, r in enumerate(regs): P(f"v_mov_b32 v{40+i}, s{r}")
        if "XA" in opt:
            vr = lambda k: 52 + k if k < 6 else 40 + k - 6
            P(f"v_readfirstlane_b32 s60, v{vr(opt['XA'])}\nv_readfirstlane_b32 s61, v{vr(opt['XB'])}\nv_readfirstlane_b32 s62, v49\ns_sub_u32 s60, s61, s60\ns_lshl_b32 s60, s60, 2\ns_min_u32 s60, s60, 100000")
            P("L_xspin:\ns_memrealtime s[64:65]\ns_waitcnt lgkmcnt(0)\ns_sub_u32 s64, s64, s62\ns_cmp_lt_u32 s64, s60\ns_cbranch_scc1 L_xspin")
        P("s_mov_b64 exec, 1\nbuffer_store_dwordx4 v[52:55], v39, s[12:15], 0 offen\nbuffer_store_dwordx2 v[56:57], v39, s[12:15], 0 offen offset:16\nbuffer_store_dwordx2 v[40:41], v39, s[12:15], 0 offen offset:24\nbuffer_store_dwordx4 v[42:45], v39, s[12:15], 0 offen offset:32\nbuffer_store_dwordx4 v[46:49], v39, s[12:15], 0 offen offset:48")
    if STAMP:
        P("s_waitcnt vmcnt(0)"); st0()
        if FOCUS != 21: stamp_dump([80 + 2*i for i in range(sa.i)] + [48 + 2*i for i in range(st0.i)])
    P("s_endpgm")

    P("L_loader:")
    P(IDS)
    P(f"""v_lshlrev_b32 v3, 4, v1
s_sub_u32 s33, s30, 4
s_mul_i32 s32, s28, {L.SLICE_B}
s_add_u32 s32, s32, {L.WS_OFF}
s_mul_i32 s39, s33, 5120
s_add_u32 s38, s32, s39
s_mul_i32 s10, s26, 10240
s_lshr_b32 s43, s33, 1
s_add_u32 s43, s43, s25
s_max_u32 s43, s43, 1
s_sub_u32 s43, s43, 1
s_lshl_b32 s8, s43, 1
s_mul_i32 s43, s43, 327680
s_add_u32 s10, s10, s43
s_and_b32 s43, s33, 1
s_add_u32 s8, s8, s43
s_lshl_b32 s8, s8, 4
s_mul_i32 s9, s26, 20
s_lshr_b32 s16, s9, 7
s_add_u32 s9, s9, 19
s_lshr_b32 s9, s9, 7
s_sub_u32 s9, s9, s16
s_lshl_b32 s9, s9, 7
s_add_u32 s8, s8, s16
s_lshl_b32 s8, s8, 7
s_add_u32 s8, s8, {L.FQ_OFF + 1280}
s_mul_i32 s43, s43, 5120
s_add_u32 s10, s10, s43
s_add_u32 s11, s39, {KV_LDS}
v_and_b32 v4, 3, v1
v_lshlrev_b32 v4, 2, v4
v_add_u32 v4, {SY_LDS}, v4
s_lshl_b32 s43, s33, 2
s_add_u32 s43, s43, {SY_LDS}
v_mov_b32 v5, s43
v_add_u32 v12, s39, v3
v_add_u32 v13, 0x10000, v12
v_add_u32 v14, 0x20000, v12
v_lshrrev_b32 v15, 2, v1
v_mul_u32_u24 v15, 1280, v15
v_and_b32 v8, 3, v1
v_lshl_add_u32 v15, v8, 4, v15
s_mul_i32 s40, s28, 5
s_lshr_b32 s40, s40, 2
s_lshl_b32 s41, s40, 9
s_add_u32 s41, s41, {L.FP_OFF + 40*128}
s_lshl_b32 s42, s40, 10
s_add_u32 s42, s42, {L.FP_OFF + 201*128}
s_mul_i32 s44, s28, 7
s_cmp_eq_u32 s28, 7
s_subb_u32 s44, s44, 0
s_lshr_b32 s40, s44, 1
s_min_u32 s40, s40, 22
s_mul_i32 s40, s40, 384
s_add_u32 s40, s40, {L.FP_OFF + 120*128}
s_add_u32 s31, s25, 1
s_min_u32 s31, s31, 7
s_lshl_b32 s31, s31, 7
s_add_u32 s31, s31, {L.GL_OFF}""")
    srd(P, 12, 4, SZ)
    def ctouch(l0, roff):
        if not opt.get("CT", 1): return
        e, pc = lab("ct"), lab("pc")
        P(f"""s_cmp_lg_u32 s33, 0
s_cbranch_scc1 {e}
s_sub_u32 s43, s26, {roff}
s_and_b32 s43, s43, 31
s_lshl_b32 s43, s43, 12
s_cmp_ge_u32 s43, L_code_end-{l0}
s_cbranch_scc1 {e}
s_getpc_b64 s[66:67]
{pc}:
s_sub_u32 s66, s66, {pc}-{l0}
s_subb_u32 s67, s67, 0
v_lshl_add_u32 v32, v1, 6, s43
v_min_u32 v32, L_code_end-{l0}-4, v32
v_mov_b32 v33, s67
v_add_co_u32 v32, vcc, s66, v32
v_addc_co_u32 v33, vcc, 0, v33, vcc
global_load_dword v34, v[32:33], off
{e}:""")
    ctouch("L_k2", 0)
    sa.i = 3; sa()
    P("s_barrier")
    sa()
    vm = VM(P); last = {}
    def rdy(val): P(f"v_mov_b32 v10, {val}\nds_write_b32 v5, v10")
    for j, (go, lo) in enumerate(((L.K_OFF, 0), (L.V_OFF, 20480))):
        P(f"s_add_u32 m0, s11, {lo}\ns_add_u32 s43, s10, {go}")
        for i in range(4): vm.op(f"buffer_load_dwordx4 v3, s[20:23], s43 offen offset:{i*1024} sc1 lds")
        last["kv"[j]] = vm.op(f"s_add_u32 m0, s11, {lo+4096}\ns_add_u32 s43, s10, {go+4096}\nbuffer_load_dwordx4 v3, s[20:23], s43 offen sc1 lds")
        if j == 0 and (VD or opt.get("VLATE", 1)): vm.wait(last["k"]); rdy(1)
        if j == 0 and VD: spoll("s8", 0, "s9", 2, 2, 48, va=6, scalar=False, slp=2)
    if not (VD or opt.get("VLATE", 1)): vm.wait(last["k"]); rdy(1)
    spoll("s41", 0, 128, 8, 1, 48, va=6, part=1)
    vm.wait(last["v"]); rdy(2)
    sa()
    NR = 25 - N1
    P(f"s_mul_i32 s45, s33, {NR*1024}\ns_add_u32 s45, s45, {4*N1*1024}\ns_add_u32 s46, s45, s32")
    for i in range(NR):
        if i % 4 == 0: P(f"s_add_u32 m0, s45, {i*1024}\ns_add_u32 s43, s46, {i*1024}")
        vm.op(f"buffer_load_dwordx4 v3, s[20:23], s43 offen offset:{(i%4)*1024} sc1 lds")
    last["wo"] = vm.op(f"""s_mul_i32 s46, s29, 20480
s_lshl_b32 s43, s35, 6
s_add_u32 s43, s43, s46
s_mul_i32 s45, s33, 3072
s_add_u32 m0, s45, {XR_LDS}
s_nop 0
buffer_load_dwordx4 v15, s[12:15], s43 offen lds
s_add_u32 m0, s45, {XR_LDS+1024}
s_add_u32 s43, s43, 64
buffer_load_dwordx4 v15, s[12:15], s43 offen lds
s_lshl_b32 s43, s36, 6
s_add_u32 s43, s43, s46
s_add_u32 m0, s45, {XR_LDS+2048}
s_nop 0
buffer_load_dwordx4 v15, s[12:15], s43 offen lds""", 3)
    spoll("s41", 0, 128, 8, 1, 48, va=6, part=2)
    spoll("s41", 5120, 128, 8, 1, 48, va=6)
    spoll("s40", 0, 128, 15, 1, 48, va=6)
    P(f"""s_cmp_ge_u32 s30, 6
s_cbranch_scc1 L_nocs
s_lshl_b32 s44, s44, 7
s_add_u32 s44, s44, {L.CS3_OFF}
s_mov_b32 s45, 8192
s_mov_b32 s46, {CS3_LDS}
s_cmp_eq_u32 s30, 5
s_cbranch_scc1 L_cs1
s_mul_i32 s44, s28, 320
s_add_u32 s44, s44, {L.CS1_OFF}
s_mov_b32 s45, 2560
s_mov_b32 s46, {CS1_LDS}
L_cs1:
s_lshl_b32 s43, s33, 30
v_add_u32 v9, s43, v3""")
    for i in range(4): P(f"buffer_load_dwordx4 {v(16+4*i,4)}, v{9 if i == 3 else 3}, s[20:23], s44 offen sc1\ns_add_u32 s44, s44, s45")
    P("L_nocs:")
    NSTASH = opt.get("NSTASH", 11); BD = opt.get("BD", 0); BS = opt.get("BS", 0)
    sreg = {}; freeb = list(range(11))
    P(f"s_and_b32 s43, s27, 1\ns_mul_i32 s7, s43, 20480\ns_mul_i32 s6, s7, 7\ns_add_u32 s6, s6, s38\ns_add_u32 s7, s7, s38")
    def src(l):
        if l < 15: return "s38", l * 20480
        if l < 22: return "s6", l * 20480
        return "s7", (29 + 2*(l - 22)) * 20480
    def stash(sg, bs=BS):
        b = freeb.pop(0); sreg[sg] = b
        for i in range(5):
            if i % 4 == 0: P(f"s_add_u32 s43, {src(sg)[0]}, {src(sg)[1] + i*1024}")
            if bs: P(f"s_waitcnt vmcnt({bs-1})")
            last[sg] = vm.op(f"buffer_load_dwordx4 {v(36+20*b+4*i,4)}, v3, s[20:23], s43 offen offset:{(i%4)*1024} sc1")
    def issue(sg, thin=False):
        slot = (sg % RING) * 20480
        if sg >= opt.get("SKIPW", 99): last[sg] = None; return
        if sg in sreg:
            b = sreg.pop(sg); vm.wait(last[sg])
            for i in range(5):
                o = slot + i*1024
                hi = (slot + 4*5120 - 1) >> 16; lo_ = slot >> 16
                k = o >> 16
                P(f"ds_write_b128 v{12+k}, {v(36+20*b+4*i,4)} offset:{o & 0xffff}")
            freeb.append(b); last[sg] = None
            return
        for i in range(5):
            if i % 4 == 0: P(f"s_add_u32 m0, s39, {slot + i*1024}\ns_add_u32 s43, {src(sg)[0]}, {src(sg)[1] + i*1024}")
            if thin: P(f"s_waitcnt vmcnt({THIN})")
            elif BD: P(f"s_waitcnt vmcnt({BD-1})")
            last[sg] = vm.op(f"buffer_load_dwordx4 v3, s[20:23], s43 offen offset:{(i%4)*1024} sc1 lds")
    pubd = [5]
    def publish(upto):
        if upto <= pubd[0]: return
        w = [last[k] for k in range(pubd[0], upto) if last[k] is not None]
        if w: vm.wait(max(w))
        rdy(upto); pubd[0] = upto
    def wait_free(n):
        P("ds_read_b32 v11, v4 offset:16\ns_waitcnt lgkmcnt(0)"); lds_check(4, 11, 16, n, f's_sleep {opt.get("SLL", 1)}\n')
    for sg in range(5, 5 + NSTASH):
        stash(sg, opt.get("BSL", 6) if sg >= opt.get("BSF", 99) else BS)
        if sg == 7:
            vm.wait(last[5])
            P("s_cmp_ge_u32 s30, 6\ns_cbranch_scc1 L_nocs2\nv_add_u32 v8, s46, v3")
            for r in range(4): P(f"v_add_f32 v{16+r}, v{16+r}, v{20+r}\nv_add_f32 v{24+r}, v{24+r}, v{28+r}")
            for r in range(4): P(f"v_add_f32 v{16+r}, v{16+r}, v{24+r}")
            P("ds_write_b128 v8, v[16:19]\nL_nocs2:")
            rdy(5)
            sa()
    sa()
    P(f"s_or_b32 s43, s26, s33\ns_cmp_lg_u32 s43, 0\ns_cbranch_scc1 L_gle\ns_lshl_b32 s44, s25, 10\ns_add_u32 s44, s44, {L.FO_OFF}")
    spoll("s44", 0, 4, 32, 1, 48, va=6, scalar=False, slp=2)
    P(f"s_lshl_b32 s44, s25, 7\ns_add_u32 s44, s44, {L.GL_OFF}\nv_mov_b32 v6, 0\nv_mov_b32 v7, 1\ns_mov_b64 exec, 1\nbuffer_store_dword v7, v6, s[20:23], s44 offen sc1\ns_mov_b64 exec, -1\nL_gle:")
    spoll("s42", 0, 128, 16, 1, 48, va=6)
    sl = Stamper(48, 16)
    nst = 5 + NSTASH
    wait_free(1)
    issue(5, True); issue(6, True)
    spoll("s31", 0, 128, 1, 1, 64, va=6)
    rdy(6)
    RS = [opt.get("RS1", 1), opt.get("RS2", 2), opt.get("RS3", 0)]
    NL = 29
    cand = list(range(nst, NL))
    done_ = set(range(7))
    def restash(n, bs=BS):
        P("s_waitcnt lgkmcnt(0)")
        while n > 0 and freeb and cand:
            sg = cand.pop(0)
            if sg in done_: continue
            stash(sg, bs); n -= 1
    def fill(sgs, thin=False):
        for sg in sorted(sgs, key=lambda x: x in sreg):
            issue(sg, thin); done_.add(sg)
    for ph in range(3):
        b = 5 * ph
        wait_free(b + 3)
        if ph == 0: ctouch("L_c1", 12)
        if ph == 2: ctouch("L_c3", 22)
        restash(RS[ph])
        fill([sg for sg in range(b + 7, b + 10) if sg < R0])
        publish(min(R0, b + 10))
        wait_free(b + 5)
        fill([sg for sg in (b + 10, b + 11) if sg < R0], True)
    publish(R0)
    sl()
    BD = opt.get("BD3", 6)
    for sg in range(R0, NL):
        if sg == opt.get("PZ", 26): publish(sg); wait_free(23)
        wait_free(max(16, sg - RING + 1))
        issue(sg)
        publish(sg)
        if sg in (21, 23, 25, 27): sl()
    publish(NL)
    if opt.get("WBL", 0) == 1:
        P("s_cmp_lg_u32 s30, 4\ns_cbranch_scc1 L_nowb\ns_cmp_lg_u32 s26, 0\ns_cbranch_scc1 L_nowb\nbuffer_wbl2 sc1\ns_waitcnt vmcnt(0)\nL_nowb:")
    if STAMP:
        sl()
        if FOCUS != 21: stamp_dump([80 + 2*i for i in range(sa.i)] + [48 + 2*i for i in range(sl.i)])
    P("L_end:\ns_endpgm")
    for t in tails: P(t)
    P("L_code_end:")
    return (KN, 256, 512, max(LDS_TOTAL, STAT + 2048 + 128), 256)
```
